```python
import torch

def _softmax(x, axis=-1):
    return torch.softmax(x, dim=axis)
def _gelu(x):
    return torch.nn.functional.gelu(x, approximate="tanh")
def _silu(x):
    return torch.nn.functional.silu(x)
def _sigmoid(x):
    return torch.sigmoid(x)
def _layernorm(x, axis=-1, eps=1e-5):
    m = x.mean(dim=axis, keepdim=True)
    v = x.var(dim=axis, keepdim=True, unbiased=False)
    return (x - m) / torch.sqrt(v + eps)
def _scatter_add(tgt, idx, src, axis=0):
    return tgt.clone().index_add_(axis, idx, src)
def _segment_sum(src, seg, n):
    out = torch.zeros((n,) + src.shape[1:], dtype=src.dtype)
    return out.index_add_(0, seg, src)
def _pad(x, pw):
    flat = tuple(v for pair in reversed(pw) for v in pair)
    return torch.nn.functional.pad(x, flat)

kernel_name = 'sequential_preLN__grouped_kv_mqa__dense_activation_squared_relu__prompt'

def setup_inputs():

    _w = (lambda a: (lambda t: t.to(torch.bfloat16) if t.is_floating_point() else t)(torch.as_tensor(a)))
    def _A_setup():
        B, S, D, H = 1, 2048, 512, 32
        Dh = D // H
        return {
            "x": _w((lambda *s: torch.randn(*s, dtype=torch.bfloat16) * 0.05)(B, S, D)),
            "wq": _w((lambda *s: torch.randn(*s, dtype=torch.bfloat16) * 0.05)(D, H * Dh)),
            "wk": _w((lambda *s: torch.randn(*s, dtype=torch.bfloat16) * 0.05)(D, Dh)),
            "wv": _w((lambda *s: torch.randn(*s, dtype=torch.bfloat16) * 0.05)(D, Dh)),
            "wo": _w((lambda *s: torch.randn(*s, dtype=torch.bfloat16) * 0.05)(H * Dh, D)),
        }
    _A_in = _A_setup()

    def _B_setup():
        B, S, D, F = 1, 2048, 512, 1376
        return {
            "x": _w((lambda *s: torch.randn(*s, dtype=torch.bfloat16) * 0.05)(B, S, D)),
            "w1": _w((lambda *s: torch.randn(*s, dtype=torch.bfloat16) * 0.05)(D, F)),
            "b1": _w((lambda *s: torch.randn(*s, dtype=torch.bfloat16) * 0.4)(F)),
            "w2": _w((lambda *s: torch.randn(*s, dtype=torch.bfloat16) * 0.05)(F, D)),
            "b2": _w((lambda *s: torch.randn(*s, dtype=torch.bfloat16) * 1.6)(D)),
        }
    _B_in = _B_setup()

    return {
        "A_x": _A_in["x"],
        "A_wq": _A_in["wq"],
        "A_wk": _A_in["wk"],
        "A_wv": _A_in["wv"],
        "A_wo": _A_in["wo"],
        "B_x": _B_in["x"],
        "B_w1": _B_in["w1"],
        "B_b1": _B_in["b1"],
        "B_w2": _B_in["w2"],
        "B_b2": _B_in["b2"],
    }

def reference(A_x, A_wq, A_wk, A_wv, A_wo, B_x, B_w1, B_b1, B_w2, B_b2):
    def _A_ref(x, wq, wk, wv, wo):
        B, S, D = x.shape
        H = 32
        Dh = D // H
        q = (lambda x, *d: x.permute(*d))((x @ wq).reshape(B, S, H, Dh), 0, 2, 1, 3)
        k = x @ wk
        v = x @ wv
        scores = torch.einsum("bhqd,bkd->bhqk", q, k) * (Dh ** -0.5)
        p = _softmax(scores, axis=-1)
        o = torch.einsum("bhqk,bkd->bhqd", p, v)
        return (lambda x, *d: x.permute(*d))(o, 0, 2, 1, 3).reshape(B, S, H * Dh) @ wo

    def _B_ref(x, w1, b1, w2, b2):
        h = torch.einsum("bsd,df->bsf", x, w1) + b1
        zero = torch.zeros_like(h)
        r = torch.where(h > zero, h, zero)
        h = r * r
        out = torch.einsum("bsf,fd->bsd", h, w2) + b2
        return out

    x = A_x
    h = x + _A_ref(_layernorm(x, axis=-1), A_wq, A_wk, A_wv, A_wo)
    h2 = h + _B_ref(_layernorm(h, axis=-1), B_w1, B_b1, B_w2, B_b2)
    return h2
```

```python
class Asm:
    def __init__(self):
        self.lines = []
    def __call__(self, s):
        for l in s.split("\n"):
            l = l.strip()
            if l:
                if l.endswith(":"):
                    self.lines.append(l)
                else:
                    self.lines.append("    " + l)
    def c(self, s):
        self.lines.append("    ; " + s)
    def text(self):
        return "\n".join(self.lines) + "\n"

def v(a, n=1):
    return f"v{a}" if n == 1 else f"v[{a}:{a+n-1}]"
def s(a, n=1):
    return f"s{a}" if n == 1 else f"s[{a}:{a+n-1}]"

class Regs:
    def __init__(self, start, limit):
        self.cur = start; self.limit = limit; self.names = {}
    def alloc(self, name, n=1, align=None):
        if align is None:
            align = 1 if n == 1 else (2 if n in (2, 3) else 4)
        self.cur = (self.cur + align - 1) // align * align
        r = self.cur
        self.cur += n
        assert self.cur <= self.limit, f"out of registers at {name}: {self.cur}"
        self.names[name] = (r, n)
        return r

def srd(a, d, lo, hi, off, nbytes):
    if off:
        a(f"s_add_u32 s{d}, s{lo}, {hex(off)}")
        a(f"s_addc_u32 s{d+1}, s{hi}, 0")
    else:
        a(f"s_mov_b32 s{d}, s{lo}")
        a(f"s_mov_b32 s{d+1}, s{hi}")
    a(f"s_mov_b32 s{d+2}, {hex(nbytes)}")
    a(f"s_mov_b32 s{d+3}, 0x20000")

def kernel_header(a, name):
    a.lines.append(f".globl {name}")
    a.lines.append(".p2align 8")
    a.lines.append(f".type {name},@function")
    a.lines.append(f"{name}:")

def kernel_desc(name, vgpr, sgpr=96):
    vg = (vgpr + 7) // 8 * 8
    return f""".p2align 6
.amdhsa_kernel {name}
  .amdhsa_next_free_vgpr {vg}
  .amdhsa_next_free_sgpr {sgpr}
  .amdhsa_accum_offset {vg}
  .amdhsa_group_segment_fixed_size 0
  .amdhsa_kernarg_size 104
  .amdhsa_user_sgpr_count 2
  .amdhsa_user_sgpr_kernarg_segment_ptr 1
  .amdhsa_system_sgpr_workgroup_id_x 1
.end_amdhsa_kernel
"""
```

```python
WS_Q  = 0x000000
WS_K  = 0x200000
WS_V  = 0x210000
WS_KM = 0x220000
WS_H  = 0x300000
WS_HN = 0x500000
WS_G  = 0x700000
G_BYTES = 64 * 86 * 1024
QSCALE = 0.25 * 1.4426950408889634
import struct
def f32bits(x):
    return struct.unpack("<I", struct.pack("<f", x))[0]
```

```python
from asmlib import *
from common import *

XBASE = 0
WBASE = 65536
KVBASE = 131072
STBASE = 147456
K1_LDS = STBASE + 4096

def gen_k1(a):
    name = "qkv_kernel"
    kernel_header(a, name)
    R = Regs(1, 256)
    vt = [R.alloc(f"t{i}") for i in range(8)]
    vXoff = [R.alloc(f"xoff{e}") for e in range(4)]
    vWoff = [R.alloc(f"woff{e}") for e in range(2)]
    vKoff = R.alloc("koff")
    vXa = [R.alloc(f"xa{i}") for i in range(8)]
    vWa = [R.alloc(f"wa{i}") for i in range(4)]
    vX16a = R.alloc("x16a"); vKWa = R.alloc("kwa")
    vsx = [R.alloc(f"sx{i}") for i in range(2)]
    vsxx = [R.alloc(f"sxx{i}") for i in range(2)]
    vcs = [R.alloc(f"cs{i}") for i in range(2)]
    ones = R.alloc("ones", 4)
    NS = 4
    Xf = [R.alloc(f"xf{i}", 4) for i in range(NS)]
    Wf = [R.alloc(f"wf{i}", 4) for i in range(NS)]
    X16 = R.alloc("x16", 4); KW = R.alloc("kw", 4)
    Dk = R.alloc("dk", 4); Dc = R.alloc("dc", 4)
    acc = R.alloc("acc", 16, 16)
    csr = R.alloc("csr", 16, 4)
    pk = R.alloc("pk", 8, 4)
    st = R.alloc("st", 8, 4)
    lane = 0
    sW, sRB, sCB, sWR, sWC, sM = 20, 21, 22, 23, 44, 45
    sT0, sT1, sXm, sWm, sKm, sSo = 46, 47, 48, 49, 50, 51
    SX, SWQ, SKW, SQ, SKV = 24, 28, 32, 36, 40
    a(f"""
    s_cmp_ge_u32 s2, 256
    s_cbranch_scc1 K1_END
    s_load_dwordx8 s[8:15], s[0:1], 0
    s_load_dwordx2 s[16:17], s[0:1], 96
    v_lshrrev_b32 v{vt[0]}, 6, v0
    v_lshlrev_b32 v{vt[1]}, 4, v0
    v_readfirstlane_b32 s{sW}, v{vt[0]}
    v_and_b32 v0, 63, v0
    s_and_b32 s{sT0}, s2, 7
    s_lshr_b32 s{sT1}, s2, 3
    s_lshl_b32 s{sRB}, s{sT0}, 2
    s_and_b32 s{sT0}, s{sT1}, 3
    s_add_u32 s{sRB}, s{sRB}, s{sT0}
    s_lshr_b32 s{sCB}, s{sT1}, 2
    s_and_b32 s{sWR}, s{sW}, 1
    s_lshr_b32 s{sWC}, s{sW}, 1
    s_lshl_b32 s{sM}, s{sWR}, 1
    s_or_b32 s{sM}, s{sM}, s{sWC}
    """)
    a.c("zero the stats area (each thread 16 bytes)")
    a(f"""
    v_mov_b32 v{Xf[0]}, 0
    v_mov_b32 v{Xf[0]+1}, 0
    v_mov_b32 v{Xf[0]+2}, 0
    v_mov_b32 v{Xf[0]+3}, 0
    v_add_u32 v{vt[1]}, {STBASE}, v{vt[1]}
    ds_write_b128 v{vt[1]}, {v(Xf[0],4)}
    """)
    a.c("DMA source offsets")
    a(f"""
    v_lshrrev_b32 v{vt[2]}, 4, v0
    v_and_b32 v{vt[3]}, 15, v0
    s_lshl_b32 s{sT0}, s{sW}, 14
    """)
    for e in range(4):
        a(f"""
        v_add_u32 v{vt[4]}, {4*e}, v{vt[2]}
        v_xor_b32 v{vt[5]}, v{vt[3]}, v{vt[4]}
        v_lshlrev_b32 v{vt[5]}, 4, v{vt[5]}
        v_lshl_add_u32 v{vt[5]}, v{vt[4]}, 10, v{vt[5]}
        v_add_u32 v{vXoff[e]}, s{sT0}, v{vt[5]}
        """)
    a(f"""
    v_lshrrev_b32 v{vt[4]}, 2, v0
    v_and_b32 v{vt[5]}, 3, v0
    v_lshlrev_b32 v{vt[5]}, 4, v{vt[5]}
    v_lshl_add_u32 v{vt[5]}, v{vt[4]}, 10, v{vt[5]}
    s_lshl_b32 s{sT0}, s{sCB}, 7
    s_lshl_b32 s{sT1}, s{sW}, 15
    s_add_u32 s{sT0}, s{sT0}, s{sT1}
    v_add_u32 v{vWoff[0]}, s{sT0}, v{vt[5]}
    v_add_u32 v{vWoff[1]}, 0x4000, v{vWoff[0]}
    """)
    a(f"""
    v_lshrrev_b32 v{vt[4]}, 1, v0
    v_and_b32 v{vt[5]}, 0x13, v{vt[4]}
    v_and_b32 v{vt[6]}, 4, v{vt[4]}
    v_lshl_or_b32 v{vt[5]}, v{vt[6]}, 1, v{vt[5]}
    v_and_b32 v{vt[6]}, 8, v{vt[4]}
    v_lshrrev_b32 v{vt[6]}, 1, v{vt[6]}
    v_or_b32 v{vt[5]}, v{vt[5]}, v{vt[6]}
    v_lshlrev_b32 v{vt[5]}, 5, v{vt[5]}
    v_and_b32 v{vt[6]}, 1, v0
    v_lshl_add_u32 v{vt[5]}, v{vt[6]}, 4, v{vt[5]}
    s_lshl_b32 s{sT0}, s{sW}, 10
    v_add_u32 v{vKoff}, s{sT0}, v{vt[5]}
    s_lshl_b32 s{sXm}, s{sW}, 12
    s_lshl_b32 s{sWm}, s{sW}, 11
    s_add_u32 s{sWm}, s{sWm}, {WBASE}
    s_add_u32 s{sKm}, s{sT0}, {KVBASE}
    s_waitcnt lgkmcnt(0)
    """)
    a.c("SRDs")
    a(f"""
    s_lshl_b32 s{sT0}, s{sRB}, 16
    s_add_u32 s{SX}, s8, s{sT0}
    s_addc_u32 s{SX+1}, s9, 0
    s_mov_b32 s{SX+2}, 0x10000
    s_mov_b32 s{SX+3}, 0x20000
    """)
    srd(a, SWQ, 10, 11, 0, 524288)
    a(f"""
    s_bitcmp1_b32 s{sCB}, 0
    s_cselect_b32 s{SKW}, s14, s12
    s_cselect_b32 s{SKW+1}, s15, s13
    s_mov_b32 s{SKW+2}, 0x4000
    s_mov_b32 s{SKW+3}, 0x20000
    """)
    for c in range(4):
        for e in range(4):
            a(f"s_add_u32 m0, s{sXm}, {XBASE + c*16384 + e*1024 - c*256}")
            a("s_nop 0")
            a(f"buffer_load_dwordx4 v{vXoff[e]}, {s(SX,4)}, 0 offen offset:{c*256} lds")
        a(f"s_mov_b32 s{sSo}, {c*131072}")
        for kb in range(2):
            for ct in range(2):
                a(f"s_add_u32 m0, s{sWm}, {(ct*32 + c*8 + kb)*1024 - ct*64}")
                a("s_nop 0")
                a(f"buffer_load_dwordx4 v{vWoff[kb]}, {s(SWQ,4)}, s{sSo} offen offset:{ct*64} lds")
        a(f"s_mov_b32 s{sSo}, {c*4096}")
        a(f"s_add_u32 m0, s{sKm}, {c*4096}")
        a("s_nop 0")
        a(f"buffer_load_dwordx4 v{vKoff}, {s(SKW,4)}, s{sSo} offen lds")
    srd(a, SQ, 16, 17, WS_Q, 0x200000)
    srd(a, SKV, 16, 17, WS_K, 0x21000)
    a.c("LDS read addresses")
    a(f"""
    v_and_b32 v{vt[0]}, 31, v0
    v_lshrrev_b32 v{vt[1]}, 5, v0
    s_lshl_b32 s{sT0}, s{sWR}, 13
    v_lshlrev_b32 v{vt[2]}, 8, v{vt[0]}
    v_add_u32 v{vt[2]}, s{sT0}, v{vt[2]}
    v_and_b32 v{vt[3]}, 15, v0
    v_xor_b32 v{vt[3]}, v{vt[3]}, v{vt[1]}
    """)
    for i in range(8):
        a(f"""
        s_xor_b32 s{sT1}, s{sM}, {i}
        s_lshl_b32 s{sT1}, s{sT1}, 1
        v_xor_b32 v{vt[4]}, s{sT1}, v{vt[3]}
        v_lshl_add_u32 v{vXa[i]}, v{vt[4]}, 4, v{vt[2]}
        """)
    a(f"""
    v_lshlrev_b32 v{vt[4]}, 9, v{vt[1]}
    v_bfe_u32 v{vt[5]}, v0, 2, 2
    v_lshl_add_u32 v{vt[4]}, v{vt[5]}, 6, v{vt[4]}
    v_bfe_u32 v{vt[5]}, v0, 4, 1
    v_lshl_add_u32 v{vt[4]}, v{vt[5]}, 5, v{vt[4]}
    v_and_b32 v{vt[5]}, 3, v0
    v_lshl_add_u32 v{vt[4]}, v{vt[5]}, 3, v{vt[4]}
    s_lshl_b32 s{sT0}, s{sWC}, 15
    s_add_u32 s{sT0}, s{sT0}, {WBASE}
    """)
    for j in range(4):
        a(f"""
        s_xor_b32 s{sT1}, s{sM}, {j}
        s_lshl_b32 s{sT1}, s{sT1}, 10
        s_add_u32 s{sT1}, s{sT1}, s{sT0}
        v_add_u32 v{vWa[j]}, s{sT1}, v{vt[4]}
        """)
    a(f"""
    s_lshr_b32 s{sT0}, s{sCB}, 1
    s_lshl_b32 s{sT0}, s{sT0}, 12
    v_and_b32 v{vt[4]}, 15, v0
    v_lshrrev_b32 v{vt[5]}, 4, v0
    s_lshl_b32 s{sT1}, s{sW}, 2
    v_add_u32 v{vt[6]}, s{sT1}, v{vt[5]}
    v_xor_b32 v{vt[6]}, v{vt[6]}, v{vt[4]}
    v_lshlrev_b32 v{vt[6]}, 4, v{vt[6]}
    v_lshl_add_u32 v{vt[6]}, v{vt[4]}, 8, v{vt[6]}
    v_add_u32 v{vX16a}, s{sT0}, v{vt[6]}
    """)
    a(f"""
    v_lshlrev_b32 v{vt[4]}, 9, v{vt[1]}
    v_bfe_u32 v{vt[5]}, v0, 4, 1
    v_lshl_add_u32 v{vt[4]}, v{vt[5]}, 7, v{vt[4]}
    v_bfe_u32 v{vt[5]}, v0, 2, 2
    v_lshl_add_u32 v{vt[4]}, v{vt[5]}, 5, v{vt[4]}
    v_and_b32 v{vt[5]}, 3, v0
    v_lshl_add_u32 v{vt[4]}, v{vt[5]}, 3, v{vt[4]}
    v_add_u32 v{vKWa}, s{sKm}, v{vt[4]}
    """)
    for i in range(4):
        a(f"v_mov_b32 v{ones+i}, 0x3f803f80")
        a(f"v_mov_b32 v{Dk+i}, 0")
        a(f"v_mov_b32 v{Dc+i}, 0")
    for i in range(16):
        a(f"v_mov_b32 v{acc+i}, 0")
    for r in vsx + vsxx + vcs:
        a(f"v_mov_b32 v{r}, 0")

    def reads(i):
        c, ip = i >> 3, i & 7
        sl = i % NS
        a(f"ds_read_b128 {v(Xf[sl],4)}, v{vXa[ip]} offset:{c*16384}")
        off = (c*8 + (ip & 4)) * 1024
        a(f"ds_read_b64_tr_b16 {v(Wf[sl],2)}, v{vWa[ip&3]} offset:{off}")
        a(f"ds_read_b64_tr_b16 {v(Wf[sl]+2,2)}, v{vWa[ip&3]} offset:{off+256}")
    for c in range(4):
        a.c(f"chunk {c}")
        a(f"s_waitcnt vmcnt({9*(3-c)}) lgkmcnt(0)")
        a("s_barrier")
        for ip in range(NS):
            reads(c*8 + ip)
        for ip in range(8):
            i = c*8 + ip
            sl = i % NS
            later = min(NS - 1, 7 - ip) * 3 + (3 if ip > 4 else 0)
            a(f"s_waitcnt lgkmcnt({later})")
            a(f"v_mfma_f32_32x32x16_bf16 {v(acc,16)}, {v(Wf[sl],4)}, {v(Xf[sl],4)}, {v(acc,16)}")
            if (ip & 1) == 0:
                for j in range(4):
                    a(f"v_dot2c_f32_bf16 v{vsx[j&1]}, v{Xf[sl]+j}, v{ones}")
                    a(f"v_dot2c_f32_bf16 v{vsxx[j&1]}, v{Xf[sl]+j}, v{Xf[sl]+j}")
            if (ip & 2) == 0:
                for j in range(4):
                    a(f"v_dot2c_f32_bf16 v{vcs[j&1]}, v{Wf[sl]+j}, v{ones}")
            if ip + NS < 8:
                reads(i + NS)
            if ip == 4:
                a(f"ds_read_b128 {v(X16,4)}, v{vX16a} offset:{c*16384}")
                a(f"ds_read_b64_tr_b16 {v(KW,2)}, v{vKWa} offset:{c*4096}")
                a(f"ds_read_b64_tr_b16 {v(KW+2,2)}, v{vKWa} offset:{c*4096+256}")
        a(f"""
        s_waitcnt lgkmcnt(0)
        s_bitcmp1_b32 s{sCB}, 0
        s_cbranch_scc1 K1_V{c}
        v_mfma_f32_16x16x32_bf16 {v(Dk,4)}, {v(KW,4)}, {v(X16,4)}, {v(Dk,4)}
        v_mfma_f32_16x16x32_bf16 {v(Dc,4)}, {v(KW,4)}, {v(ones,4)}, {v(Dc,4)}
        s_branch K1_J{c}
        K1_V{c}:
        v_mfma_f32_16x16x32_bf16 {v(Dk,4)}, {v(X16,4)}, {v(KW,4)}, {v(Dk,4)}
        v_mfma_f32_16x16x32_bf16 {v(Dc,4)}, {v(ones,4)}, {v(KW,4)}, {v(Dc,4)}
        K1_J{c}:
        """)
    a.c("publish partial stats")
    a(f"""
    v_add_f32 v{vsx[0]}, v{vsx[0]}, v{vsx[1]}
    v_add_f32 v{vsxx[0]}, v{vsxx[0]}, v{vsxx[1]}
    v_add_f32 v{vcs[0]}, v{vcs[0]}, v{vcs[1]}
    s_lshl_b32 s{sT0}, s{sWR}, 8
    s_add_u32 s{sT0}, s{sT0}, {STBASE}
    v_lshlrev_b32 v{vt[2]}, 3, v{vt[0]}
    v_add_u32 v{vt[2]}, s{sT0}, v{vt[2]}
    s_lshl_b32 s{sT1}, s{sWC}, 7
    s_add_u32 s{sT1}, s{sT1}, {STBASE + 512}
    v_lshlrev_b32 v{vt[3]}, 2, v{vt[0]}
    v_add_u32 v{vt[3]}, s{sT1}, v{vt[3]}
    v_lshlrev_b32 v{vt[4]}, 2, v0
    v_add_u32 v{vt[4]}, {STBASE + 1024}, v{vt[4]}
    ds_add_f32 v{vt[2]}, v{vsx[0]}
    ds_add_f32 v{vt[2]}, v{vsxx[0]} offset:4
    ds_add_f32 v{vt[3]}, v{vcs[0]}
    v_lshlrev_b32 v{vt[5]}, 4, v{vt[1]}
    v_add_u32 v{vt[5]}, s{sT1}, v{vt[5]}
    """)
    for r in range(4):
        a(f"ds_add_f32 v{vt[4]}, v{Dk+r} offset:{r*256}")
        a(f"ds_add_f32 v{vt[4]}, v{Dc+r} offset:{1024 + r*256}")
    a(f"""
    s_waitcnt lgkmcnt(0)
    s_barrier
    ds_read_b64 {v(st,2)}, v{vt[2]}
    """)
    for q in range(4):
        a(f"ds_read_b128 {v(csr+4*q,4)}, v{vt[5]} offset:{32*q}")
    a(f"""
    s_lshl_b32 s{sT0}, s{sRB}, 16
    s_lshl_b32 s{sT1}, s{sWR}, 15
    s_add_u32 s{sT0}, s{sT0}, s{sT1}
    s_lshl_b32 s{sT1}, s{sCB}, 10
    s_add_u32 s{sT0}, s{sT0}, s{sT1}
    s_lshl_b32 s{sT1}, s{sWC}, 8
    s_add_u32 s{sT0}, s{sT0}, s{sT1}
    v_lshrrev_b32 v{vt[6]}, 3, v{vt[0]}
    v_lshlrev_b32 v{vt[6]}, 13, v{vt[6]}
    v_lshl_add_u32 v{vt[6]}, v{vt[1]}, 9, v{vt[6]}
    v_and_b32 v{vt[7]}, 7, v0
    v_lshl_add_u32 v{vt[6]}, v{vt[7]}, 4, v{vt[6]}
    s_mov_b32 s{sXm}, {hex(f32bits(1.0/512))}
    s_mov_b32 s{sWm}, {hex(f32bits(1e-5))}
    s_mov_b32 s{sSo}, {hex(f32bits(QSCALE))}
    s_waitcnt lgkmcnt(4)
    v_mul_f32 v{st}, s{sXm}, v{st}
    v_mul_f32 v{st+1}, s{sXm}, v{st+1}
    v_fma_f32 v{st+1}, -v{st}, v{st}, v{st+1}
    v_max_f32 v{st+1}, 0, v{st+1}
    v_add_f32 v{st+1}, s{sWm}, v{st+1}
    v_rsq_f32 v{st+1}, v{st+1}
    s_nop 0
    v_mul_f32 v{st+1}, s{sSo}, v{st+1}
    v_mul_f32 v{st}, v{st}, v{st+1}
    s_waitcnt lgkmcnt(0)
    """)
    for r in range(16):
        a(f"v_mul_f32 v{acc+r}, v{acc+r}, v{st+1}")
        a(f"v_fma_f32 v{acc+r}, -v{st}, v{csr+r}, v{acc+r}")
    for j in range(8):
        a(f"v_cvt_pk_bf16_f32 v{pk+j}, v{acc+2*j}, v{acc+2*j+1}")
    a(f"""
    buffer_store_dwordx4 {v(pk,4)}, v{vt[6]}, {s(SQ,4)}, s{sT0} offen
    buffer_store_dwordx4 {v(pk+4,4)}, v{vt[6]}, {s(SQ,4)}, s{sT0} offen offset:128
    s_cmp_lg_u32 s{sW}, 3
    s_cbranch_scc1 K1_END
    """)
    a.c("KV epilogue (wave 3)")
    g, d = vt[0], vt[1]
    a(f"""
    v_lshrrev_b32 v{g}, 4, v0
    v_and_b32 v{d}, 15, v0
    """)
    for r in range(4):
        a(f"ds_read_b32 v{Dk+r}, v{vt[4]} offset:{r*256}")
        a(f"ds_read_b32 v{Dc+r}, v{vt[4]} offset:{1024 + r*256}")
    a(f"""
    s_lshr_b32 s{sM}, s{sCB}, 1
    s_lshl_b32 s{sT0}, s{sM}, 7
    s_add_u32 s{sT0}, s{sT0}, {STBASE}
    s_lshl_b32 s{sKm}, s{sRB}, 2
    s_add_u32 s{sKm}, s{sKm}, s{sM}
    s_bitcmp1_b32 s{sCB}, 0
    s_cbranch_scc1 K1_VEP
    """)
    a.c("K tile: lane key = l&15")
    a(f"""
    v_lshlrev_b32 v{vt[2]}, 3, v{d}
    v_add_u32 v{vt[2]}, s{sT0}, v{vt[2]}
    ds_read_b64 {v(st,2)}, v{vt[2]}
    v_and_b32 v{vt[3]}, 3, v{d}
    v_and_b32 v{vt[5]}, 4, v{d}
    v_lshl_or_b32 v{vt[3]}, v{vt[5]}, 1, v{vt[3]}
    v_and_b32 v{vt[5]}, 8, v{d}
    v_lshrrev_b32 v{vt[5]}, 1, v{vt[5]}
    v_or_b32 v{vt[3]}, v{vt[3]}, v{vt[5]}
    v_lshlrev_b32 v{vt[3]}, 4, v{vt[3]}
    v_and_b32 v{vt[5]}, 1, v{g}
    v_lshl_add_u32 v{vt[3]}, v{vt[5]}, 9, v{vt[3]}
    v_lshrrev_b32 v{vt[5]}, 1, v{g}
    v_lshl_add_u32 v{vt[3]}, v{vt[5]}, 3, v{vt[3]}
    s_lshr_b32 s{sT1}, s{sKm}, 1
    s_lshl_b32 s{sT1}, s{sT1}, 10
    s_and_b32 s{sT0}, s{sKm}, 1
    s_lshl_b32 s{sT0}, s{sT0}, 8
    s_add_u32 s{sT1}, s{sT1}, s{sT0}
    s_waitcnt lgkmcnt(0)
    v_mul_f32 v{st}, s{sXm}, v{st}
    v_mul_f32 v{st+1}, s{sXm}, v{st+1}
    v_fma_f32 v{st+1}, -v{st}, v{st}, v{st+1}
    v_max_f32 v{st+1}, 0, v{st+1}
    v_add_f32 v{st+1}, s{sWm}, v{st+1}
    v_rsq_f32 v{st+1}, v{st+1}
    """)
    for r in range(4):
        a(f"v_fma_f32 v{Dk+r}, -v{st}, v{Dc+r}, v{Dk+r}")
    for r in range(4):
        a(f"v_mul_f32 v{Dk+r}, v{Dk+r}, v{st+1}")
    a(f"""
    v_cvt_pk_bf16_f32 v{pk}, v{Dk}, v{Dk+1}
    v_cvt_pk_bf16_f32 v{pk+1}, v{Dk+2}, v{Dk+3}
    v_mul_f32 v{st+2}, v{Dk}, v{Dk}
    v_fmac_f32 v{st+2}, v{Dk+1}, v{Dk+1}
    v_fmac_f32 v{st+2}, v{Dk+2}, v{Dk+2}
    v_fmac_f32 v{st+2}, v{Dk+3}, v{Dk+3}
    buffer_store_dwordx2 {v(pk,2)}, v{vt[3]}, {s(SKV,4)}, s{sT1} offen
    v_mov_b32 v{st+3}, v{st+2}
    s_nop 1
    v_permlane32_swap_b32 v{st+2}, v{st+3}
    s_nop 1
    v_add_f32 v{st+2}, v{st+2}, v{st+3}
    v_mov_b32 v{st+3}, v{st+2}
    s_nop 1
    v_permlane16_swap_b32 v{st+2}, v{st+3}
    s_nop 1
    v_add_f32 v{st+2}, v{st+2}, v{st+3}
    s_nop 1
    v_max_f32_dpp v{st+2}, v{st+2}, v{st+2} row_ror:8 row_mask:0xf bank_mask:0xf
    s_nop 1
    v_max_f32_dpp v{st+2}, v{st+2}, v{st+2} row_ror:4 row_mask:0xf bank_mask:0xf
    s_nop 1
    v_max_f32_dpp v{st+2}, v{st+2}, v{st+2} row_ror:2 row_mask:0xf bank_mask:0xf
    s_nop 1
    v_max_f32_dpp v{st+2}, v{st+2}, v{st+2} row_ror:1 row_mask:0xf bank_mask:0xf
    s_lshl_b32 s{sKm}, s{sKm}, 2
    s_add_u32 s{sKm}, s{sKm}, 0x20000
    v_mov_b32 v{vt[5]}, 0
    s_mov_b64 exec, 1
    buffer_store_dword v{st+2}, v{vt[5]}, {s(SKV,4)}, s{sKm} offen
    s_endpgm
    K1_VEP:
    """)
    a.c("V tile: lane d = l&15, keys 4g+r")
    a(f"""
    v_lshlrev_b32 v{vt[2]}, 5, v{g}
    v_add_u32 v{vt[2]}, s{sT0}, v{vt[2]}
    ds_read_b128 {v(st,4)}, v{vt[2]}
    ds_read_b128 {v(st+4,4)}, v{vt[2]} offset:16
    v_lshlrev_b32 v{vt[3]}, 4, v{d}
    v_and_b32 v{vt[5]}, 1, v{g}
    v_lshl_add_u32 v{vt[3]}, v{vt[5]}, 8, v{vt[3]}
    v_lshrrev_b32 v{vt[5]}, 1, v{g}
    v_lshl_add_u32 v{vt[3]}, v{vt[5]}, 3, v{vt[3]}
    s_lshl_b32 s{sT1}, s{sKm}, 9
    s_add_u32 s{sT1}, s{sT1}, 0x10000
    s_waitcnt lgkmcnt(0)
    """)
    for r in range(4):
        m, q = st + 2*r, st + 2*r + 1
        a(f"""
        v_mul_f32 v{m}, s{sXm}, v{m}
        v_mul_f32 v{q}, s{sXm}, v{q}
        v_fma_f32 v{q}, -v{m}, v{m}, v{q}
        v_max_f32 v{q}, 0, v{q}
        v_add_f32 v{q}, s{sWm}, v{q}
        v_rsq_f32 v{q}, v{q}
        v_fma_f32 v{Dk+r}, -v{m}, v{Dc+r}, v{Dk+r}
        v_mul_f32 v{Dk+r}, v{Dk+r}, v{q}
        """)
    a(f"""
    v_cvt_pk_bf16_f32 v{pk}, v{Dk}, v{Dk+1}
    v_cvt_pk_bf16_f32 v{pk+1}, v{Dk+2}, v{Dk+3}
    buffer_store_dwordx2 {v(pk,2)}, v{vt[3]}, {s(SKV,4)}, s{sT1} offen
    K1_END:
    s_endpgm
    """)
    return name, R.cur, K1_LDS
```

```python
from asmlib import *
from common import *

QL = 0
OACC = 8192
OSTR = 2304
MISC = OACC + 8 * OSTR
WOL = 28672
K2_LDS = WOL + 131072
THR2 = (40.0 / 1.02) ** 2

def gen_k2(a):
    name = "attn_kernel"
    kernel_header(a, name)
    R = Regs(1, 256)
    vt = [R.alloc(f"t{i}") for i in range(6)]
    vidx = R.alloc("idx")
    vQa = R.alloc("qa")
    vOa = R.alloc("oa")
    vNr = R.alloc("nr"); vNl = R.alloc("nl"); vNw = R.alloc("nw")
    vOFa = R.alloc("ofa")
    vWa = [R.alloc(f"wa{i}") for i in range(4)]
    vWo = [R.alloc(f"wo{i}") for i in range(2)]
    zero = R.alloc("zero", 4)
    Q = R.alloc("q", 4)
    nrm = R.alloc("nrm", 10, 2)
    Kf = R.alloc("k", 32)
    Vf = R.alloc("v", 64)
    S = [R.alloc(f"s{i}", 16) for i in range(2)]
    O = [R.alloc(f"o{i}", 16) for i in range(2)]
    woA = R.alloc("woa", 16)
    OFr = R.alloc("ofr", 8)
    hacc = R.alloc("hacc", 16)
    negm = R.alloc("negm", 16)
    sW, sRB, sT0, sT1, sT2, sWm, sSo = 20, 21, 22, 23, 44, 45, 46
    sMaskLo, sMaskHi = 48, 50
    SQ, SKV, SWO, SX, SH, SHN, SP = 24, 28, 32, 36, 40, 52, 56
    a(f"""
    s_cmp_ge_u32 s2, 256
    s_cbranch_scc1 K2_END
    s_load_dwordx2 s[16:17], s[0:1], 96
    s_load_dwordx2 s[8:9], s[0:1], 0
    s_load_dwordx2 s[10:11], s[0:1], 32
    s_load_dwordx2 s[12:13], s[0:1], 48
    s_load_dwordx2 s[14:15], s[0:1], 64
    v_lshrrev_b32 v{vt[0]}, 6, v0
    v_lshlrev_b32 v{vt[1]}, 4, v0
    v_readfirstlane_b32 s{sW}, v{vt[0]}
    v_and_b32 v0, 63, v0
    s_and_b32 s{sT0}, s2, 7
    s_lshr_b32 s{sT1}, s2, 3
    s_lshl_b32 s{sRB}, s{sT0}, 5
    s_add_u32 s{sRB}, s{sRB}, s{sT1}
    s_mov_b32 s{sMaskLo}, 0x0000ffff
    s_mov_b32 s{sMaskLo+1}, 0x0000ffff
    s_mov_b32 s{sMaskHi}, 0xffff0000
    s_mov_b32 s{sMaskHi+1}, 0xffff0000
    v_lshlrev_b32 v{vQa}, 4, v0
    """)
    for i in range(4):
        a(f"v_mov_b32 v{zero+i}, 0")
    a(f"v_add_u32 v{vt[1]}, {OACC}, v{vt[1]}")
    for i in range(3):
        a(f"ds_write_b128 v{vt[1]}, {v(zero,4)} offset:{i*8192}" if i < 2 else f"ds_write_b128 v{vt[1]}, {v(zero,4)} offset:{2*8192 - 6144}")
    a(f"""
    s_lshl_b32 s{sT0}, s{sW}, 13
    v_add_u32 v{vt[2]}, s{sT0}, v{vQa}
    v_lshrrev_b32 v{vt[3]}, 5, v0
    v_and_b32 v{vt[4]}, 15, v0
    v_lshlrev_b32 v{vt[4]}, 4, v{vt[4]}
    v_lshl_add_u32 v{vt[4]}, v{vt[3]}, 8, v{vt[4]}
    v_add_u32 v{vt[3]}, s{sT0}, v{vt[4]}
    v_add_u32 v{vt[3]}, 0x10000, v{vt[3]}
    v_lshlrev_b32 v{vt[5]}, 3, v0
    s_lshl_b32 s{sT1}, s{sRB}, 13
    s_lshl_b32 s{sT2}, s{sW}, 10
    s_add_u32 s{sT1}, s{sT1}, s{sT2}
    s_mov_b32 s{sSo}, 0x20000
    s_waitcnt lgkmcnt(0)
    """)
    srd(a, SQ, 16, 17, WS_Q, 0x200000)
    srd(a, SKV, 16, 17, WS_K, 0x21000)
    order = []
    a(f"buffer_load_dwordx4 {v(Q,4)}, v{vQa}, {s(SQ,4)}, s{sT1} offen"); order.append("Q")
    a(f"buffer_load_dwordx2 {v(nrm,2)}, v{vt[5]}, {s(SKV,4)}, s{sSo} offen"); order.append("KM")
    def ldK(j):
        so = "0" if j < 4 else f"s{sT2}"
        a(f"buffer_load_dwordx4 {v(Kf+4*j,4)}, v{vt[2]}, {s(SKV,4)}, {so} offen offset:{(j&3)*1024}"); order.append(f"K{j}")
    def ldV(i):
        so = "0" if i < 8 else f"s{sT2}"
        a(f"buffer_load_dwordx4 {v(Vf+4*i,4)}, v{vt[3]}, {s(SKV,4)}, {so} offen offset:{(i&7)*512}"); order.append(f"V{i}")
    a(f"s_movk_i32 s{sT2}, 0x1000")
    ldK(0); ldK(1)
    for j in range(8):
        a(f"s_mov_b64 exec, {s(sMaskLo,2)}")
        ldV(2*j); ldV(2*j+1)
        a("s_mov_b64 exec, -1")
        if j + 2 < 8:
            ldK(j + 2)
    srd(a, SWO, 10, 11, 0, 524288)
    a(f"""
    v_lshrrev_b32 v{vt[0]}, 3, v0
    v_bfe_u32 v{vt[1]}, v0, 1, 2
    v_bfe_u32 v{vt[4]}, v0, 4, 1
    v_xor_b32 v{vt[1]}, v{vt[1]}, v{vt[4]}
    v_and_b32 v{vt[4]}, 1, v0
    v_lshlrev_b32 v{vt[4]}, 4, v{vt[4]}
    v_lshl_add_u32 v{vt[4]}, v{vt[0]}, 10, v{vt[4]}
    s_lshl_b32 s{sT0}, s{sW}, 7
    v_add_u32 v{vt[4]}, s{sT0}, v{vt[4]}
    v_lshl_add_u32 v{vWo[0]}, v{vt[1]}, 5, v{vt[4]}
    v_xor_b32 v{vt[1]}, 2, v{vt[1]}
    v_lshl_add_u32 v{vWo[1]}, v{vt[1]}, 5, v{vt[4]}
    s_lshl_b32 s{sWm}, s{sW}, 13
    s_add_u32 s{sWm}, s{sWm}, {WOL}
    """)
    def dma_wo(t):
        L = []
        for e in range(8):
            L.append(f"s_mov_b32 s{sSo}, {t*65536 + e*8192}\ns_add_u32 m0, s{sWm}, {(t&1)*65536 + e*1024}\ns_nop 0\n"
                     f"buffer_load_dwordx4 v{vWo[e&1]}, {s(SWO,4)}, s{sSo} offen lds")
        return L
    for t in range(2):
        for x in dma_wo(t):
            a(x); order.append("WO")
    a(f"""
    s_lshr_b32 s{sT0}, s2, 3
    s_mul_i32 s{sT0}, s{sT0}, 44032
    s_lshl_b32 s{sT1}, s{sW}, 13
    s_add_u32 s{sT0}, s{sT0}, s{sT1}
    v_lshlrev_b32 v{vt[0]}, 7, v0
    v_add_u32 v{vt[0]}, s{sT0}, v{vt[0]}
    """)
    srd(a, SP, 12, 13, 0, 1409024)
    a(f"buffer_load_dword v{negm}, v{vt[0]}, {s(SP,4)}, 0 offen"); order.append("PF")
    srd(a, SH, 14, 15, 0, 1409024)
    a(f"buffer_load_dword v{negm+1}, v{vt[0]}, {s(SH,4)}, 0 offen"); order.append("PF")
    NL = len(order)
    def wait_for(item):
        n = NL - 1 - order.index(item)
        return f"s_waitcnt vmcnt({n})"
    a.c("ones rows of the V^T operand (upper 16 lanes of each half)")
    a(f"s_mov_b64 exec, {s(sMaskHi,2)}")
    for i in range(64):
        a(f"v_mov_b32 v{Vf+i}, 0x3f803f80")
    a("s_mov_b64 exec, -1")
    a(f"v_mov_b32 v{vidx}, 0xdddddddd")
    for i in range(16):
        a(f"v_mov_b32 v{hacc+i}, 0")
        a(f"v_mov_b32 v{O[0]+i}, 0")
        a(f"v_mov_b32 v{O[1]+i}, 0")
    a.c("LDS addresses")
    a(f"""
    v_lshlrev_b32 v{vOa}, 2, v0
    v_add_u32 v{vOa}, {OACC}, v{vOa}
    v_and_b32 v{vt[0]}, 31, v0
    v_lshrrev_b32 v{vt[1]}, 5, v0
    s_mul_i32 s{sT0}, s{sW}, {OSTR}
    s_add_u32 s{sT0}, s{sT0}, {OACC}
    v_lshlrev_b32 v{vNl}, 2, v{vt[0]}
    v_add_u32 v{vNl}, s{sT0}, v{vNl}
    v_lshl_add_u32 v{vNr}, v{vt[1]}, 10, v{vNl}
    v_and_b32 v{vt[2]}, 7, v0
    v_lshlrev_b32 v{vt[2]}, 4, v{vt[2]}
    v_bfe_u32 v{vt[3]}, v0, 3, 2
    v_lshl_add_u32 v{vNw}, v{vt[3]}, 8, v{vt[2]}
    v_lshl_add_u32 v{vNw}, v{vt[1]}, 7, v{vNw}
    v_add_u32 v{vNw}, s{sT0}, v{vNw}
    v_lshrrev_b32 v{vt[3]}, 4, v0
    v_lshl_add_u32 v{vOFa}, v{vt[3]}, 7, v{vt[2]}
    v_add_u32 v{vOFa}, {OACC}, v{vOFa}
    v_bfe_u32 v{vt[4]}, v0, 2, 2
    v_lshlrev_b32 v{vt[5]}, 10, v{vt[3]}
    v_lshl_add_u32 v{vt[5]}, v{vt[4]}, 7, v{vt[5]}
    v_and_b32 v{vt[2]}, 3, v0
    v_lshl_add_u32 v{vt[5]}, v{vt[2]}, 3, v{vt[5]}
    v_add_u32 v{vt[5]}, s{sWm}, v{vt[5]}
    v_bfe_u32 v{vt[4]}, v0, 3, 2
    """)
    for ct in range(4):
        a(f"v_xor_b32 v{vt[2]}, {ct}, v{vt[4]}")
        a(f"v_lshl_add_u32 v{vWa[ct]}, v{vt[2]}, 5, v{vt[5]}")
    srd(a, SX, 8, 9, 0, 0x200000)
    srd(a, SH, 16, 17, WS_H, 0x200000)
    srd(a, SHN, 16, 17, WS_HN, 0x200000)
    a.c("share Q frag, bound check")
    a(f"""
    s_lshl_b32 s{sT0}, s{sW}, 10
    v_add_u32 v{vt[0]}, s{sT0}, v{vQa}
    v_mov_b32 v{nrm+2}, 0
    {wait_for("KM")}
    ds_write_b128 v{vt[0]}, {v(Q,4)}
    v_dot2c_f32_bf16 v{nrm+2}, v{Q}, v{Q}
    v_dot2c_f32_bf16 v{nrm+2}, v{Q+1}, v{Q+1}
    v_dot2c_f32_bf16 v{nrm+2}, v{Q+2}, v{Q+2}
    v_dot2c_f32_bf16 v{nrm+2}, v{Q+3}, v{Q+3}
    v_max_f32 v{nrm}, v{nrm}, v{nrm+1}
    s_nop 1
    v_max_f32_dpp v{nrm}, v{nrm}, v{nrm} row_ror:8 row_mask:0xf bank_mask:0xf
    v_mov_b32 v{nrm+3}, v{nrm+2}
    s_nop 0
    v_max_f32_dpp v{nrm}, v{nrm}, v{nrm} row_ror:4 row_mask:0xf bank_mask:0xf
    v_permlane32_swap_b32 v{nrm+2}, v{nrm+3}
    s_nop 0
    v_max_f32_dpp v{nrm}, v{nrm}, v{nrm} row_ror:2 row_mask:0xf bank_mask:0xf
    v_add_f32 v{nrm+2}, v{nrm+2}, v{nrm+3}
    s_nop 0
    v_max_f32_dpp v{nrm}, v{nrm}, v{nrm} row_ror:1 row_mask:0xf bank_mask:0xf
    s_nop 0
    v_mov_b32 v{nrm+1}, v{nrm}
    s_nop 1
    v_permlane32_swap_b32 v{nrm}, v{nrm+1}
    s_nop 1
    v_max_f32 v{nrm}, v{nrm}, v{nrm+1}
    v_mov_b32 v{nrm+1}, v{nrm}
    s_nop 1
    v_permlane16_swap_b32 v{nrm}, v{nrm+1}
    s_nop 1
    v_max_f32 v{nrm}, v{nrm}, v{nrm+1}
    v_mul_f32 v{nrm}, v{nrm}, v{nrm+2}
    v_mov_b32 v{nrm+1}, {hex(f32bits(THR2))}
    v_cmp_nle_f32 vcc, v{nrm}, v{nrm+1}
    s_lshl_b32 s{sT0}, s{sW}, 2
    s_add_u32 s{sT0}, s{sT0}, {MISC}
    s_cmp_lg_u64 vcc, 0
    s_cselect_b32 s{sT1}, 1, 0
    v_mov_b32 v{vt[0]}, s{sT0}
    v_mov_b32 v{vt[1]}, s{sT1}
    ds_write_b32 v{vt[0]}, v{vt[1]}
    v_mov_b32 v{vt[0]}, {MISC}
    s_waitcnt lgkmcnt(0)
    s_barrier
    ds_read_b128 {v(nrm,4)}, v{vt[0]}
    ds_read_b128 {v(nrm+4,4)}, v{vt[0]} offset:16
    ds_read_b128 {v(Q,4)}, v{vQa}
    s_waitcnt lgkmcnt(1)
    v_or3_b32 v{nrm}, v{nrm}, v{nrm+1}, v{nrm+2}
    v_or3_b32 v{nrm+3}, v{nrm+3}, v{nrm+4}, v{nrm+5}
    v_or3_b32 v{nrm}, v{nrm}, v{nrm+6}, v{nrm+7}
    v_or_b32 v{nrm}, v{nrm}, v{nrm+3}
    s_nop 0
    v_readfirstlane_b32 s{sT0}, v{nrm}
    s_cmp_lg_u32 s{sT0}, 0
    s_cbranch_scc1 K2_SLOW
    """)

    def smf(tau, slow):
        t, j = divmod(tau, 8)
        c = v(negm, 16) if slow else "0"
        return f"v_mfma_f32_32x32x16_bf16 {v(S[tau&1],16)}, {v(Kf+4*j,4)}, {v(Q,4)}, {c}"
    def pv(tau, h):
        t, j = divmod(tau, 8)
        return f"v_smfmac_f32_32x32x32_bf16 {v(O[t&1],16)}, {v(Vf+8*j+4*h,4)}, {v(S[tau&1]+8*h,8)}, v{vidx}"
    def drain(t):
        return [f"ds_add_f32 v{vOa}, v{O[t&1]+r} offset:{t*OSTR + r*256}" for r in range(9)]
    def norm_reads(t, tag):
        L = f"s_cmp_lg_u32 s{sW}, {t}\ns_cbranch_scc1 K2_NR{tag}\n"
        for r in range(4):
            L += f"ds_read2_b32 {v(nrm+2*r,2)}, v{vNr} offset0:{r*64} offset1:{r*64+32}\n"
        L += f"ds_read_b32 v{nrm+8}, v{vNl} offset:2048\nK2_NR{tag}:\n"
        return L
    def norm_comp(t, tag):
        L = f"s_cmp_lg_u32 s{sW}, {t}\ns_cbranch_scc1 K2_NC{tag}\ns_waitcnt lgkmcnt(0)\nv_rcp_f32 v{nrm+8}, v{nrm+8}\ns_nop 0\n"
        for r in range(8):
            L += f"v_mul_f32 v{nrm+r}, v{nrm+r}, v{nrm+8}\n"
        L += f"v_cvt_pk_bf16_f32 v{nrm+8}, v{nrm+1}, v{nrm+3}\n"
        L += f"v_cvt_pk_bf16_f32 v{nrm+9}, v{nrm+5}, v{nrm+7}\n"
        L += f"v_cvt_pk_bf16_f32 v{nrm+7}, v{nrm+4}, v{nrm+6}\n"
        L += f"v_cvt_pk_bf16_f32 v{nrm+6}, v{nrm+0}, v{nrm+2}\n"
        L += f"ds_write_b128 v{vNw}, {v(nrm+6,4)}\nK2_NC{tag}:\n"
        return L
    def wo_reads(t, ks):
        L = []
        for ct in range(4):
            for rd in range(2):
                L.append(f"ds_read_b64_tr_b16 {v(woA+4*ct+2*rd,2)}, v{vWa[ct]} offset:{(t&1)*65536 + ks*4096 + rd*512}" if (t & 1) == 0 else None)
        return L
    def wo_reads(t, ks):
        return [f"ds_read_b64_tr_b16 {v(woA+4*ct+2*rd,2)}, v{vWa[ct]} offset:{ks*4096 + rd*512}" for ct in range(4) for rd in range(2)]
    def wo_toggle():
        return [f"v_xor_b32 v{vWa[ct]}, s{sT2}, v{vWa[ct]}" for ct in range(4)]
    def of_reads(t):
        return [f"ds_read_b128 {v(OFr+4*ks,4)}, v{vOFa} offset:{t*OSTR + ks*512}" for ks in range(2)]
    def wo_mfma(ks):
        return [f"v_mfma_f32_16x16x32_bf16 {v(hacc+4*ct,4)}, {v(woA+4*ct,4)}, {v(OFr+4*ks,4)}, {v(hacc+4*ct,4)}" for ct in range(4)]

    def mainloop(slow):
        tag = "S" if slow else "F"
        a(f"{wait_for('K0')}")
        a("s_waitcnt lgkmcnt(0)")
        if slow:
            a(f"ds_read_b32 v{nrm}, v{vt[0]}")
            a("s_waitcnt lgkmcnt(0)")
            for i in range(16):
                a(f"v_sub_f32 v{negm+i}, 0, v{nrm}")
            a("s_nop 1")
        a(smf(0, slow))
        a("s_nop 7")
        a("s_nop 3")
        for tau in range(64):
            t, j = divmod(tau, 8)
            slots = [[] for _ in range(17)]
            if tau > 0:
                slots[2].append(pv(tau - 1, 1))
            if tau < 63:
                if t == 0 and j < 7:
                    slots[5].append(wait_for(f"K{j+1}"))
                if j == 7:
                    slots[5].append("s_waitcnt lgkmcnt(0)")
                    if slow:
                        slots[5] += [f"v_sub_f32 v{negm+i}, 0, v{nrm}" for i in range(16)] + ["s_nop 1"]
                slots[5].append(smf(tau + 1, slow))
            if t == 0:
                slots[10].append(wait_for(f"V{2*j+1}"))
            slots[10].append(pv(tau, 0))
            if j == 6 and t < 7:
                slots[7].append(f"ds_read_b128 {v(Q,4)}, v{vQa} offset:{(t+1)*1024}")
                if slow:
                    slots[7].append(f"ds_read_b32 v{nrm}, v{vt[0]} offset:{(t+1)*128}")
            if t >= 1:
                if j == 1:
                    for i, x in enumerate(drain(t - 1)):
                        slots[1 + i].append(x)
                if j == 2:
                    slots[0] += ["s_waitcnt lgkmcnt(0)", "s_barrier", norm_reads(t - 1, f"{tag}{t}")]
                    if t >= 2:
                        slots[1].append("s_waitcnt vmcnt(8)")
                        slots[1] += of_reads(t - 2)
                        for i, x in enumerate(wo_reads(t - 2, 0)):
                            slots[3 + i].append(x)
                    slots[12].append(f"v_mfma_f32_32x32x16_bf16 {v(O[(t-1)&1],16)}, {v(zero,4)}, {v(zero,4)}, 0")
                if j == 3:
                    slots[0].append(norm_comp(t - 1, f"{tag}{t}"))
                if t >= 2:
                    if j == 3:
                        slots[11].append("s_waitcnt lgkmcnt(0)")
                        m = wo_mfma(0)
                        slots[11].append(m[0]); slots[13].append(m[1]); slots[15].append(m[2])
                    if j == 4:
                        slots[0].append(wo_mfma(0)[3])
                        for i, x in enumerate(wo_reads(t - 2, 1)):
                            slots[3 + i].append(x)
                    if j == 5:
                        slots[11].append("s_waitcnt lgkmcnt(0)")
                        m = wo_mfma(1)
                        slots[11].append(m[0]); slots[13].append(m[1]); slots[15].append(m[2])
                        delta = 65536 if (t & 1) == 0 else -65536
                        for ct in range(4):
                            slots[12 + (ct & 1) * 2].append(f"v_add_u32 v{vWa[ct]}, {hex(delta & 0xffffffff)}, v{vWa[ct]}")
                    if j == 6:
                        slots[0].append(wo_mfma(1)[3])
                        for i, x in enumerate(dma_wo(t)):
                            slots[8 + i].append(x)
            for i in range(16):
                for x in slots[i]:
                    a(x)
                a(f"v_exp_f32 v{S[tau&1]+i}, v{S[tau&1]+i}")
            for x in slots[16]:
                a(x)
        a("s_nop 1")
        a(pv(63, 1))
    mainloop(False)
    a("K2_TAIL:")
    X = S[0]
    a(f"""
    v_and_b32 v{vt[0]}, 7, v0
    v_lshrrev_b32 v{vt[1]}, 4, v0
    v_lshlrev_b32 v{vt[2]}, 10, v{vt[0]}
    v_lshl_add_u32 v{vt[2]}, v{vt[1]}, 3, v{vt[2]}
    s_lshl_b32 s{sT0}, s{sRB}, 13
    s_lshl_b32 s{sT1}, s{sW}, 7
    s_add_u32 s{sT0}, s{sT0}, s{sT1}
    """)
    for ct in range(4):
        a(f"buffer_load_dwordx2 {v(X+2*ct,2)}, v{vt[2]}, {s(SX,4)}, s{sT0} offen offset:{32*ct}")
    a("s_nop 4")
    for x in drain(7):
        a(x)
    a("s_waitcnt lgkmcnt(0)")
    a("s_barrier")
    a(norm_reads(7, "T"))
    a("s_waitcnt vmcnt(4)")
    for x in of_reads(6) + wo_reads(6, 0):
        a(x)
    a(norm_comp(7, "T"))
    a("s_waitcnt lgkmcnt(0)")
    for x in wo_mfma(0):
        a(x)
    for x in wo_reads(6, 1):
        a(x)
    a("s_waitcnt lgkmcnt(0)")
    a("s_barrier")
    for x in wo_mfma(1):
        a(x)
    for ct in range(4):
        a(f"v_add_u32 v{vWa[ct]}, 0x10000, v{vWa[ct]}")
    for x in of_reads(7) + wo_reads(7, 0):
        a(x)
    a("s_waitcnt lgkmcnt(0)")
    for x in wo_mfma(0):
        a(x)
    for x in wo_reads(7, 1):
        a(x)
    a("s_waitcnt lgkmcnt(0)")
    for x in wo_mfma(1):
        a(x)
    a.c("h = x + attn ; LN2")
    H = S[1]; XU = O[0]; PK = O[1]; ST = woA
    a("s_waitcnt vmcnt(0)")
    for i in range(8):
        a(f"v_lshlrev_b32 v{XU+2*i}, 16, v{X+i}")
        a(f"v_and_b32 v{XU+2*i+1}, 0xffff0000, v{X+i}")
    for i in range(16):
        a(f"v_add_f32 v{H+i}, v{hacc+i}, v{XU+i}")
    for i in range(8):
        a(f"v_cvt_pk_bf16_f32 v{PK+i}, v{H+2*i}, v{H+2*i+1}")
    a(f"""
    s_mov_b32 s{sMaskLo}, 0x00ff00ff
    s_mov_b32 s{sMaskLo+1}, 0x00ff00ff
    s_mov_b64 exec, {s(sMaskLo,2)}
    """)
    for ct in range(4):
        a(f"buffer_store_dwordx2 {v(PK+2*ct,2)}, v{vt[2]}, {s(SH,4)}, s{sT0} offen offset:{32*ct}")
    a("s_mov_b64 exec, -1")
    def xreduce(r, tmp):
        a(f"""
        v_mov_b32 v{tmp}, v{r}
        s_nop 1
        v_permlane32_swap_b32 v{r}, v{tmp}
        s_nop 1
        v_add_f32 v{r}, v{r}, v{tmp}
        v_mov_b32 v{tmp}, v{r}
        s_nop 1
        v_permlane16_swap_b32 v{r}, v{tmp}
        s_nop 1
        v_add_f32 v{r}, v{r}, v{tmp}
        """)
    for i in range(4):
        a(f"v_add_f32 v{XU+i}, v{H+i}, v{H+4+i}")
        a(f"v_add_f32 v{XU+4+i}, v{H+8+i}, v{H+12+i}")
    for i in range(4):
        a(f"v_add_f32 v{XU+i}, v{XU+i}, v{XU+4+i}")
    a(f"""
    v_add_f32 v{XU}, v{XU}, v{XU+1}
    v_add_f32 v{XU+2}, v{XU+2}, v{XU+3}
    v_add_f32 v{XU}, v{XU}, v{XU+2}
    """)
    xreduce(XU, XU+2)
    a(f"v_mul_f32 v{XU}, {hex(f32bits(1.0/64))}, v{XU}")
    for i in range(16):
        a(f"v_sub_f32 v{hacc+i}, v{H+i}, v{XU}")
    a(f"v_mul_f32 v{XU+1}, v{hacc}, v{hacc}")
    a(f"v_mul_f32 v{XU+3}, v{hacc+1}, v{hacc+1}")
    for i in range(2, 16):
        a(f"v_fmac_f32 v{XU+1+2*(i&1)}, v{hacc+i}, v{hacc+i}")
    a(f"v_add_f32 v{XU+1}, v{XU+1}, v{XU+3}")
    xreduce(XU+1, XU+2)
    a(f"""
    s_lshl_b32 s{sT1}, s{sW}, 3
    s_add_u32 s{sT1}, s{sT1}, {MISC + 64}
    v_lshlrev_b32 v{vt[3]}, 6, v{vt[0]}
    v_add_u32 v{vt[4]}, s{sT1}, v{vt[3]}
    v_add_u32 v{vt[3]}, {MISC + 64}, v{vt[3]}
    ds_write_b64 v{vt[4]}, {v(XU,2)}
    s_waitcnt lgkmcnt(0)
    s_barrier
    """)
    for i in range(4):
        a(f"ds_read_b128 {v(ST+4*i,4)}, v{vt[3]} offset:{16*i}")
    a(f"""
    s_lshr_b32 s{sT0}, s{sRB}, 2
    s_lshl_b32 s{sT0}, s{sT0}, 15
    s_lshl_b32 s{sT1}, s{sW}, 12
    s_add_u32 s{sT0}, s{sT0}, s{sT1}
    s_and_b32 s{sT1}, s{sRB}, 3
    s_lshl_b32 s{sT1}, s{sT1}, 7
    s_add_u32 s{sT0}, s{sT0}, s{sT1}
    v_lshlrev_b32 v{vt[4]}, 4, v{vt[0]}
    v_lshrrev_b32 v{vt[5]}, 5, v0
    v_lshl_add_u32 v{vt[4]}, v{vt[5]}, 9, v{vt[4]}
    v_bfe_u32 v{vt[5]}, v0, 4, 1
    v_lshl_add_u32 v{vt[4]}, v{vt[5]}, 3, v{vt[4]}
    s_waitcnt lgkmcnt(0)
    v_add_f32 v{XU+2}, v{ST}, v{ST+2}
    v_add_f32 v{XU+3}, v{ST+4}, v{ST+6}
    v_add_f32 v{XU+4}, v{ST+8}, v{ST+10}
    v_add_f32 v{XU+5}, v{ST+12}, v{ST+14}
    v_add_f32 v{XU+6}, v{ST+1}, v{ST+3}
    v_add_f32 v{XU+7}, v{ST+5}, v{ST+7}
    v_add_f32 v{XU+8}, v{ST+9}, v{ST+11}
    v_add_f32 v{XU+9}, v{ST+13}, v{ST+15}
    v_add_f32 v{XU+2}, v{XU+2}, v{XU+3}
    v_add_f32 v{XU+4}, v{XU+4}, v{XU+5}
    v_add_f32 v{XU+6}, v{XU+6}, v{XU+7}
    v_add_f32 v{XU+8}, v{XU+8}, v{XU+9}
    v_add_f32 v{XU+2}, v{XU+2}, v{XU+4}
    v_add_f32 v{XU+6}, v{XU+6}, v{XU+8}
    v_mul_f32 v{XU+2}, 0x3e000000, v{XU+2}
    """)
    for i in range(8):
        a(f"v_sub_f32 v{ST+2*i}, v{ST+2*i}, v{XU+2}")
    a(f"v_mul_f32 v{XU+3}, v{ST}, v{ST}")
    for i in range(1, 8):
        a(f"v_fmac_f32 v{XU+3}, v{ST+2*i}, v{ST+2*i}")
    a(f"""
    v_fmac_f32 v{XU+6}, 0x42800000, v{XU+3}
    v_mov_b32 v{XU+7}, {hex(f32bits(1e-5))}
    v_fmac_f32 v{XU+7}, {hex(f32bits(1.0/512))}, v{XU+6}
    v_rsq_f32 v{XU+7}, v{XU+7}
    """)
    for i in range(16):
        a(f"v_sub_f32 v{H+i}, v{H+i}, v{XU+2}")
    for i in range(16):
        a(f"v_mul_f32 v{H+i}, v{H+i}, v{XU+7}")
    for i in range(8):
        a(f"v_cvt_pk_bf16_f32 v{hacc+i}, v{H+2*i}, v{H+2*i+1}")
    a(f"s_mov_b64 exec, {s(sMaskLo,2)}")
    for ct in range(4):
        a(f"buffer_store_dwordx2 {v(hacc+2*ct,2)}, v{vt[4]}, {s(SHN,4)}, s{sT0} offen offset:{1024*ct}")
    a("K2_END:")
    a("s_endpgm")
    a.c("slow path: true row maxima first")
    a("K2_SLOW:")
    MB = MISC + 1024
    a(f"""
    v_and_b32 v{vt[0]}, 31, v0
    v_lshlrev_b32 v{vt[0]}, 2, v{vt[0]}
    v_add_u32 v{vt[0]}, {MB}, v{vt[0]}
    s_lshl_b32 s{sT0}, s{sW}, 7
    v_add_u32 v{vt[1]}, s{sT0}, v{vt[0]}
    v_mov_b32 v{vt[2]}, 0xff800000
    ds_write_b32 v{vt[1]}, v{vt[2]}
    s_waitcnt vmcnt(0) lgkmcnt(0)
    s_barrier
    v_mov_b32 v{vt[1]}, v{vt[0]}
    v_mov_b32 v{vt[3]}, v{vQa}
    s_mov_b32 s{sT0}, 0
    K2_P1:
    ds_read_b128 {v(Q,4)}, v{vt[3]}
    v_mov_b32 v{nrm}, 0xff800000
    s_waitcnt lgkmcnt(0)
    """)
    for j in range(8):
        a(f"v_mfma_f32_32x32x16_bf16 {v(S[0],16)}, {v(Kf+4*j,4)}, {v(Q,4)}, 0")
        a("s_nop 7\ns_nop 3")
        for i in range(8):
            a(f"v_max3_f32 v{nrm}, v{nrm}, v{S[0]+2*i}, v{S[0]+2*i+1}")
        a("s_nop 1")
    a(f"""
    ds_max_f32 v{vt[1]}, v{nrm}
    v_add_u32 v{vt[1]}, 128, v{vt[1]}
    v_add_u32 v{vt[3]}, 1024, v{vt[3]}
    s_add_u32 s{sT0}, s{sT0}, 1
    s_cmp_lt_u32 s{sT0}, 8
    s_cbranch_scc1 K2_P1
    ds_read_b128 {v(Q,4)}, v{vQa}
    s_waitcnt lgkmcnt(0)
    s_barrier
    """)
    mainloop(True)
    a("s_branch K2_TAIL")
    return name, R.cur, K2_LDS
```

```python
from asmlib import *
from common import *

K3_LDS = 98304

def gen_k3(a):
    name = "ffn1_kernel"
    kernel_header(a, name)
    R = Regs(1, 256)
    vt = [R.alloc(f"t{i}") for i in range(4)]
    vWoff = [R.alloc(f"woff{i}") for i in range(2)]
    vL16 = R.alloc("l16")
    vWa = [R.alloc(f"wa{i}") for i in range(2)]
    B = R.alloc("b", 128)
    acc = R.alloc("acc", 48)
    NS = 3
    A = R.alloc("a", 12 * NS)
    bias = A
    sW, sRT, sT0, sT1, sT, sWm, sSo, sHo = 20, 21, 22, 23, 44, 45, 46, 47
    SW1, SB1, SHN, SG = 24, 28, 32, 36
    a(f"""
    s_cmp_ge_u32 s2, 240
    s_cbranch_scc1 K3_END
    s_load_dwordx4 s[8:11], s[0:1], 48
    s_load_dwordx2 s[16:17], s[0:1], 96
    v_lshrrev_b32 v{vt[0]}, 6, v0
    v_and_b32 v0, 63, v0
    v_readfirstlane_b32 s{sW}, v{vt[0]}
    v_lshlrev_b32 v{vL16}, 4, v0
    s_and_b32 s{sT0}, s2, 7
    s_lshr_b32 s{sT1}, s2, 3
    s_lshl_b32 s{sRT}, s{sT0}, 1
    s_and_b32 s{sT0}, s{sT1}, 1
    s_add_u32 s{sRT}, s{sRT}, s{sT0}
    s_lshl_b32 s{sRT}, s{sRT}, 2
    s_add_u32 s{sRT}, s{sRT}, s{sW}
    s_lshr_b32 s{sT1}, s{sT1}, 1
    s_mul_i32 s{sT}, s{sT1}, 3
    s_min_u32 s{sT}, s{sT}, 40
    v_lshrrev_b32 v{vt[0]}, 2, v0
    v_mul_u32_u24 v{vt[0]}, 2752, v{vt[0]}
    v_and_b32 v{vt[1]}, 3, v0
    v_lshl_add_u32 v{vt[0]}, v{vt[1]}, 4, v{vt[0]}
    s_lshl_b32 s{sT0}, s{sT}, 6
    s_mul_i32 s{sT1}, s{sW}, {2*44032}
    s_add_u32 s{sT1}, s{sT1}, s{sT0}
    v_add_u32 v{vWoff[0]}, s{sT1}, v{vt[0]}
    v_add_u32 v{vWoff[1]}, 44032, v{vWoff[0]}
    s_mul_i32 s{sWm}, s{sW}, 6144
    v_lshrrev_b32 v{vt[2]}, 5, v0
    v_lshlrev_b32 v{vt[3]}, 3, v{vt[2]}
    s_lshl_b32 s{sHo}, s{sRT}, 15
    s_waitcnt lgkmcnt(0)
    """)
    srd(a, SW1, 8, 9, 0, 1409024)
    srd(a, SB1, 10, 11, 0, 2752)
    srd(a, SHN, 16, 17, WS_HN, 0x200000)
    def issue_chunk(c):
        a(f"s_mov_b32 s{sSo}, {c*8*44032}")
        for kb in range(2):
            for ft in range(3):
                a(f"s_add_u32 m0, s{sWm}, {c*24576 + kb*3072 + ft*1024 - ft*64}")
                a("s_nop 0")
                a(f"buffer_load_dwordx4 v{vWoff[kb]}, {s(SW1,4)}, s{sSo} offen offset:{ft*64} lds")
        for i in range(8):
            ks = c*8 + i
            if i % 4 == 0:
                a(f"s_add_u32 s{sSo}, s{sHo}, {ks*1024}")
            a(f"buffer_load_dwordx4 {v(B+4*ks,4)}, v{vL16}, {s(SHN,4)}, s{sSo} offen offset:{(i%4)*1024}")
    issue_chunk(0)
    for ft in range(3):
        for q in range(4):
            a(f"buffer_load_dwordx2 {v(bias+8*ft+2*q,2)}, v{vt[3]}, {s(SB1,4)}, s{sT0} offen offset:{ft*64+q*16}")
    issue_chunk(1)
    issue_chunk(2)
    srd(a, SG, 16, 17, WS_G, G_BYTES)
    a(f"""
    v_lshlrev_b32 v{vt[0]}, 9, v{vt[2]}
    v_bfe_u32 v{vt[1]}, v0, 2, 2
    v_lshl_add_u32 v{vt[0]}, v{vt[1]}, 6, v{vt[0]}
    v_bfe_u32 v{vt[1]}, v0, 4, 1
    v_lshl_add_u32 v{vt[0]}, v{vt[1]}, 5, v{vt[0]}
    v_and_b32 v{vt[1]}, 3, v0
    v_lshl_add_u32 v{vWa[0]}, v{vt[1]}, 3, v{vt[0]}
    v_add_u32 v{vWa[1]}, 49152, v{vWa[0]}
    s_waitcnt vmcnt(28)
    """)
    for i in range(24):
        a(f"v_lshlrev_b32 v{acc+2*i}, 16, v{bias+i}")
        a(f"v_and_b32 v{acc+2*i+1}, 0xffff0000, v{bias+i}")
    issue_chunk(3)
    def reads(ks):
        sl = ks % NS
        base = vWa[ks >> 4]
        for ft in range(3):
            off = (ks & 15) * 3072 + ft * 1024
            a(f"ds_read_b64_tr_b16 {v(A+12*sl+4*ft,2)}, v{base} offset:{off}")
            a(f"ds_read_b64_tr_b16 {v(A+12*sl+4*ft+2,2)}, v{base} offset:{off+256}")
    a("s_barrier")
    reads(0); reads(1)
    for ks in range(32):
        nx = ks + 2
        if nx < 32:
            if nx % 8 == 0:
                c = nx // 8
                a(f"s_waitcnt vmcnt({14*(3-c)})")
                a("s_barrier")
            reads(nx)
        later = 6 * min(2, 31 - ks)
        a(f"s_waitcnt lgkmcnt({later})")
        sl = ks % NS
        for ft in range(3):
            a(f"v_mfma_f32_32x32x16_bf16 {v(acc+16*ft,16)}, {v(A+12*sl+4*ft,4)}, {v(B+4*ks,4)}, {v(acc+16*ft,16)}")
    a(f"""
    s_mul_i32 s{sT0}, s{sRT}, 86
    s_lshl_b32 s{sT1}, s{sT}, 1
    s_add_u32 s{sT0}, s{sT0}, s{sT1}
    s_lshl_b32 s{sT0}, s{sT0}, 10
    s_add_u32 s{sT1}, s{sT0}, 4096
    s_nop 7
    """)
    for ft in range(3):
        for i in range(16):
            a(f"v_max_f32 v{acc+16*ft+i}, 0, v{acc+16*ft+i}")
        for i in range(8):
            r = acc + 16*ft + 2*i
            a(f"v_pk_mul_f32 {v(r,2)}, {v(r,2)}, {v(r,2)}")
        for i in range(8):
            r = acc + 16*ft + 2*i
            a(f"v_cvt_pk_bf16_f32 v{B+8*ft+i}, v{r}, v{r+1}")
        for sx in range(2):
            n = 2*ft + sx
            so = sT0 if n < 4 else sT1
            a(f"buffer_store_dwordx4 {v(B+8*ft+4*sx,4)}, v{vL16}, {s(SG,4)}, s{so} offen offset:{(n&3)*1024}")
    a("K3_END:")
    a("s_endpgm")
    return name, R.cur, K3_LDS
```

```python
from asmlib import *
from common import *

DEPTH = 11
RING = DEPTH * 2048
K4_LDS = 4 * RING

def gen_k4(a):
    name = "ffn2_kernel"
    kernel_header(a, name)
    R = Regs(1, 256)
    vt = [R.alloc(f"t{i}") for i in range(4)]
    vWoff = R.alloc("woff")
    vL16 = R.alloc("l16"); vG1 = R.alloc("g1")
    vWa = [R.alloc(f"wa{i}") for i in range(2)]
    vOo = R.alloc("oo")
    vTid = R.alloc("tid")
    G = R.alloc("g", 8 * DEPTH)
    acc = R.alloc("acc", 64)
    A = R.alloc("a", 16)
    Hr = R.alloc("h", 8); B2 = R.alloc("b2", 8)
    sW, sRB, sCB, sT0, sT1, sWm, sSo, sGo, sW2o = 20, 21, 22, 23, 44, 45, 46, 47, 48
    SW2, SB2, SH, SG, SO = 24, 28, 32, 36, 40
    a(f"""
    s_cmp_ge_u32 s2, 256
    s_cbranch_scc1 K4_END
    s_load_dwordx4 s[8:11], s[0:1], 64
    s_load_dwordx2 s[12:13], s[0:1], 80
    s_load_dwordx2 s[16:17], s[0:1], 96
    v_lshrrev_b32 v{vt[0]}, 6, v0
    v_mov_b32 v{vTid}, v0
    v_readfirstlane_b32 s{sW}, v{vt[0]}
    v_and_b32 v0, 63, v0
    v_lshlrev_b32 v{vL16}, 4, v0
    v_add_u32 v{vG1}, {86*1024}, v{vL16}
    s_and_b32 s{sT0}, s2, 7
    s_lshr_b32 s{sT1}, s2, 3
    s_lshl_b32 s{sRB}, s{sT0}, 2
    s_and_b32 s{sT0}, s{sT1}, 3
    s_add_u32 s{sRB}, s{sRB}, s{sT0}
    s_lshr_b32 s{sCB}, s{sT1}, 2
    """)
    a(f"""
    v_lshrrev_b32 v{vt[0]}, 3, v0
    v_bfe_u32 v{vt[1]}, v0, 2, 1
    v_bfe_u32 v{vt[2]}, v0, 4, 1
    v_xor_b32 v{vt[1]}, v{vt[1]}, v{vt[2]}
    v_and_b32 v{vt[2]}, 3, v0
    v_lshlrev_b32 v{vt[2]}, 4, v{vt[2]}
    v_lshl_add_u32 v{vt[2]}, v{vt[1]}, 6, v{vt[2]}
    v_lshl_add_u32 v{vt[2]}, v{vt[0]}, 10, v{vt[2]}
    s_lshl_b32 s{sT0}, s{sCB}, 7
    v_add_u32 v{vWoff}, s{sT0}, v{vt[2]}
    s_lshl_b32 s{sW2o}, s{sW}, 14
    s_mul_i32 s{sGo}, s{sRB}, {2*86*1024}
    s_lshl_b32 s{sT1}, s{sW}, 10
    s_add_u32 s{sGo}, s{sGo}, s{sT1}
    s_mul_i32 s{sWm}, s{sW}, {RING}
    s_waitcnt lgkmcnt(0)
    """)
    srd(a, SW2, 8, 9, 0, 1409024)
    srd(a, SG, 16, 17, WS_G, G_BYTES)
    def issue(i):
        sl = i % DEPTH
        for e in range(2):
            a(f"s_add_u32 s{sSo}, s{sW2o}, {i*65536 + e*8192}")
            a(f"s_add_u32 m0, s{sWm}, {sl*2048 + e*1024}")
            a("s_nop 0")
            a(f"buffer_load_dwordx4 v{vWoff}, {s(SW2,4)}, s{sSo} offen lds")
        a(f"s_add_u32 s{sSo}, s{sGo}, {i*4096}")
        a(f"buffer_load_dwordx4 {v(G+8*sl,4)}, v{vL16}, {s(SG,4)}, s{sSo} offen")
        a(f"buffer_load_dwordx4 {v(G+8*sl+4,4)}, v{vG1}, {s(SG,4)}, s{sSo} offen")
    for i in range(DEPTH):
        issue(i)
    srd(a, SB2, 10, 11, 0, 1024)
    srd(a, SH, 16, 17, WS_H, 0x200000)
    srd(a, SO, 12, 13, 0, 0x200000)
    a(f"""
    v_lshrrev_b32 v{vt[0]}, 2, v{vTid}
    v_and_b32 v{vt[1]}, 3, v{vTid}
    v_lshlrev_b32 v{vt[1]}, 5, v{vt[1]}
    v_add_u32 v{vt[1]}, s{sT0}, v{vt[1]}
    v_lshl_add_u32 v{vOo}, v{vt[0]}, 10, v{vt[1]}
    s_lshl_b32 s{sT1}, s{sRB}, 16
    buffer_load_dwordx4 {v(Hr,4)}, v{vOo}, {s(SH,4)}, s{sT1} offen
    buffer_load_dwordx4 {v(Hr+4,4)}, v{vOo}, {s(SH,4)}, s{sT1} offen offset:16
    buffer_load_dwordx4 {v(B2,4)}, v{vt[1]}, {s(SB2,4)}, 0 offen
    buffer_load_dwordx4 {v(B2+4,4)}, v{vt[1]}, {s(SB2,4)}, 0 offen offset:16
    """)
    a(f"""
    v_lshrrev_b32 v{vt[0]}, 5, v0
    v_lshlrev_b32 v{vt[0]}, 9, v{vt[0]}
    v_bfe_u32 v{vt[2]}, v0, 2, 2
    v_lshl_add_u32 v{vt[0]}, v{vt[2]}, 7, v{vt[0]}
    v_bfe_u32 v{vt[2]}, v0, 4, 1
    v_lshl_add_u32 v{vt[0]}, v{vt[2]}, 5, v{vt[0]}
    v_and_b32 v{vt[2]}, 3, v0
    v_lshl_add_u32 v{vt[0]}, v{vt[2]}, 3, v{vt[0]}
    v_add_u32 v{vt[0]}, s{sWm}, v{vt[0]}
    v_bfe_u32 v{vt[2]}, v0, 3, 1
    v_lshl_add_u32 v{vWa[0]}, v{vt[2]}, 6, v{vt[0]}
    v_xor_b32 v{vt[2]}, 1, v{vt[2]}
    v_lshl_add_u32 v{vWa[1]}, v{vt[2]}, 6, v{vt[0]}
    """)
    for i in range(64):
        a(f"v_mov_b32 v{acc+i}, 0")
    NST = 22
    ops = [("st", i) for i in range(DEPTH) for _ in range(4)] + [("x", 0)] * 4
    def wait_step(i):
        last = max(k for k, o in enumerate(ops) if o == ("st", i))
        a(f"s_waitcnt vmcnt({len(ops) - 1 - last})")
    def reads(i):
        sl = i % DEPTH
        ab = A + 8 * (i & 1)
        for ct in range(2):
            for rd in range(2):
                a(f"ds_read_b64_tr_b16 {v(ab+4*ct+2*rd,2)}, v{vWa[ct]} offset:{sl*2048 + rd*1024}")
    wait_step(0)
    reads(0)
    for i in range(NST):
        if i + 1 < NST:
            wait_step(i + 1)
            reads(i + 1)
            a("s_waitcnt lgkmcnt(4)")
        else:
            a("s_waitcnt lgkmcnt(0)")
        sl = i % DEPTH
        ab = A + 8 * (i & 1)
        for ct in range(2):
            for rt in range(2):
                d = acc + 16 * (2*ct + rt)
                a(f"v_mfma_f32_32x32x16_bf16 {v(d,16)}, {v(ab+4*ct,4)}, {v(G+8*sl+4*rt,4)}, {v(d,16)}")
        if i + DEPTH < NST:
            issue(i + DEPTH)
            ops += [("st", i + DEPTH)] * 4
    a.c("cross-wave reduction")
    a(f"""
    v_and_b32 v{vt[0]}, 31, v0
    v_mul_u32_u24 v{vt[0]}, 272, v{vt[0]}
    v_lshrrev_b32 v{vt[2]}, 5, v0
    v_lshl_add_u32 v{vt[0]}, v{vt[2]}, 4, v{vt[0]}
    v_add_u32 v{vt[0]}, s{sWm}, v{vt[0]}
    v_lshrrev_b32 v{vt[2]}, 2, v{vTid}
    v_mul_u32_u24 v{vt[2]}, 272, v{vt[2]}
    v_and_b32 v{vt[3]}, 3, v{vTid}
    v_lshl_add_u32 v{vt[2]}, v{vt[3]}, 6, v{vt[2]}
    v_add_u32 v{vt[3]}, {2*RING}, v{vt[2]}
    s_nop 3
    """)
    for ct in range(2):
        for rt in range(2):
            for q in range(4):
                d = acc + 16 * (2*ct + rt) + 4*q
                a(f"ds_write_b128 v{vt[0]}, {v(d,4)} offset:{rt*32*272 + (32*ct + 8*q)*4}")
    a("s_waitcnt lgkmcnt(0)")
    a("s_barrier")
    for w in range(4):
        for q in range(4):
            a(f"ds_read_b128 {v(acc+16*w+4*q,4)}, v{vt[2 + (w >> 1)]} offset:{(w & 1)*RING + 16*q}")
    a("s_waitcnt vmcnt(0)")
    for i in range(8):
        a(f"v_lshlrev_b32 v{G+2*i}, 16, v{Hr+i}")
        a(f"v_and_b32 v{G+2*i+1}, 0xffff0000, v{Hr+i}")
        a(f"v_lshlrev_b32 v{G+16+2*i}, 16, v{B2+i}")
        a(f"v_and_b32 v{G+16+2*i+1}, 0xffff0000, v{B2+i}")
    for i in range(16):
        a(f"v_add_f32 v{G+i}, v{G+i}, v{G+16+i}")
    a("s_waitcnt lgkmcnt(8)")
    for i in range(16):
        a(f"v_add_f32 v{acc+i}, v{acc+i}, v{acc+16+i}")
    a("s_waitcnt lgkmcnt(0)")
    for i in range(16):
        a(f"v_add_f32 v{acc+32+i}, v{acc+32+i}, v{acc+48+i}")
    for i in range(16):
        a(f"v_add_f32 v{acc+i}, v{acc+i}, v{G+i}")
    for i in range(16):
        a(f"v_add_f32 v{acc+i}, v{acc+i}, v{acc+32+i}")
    for i in range(8):
        a(f"v_cvt_pk_bf16_f32 v{G+32+i}, v{acc+2*i}, v{acc+2*i+1}")
    a(f"""
    buffer_store_dwordx4 {v(G+32,4)}, v{vOo}, {s(SO,4)}, s{sT1} offen
    buffer_store_dwordx4 {v(G+36,4)}, v{vOo}, {s(SO,4)}, s{sT1} offen offset:16
    K4_END:
    s_endpgm
    """)
    return name, R.cur, K4_LDS
```

```python
import sys
from asmlib import *
from k1 import gen_k1
from k2 import gen_k2
from k3 import gen_k3
from k4 import gen_k4
NAME = "sequential_preLN__grouped_kv_mqa__dense_activation_squared_relu__prompt"
ref = open(f"cdna_kernels/{NAME}.s.ref").read().split("\n")
hdr = [l for l in ref if l.startswith(";") and "@launch" not in l and "Override launch" not in l and "grid=ceil" not in l]
def build(extra_launch=None):
    a = Asm()
    ks = []
    for g, grid, block in ((gen_k1, 256, 512), (gen_k2, 256, 512)):
        name, nv, lds = g(a)
        ks.append((name, nv, lds, grid, block))
    out = "\n".join(hdr) + "\n"
    launches = [(n, g, b, l) for (n, nv, l, g, b) in ks]
    for n, g, b, l in launches:
        out += f"; @launch kernel={n} grid=({g},1,1) block=({b},1,1) lds={l}\n"
    out += '.amdgcn_target "amdgcn-amd-amdhsa--gfx950"\n.text\n'
    out += a.text()
    out += '.section .rodata,"a"\n'
    for n, nv, l, g, b in ks:
        out += kernel_desc(n, nv)
        print(n, "vgprs", nv, "lds", l, file=sys.stderr)
    return out
if __name__ == "__main__":
    path = sys.argv[1] if len(sys.argv) > 1 else f"cdna_kernels/{NAME}.s"
    open(path, "w").write(build())
```

```python
class Asm:
    def __init__(self):
        self.lines = []
    def __call__(self, s):
        for l in s.split("\n"):
            l = l.strip()
            if l:
                if l.endswith(":"):
                    self.lines.append(l)
                else:
                    self.lines.append("    " + l)
    def c(self, s):
        self.lines.append("    ; " + s)
    def text(self):
        return "\n".join(self.lines) + "\n"

def v(a, n=1):
    return f"v{a}" if n == 1 else f"v[{a}:{a+n-1}]"
def s(a, n=1):
    return f"s{a}" if n == 1 else f"s[{a}:{a+n-1}]"

class Regs:
    def __init__(self, start, limit):
        self.cur = start; self.limit = limit; self.names = {}
    def alloc(self, name, n=1, align=None):
        if align is None:
            align = 1 if n == 1 else (2 if n in (2, 3) else 4)
        self.cur = (self.cur + align - 1) // align * align
        r = self.cur
        self.cur += n
        assert self.cur <= self.limit, f"out of registers at {name}: {self.cur}"
        self.names[name] = (r, n)
        return r

def srd(a, d, lo, hi, off, nbytes):
    if off:
        a(f"s_add_u32 s{d}, s{lo}, {hex(off)}")
        a(f"s_addc_u32 s{d+1}, s{hi}, 0")
    else:
        a(f"s_mov_b32 s{d}, s{lo}")
        a(f"s_mov_b32 s{d+1}, s{hi}")
    a(f"s_mov_b32 s{d+2}, {hex(nbytes)}")
    a(f"s_mov_b32 s{d+3}, 0x20000")

def kernel_header(a, name):
    a.lines.append(f".globl {name}")
    a.lines.append(".p2align 8")
    a.lines.append(f".type {name},@function")
    a.lines.append(f"{name}:")

def kernel_desc(name, vgpr, sgpr=102):
    vg = (vgpr + 7) // 8 * 8
    return f""".p2align 6
.amdhsa_kernel {name}
  .amdhsa_next_free_vgpr {vg}
  .amdhsa_next_free_sgpr {sgpr}
  .amdhsa_accum_offset {vg}
  .amdhsa_group_segment_fixed_size 0
  .amdhsa_kernarg_size 104
  .amdhsa_user_sgpr_count 2
  .amdhsa_user_sgpr_kernarg_segment_ptr 1
  .amdhsa_system_sgpr_workgroup_id_x 1
.end_amdhsa_kernel
"""

import os
DIAG = os.environ.get("DIAG", "0") == "1"
REAL = os.environ.get("REAL", "0") == "1"
def stamp(a, idx, real=False):
    if not DIAG: return
    real = real or REAL
    a(f"{'s_memrealtime' if real else 's_memtime'} s[{62+2*idx}:{63+2*idx}]")
    a("s_waitcnt lgkmcnt(0)")
def stamp_str(idx):
    return f"{'s_memrealtime' if REAL else 's_memtime'} s[{62+2*idx}:{63+2*idx}]\ns_waitcnt lgkmcnt(0)" if DIAG else ""
def stamp_init(a):
    if not DIAG: return
    for i in range(62, 94):
        a(f"s_mov_b32 s{i}, 0")
    stamp(a, 0); stamp(a, 14, True)
def stamp_dump(a, kidx, sW, wslo=16):
    if not DIAG: return
    stamp(a, 13); stamp(a, 15, True)
    a(f"""
    s_add_u32 s96, s{wslo}, 0x2000000
    s_addc_u32 s97, s{wslo+1}, 0
    s_mov_b32 s98, 0x1000000
    s_mov_b32 s99, 0x20000
    s_add_u32 s94, s2, {kidx*256}
    s_lshl_b32 s94, s94, 3
    s_add_u32 s94, s94, s{sW}
    s_lshl_b32 s94, s94, 7
    s_mov_b64 exec, 1
    v_mov_b32 v1, 0
    """)
    for i in range(16):
        a(f"v_mov_b32 v2, s{62+2*i}")
        a(f"buffer_store_dword v2, v1, s[96:99], s94 offen offset:{4*i}")
```

```python
from asmlib import *
from common import *

XBASE = 0
WBASE = 65536
KVBASE = 131072
STBASE = 147456
K1_LDS = STBASE + 4096 + 8192

def gen_k1(a):
    name = "qkv_kernel"
    kernel_header(a, name)
    R = Regs(1, 256)
    vt = [R.alloc(f"t{i}") for i in range(8)]
    vXoff = [R.alloc(f"xoff{e}") for e in range(4)]
    vWoff = [R.alloc(f"woff{e}") for e in range(2)]
    vKoff = R.alloc("koff")
    vXa = [R.alloc(f"xa{i}") for i in range(8)]
    vWa = [R.alloc(f"wa{i}") for i in range(4)]
    vX16a = R.alloc("x16a"); vKWa = R.alloc("kwa")
    vsx = [R.alloc(f"sx{i}") for i in range(2)]
    vsxx = [R.alloc(f"sxx{i}") for i in range(2)]
    vcs = [R.alloc(f"cs{i}") for i in range(2)]
    ones = R.alloc("ones", 4)
    NS = 4
    Xf = [R.alloc(f"xf{i}", 4) for i in range(NS)]
    Wf = [R.alloc(f"wf{i}", 4) for i in range(NS)]
    X16 = R.alloc("x16", 4); KW = R.alloc("kw", 4)
    Dk = R.alloc("dk", 4); Dc = R.alloc("dc", 4)
    acc = R.alloc("acc", 16, 16)
    csr = R.alloc("csr", 16, 4)
    pk = R.alloc("pk", 8, 4)
    st = R.alloc("st", 8, 4)
    lane = 0
    sW, sRB, sCB, sWR, sWC, sM = 20, 21, 22, 23, 44, 45
    sT0, sT1, sXm, sWm, sKm, sSo = 46, 47, 48, 49, 50, 51
    SX, SWQ, SKW, SQ, SKV = 24, 28, 32, 36, 40
    a(f"""
    s_cmp_ge_u32 s2, 256
    s_cbranch_scc1 K1_END
    s_load_dwordx8 s[8:15], s[0:1], 0
    s_load_dwordx2 s[16:17], s[0:1], 96
    v_lshrrev_b32 v{vt[0]}, 6, v0
    v_lshlrev_b32 v{vt[1]}, 4, v0
    v_readfirstlane_b32 s{sW}, v{vt[0]}
    v_and_b32 v0, 63, v0
    s_and_b32 s{sT0}, s2, 7
    s_lshr_b32 s{sT1}, s2, 3
    s_lshl_b32 s{sRB}, s{sT0}, 2
    s_and_b32 s{sT0}, s{sT1}, 3
    s_add_u32 s{sRB}, s{sRB}, s{sT0}
    s_lshr_b32 s{sCB}, s{sT1}, 2
    s_and_b32 s{sWR}, s{sW}, 1
    s_lshr_b32 s{sWC}, s{sW}, 1
    s_lshl_b32 s{sM}, s{sWR}, 1
    s_or_b32 s{sM}, s{sM}, s{sWC}
    """)
    stamp_init(a)
    a.c("DMA source offsets")
    a(f"""
    v_lshrrev_b32 v{vt[2]}, 4, v0
    v_and_b32 v{vt[3]}, 15, v0
    s_lshl_b32 s{sT0}, s{sW}, 14
    """)
    for e in range(4):
        a(f"""
        v_add_u32 v{vt[4]}, {4*e}, v{vt[2]}
        v_xor_b32 v{vt[5]}, v{vt[3]}, v{vt[4]}
        v_lshlrev_b32 v{vt[5]}, 4, v{vt[5]}
        v_lshl_add_u32 v{vt[5]}, v{vt[4]}, 10, v{vt[5]}
        v_add_u32 v{vXoff[e]}, s{sT0}, v{vt[5]}
        """)
    a(f"""
    v_lshrrev_b32 v{vt[4]}, 2, v0
    v_and_b32 v{vt[5]}, 3, v0
    v_lshlrev_b32 v{vt[5]}, 4, v{vt[5]}
    v_lshl_add_u32 v{vt[5]}, v{vt[4]}, 10, v{vt[5]}
    s_lshl_b32 s{sT0}, s{sCB}, 7
    s_lshl_b32 s{sT1}, s{sW}, 15
    s_add_u32 s{sT0}, s{sT0}, s{sT1}
    v_add_u32 v{vWoff[0]}, s{sT0}, v{vt[5]}
    v_add_u32 v{vWoff[1]}, 0x4000, v{vWoff[0]}
    """)
    a(f"""
    v_lshrrev_b32 v{vt[4]}, 1, v0
    v_and_b32 v{vt[5]}, 0x13, v{vt[4]}
    v_and_b32 v{vt[6]}, 4, v{vt[4]}
    v_lshl_or_b32 v{vt[5]}, v{vt[6]}, 1, v{vt[5]}
    v_and_b32 v{vt[6]}, 8, v{vt[4]}
    v_lshrrev_b32 v{vt[6]}, 1, v{vt[6]}
    v_or_b32 v{vt[5]}, v{vt[5]}, v{vt[6]}
    v_lshlrev_b32 v{vt[5]}, 5, v{vt[5]}
    v_and_b32 v{vt[6]}, 1, v0
    v_lshl_add_u32 v{vt[5]}, v{vt[6]}, 4, v{vt[5]}
    s_lshl_b32 s{sT0}, s{sW}, 10
    v_add_u32 v{vKoff}, s{sT0}, v{vt[5]}
    s_lshl_b32 s{sXm}, s{sW}, 12
    s_lshl_b32 s{sWm}, s{sW}, 11
    s_add_u32 s{sWm}, s{sWm}, {WBASE}
    s_add_u32 s{sKm}, s{sT0}, {KVBASE}
    s_waitcnt lgkmcnt(0)
    """)
    a.c("SRDs")
    a(f"""
    s_lshl_b32 s{sT0}, s{sRB}, 16
    s_add_u32 s{SX}, s8, s{sT0}
    s_addc_u32 s{SX+1}, s9, 0
    s_mov_b32 s{SX+2}, 0x10000
    s_mov_b32 s{SX+3}, 0x20000
    """)
    srd(a, SWQ, 10, 11, 0, 524288)
    a(f"""
    s_bitcmp1_b32 s{sCB}, 0
    s_cselect_b32 s{SKW}, s14, s12
    s_cselect_b32 s{SKW+1}, s15, s13
    s_mov_b32 s{SKW+2}, 0x4000
    s_mov_b32 s{SKW+3}, 0x20000
    """)
    for c in range(4):
        for e in range(4):
            a(f"s_add_u32 m0, s{sXm}, {XBASE + c*16384 + e*1024 - c*256}")
            a("s_nop 0")
            a(f"buffer_load_dwordx4 v{vXoff[e]}, {s(SX,4)}, 0 offen offset:{c*256} lds")
        a(f"s_mov_b32 s{sSo}, {c*131072}")
        for kb in range(2):
            for ct in range(2):
                a(f"s_add_u32 m0, s{sWm}, {(ct*32 + c*8 + kb)*1024 - ct*64}")
                a("s_nop 0")
                a(f"buffer_load_dwordx4 v{vWoff[kb]}, {s(SWQ,4)}, s{sSo} offen offset:{ct*64} lds")
        a(f"s_mov_b32 s{sSo}, {c*4096}")
        a(f"s_add_u32 m0, s{sKm}, {c*4096}")
        a("s_nop 0")
        a(f"buffer_load_dwordx4 v{vKoff}, {s(SKW,4)}, s{sSo} offen lds")
    srd(a, SQ, 16, 17, WS_Q, 0x200000)
    srd(a, SKV, 16, 17, WS_K, 0x21000)
    stamp(a, 1)
    a.c("LDS read addresses")
    a(f"""
    v_and_b32 v{vt[0]}, 31, v0
    v_lshrrev_b32 v{vt[1]}, 5, v0
    s_lshl_b32 s{sT0}, s{sWR}, 13
    v_lshlrev_b32 v{vt[2]}, 8, v{vt[0]}
    v_add_u32 v{vt[2]}, s{sT0}, v{vt[2]}
    v_and_b32 v{vt[3]}, 15, v0
    v_xor_b32 v{vt[3]}, v{vt[3]}, v{vt[1]}
    """)
    for i in range(8):
        a(f"""
        s_xor_b32 s{sT1}, s{sM}, {i}
        s_lshl_b32 s{sT1}, s{sT1}, 1
        v_xor_b32 v{vt[4]}, s{sT1}, v{vt[3]}
        v_lshl_add_u32 v{vXa[i]}, v{vt[4]}, 4, v{vt[2]}
        """)
    a(f"""
    v_lshlrev_b32 v{vt[4]}, 9, v{vt[1]}
    v_bfe_u32 v{vt[5]}, v0, 2, 2
    v_lshl_add_u32 v{vt[4]}, v{vt[5]}, 6, v{vt[4]}
    v_bfe_u32 v{vt[5]}, v0, 4, 1
    v_lshl_add_u32 v{vt[4]}, v{vt[5]}, 5, v{vt[4]}
    v_and_b32 v{vt[5]}, 3, v0
    v_lshl_add_u32 v{vt[4]}, v{vt[5]}, 3, v{vt[4]}
    s_lshl_b32 s{sT0}, s{sWC}, 15
    s_add_u32 s{sT0}, s{sT0}, {WBASE}
    """)
    for j in range(4):
        a(f"""
        s_xor_b32 s{sT1}, s{sM}, {j}
        s_lshl_b32 s{sT1}, s{sT1}, 10
        s_add_u32 s{sT1}, s{sT1}, s{sT0}
        v_add_u32 v{vWa[j]}, s{sT1}, v{vt[4]}
        """)
    a(f"""
    s_lshr_b32 s{sT0}, s{sCB}, 1
    s_lshl_b32 s{sT0}, s{sT0}, 12
    v_and_b32 v{vt[4]}, 15, v0
    v_lshrrev_b32 v{vt[5]}, 4, v0
    s_lshl_b32 s{sT1}, s{sW}, 2
    v_add_u32 v{vt[6]}, s{sT1}, v{vt[5]}
    v_xor_b32 v{vt[6]}, v{vt[6]}, v{vt[4]}
    v_lshlrev_b32 v{vt[6]}, 4, v{vt[6]}
    v_lshl_add_u32 v{vt[6]}, v{vt[4]}, 8, v{vt[6]}
    v_add_u32 v{vX16a}, s{sT0}, v{vt[6]}
    """)
    a(f"""
    v_lshlrev_b32 v{vt[4]}, 9, v{vt[1]}
    v_bfe_u32 v{vt[5]}, v0, 4, 1
    v_lshl_add_u32 v{vt[4]}, v{vt[5]}, 7, v{vt[4]}
    v_bfe_u32 v{vt[5]}, v0, 2, 2
    v_lshl_add_u32 v{vt[4]}, v{vt[5]}, 5, v{vt[4]}
    v_and_b32 v{vt[5]}, 3, v0
    v_lshl_add_u32 v{vt[4]}, v{vt[5]}, 3, v{vt[4]}
    v_add_u32 v{vKWa}, s{sKm}, v{vt[4]}
    """)
    for i in range(4):
        a(f"v_mov_b32 v{ones+i}, 0x3f803f80")
        a(f"v_mov_b32 v{Dk+i}, 0")
        a(f"v_mov_b32 v{Dc+i}, 0")
    for i in range(16):
        a(f"v_mov_b32 v{acc+i}, 0")
    for r in vsx + vsxx + vcs:
        a(f"v_mov_b32 v{r}, 0")

    def reads(i):
        c, ip = i >> 3, i & 7
        sl = i % NS
        a(f"ds_read_b128 {v(Xf[sl],4)}, v{vXa[ip]} offset:{c*16384}")
        off = (c*8 + (ip & 4)) * 1024
        a(f"ds_read_b64_tr_b16 {v(Wf[sl],2)}, v{vWa[ip&3]} offset:{off}")
        a(f"ds_read_b64_tr_b16 {v(Wf[sl]+2,2)}, v{vWa[ip&3]} offset:{off+256}")
    for c in range(4):
        a.c(f"chunk {c}")
        a(f"s_waitcnt vmcnt({9*(3-c)}) lgkmcnt(0)")
        a("s_barrier")
        stamp(a, 2 + c)
        for ip in range(NS):
            reads(c*8 + ip)
        for ip in range(8):
            i = c*8 + ip
            sl = i % NS
            later = min(NS - 1, 7 - ip) * 3 + (3 if ip > 4 else 0)
            a(f"s_waitcnt lgkmcnt({later})")
            a(f"v_mfma_f32_32x32x16_bf16 {v(acc,16)}, {v(Wf[sl],4)}, {v(Xf[sl],4)}, {v(acc,16)}")
            if (ip & 1) == 0:
                for j in range(4):
                    a(f"v_dot2c_f32_bf16 v{vsx[j&1]}, v{Xf[sl]+j}, v{ones}")
                    a(f"v_dot2c_f32_bf16 v{vsxx[j&1]}, v{Xf[sl]+j}, v{Xf[sl]+j}")
            if (ip & 2) == 0:
                for j in range(4):
                    a(f"v_dot2c_f32_bf16 v{vcs[j&1]}, v{Wf[sl]+j}, v{ones}")
            if ip + NS < 8:
                reads(i + NS)
            if ip == 4:
                a(f"ds_read_b128 {v(X16,4)}, v{vX16a} offset:{c*16384}")
                a(f"ds_read_b64_tr_b16 {v(KW,2)}, v{vKWa} offset:{c*4096}")
                a(f"ds_read_b64_tr_b16 {v(KW+2,2)}, v{vKWa} offset:{c*4096+256}")
        a(f"""
        s_waitcnt lgkmcnt(0)
        s_bitcmp1_b32 s{sCB}, 0
        s_cbranch_scc1 K1_V{c}
        v_mfma_f32_16x16x32_bf16 {v(Dk,4)}, {v(KW,4)}, {v(X16,4)}, {v(Dk,4)}
        v_mfma_f32_16x16x32_bf16 {v(Dc,4)}, {v(KW,4)}, {v(ones,4)}, {v(Dc,4)}
        s_branch K1_J{c}
        K1_V{c}:
        v_mfma_f32_16x16x32_bf16 {v(Dk,4)}, {v(X16,4)}, {v(KW,4)}, {v(Dk,4)}
        v_mfma_f32_16x16x32_bf16 {v(Dc,4)}, {v(ones,4)}, {v(KW,4)}, {v(Dc,4)}
        K1_J{c}:
        """)
    stamp(a, 6)
    a.c("publish partial stats")
    a(f"""
    v_add_f32 v{vcs[0]}, v{vcs[0]}, v{vcs[1]}
    v_add_f32 v{st}, v{vsx[0]}, v{vsx[1]}
    v_mov_b32 v{vcs[1]}, v{vcs[0]}
    v_add_f32 v{st+1}, v{vsxx[0]}, v{vsxx[1]}
    s_lshl_b32 s{sT0}, s{sWR}, 8
    s_add_u32 s{sT0}, s{sT0}, {STBASE}
    v_permlane32_swap_b32 v{vcs[0]}, v{vcs[1]}
    v_lshlrev_b32 v{vt[2]}, 3, v{vt[0]}
    v_add_u32 v{vt[2]}, s{sT0}, v{vt[2]}
    v_add_f32 v{vcs[0]}, v{vcs[0]}, v{vcs[1]}
    s_lshl_b32 s{sT1}, s{sWC}, 10
    v_lshl_add_u32 v{vt[3]}, v{vt[1]}, 9, v{vt[2]}
    v_add_u32 v{vt[3]}, s{sT1}, v{vt[3]}
    ds_write_b64 v{vt[3]}, {v(st,2)}
    s_lshl_b32 s{sT1}, s{sWC}, 7
    s_add_u32 s{sT1}, s{sT1}, {STBASE + 2048}
    s_lshl_b32 s{sT0}, s{sWR}, 8
    s_add_u32 s{sT0}, s{sT0}, s{sT1}
    v_lshlrev_b32 v{vt[3]}, 2, v{vt[0]}
    v_add_u32 v{vt[3]}, s{sT0}, v{vt[3]}
    ds_write_b32 v{vt[3]}, v{vcs[0]}
    v_lshlrev_b32 v{vt[4]}, 4, v0
    v_add_u32 v{vt[4]}, {STBASE + 4096}, v{vt[4]}
    s_lshl_b32 s{sT0}, s{sW}, 11
    v_add_u32 v{vt[3]}, s{sT0}, v{vt[4]}
    ds_write_b128 v{vt[3]}, {v(Dk,4)}
    ds_write_b128 v{vt[3]}, {v(Dc,4)} offset:1024
    v_lshlrev_b32 v{vt[5]}, 4, v{vt[1]}
    v_add_u32 v{vt[5]}, s{sT1}, v{vt[5]}
    s_waitcnt lgkmcnt(0)
    s_barrier
    """)
    for q in range(4):
        a(f"ds_read_b64 {v(st+2*q,2)}, v{vt[2]} offset:{512*q}")
    cs2 = Xf[0]
    for q in range(4):
        a(f"ds_read_b128 {v(csr+4*q,4)}, v{vt[5]} offset:{32*q}")
        a(f"ds_read_b128 {v(cs2+4*q,4)}, v{vt[5]} offset:{256+32*q}")
    a(f"""
    s_lshl_b32 s{sT0}, s{sRB}, 16
    s_lshl_b32 s{sT1}, s{sWR}, 15
    s_add_u32 s{sT0}, s{sT0}, s{sT1}
    s_lshl_b32 s{sT1}, s{sCB}, 10
    s_add_u32 s{sT0}, s{sT0}, s{sT1}
    s_lshl_b32 s{sT1}, s{sWC}, 8
    s_add_u32 s{sT0}, s{sT0}, s{sT1}
    v_lshrrev_b32 v{vt[6]}, 3, v{vt[0]}
    v_lshlrev_b32 v{vt[6]}, 13, v{vt[6]}
    v_lshl_add_u32 v{vt[6]}, v{vt[1]}, 9, v{vt[6]}
    v_and_b32 v{vt[7]}, 7, v0
    v_lshl_add_u32 v{vt[6]}, v{vt[7]}, 4, v{vt[6]}
    s_mov_b32 s{sXm}, {hex(f32bits(1.0/512))}
    s_mov_b32 s{sWm}, {hex(f32bits(1e-5))}
    s_mov_b32 s{sSo}, {hex(f32bits(QSCALE))}
    s_waitcnt lgkmcnt(8)
    v_pk_add_f32 {v(st,2)}, {v(st,2)}, {v(st+2,2)}
    v_pk_add_f32 {v(st+4,2)}, {v(st+4,2)}, {v(st+6,2)}
    v_pk_add_f32 {v(st,2)}, {v(st,2)}, {v(st+4,2)}
    v_mul_f32 v{st}, s{sXm}, v{st}
    v_mul_f32 v{st+1}, s{sXm}, v{st+1}
    v_fma_f32 v{st+1}, -v{st}, v{st}, v{st+1}
    v_max_f32 v{st+1}, 0, v{st+1}
    v_add_f32 v{st+1}, s{sWm}, v{st+1}
    v_rsq_f32 v{st+1}, v{st+1}
    s_nop 0
    v_mul_f32 v{st+1}, s{sSo}, v{st+1}
    v_mul_f32 v{st}, v{st}, v{st+1}
    s_waitcnt lgkmcnt(0)
    """)
    for r in range(8):
        a(f"v_pk_add_f32 {v(csr+2*r,2)}, {v(csr+2*r,2)}, {v(cs2+2*r,2)}")
        a(f"v_pk_mul_f32 {v(acc+2*r,2)}, {v(acc+2*r,2)}, {v(st,2)} op_sel:[0,1] op_sel_hi:[1,1]")
    for r in range(8):
        a(f"v_pk_fma_f32 {v(acc+2*r,2)}, {v(csr+2*r,2)}, {v(st,2)}, {v(acc+2*r,2)} op_sel_hi:[1,0,1] neg_lo:[1,0,0] neg_hi:[1,0,0]")
    for j in range(8):
        a(f"v_cvt_pk_bf16_f32 v{pk+j}, v{acc+2*j}, v{acc+2*j+1}")
    a(f"""
    buffer_store_dwordx4 {v(pk,4)}, v{vt[6]}, {s(SQ,4)}, s{sT0} offen
    buffer_store_dwordx4 {v(pk+4,4)}, v{vt[6]}, {s(SQ,4)}, s{sT0} offen offset:128
    s_cmp_lg_u32 s{sW}, 3
    s_cbranch_scc1 K1_DONE
    """)
    a.c("KV epilogue (wave 3)")
    g, d = vt[0], vt[1]
    a(f"""
    v_lshrrev_b32 v{g}, 4, v0
    v_and_b32 v{d}, 15, v0
    """)
    P = acc
    assert csr == acc + 16
    a("s_nop 1")
    for w in range(4):
        a(f"ds_read_b128 {v(P+8*w,4)}, v{vt[4]} offset:{w*2048}")
        a(f"ds_read_b128 {v(P+8*w+4,4)}, v{vt[4]} offset:{w*2048+1024}")
    def kvsum():
        for i in range(4):
            a(f"v_pk_add_f32 {v(P+2*i,2)}, {v(P+2*i,2)}, {v(P+8+2*i,2)}")
            a(f"v_pk_add_f32 {v(P+16+2*i,2)}, {v(P+16+2*i,2)}, {v(P+24+2*i,2)}")
        for i in range(4):
            a(f"v_pk_add_f32 {v(Dk+2*i,2)}, {v(P+2*i,2)}, {v(P+16+2*i,2)}")
    assert Dc == Dk + 4
    a(f"""
    s_lshr_b32 s{sM}, s{sCB}, 1
    s_lshl_b32 s{sT0}, s{sM}, 7
    s_add_u32 s{sT0}, s{sT0}, {STBASE}
    s_lshl_b32 s{sKm}, s{sRB}, 2
    s_add_u32 s{sKm}, s{sKm}, s{sM}
    s_bitcmp1_b32 s{sCB}, 0
    s_cbranch_scc1 K1_VEP
    """)
    a.c("K tile: lane key = l&15")
    a(f"""
    v_lshlrev_b32 v{vt[2]}, 3, v{d}
    v_add_u32 v{vt[2]}, s{sT0}, v{vt[2]}
    ds_read_b64 {v(st,2)}, v{vt[2]}
    ds_read_b64 {v(st+2,2)}, v{vt[2]} offset:512
    ds_read_b64 {v(st+4,2)}, v{vt[2]} offset:1024
    ds_read_b64 {v(st+6,2)}, v{vt[2]} offset:1536
    v_and_b32 v{vt[3]}, 3, v{d}
    v_and_b32 v{vt[5]}, 4, v{d}
    v_lshl_or_b32 v{vt[3]}, v{vt[5]}, 1, v{vt[3]}
    v_and_b32 v{vt[5]}, 8, v{d}
    v_lshrrev_b32 v{vt[5]}, 1, v{vt[5]}
    v_or_b32 v{vt[3]}, v{vt[3]}, v{vt[5]}
    v_lshlrev_b32 v{vt[3]}, 4, v{vt[3]}
    v_and_b32 v{vt[5]}, 1, v{g}
    v_lshl_add_u32 v{vt[3]}, v{vt[5]}, 9, v{vt[3]}
    v_lshrrev_b32 v{vt[5]}, 1, v{g}
    v_lshl_add_u32 v{vt[3]}, v{vt[5]}, 3, v{vt[3]}
    s_lshr_b32 s{sT1}, s{sKm}, 1
    s_lshl_b32 s{sT1}, s{sT1}, 10
    s_and_b32 s{sT0}, s{sKm}, 1
    s_lshl_b32 s{sT0}, s{sT0}, 8
    s_add_u32 s{sT1}, s{sT1}, s{sT0}
    s_waitcnt lgkmcnt(0)
    v_pk_add_f32 {v(st,2)}, {v(st,2)}, {v(st+2,2)}
    v_pk_add_f32 {v(st+4,2)}, {v(st+4,2)}, {v(st+6,2)}
    v_pk_add_f32 {v(st,2)}, {v(st,2)}, {v(st+4,2)}
    """)
    kvsum()
    a(f"""
    v_mul_f32 v{st}, s{sXm}, v{st}
    v_mul_f32 v{st+1}, s{sXm}, v{st+1}
    v_fma_f32 v{st+1}, -v{st}, v{st}, v{st+1}
    v_max_f32 v{st+1}, 0, v{st+1}
    v_add_f32 v{st+1}, s{sWm}, v{st+1}
    v_rsq_f32 v{st+1}, v{st+1}
    """)
    for r in range(4):
        a(f"v_fma_f32 v{Dk+r}, -v{st}, v{Dc+r}, v{Dk+r}")
    for r in range(4):
        a(f"v_mul_f32 v{Dk+r}, v{Dk+r}, v{st+1}")
    a(f"""
    v_cvt_pk_bf16_f32 v{pk}, v{Dk}, v{Dk+1}
    v_cvt_pk_bf16_f32 v{pk+1}, v{Dk+2}, v{Dk+3}
    v_mul_f32 v{st+2}, v{Dk}, v{Dk}
    v_fmac_f32 v{st+2}, v{Dk+1}, v{Dk+1}
    v_fmac_f32 v{st+2}, v{Dk+2}, v{Dk+2}
    v_fmac_f32 v{st+2}, v{Dk+3}, v{Dk+3}
    buffer_store_dwordx2 {v(pk,2)}, v{vt[3]}, {s(SKV,4)}, s{sT1} offen
    v_mov_b32 v{st+3}, v{st+2}
    s_nop 1
    v_permlane32_swap_b32 v{st+2}, v{st+3}
    s_nop 1
    v_add_f32 v{st+2}, v{st+2}, v{st+3}
    v_mov_b32 v{st+3}, v{st+2}
    s_nop 1
    v_permlane16_swap_b32 v{st+2}, v{st+3}
    s_nop 1
    v_add_f32 v{st+2}, v{st+2}, v{st+3}
    s_nop 1
    v_max_f32_dpp v{st+2}, v{st+2}, v{st+2} row_ror:8 row_mask:0xf bank_mask:0xf
    s_nop 1
    v_max_f32_dpp v{st+2}, v{st+2}, v{st+2} row_ror:4 row_mask:0xf bank_mask:0xf
    s_nop 1
    v_max_f32_dpp v{st+2}, v{st+2}, v{st+2} row_ror:2 row_mask:0xf bank_mask:0xf
    s_nop 1
    v_max_f32_dpp v{st+2}, v{st+2}, v{st+2} row_ror:1 row_mask:0xf bank_mask:0xf
    s_lshl_b32 s{sKm}, s{sKm}, 2
    s_add_u32 s{sKm}, s{sKm}, 0x20000
    v_mov_b32 v{vt[5]}, 0
    s_mov_b64 exec, 1
    buffer_store_dword v{st+2}, v{vt[5]}, {s(SKV,4)}, s{sKm} offen
    s_branch K1_DONE
    K1_VEP:
    """)
    a.c("V tile: lane d = l&15, keys 4g+r")
    a(f"""
    v_lshlrev_b32 v{vt[2]}, 5, v{g}
    v_add_u32 v{vt[2]}, s{sT0}, v{vt[2]}
    ds_read_b128 {v(st,4)}, v{vt[2]}
    ds_read_b128 {v(st+4,4)}, v{vt[2]} offset:16
    ds_read_b128 {v(Xf[0],4)}, v{vt[2]} offset:512
    ds_read_b128 {v(Xf[0]+4,4)}, v{vt[2]} offset:528
    ds_read_b128 {v(Xf[0]+8,4)}, v{vt[2]} offset:1024
    ds_read_b128 {v(Xf[0]+12,4)}, v{vt[2]} offset:1040
    ds_read_b128 {v(Wf[0],4)}, v{vt[2]} offset:1536
    ds_read_b128 {v(Wf[0]+4,4)}, v{vt[2]} offset:1552
    v_lshlrev_b32 v{vt[3]}, 4, v{d}
    v_and_b32 v{vt[5]}, 1, v{g}
    v_lshl_add_u32 v{vt[3]}, v{vt[5]}, 8, v{vt[3]}
    v_lshrrev_b32 v{vt[5]}, 1, v{g}
    v_lshl_add_u32 v{vt[3]}, v{vt[5]}, 3, v{vt[3]}
    s_lshl_b32 s{sT1}, s{sKm}, 9
    s_add_u32 s{sT1}, s{sT1}, 0x10000
    s_waitcnt lgkmcnt(0)
    """)
    kvsum()
    for i in range(4):
        a(f"v_pk_add_f32 {v(st+2*i,2)}, {v(st+2*i,2)}, {v(Xf[0]+2*i,2)}")
        a(f"v_pk_add_f32 {v(Xf[0]+8+2*i,2)}, {v(Xf[0]+8+2*i,2)}, {v(Wf[0]+2*i,2)}")
    for i in range(4):
        a(f"v_pk_add_f32 {v(st+2*i,2)}, {v(st+2*i,2)}, {v(Xf[0]+8+2*i,2)}")
    for r in range(4):
        m, q = st + 2*r, st + 2*r + 1
        a(f"""
        v_mul_f32 v{m}, s{sXm}, v{m}
        v_mul_f32 v{q}, s{sXm}, v{q}
        v_fma_f32 v{q}, -v{m}, v{m}, v{q}
        v_max_f32 v{q}, 0, v{q}
        v_add_f32 v{q}, s{sWm}, v{q}
        v_rsq_f32 v{q}, v{q}
        v_fma_f32 v{Dk+r}, -v{m}, v{Dc+r}, v{Dk+r}
        v_mul_f32 v{Dk+r}, v{Dk+r}, v{q}
        """)
    a(f"""
    v_cvt_pk_bf16_f32 v{pk}, v{Dk}, v{Dk+1}
    v_cvt_pk_bf16_f32 v{pk+1}, v{Dk+2}, v{Dk+3}
    buffer_store_dwordx2 {v(pk,2)}, v{vt[3]}, {s(SKV,4)}, s{sT1} offen
    K1_DONE:
    """)
    stamp_dump(a, 0, sW)
    a("K1_END:")
    a("s_endpgm")
    return name, R.cur, K1_LDS
```

```python
from asmlib import *
from common import *
import os

QL = 0
OACC = 8192
LACC = OACC + 16384
OFB = LACC + 1024
MISC = OFB + 1024
WOL = 28672
K2_LDS = WOL + 131072
THR2 = (40.0 / 1.02) ** 2
PRIO = os.environ.get("PRIO", "1") == "1"

def gen_k2(a):
    name = "attn_kernel"
    kernel_header(a, name)
    R = Regs(1, 256)
    vt = [R.alloc(f"t{i}") for i in range(6)]
    vidx = R.alloc("idx")
    vQa = R.alloc("qa")
    vOa = R.alloc("oa"); vLa = R.alloc("la")
    vNr = R.alloc("nr"); vNl = R.alloc("nl"); vNw = R.alloc("nw")
    vOFa = R.alloc("ofa")
    vKo = R.alloc("ko"); vVo = R.alloc("vo")
    vWa = [R.alloc(f"wa{i}") for i in range(4)]
    vWo = [R.alloc(f"wo{i}") for i in range(2)]
    zero = R.alloc("zero", 4)
    Q = R.alloc("q", 4)
    nrm = R.alloc("nrm", 8, 4)
    Kf = R.alloc("k", 32)
    Vf = R.alloc("v", 64)
    S = [R.alloc(f"s{i}", 16) for i in range(2)]
    O = [R.alloc(f"o{i}", 16) for i in range(2)]
    woA = R.alloc("woa", 16)
    OFr = R.alloc("ofr", 8)
    hacc = R.alloc("hacc", 16)
    negm = R.alloc("negm", 16)
    sW, sRB, sT0, sT1, sT2, sWm, sSo, sHalf = 20, 21, 22, 23, 44, 45, 46, 47
    sMaskLo, sMaskHi = 48, 50
    SQ, SKV, SWO, SX, SH, SHN, SP = 24, 28, 32, 36, 40, 52, 56
    a(f"""
    s_cmp_ge_u32 s2, 256
    s_cbranch_scc1 K2_END
    s_load_dwordx2 s[16:17], s[0:1], 96
    s_load_dwordx2 s[8:9], s[0:1], 0
    s_load_dwordx2 s[10:11], s[0:1], 32
    s_load_dwordx2 s[12:13], s[0:1], 48
    s_load_dwordx2 s[14:15], s[0:1], 64
    v_lshrrev_b32 v{vt[0]}, 6, v0
    v_and_b32 v0, 63, v0
    v_readfirstlane_b32 s{sW}, v{vt[0]}
    v_lshlrev_b32 v{vQa}, 4, v0
    s_and_b32 s{sT0}, s2, 7
    s_lshr_b32 s{sT1}, s2, 3
    s_lshl_b32 s{sRB}, s{sT0}, 5
    s_add_u32 s{sRB}, s{sRB}, s{sT1}
    s_mov_b32 s{sMaskLo}, 0x0000ffff
    s_mov_b32 s{sMaskLo+1}, 0x0000ffff
    s_mov_b32 s{sMaskHi}, 0xffff0000
    s_mov_b32 s{sMaskHi+1}, 0xffff0000
    s_lshl_b32 s{sT0}, s{sW}, 13
    v_add_u32 v{vKo}, s{sT0}, v{vQa}
    v_lshrrev_b32 v{vt[3]}, 5, v0
    v_and_b32 v{vt[4]}, 15, v0
    v_lshlrev_b32 v{vt[4]}, 4, v{vt[4]}
    v_lshl_add_u32 v{vt[4]}, v{vt[3]}, 8, v{vt[4]}
    s_add_u32 s{sT0}, s{sT0}, 0x10000
    v_add_u32 v{vVo}, s{sT0}, v{vt[4]}
    v_lshlrev_b32 v{vt[5]}, 3, v0
    s_lshl_b32 s{sT1}, s{sRB}, 13
    s_lshl_b32 s{sT2}, s{sW}, 10
    s_add_u32 s{sT1}, s{sT1}, s{sT2}
    s_mov_b32 s{sSo}, 0x20000
    s_movk_i32 s{sT2}, 0x1000
    s_lshr_b32 s{sHalf}, s{sW}, 2
    """)
    stamp_init(a)
    a("s_waitcnt lgkmcnt(0)")
    srd(a, SQ, 16, 17, WS_Q, 0x200000)
    srd(a, SKV, 16, 17, WS_K, 0x21000)
    order = []
    def ldK(j):
        so = "0" if j < 4 else f"s{sT2}"
        order.append(f"K{j}")
        return f"buffer_load_dwordx4 {v(Kf+4*j,4)}, v{vKo}, {s(SKV,4)}, {so} offen offset:{(j&3)*1024}"
    def ldV2(j):
        L = f"s_mov_b64 exec, {s(sMaskLo,2)}\n"
        for i in (2*j, 2*j+1):
            so = "0" if i < 8 else f"s{sT2}"
            order.append(f"V{i}")
            L += f"buffer_load_dwordx4 {v(Vf+4*i,4)}, v{vVo}, {s(SKV,4)}, {so} offen offset:{(i&7)*512}\n"
        return L + "s_mov_b64 exec, -1"
    def wait_for(item):
        return f"s_waitcnt vmcnt({len(order) - 1 - order.index(item)})"
    a(f"buffer_load_dwordx4 {v(Q,4)}, v{vQa}, {s(SQ,4)}, s{sT1} offen"); order.append("Q")
    a(f"buffer_load_dwordx2 {v(nrm,2)}, v{vt[5]}, {s(SKV,4)}, s{sSo} offen"); order.append("KM")
    a(ldK(0)); a(ldK(1)); a(ldV2(0)); a(ldK(2)); a(ldV2(1))
    pro_order = list(order)
    srd(a, SWO, 10, 11, 0, 524288)
    a.c("ones rows of the V^T operand (upper 16 lanes of each half)")
    a(f"s_mov_b64 exec, {s(sMaskHi,2)}")
    for i in range(64):
        a(f"v_mov_b32 v{Vf+i}, 0x3f803f80")
    a("s_mov_b64 exec, -1")
    a(f"""
    v_lshrrev_b32 v{vt[0]}, 3, v0
    v_bfe_u32 v{vt[1]}, v0, 1, 2
    v_bfe_u32 v{vt[4]}, v0, 4, 1
    v_xor_b32 v{vt[1]}, v{vt[1]}, v{vt[4]}
    v_and_b32 v{vt[4]}, 1, v0
    v_lshlrev_b32 v{vt[4]}, 4, v{vt[4]}
    v_lshl_add_u32 v{vt[4]}, v{vt[0]}, 10, v{vt[4]}
    s_lshl_b32 s{sT0}, s{sW}, 7
    v_add_u32 v{vt[4]}, s{sT0}, v{vt[4]}
    v_lshl_add_u32 v{vWo[0]}, v{vt[1]}, 5, v{vt[4]}
    v_xor_b32 v{vt[1]}, 2, v{vt[1]}
    v_lshl_add_u32 v{vWo[1]}, v{vt[1]}, 5, v{vt[4]}
    s_lshl_b32 s{sWm}, s{sW}, 13
    s_add_u32 s{sWm}, s{sWm}, {WOL}
    v_mov_b32 v{vidx}, 0xdddddddd
    """)
    def dma_wo(t):
        L = []
        for e in range(8):
            L.append(f"s_mov_b32 s{sSo}, {t*65536 + e*8192}\ns_add_u32 m0, s{sWm}, {(t&1)*65536 + e*1024}\ns_nop 0\n"
                     f"buffer_load_dwordx4 v{vWo[e&1]}, {s(SWO,4)}, s{sSo} offen lds")
        return L
    for i in range(4):
        a(f"v_mov_b32 v{zero+i}, 0")
    for i in range(16):
        a(f"v_mov_b32 v{hacc+i}, 0")
    for i in range(9):
        a(f"v_mov_b32 v{O[0]+i}, 0")
        a(f"v_mov_b32 v{O[1]+i}, 0")
    a.c("LDS addresses")
    a(f"""
    s_lshl_b32 s{sT0}, s{sW}, 11
    s_add_u32 s{sT0}, s{sT0}, {OACC}
    v_add_u32 v{vOa}, s{sT0}, v{vQa}
    v_and_b32 v{vt[0]}, 31, v0
    s_lshl_b32 s{sT0}, s{sW}, 2
    s_add_u32 s{sT0}, s{sT0}, {LACC}
    v_lshlrev_b32 v{vLa}, 5, v{vt[0]}
    v_add_u32 v{vLa}, s{sT0}, v{vLa}
    s_and_b32 s{sT1}, s{sW}, 3
    v_and_b32 v{vt[2]}, 7, v0
    v_lshrrev_b32 v{vt[1]}, 5, v0
    v_bfe_u32 v{vt[3]}, v0, 4, 1
    v_bfe_u32 v{vt[4]}, v0, 3, 1
    v_lshlrev_b32 v{vNr}, 4, v{vt[2]}
    v_lshl_add_u32 v{vNr}, v{vt[1]}, 10, v{vNr}
    v_lshl_add_u32 v{vNr}, v{vt[3]}, 9, v{vNr}
    v_lshl_add_u32 v{vNr}, v{vt[4]}, 3, v{vNr}
    s_lshl_b32 s{sT0}, s{sT1}, 7
    s_add_u32 s{sT0}, s{sT0}, {OACC}
    v_add_u32 v{vNr}, s{sT0}, v{vNr}
    s_lshl_b32 s{sT0}, s{sT1}, 8
    s_add_u32 s{sSo}, s{sT0}, {LACC}
    v_lshlrev_b32 v{vNl}, 5, v{vt[2]}
    v_add_u32 v{vNl}, s{sSo}, v{vNl}
    v_lshlrev_b32 v{vNw}, 4, v{vt[2]}
    v_lshl_add_u32 v{vNw}, v{vt[1]}, 7, v{vNw}
    v_bfe_u32 v{vt[3]}, v0, 3, 2
    v_lshl_add_u32 v{vNw}, v{vt[3]}, 2, v{vNw}
    s_add_u32 s{sSo}, s{sT0}, {OFB}
    v_add_u32 v{vNw}, s{sSo}, v{vNw}
    v_lshrrev_b32 v{vt[3]}, 4, v0
    v_lshlrev_b32 v{vt[2]}, 4, v{vt[2]}
    v_lshl_add_u32 v{vOFa}, v{vt[3]}, 7, v{vt[2]}
    v_add_u32 v{vOFa}, {OFB}, v{vOFa}
    v_bfe_u32 v{vt[4]}, v0, 2, 2
    v_lshlrev_b32 v{vt[5]}, 10, v{vt[3]}
    v_lshl_add_u32 v{vt[5]}, v{vt[4]}, 7, v{vt[5]}
    v_and_b32 v{vt[2]}, 3, v0
    v_lshl_add_u32 v{vt[5]}, v{vt[2]}, 3, v{vt[5]}
    v_add_u32 v{vt[5]}, s{sWm}, v{vt[5]}
    v_bfe_u32 v{vt[4]}, v0, 3, 2
    """)
    for ct in range(4):
        a(f"v_xor_b32 v{vt[2]}, {ct}, v{vt[4]}")
        a(f"v_lshl_add_u32 v{vWa[ct]}, v{vt[2]}, 5, v{vt[5]}")
    srd(a, SX, 8, 9, 0, 0x200000)
    srd(a, SHN, 16, 17, WS_HN, 0x200000)
    srd(a, SP, 12, 13, 0, 1409024)
    srd(a, SH, 14, 15, 0, 1409024)
    a(f"""
    s_lshr_b32 s{sT0}, s2, 3
    s_mul_i32 s{sT0}, s{sT0}, 44032
    s_lshl_b32 s{sT1}, s{sW}, 13
    s_add_u32 s{sT0}, s{sT0}, s{sT1}
    v_lshlrev_b32 v{vt[5]}, 7, v0
    v_add_u32 v{vt[5]}, s{sT0}, v{vt[5]}
    """)
    stamp(a, 1)
    a.c("share Q frag, bound check")
    a(f"""
    s_lshl_b32 s{sT0}, s{sW}, 10
    v_add_u32 v{vt[0]}, s{sT0}, v{vQa}
    v_mov_b32 v{nrm+2}, 0
    {wait_for("KM")}
    ds_write_b128 v{vt[0]}, {v(Q,4)}
    v_dot2c_f32_bf16 v{nrm+2}, v{Q}, v{Q}
    v_dot2c_f32_bf16 v{nrm+2}, v{Q+1}, v{Q+1}
    v_dot2c_f32_bf16 v{nrm+2}, v{Q+2}, v{Q+2}
    v_dot2c_f32_bf16 v{nrm+2}, v{Q+3}, v{Q+3}
    v_max_f32 v{nrm}, v{nrm}, v{nrm+1}
    s_nop 1
    v_max_f32_dpp v{nrm}, v{nrm}, v{nrm} row_ror:8 row_mask:0xf bank_mask:0xf
    v_mov_b32 v{nrm+3}, v{nrm+2}
    s_nop 0
    v_max_f32_dpp v{nrm}, v{nrm}, v{nrm} row_ror:4 row_mask:0xf bank_mask:0xf
    v_permlane32_swap_b32 v{nrm+2}, v{nrm+3}
    s_nop 0
    v_max_f32_dpp v{nrm}, v{nrm}, v{nrm} row_ror:2 row_mask:0xf bank_mask:0xf
    v_add_f32 v{nrm+2}, v{nrm+2}, v{nrm+3}
    s_nop 0
    v_max_f32_dpp v{nrm}, v{nrm}, v{nrm} row_ror:1 row_mask:0xf bank_mask:0xf
    s_nop 0
    v_mov_b32 v{nrm+1}, v{nrm}
    s_nop 1
    v_permlane32_swap_b32 v{nrm}, v{nrm+1}
    s_nop 1
    v_max_f32 v{nrm}, v{nrm}, v{nrm+1}
    v_mov_b32 v{nrm+1}, v{nrm}
    s_nop 1
    v_permlane16_swap_b32 v{nrm}, v{nrm+1}
    s_nop 1
    v_max_f32 v{nrm}, v{nrm}, v{nrm+1}
    v_mul_f32 v{nrm}, v{nrm}, v{nrm+2}
    v_mov_b32 v{nrm+1}, {hex(f32bits(THR2))}
    v_cmp_nle_f32 vcc, v{nrm}, v{nrm+1}
    s_lshl_b32 s{sT0}, s{sW}, 2
    s_add_u32 s{sT0}, s{sT0}, {MISC}
    s_cmp_lg_u64 vcc, 0
    s_cselect_b32 s{sT1}, 1, 0
    v_mov_b32 v{vt[0]}, s{sT0}
    v_mov_b32 v{vt[1]}, s{sT1}
    ds_write_b32 v{vt[0]}, v{vt[1]}
    v_mov_b32 v{vt[0]}, {MISC}
    s_waitcnt lgkmcnt(0)
    s_barrier
    ds_read_b128 {v(nrm,4)}, v{vt[0]}
    ds_read_b128 {v(nrm+4,4)}, v{vt[0]} offset:16
    ds_read_b128 {v(Q,4)}, v{vQa}
    s_waitcnt lgkmcnt(1)
    v_or3_b32 v{nrm}, v{nrm}, v{nrm+1}, v{nrm+2}
    v_or3_b32 v{nrm+3}, v{nrm+3}, v{nrm+4}, v{nrm+5}
    v_or3_b32 v{nrm}, v{nrm}, v{nrm+6}, v{nrm+7}
    v_or_b32 v{nrm}, v{nrm}, v{nrm+3}
    s_nop 0
    v_readfirstlane_b32 s{sT0}, v{nrm}
    s_cmp_lg_u32 s{sT0}, 0
    s_cbranch_scc1 K2_SLOW
    """)

    def smf(tau, slow):
        t, j = divmod(tau, 8)
        c = v(negm, 16) if slow else "0"
        return f"v_mfma_f32_32x32x16_bf16 {v(S[tau&1],16)}, {v(Kf+4*j,4)}, {v(Q,4)}, {c}"
    def pv(tau, h):
        t, j = divmod(tau, 8)
        return f"v_smfmac_f32_32x32x32_bf16 {v(O[t&1],16)}, {v(Vf+8*j+4*h,4)}, {v(S[tau&1]+8*h,8)}, v{vidx}"
    def drain(t):
        o = O[t & 1]
        return [f"ds_write_b128 v{vOa}, {v(o,4)}", f"ds_write_b128 v{vOa}, {v(o+4,4)} offset:1024", f"ds_write_b32 v{vLa}, v{o+8}"]
    def norm_reads(t, tag):
        L = f"s_cmp_lg_u32 s{sHalf}, {t&1}\ns_cbranch_scc1 K2_NR{tag}\n"
        L += f"ds_read_b128 {v(nrm,4)}, v{vNl}\nds_read_b128 {v(nrm+4,4)}, v{vNl} offset:16\n"
        for w in range(8):
            L += f"ds_read_b64 {v(woA+2*w,2)}, v{vNr} offset:{w*2048}\n"
        return L + f"K2_NR{tag}:\n"
    def norm_comp(t, tag):
        L = f"s_cmp_lg_u32 s{sHalf}, {t&1}\ns_cbranch_scc1 K2_NC{tag}\ns_waitcnt lgkmcnt(0)\n"
        L += f"v_pk_add_f32 {v(nrm,2)}, {v(nrm,2)}, {v(nrm+2,2)}\n"
        L += f"v_pk_add_f32 {v(nrm+4,2)}, {v(nrm+4,2)}, {v(nrm+6,2)}\n"
        for w in range(4):
            L += f"v_pk_add_f32 {v(woA+4*w,2)}, {v(woA+4*w,2)}, {v(woA+4*w+2,2)}\n"
        L += f"v_pk_add_f32 {v(nrm,2)}, {v(nrm,2)}, {v(nrm+4,2)}\n"
        L += f"v_pk_add_f32 {v(woA,2)}, {v(woA,2)}, {v(woA+4,2)}\n"
        L += f"v_add_f32 v{nrm}, v{nrm}, v{nrm+1}\n"
        L += f"v_pk_add_f32 {v(woA+8,2)}, {v(woA+8,2)}, {v(woA+12,2)}\n"
        L += f"v_rcp_f32 v{nrm}, v{nrm}\n"
        L += f"v_pk_add_f32 {v(woA,2)}, {v(woA,2)}, {v(woA+8,2)}\n"
        L += f"v_pk_mul_f32 {v(woA,2)}, {v(woA,2)}, {v(nrm,2)} op_sel_hi:[1,0]\n"
        L += f"v_cvt_pk_bf16_f32 v{woA}, v{woA}, v{woA+1}\n"
        L += f"ds_write_b32 v{vNw}, v{woA}\nK2_NC{tag}:\n"
        return L
    def wo_reads(ks):
        return [f"ds_read_b64_tr_b16 {v(woA+4*ct+2*rd,2)}, v{vWa[ct]} offset:{ks*4096 + rd*512}" for ct in range(4) for rd in range(2)]
    def of_reads():
        return [f"ds_read_b128 {v(OFr+4*ks,4)}, v{vOFa} offset:{ks*512}" for ks in range(2)]
    def wo_mfma(ks):
        return [f"v_mfma_f32_16x16x32_bf16 {v(hacc+4*ct,4)}, {v(woA+4*ct,4)}, {v(OFr+4*ks,4)}, {v(hacc+4*ct,4)}" for ct in range(4)]

    def mainloop(slow):
        tag = "S" if slow else "F"
        order[:] = list(pro_order)
        a(f"{wait_for('K0')}")
        a("s_waitcnt lgkmcnt(0)")
        if slow:
            a(f"ds_read_b32 v{nrm}, v{vt[0]}")
            a("s_waitcnt lgkmcnt(0)")
            for i in range(16):
                a(f"v_sub_f32 v{negm+i}, 0, v{nrm}")
            a("s_nop 1")
        stamp(a, 2)
        a(smf(0, slow))
        a("s_nop 7")
        a("s_nop 3")
        for tau in range(64):
            t, j = divmod(tau, 8)
            slots = [[] for _ in range(17)]
            if PRIO and j in (0, 1, 2, 3, 4, 6):
                slots[0].append(f"s_setprio { {0: 1, 1: 0, 2: 1, 3: 0, 4: 3, 6: 2}[j] }")
            if tau > 0:
                slots[2].append(pv(tau - 1, 1))
            if t == 0 and not slow:
                if j + 3 < 8:
                    slots[0].append(lambda j=j: ldK(j + 3))
                if j + 2 < 8:
                    slots[1].append(lambda j=j: ldV2(j + 2))
            if tau < 63:
                if t == 0 and j < 7 and not slow:
                    slots[5].append(lambda j=j: wait_for(f"K{j+1}"))
                if j == 7:
                    slots[5].append("s_waitcnt lgkmcnt(0)")
                    if slow:
                        slots[5] += [f"v_sub_f32 v{negm+i}, 0, v{nrm}" for i in range(16)] + ["s_nop 1"]
                slots[5].append(smf(tau + 1, slow))
            if t == 0 and not slow:
                slots[10].append(lambda j=j: wait_for(f"V{2*j+1}"))
            slots[10].append(pv(tau, 0))
            if j == 6 and t < 7:
                slots[9].append(f"ds_read_b128 {v(Q,4)}, v{vQa} offset:{(t+1)*1024}")
                if slow:
                    slots[9].append(f"ds_read_b32 v{nrm}, v{vt[0]} offset:{(t+1)*128}")
            def vm(nm, x):
                return lambda: (order.append(nm), x)[1]
            if tau == 6:
                for i, x in enumerate(dma_wo(0)):
                    slots[8 + i].append(vm(f"WO0_{i}", x))
            if tau == 8:
                for i, x in enumerate(dma_wo(1)):
                    slots[4 + i].append(vm(f"WO1_{i}", x))
            if tau == 16:
                slots[4].append(vm("PF", f"buffer_load_dword v{vt[3]}, v{vt[5]}, {s(SP,4)}, 0 offen"))
                slots[6].append(vm("PF", f"buffer_load_dword v{vt[4]}, v{vt[5]}, {s(SH,4)}, 0 offen"))
            if t >= 1:
                if j == 1:
                    for i, x in enumerate(drain(t - 1)):
                        slots[1 + 2*i].append(x)
                if j == 2:
                    slots[0] += ["s_waitcnt lgkmcnt(0)", "s_barrier"] + ([stamp_str(2 + t)] if DIAG else []) + [norm_reads(t - 1, f"{tag}{t}")]
                    slots[13].append(f"v_mfma_f32_32x32x16_bf16 {v(O[(t-1)&1],16)}, {v(zero,4)}, {v(zero,4)}, 0")
                if j == 3:
                    slots[0].append(norm_comp(t - 1, f"{tag}{t}"))
                if j == 4:
                    slots[0] += ["s_waitcnt lgkmcnt(0)", "s_barrier", lambda t=t: wait_for(f"WO{t-1}_7")]
                    slots[1] += of_reads()
                    for i, x in enumerate(wo_reads(0)):
                        slots[3 + i].append(x)
                    m = wo_mfma(0)
                    slots[14] += ["s_waitcnt lgkmcnt(0)", m[0]]; slots[16].append(m[1])
                if j == 5:
                    m = wo_mfma(0)
                    slots[8].append(m[2]); slots[13].append(m[3])
                    for i, x in enumerate(wo_reads(1)):
                        slots[14 + (i >> 2)].append(x)
                if j == 6:
                    m = wo_mfma(1)
                    slots[8] += ["s_waitcnt lgkmcnt(0)", m[0]]
                    slots[13].append(m[1]); slots[15].append(m[2])
                if j == 7:
                    slots[0].append(wo_mfma(1)[3])
                    delta = 65536 if (t & 1) == 1 else -65536
                    for ct in range(4):
                        slots[7 + ct].append(f"v_add_u32 v{vWa[ct]}, {hex(delta & 0xffffffff)}, v{vWa[ct]}")
                    if t + 1 < 8:
                        for i, x in enumerate(dma_wo(t + 1)):
                            slots[8 + i].append(vm(f"WO{t+1}_{i}", x))
            for i in range(17):
                for x in slots[i]:
                    a(x() if callable(x) else x)
                if i < 16:
                    a(f"v_exp_f32 v{S[tau&1]+i}, v{S[tau&1]+i}")
        a("s_nop 1")
        a(pv(63, 1))
    mainloop(False)
    a("K2_TAIL:")
    stamp(a, 10)
    X = S[0]
    a(f"""
    v_and_b32 v{vt[0]}, 7, v0
    v_lshrrev_b32 v{vt[1]}, 4, v0
    v_lshlrev_b32 v{vt[2]}, 10, v{vt[0]}
    v_lshl_add_u32 v{vt[2]}, v{vt[1]}, 3, v{vt[2]}
    s_lshl_b32 s{sT0}, s{sRB}, 13
    s_lshl_b32 s{sT1}, s{sW}, 7
    s_add_u32 s{sT0}, s{sT0}, s{sT1}
    """)
    for ct in range(4):
        a(f"buffer_load_dwordx2 {v(X+2*ct,2)}, v{vt[2]}, {s(SX,4)}, s{sT0} offen offset:{32*ct}")
    srd(a, SH, 16, 17, WS_H, 0x200000)
    a("s_nop 0")
    for x in drain(7):
        a(x)
    a("s_waitcnt lgkmcnt(0)")
    a("s_barrier")
    a(norm_reads(7, "T"))
    a(norm_comp(7, "T"))
    a("s_waitcnt vmcnt(4)")
    A2 = Kf
    for x in wo_reads(0):
        a(x)
    for ct in range(4):
        for rd in range(2):
            a(f"ds_read_b64_tr_b16 {v(A2+4*ct+2*rd,2)}, v{vWa[ct]} offset:{4096 + rd*512}")
    a("s_waitcnt lgkmcnt(0)")
    a("s_barrier")
    for x in of_reads():
        a(x)
    H = S[1]; XU = O[0]; PK = O[1]; ST = woA
    a("s_waitcnt vmcnt(0)")
    for i in range(8):
        a(f"v_lshlrev_b32 v{XU+2*i}, 16, v{X+i}")
        a(f"v_and_b32 v{XU+2*i+1}, 0xffff0000, v{X+i}")
    a("s_waitcnt lgkmcnt(0)")
    for x in wo_mfma(0):
        a(x)
    for ct in range(4):
        a(f"v_mfma_f32_16x16x32_bf16 {v(hacc+4*ct,4)}, {v(A2+4*ct,4)}, {v(OFr+4,4)}, {v(hacc+4*ct,4)}")
    stamp(a, 11)
    a.c("h = x + attn ; LN2")
    a(f"""
    s_mov_b32 s{sMaskLo}, 0x00ff00ff
    s_mov_b32 s{sMaskLo+1}, 0x00ff00ff
    s_nop 3
    """)
    for i in range(16):
        a(f"v_add_f32 v{H+i}, v{hacc+i}, v{XU+i}")
    for i in range(8):
        a(f"v_cvt_pk_bf16_f32 v{PK+i}, v{H+2*i}, v{H+2*i+1}")
    a(f"s_mov_b64 exec, {s(sMaskLo,2)}")
    for ct in range(4):
        a(f"buffer_store_dwordx2 {v(PK+2*ct,2)}, v{vt[2]}, {s(SH,4)}, s{sT0} offen offset:{32*ct}")
    a("s_mov_b64 exec, -1")
    def xreduce(r, tmp):
        a(f"""
        v_mov_b32 v{tmp}, v{r}
        s_nop 1
        v_permlane32_swap_b32 v{r}, v{tmp}
        s_nop 1
        v_add_f32 v{r}, v{r}, v{tmp}
        v_mov_b32 v{tmp}, v{r}
        s_nop 1
        v_permlane16_swap_b32 v{r}, v{tmp}
        s_nop 1
        v_add_f32 v{r}, v{r}, v{tmp}
        """)
    for i in range(2):
        a(f"v_pk_add_f32 {v(XU+2*i,2)}, {v(H+2*i,2)}, {v(H+4+2*i,2)}")
        a(f"v_pk_add_f32 {v(XU+4+2*i,2)}, {v(H+8+2*i,2)}, {v(H+12+2*i,2)}")
    for i in range(2):
        a(f"v_pk_add_f32 {v(XU+2*i,2)}, {v(XU+2*i,2)}, {v(XU+4+2*i,2)}")
    a(f"""
    v_pk_add_f32 {v(XU,2)}, {v(XU,2)}, {v(XU+2,2)}
    v_add_f32 v{XU}, v{XU}, v{XU+1}
    """)
    xreduce(XU, XU+2)
    a(f"v_mul_f32 v{XU}, {hex(f32bits(1.0/64))}, v{XU}")
    for i in range(8):
        a(f"v_pk_add_f32 {v(hacc+2*i,2)}, {v(H+2*i,2)}, {v(XU,2)} op_sel_hi:[1,0] neg_lo:[0,1] neg_hi:[0,1]")
    a(f"v_pk_mul_f32 {v(XU+2,2)}, {v(hacc,2)}, {v(hacc,2)}")
    a(f"v_pk_mul_f32 {v(XU+4,2)}, {v(hacc+2,2)}, {v(hacc+2,2)}")
    for i in range(2, 8):
        d = XU + 2 + 2*(i & 1)
        a(f"v_pk_fma_f32 {v(d,2)}, {v(hacc+2*i,2)}, {v(hacc+2*i,2)}, {v(d,2)}")
    a(f"v_pk_add_f32 {v(XU+2,2)}, {v(XU+2,2)}, {v(XU+4,2)}")
    a(f"v_add_f32 v{XU+1}, v{XU+2}, v{XU+3}")
    xreduce(XU+1, XU+2)
    a(f"""
    s_lshl_b32 s{sT1}, s{sW}, 3
    s_add_u32 s{sT1}, s{sT1}, {MISC + 64}
    v_lshlrev_b32 v{vt[3]}, 6, v{vt[0]}
    v_add_u32 v{vt[4]}, s{sT1}, v{vt[3]}
    v_add_u32 v{vt[3]}, {MISC + 64}, v{vt[3]}
    ds_write_b64 v{vt[4]}, {v(XU,2)}
    s_waitcnt lgkmcnt(0)
    s_barrier
    """)
    for i in range(4):
        a(f"ds_read_b128 {v(ST+4*i,4)}, v{vt[3]} offset:{16*i}")
    a(f"""
    s_lshr_b32 s{sT0}, s{sRB}, 2
    s_lshl_b32 s{sT0}, s{sT0}, 15
    s_lshl_b32 s{sT1}, s{sW}, 12
    s_add_u32 s{sT0}, s{sT0}, s{sT1}
    s_and_b32 s{sT1}, s{sRB}, 3
    s_lshl_b32 s{sT1}, s{sT1}, 7
    s_add_u32 s{sT0}, s{sT0}, s{sT1}
    v_lshlrev_b32 v{vt[4]}, 4, v{vt[0]}
    v_lshrrev_b32 v{vt[5]}, 5, v0
    v_lshl_add_u32 v{vt[4]}, v{vt[5]}, 9, v{vt[4]}
    v_bfe_u32 v{vt[5]}, v0, 4, 1
    v_lshl_add_u32 v{vt[4]}, v{vt[5]}, 3, v{vt[4]}
    s_waitcnt lgkmcnt(0)
    v_pk_add_f32 {v(XU+2,2)}, {v(ST,2)}, {v(ST+2,2)}
    v_pk_add_f32 {v(XU+4,2)}, {v(ST+4,2)}, {v(ST+6,2)}
    v_pk_add_f32 {v(XU+6,2)}, {v(ST+8,2)}, {v(ST+10,2)}
    v_pk_add_f32 {v(XU+8,2)}, {v(ST+12,2)}, {v(ST+14,2)}
    v_pk_add_f32 {v(XU+2,2)}, {v(XU+2,2)}, {v(XU+4,2)}
    v_pk_add_f32 {v(XU+6,2)}, {v(XU+6,2)}, {v(XU+8,2)}
    v_pk_add_f32 {v(XU+2,2)}, {v(XU+2,2)}, {v(XU+6,2)}
    v_mul_f32 v{XU+2}, 0x3e000000, v{XU+2}
    """)
    for i in range(8):
        a(f"v_sub_f32 v{ST+2*i}, v{ST+2*i}, v{XU+2}")
    a(f"v_mul_f32 v{XU+4}, v{ST}, v{ST}")
    a(f"v_mul_f32 v{XU+5}, v{ST+2}, v{ST+2}")
    for i in range(2, 8):
        a(f"v_fmac_f32 v{XU+4+(i&1)}, v{ST+2*i}, v{ST+2*i}")
    a(f"""
    v_add_f32 v{XU+4}, v{XU+4}, v{XU+5}
    v_fmac_f32 v{XU+3}, 0x42800000, v{XU+4}
    v_mov_b32 v{XU+6}, {hex(f32bits(1e-5))}
    v_fmac_f32 v{XU+6}, {hex(f32bits(1.0/512))}, v{XU+3}
    v_rsq_f32 v{XU+6}, v{XU+6}
    """)
    for i in range(8):
        a(f"v_pk_add_f32 {v(H+2*i,2)}, {v(H+2*i,2)}, {v(XU+2,2)} op_sel_hi:[1,0] neg_lo:[0,1] neg_hi:[0,1]")
    for i in range(8):
        a(f"v_pk_mul_f32 {v(H+2*i,2)}, {v(H+2*i,2)}, {v(XU+6,2)} op_sel_hi:[1,0]")
    for i in range(8):
        a(f"v_cvt_pk_bf16_f32 v{hacc+i}, v{H+2*i}, v{H+2*i+1}")
    a(f"s_mov_b64 exec, {s(sMaskLo,2)}")
    for ct in range(4):
        a(f"buffer_store_dwordx2 {v(hacc+2*ct,2)}, v{vt[4]}, {s(SHN,4)}, s{sT0} offen offset:{1024*ct}")
    stamp_dump(a, 1, sW)
    a("K2_END:")
    a("s_endpgm")
    a.c("slow path: true row maxima first")
    a("K2_SLOW:")
    MB = MISC + 1024
    for j in range(3, 8):
        a(ldK(j))
    for j in range(2, 8):
        a(ldV2(j))
    a(f"""
    v_and_b32 v{vt[0]}, 31, v0
    v_lshlrev_b32 v{vt[0]}, 2, v{vt[0]}
    v_add_u32 v{vt[0]}, {MB}, v{vt[0]}
    s_lshl_b32 s{sT0}, s{sW}, 7
    v_add_u32 v{vt[1]}, s{sT0}, v{vt[0]}
    v_mov_b32 v{vt[2]}, 0xff800000
    ds_write_b32 v{vt[1]}, v{vt[2]}
    s_waitcnt vmcnt(0) lgkmcnt(0)
    s_barrier
    v_mov_b32 v{vt[1]}, v{vt[0]}
    v_mov_b32 v{vt[3]}, v{vQa}
    s_mov_b32 s{sT0}, 0
    K2_P1:
    ds_read_b128 {v(Q,4)}, v{vt[3]}
    v_mov_b32 v{nrm}, 0xff800000
    s_waitcnt lgkmcnt(0)
    """)
    for j in range(8):
        a(f"v_mfma_f32_32x32x16_bf16 {v(S[0],16)}, {v(Kf+4*j,4)}, {v(Q,4)}, 0")
        a("s_nop 7\ns_nop 3")
        for i in range(8):
            a(f"v_max3_f32 v{nrm}, v{nrm}, v{S[0]+2*i}, v{S[0]+2*i+1}")
        a("s_nop 1")
    a(f"""
    ds_max_f32 v{vt[1]}, v{nrm}
    v_add_u32 v{vt[1]}, 128, v{vt[1]}
    v_add_u32 v{vt[3]}, 1024, v{vt[3]}
    s_add_u32 s{sT0}, s{sT0}, 1
    s_cmp_lt_u32 s{sT0}, 8
    s_cbranch_scc1 K2_P1
    ds_read_b128 {v(Q,4)}, v{vQa}
    s_waitcnt lgkmcnt(0)
    s_barrier
    """)
    mainloop(True)
    a("s_branch K2_TAIL")
    return name, R.cur, K2_LDS
```

```python
from asmlib import *
from common import *

K3_LDS = 98304

def gen_k3(a):
    name = "ffn1_kernel"
    kernel_header(a, name)
    R = Regs(1, 256)
    vt = [R.alloc(f"t{i}") for i in range(4)]
    vWoff = [R.alloc(f"woff{i}") for i in range(2)]
    vL16 = R.alloc("l16")
    vWa = [R.alloc(f"wa{i}") for i in range(2)]
    B = R.alloc("b", 128)
    acc = R.alloc("acc", 48)
    NS = 3
    A = R.alloc("a", 12 * NS)
    bias = A
    sW, sRT, sT0, sT1, sT, sWm, sSo, sHo = 20, 21, 22, 23, 44, 45, 46, 47
    SW1, SB1, SHN, SG = 24, 28, 32, 36
    a(f"""
    s_cmp_ge_u32 s2, 240
    s_cbranch_scc1 K3_END
    s_load_dwordx4 s[8:11], s[0:1], 48
    s_load_dwordx2 s[16:17], s[0:1], 96
    v_lshrrev_b32 v{vt[0]}, 6, v0
    v_and_b32 v0, 63, v0
    v_readfirstlane_b32 s{sW}, v{vt[0]}
    v_lshlrev_b32 v{vL16}, 4, v0
    s_and_b32 s{sT0}, s2, 7
    s_lshr_b32 s{sT1}, s2, 3
    s_lshl_b32 s{sRT}, s{sT0}, 1
    s_and_b32 s{sT0}, s{sT1}, 1
    s_add_u32 s{sRT}, s{sRT}, s{sT0}
    s_lshl_b32 s{sRT}, s{sRT}, 2
    s_add_u32 s{sRT}, s{sRT}, s{sW}
    s_lshr_b32 s{sT1}, s{sT1}, 1
    s_mul_i32 s{sT}, s{sT1}, 3
    s_min_u32 s{sT}, s{sT}, 40
    v_lshrrev_b32 v{vt[0]}, 2, v0
    v_mul_u32_u24 v{vt[0]}, 2752, v{vt[0]}
    v_and_b32 v{vt[1]}, 3, v0
    v_lshl_add_u32 v{vt[0]}, v{vt[1]}, 4, v{vt[0]}
    s_lshl_b32 s{sT0}, s{sT}, 6
    s_mul_i32 s{sT1}, s{sW}, {2*44032}
    s_add_u32 s{sT1}, s{sT1}, s{sT0}
    v_add_u32 v{vWoff[0]}, s{sT1}, v{vt[0]}
    v_add_u32 v{vWoff[1]}, 44032, v{vWoff[0]}
    s_mul_i32 s{sWm}, s{sW}, 6144
    v_lshrrev_b32 v{vt[2]}, 5, v0
    v_lshlrev_b32 v{vt[3]}, 3, v{vt[2]}
    s_lshl_b32 s{sHo}, s{sRT}, 15
    s_waitcnt lgkmcnt(0)
    """)
    stamp_init(a)
    srd(a, SW1, 8, 9, 0, 1409024)
    srd(a, SB1, 10, 11, 0, 2752)
    srd(a, SHN, 16, 17, WS_HN, 0x200000)
    def issue_chunk(c):
        a(f"s_mov_b32 s{sSo}, {c*8*44032}")
        for kb in range(2):
            for ft in range(3):
                a(f"s_add_u32 m0, s{sWm}, {c*24576 + kb*3072 + ft*1024 - ft*64}")
                a("s_nop 0")
                a(f"buffer_load_dwordx4 v{vWoff[kb]}, {s(SW1,4)}, s{sSo} offen offset:{ft*64} lds")
        for i in range(8):
            ks = c*8 + i
            if i % 4 == 0:
                a(f"s_add_u32 s{sSo}, s{sHo}, {ks*1024}")
            a(f"buffer_load_dwordx4 {v(B+4*ks,4)}, v{vL16}, {s(SHN,4)}, s{sSo} offen offset:{(i%4)*1024}")
    issue_chunk(0)
    for ft in range(3):
        for q in range(4):
            a(f"buffer_load_dwordx2 {v(bias+8*ft+2*q,2)}, v{vt[3]}, {s(SB1,4)}, s{sT0} offen offset:{ft*64+q*16}")
    issue_chunk(1)
    issue_chunk(2)
    srd(a, SG, 16, 17, WS_G, G_BYTES)
    a(f"""
    v_lshlrev_b32 v{vt[0]}, 9, v{vt[2]}
    v_bfe_u32 v{vt[1]}, v0, 2, 2
    v_lshl_add_u32 v{vt[0]}, v{vt[1]}, 6, v{vt[0]}
    v_bfe_u32 v{vt[1]}, v0, 4, 1
    v_lshl_add_u32 v{vt[0]}, v{vt[1]}, 5, v{vt[0]}
    v_and_b32 v{vt[1]}, 3, v0
    v_lshl_add_u32 v{vWa[0]}, v{vt[1]}, 3, v{vt[0]}
    v_add_u32 v{vWa[1]}, 49152, v{vWa[0]}
    s_waitcnt vmcnt(28)
    """)
    for i in range(24):
        a(f"v_lshlrev_b32 v{acc+2*i}, 16, v{bias+i}")
        a(f"v_and_b32 v{acc+2*i+1}, 0xffff0000, v{bias+i}")
    issue_chunk(3)
    def reads(ks):
        sl = ks % NS
        base = vWa[ks >> 4]
        for ft in range(3):
            off = (ks & 15) * 3072 + ft * 1024
            a(f"ds_read_b64_tr_b16 {v(A+12*sl+4*ft,2)}, v{base} offset:{off}")
            a(f"ds_read_b64_tr_b16 {v(A+12*sl+4*ft+2,2)}, v{base} offset:{off+256}")
    a("s_barrier")
    stamp(a, 2)
    reads(0); reads(1)
    for ks in range(32):
        nx = ks + 2
        if nx < 32:
            if nx % 8 == 0:
                c = nx // 8
                a(f"s_waitcnt vmcnt({14*(3-c)})")
                a("s_barrier")
                stamp(a, 2 + c)
            reads(nx)
        later = 6 * min(2, 31 - ks)
        a(f"s_waitcnt lgkmcnt({later})")
        sl = ks % NS
        for ft in range(3):
            a(f"v_mfma_f32_32x32x16_bf16 {v(acc+16*ft,16)}, {v(A+12*sl+4*ft,4)}, {v(B+4*ks,4)}, {v(acc+16*ft,16)}")
    a(f"""
    s_mul_i32 s{sT0}, s{sRT}, 86
    s_lshl_b32 s{sT1}, s{sT}, 1
    s_add_u32 s{sT0}, s{sT0}, s{sT1}
    s_lshl_b32 s{sT0}, s{sT0}, 10
    s_add_u32 s{sT1}, s{sT0}, 4096
    s_nop 7
    """)
    stamp(a, 6)
    for ft in range(3):
        for i in range(16):
            a(f"v_max_f32 v{acc+16*ft+i}, 0, v{acc+16*ft+i}")
        for i in range(8):
            r = acc + 16*ft + 2*i
            a(f"v_pk_mul_f32 {v(r,2)}, {v(r,2)}, {v(r,2)}")
        for i in range(8):
            r = acc + 16*ft + 2*i
            a(f"v_cvt_pk_bf16_f32 v{B+8*ft+i}, v{r}, v{r+1}")
        for sx in range(2):
            n = 2*ft + sx
            so = sT0 if n < 4 else sT1
            a(f"buffer_store_dwordx4 {v(B+8*ft+4*sx,4)}, v{vL16}, {s(SG,4)}, s{so} offen offset:{(n&3)*1024}")
    stamp_dump(a, 2, sW)
    a("K3_END:")
    a("s_endpgm")
    return name, R.cur, K3_LDS
```

```python
from asmlib import *
from common import *

DEPTH = 11
RING = DEPTH * 2048
K4_LDS = 4 * RING

def gen_k4(a):
    name = "ffn2_kernel"
    kernel_header(a, name)
    R = Regs(1, 256)
    vt = [R.alloc(f"t{i}") for i in range(4)]
    vWoff = R.alloc("woff")
    vL16 = R.alloc("l16"); vG1 = R.alloc("g1")
    vWa = [R.alloc(f"wa{i}") for i in range(2)]
    vOo = R.alloc("oo")
    vTid = R.alloc("tid")
    G = R.alloc("g", 8 * DEPTH)
    acc = R.alloc("acc", 64)
    A = R.alloc("a", 16)
    Hr = R.alloc("h", 8); B2 = R.alloc("b2", 8)
    sW, sRB, sCB, sT0, sT1, sWm, sSo, sGo, sW2o = 20, 21, 22, 23, 44, 45, 46, 47, 48
    SW2, SB2, SH, SG, SO = 24, 28, 32, 36, 40
    a(f"""
    s_cmp_ge_u32 s2, 256
    s_cbranch_scc1 K4_END
    s_load_dwordx4 s[8:11], s[0:1], 64
    s_load_dwordx2 s[12:13], s[0:1], 80
    s_load_dwordx2 s[16:17], s[0:1], 96
    v_lshrrev_b32 v{vt[0]}, 6, v0
    v_mov_b32 v{vTid}, v0
    v_readfirstlane_b32 s{sW}, v{vt[0]}
    v_and_b32 v0, 63, v0
    v_lshlrev_b32 v{vL16}, 4, v0
    v_add_u32 v{vG1}, {86*1024}, v{vL16}
    s_and_b32 s{sT0}, s2, 7
    s_lshr_b32 s{sT1}, s2, 3
    s_lshl_b32 s{sRB}, s{sT0}, 2
    s_and_b32 s{sT0}, s{sT1}, 3
    s_add_u32 s{sRB}, s{sRB}, s{sT0}
    s_lshr_b32 s{sCB}, s{sT1}, 2
    """)
    a(f"""
    v_lshrrev_b32 v{vt[0]}, 3, v0
    v_bfe_u32 v{vt[1]}, v0, 2, 1
    v_bfe_u32 v{vt[2]}, v0, 4, 1
    v_xor_b32 v{vt[1]}, v{vt[1]}, v{vt[2]}
    v_and_b32 v{vt[2]}, 3, v0
    v_lshlrev_b32 v{vt[2]}, 4, v{vt[2]}
    v_lshl_add_u32 v{vt[2]}, v{vt[1]}, 6, v{vt[2]}
    v_lshl_add_u32 v{vt[2]}, v{vt[0]}, 10, v{vt[2]}
    s_lshl_b32 s{sT0}, s{sCB}, 7
    v_add_u32 v{vWoff}, s{sT0}, v{vt[2]}
    s_lshl_b32 s{sW2o}, s{sW}, 14
    s_mul_i32 s{sGo}, s{sRB}, {2*86*1024}
    s_lshl_b32 s{sT1}, s{sW}, 10
    s_add_u32 s{sGo}, s{sGo}, s{sT1}
    s_mul_i32 s{sWm}, s{sW}, {RING}
    s_waitcnt lgkmcnt(0)
    """)
    stamp_init(a)
    srd(a, SW2, 8, 9, 0, 1409024)
    srd(a, SG, 16, 17, WS_G, G_BYTES)
    def issue(i):
        sl = i % DEPTH
        for e in range(2):
            a(f"s_add_u32 s{sSo}, s{sW2o}, {i*65536 + e*8192}")
            a(f"s_add_u32 m0, s{sWm}, {sl*2048 + e*1024}")
            a("s_nop 0")
            a(f"buffer_load_dwordx4 v{vWoff}, {s(SW2,4)}, s{sSo} offen lds")
        a(f"s_add_u32 s{sSo}, s{sGo}, {i*4096}")
        a(f"buffer_load_dwordx4 {v(G+8*sl,4)}, v{vL16}, {s(SG,4)}, s{sSo} offen")
        a(f"buffer_load_dwordx4 {v(G+8*sl+4,4)}, v{vG1}, {s(SG,4)}, s{sSo} offen")
    for i in range(DEPTH):
        issue(i)
    srd(a, SB2, 10, 11, 0, 1024)
    srd(a, SH, 16, 17, WS_H, 0x200000)
    srd(a, SO, 12, 13, 0, 0x200000)
    a(f"""
    v_lshrrev_b32 v{vt[0]}, 2, v{vTid}
    v_and_b32 v{vt[1]}, 3, v{vTid}
    v_lshlrev_b32 v{vt[1]}, 5, v{vt[1]}
    v_add_u32 v{vt[1]}, s{sT0}, v{vt[1]}
    v_lshl_add_u32 v{vOo}, v{vt[0]}, 10, v{vt[1]}
    s_lshl_b32 s{sT1}, s{sRB}, 16
    buffer_load_dwordx4 {v(Hr,4)}, v{vOo}, {s(SH,4)}, s{sT1} offen
    buffer_load_dwordx4 {v(Hr+4,4)}, v{vOo}, {s(SH,4)}, s{sT1} offen offset:16
    buffer_load_dwordx4 {v(B2,4)}, v{vt[1]}, {s(SB2,4)}, 0 offen
    buffer_load_dwordx4 {v(B2+4,4)}, v{vt[1]}, {s(SB2,4)}, 0 offen offset:16
    """)
    a(f"""
    v_lshrrev_b32 v{vt[0]}, 5, v0
    v_lshlrev_b32 v{vt[0]}, 9, v{vt[0]}
    v_bfe_u32 v{vt[2]}, v0, 2, 2
    v_lshl_add_u32 v{vt[0]}, v{vt[2]}, 7, v{vt[0]}
    v_bfe_u32 v{vt[2]}, v0, 4, 1
    v_lshl_add_u32 v{vt[0]}, v{vt[2]}, 5, v{vt[0]}
    v_and_b32 v{vt[2]}, 3, v0
    v_lshl_add_u32 v{vt[0]}, v{vt[2]}, 3, v{vt[0]}
    v_add_u32 v{vt[0]}, s{sWm}, v{vt[0]}
    v_bfe_u32 v{vt[2]}, v0, 3, 1
    v_lshl_add_u32 v{vWa[0]}, v{vt[2]}, 6, v{vt[0]}
    v_xor_b32 v{vt[2]}, 1, v{vt[2]}
    v_lshl_add_u32 v{vWa[1]}, v{vt[2]}, 6, v{vt[0]}
    """)
    for i in range(64):
        a(f"v_mov_b32 v{acc+i}, 0")
    NST = 22
    ops = [("st", i) for i in range(DEPTH) for _ in range(4)] + [("x", 0)] * 4
    def wait_step(i):
        last = max(k for k, o in enumerate(ops) if o == ("st", i))
        a(f"s_waitcnt vmcnt({len(ops) - 1 - last})")
    def reads(i):
        sl = i % DEPTH
        ab = A + 8 * (i & 1)
        for ct in range(2):
            for rd in range(2):
                a(f"ds_read_b64_tr_b16 {v(ab+4*ct+2*rd,2)}, v{vWa[ct]} offset:{sl*2048 + rd*1024}")
    stamp(a, 1)
    wait_step(0)
    stamp(a, 2)
    reads(0)
    for i in range(NST):
        if i + 1 < NST:
            wait_step(i + 1)
            if i in (4, 10, 15): stamp(a, {4: 3, 10: 4, 15: 5}[i])
            reads(i + 1)
            a("s_waitcnt lgkmcnt(4)")
        else:
            a("s_waitcnt lgkmcnt(0)")
        sl = i % DEPTH
        ab = A + 8 * (i & 1)
        for ct in range(2):
            for rt in range(2):
                d = acc + 16 * (2*ct + rt)
                a(f"v_mfma_f32_32x32x16_bf16 {v(d,16)}, {v(ab+4*ct,4)}, {v(G+8*sl+4*rt,4)}, {v(d,16)}")
        if i + DEPTH < NST:
            issue(i + DEPTH)
            ops += [("st", i + DEPTH)] * 4
    stamp(a, 6)
    a.c("cross-wave reduction")
    a(f"""
    v_and_b32 v{vt[0]}, 31, v0
    v_mul_u32_u24 v{vt[0]}, 272, v{vt[0]}
    v_lshrrev_b32 v{vt[2]}, 5, v0
    v_lshl_add_u32 v{vt[0]}, v{vt[2]}, 4, v{vt[0]}
    v_add_u32 v{vt[0]}, s{sWm}, v{vt[0]}
    v_lshrrev_b32 v{vt[2]}, 2, v{vTid}
    v_mul_u32_u24 v{vt[2]}, 272, v{vt[2]}
    v_and_b32 v{vt[3]}, 3, v{vTid}
    v_lshl_add_u32 v{vt[2]}, v{vt[3]}, 6, v{vt[2]}
    v_add_u32 v{vt[3]}, {2*RING}, v{vt[2]}
    s_nop 3
    """)
    for ct in range(2):
        for rt in range(2):
            for q in range(4):
                d = acc + 16 * (2*ct + rt) + 4*q
                a(f"ds_write_b128 v{vt[0]}, {v(d,4)} offset:{rt*32*272 + (32*ct + 8*q)*4}")
    a("s_waitcnt lgkmcnt(0)")
    a("s_barrier")
    for w in range(4):
        for q in range(4):
            a(f"ds_read_b128 {v(acc+16*w+4*q,4)}, v{vt[2 + (w >> 1)]} offset:{(w & 1)*RING + 16*q}")
    a("s_waitcnt vmcnt(0)")
    for i in range(8):
        a(f"v_lshlrev_b32 v{G+2*i}, 16, v{Hr+i}")
        a(f"v_and_b32 v{G+2*i+1}, 0xffff0000, v{Hr+i}")
        a(f"v_lshlrev_b32 v{G+16+2*i}, 16, v{B2+i}")
        a(f"v_and_b32 v{G+16+2*i+1}, 0xffff0000, v{B2+i}")
    for i in range(16):
        a(f"v_add_f32 v{G+i}, v{G+i}, v{G+16+i}")
    a("s_waitcnt lgkmcnt(8)")
    for i in range(16):
        a(f"v_add_f32 v{acc+i}, v{acc+i}, v{acc+16+i}")
    a("s_waitcnt lgkmcnt(0)")
    for i in range(16):
        a(f"v_add_f32 v{acc+32+i}, v{acc+32+i}, v{acc+48+i}")
    for i in range(16):
        a(f"v_add_f32 v{acc+i}, v{acc+i}, v{G+i}")
    for i in range(16):
        a(f"v_add_f32 v{acc+i}, v{acc+i}, v{acc+32+i}")
    for i in range(8):
        a(f"v_cvt_pk_bf16_f32 v{G+32+i}, v{acc+2*i}, v{acc+2*i+1}")
    a(f"""
    buffer_store_dwordx4 {v(G+32,4)}, v{vOo}, {s(SO,4)}, s{sT1} offen
    buffer_store_dwordx4 {v(G+36,4)}, v{vOo}, {s(SO,4)}, s{sT1} offen offset:16
    """)
    stamp_dump(a, 3, sW)
    a("K4_END:")
    a("s_endpgm")
    return name, R.cur, K4_LDS
```

```python
WS_Q  = 0x000000
WS_K  = 0x200000
WS_V  = 0x210000
WS_KM = 0x221000
VSTR = 528
KV_BYTES = 0x22000
WS_WO = 0x280000
WS_H  = 0x300000
WS_HN = 0x500000
WS_G  = 0x700000
G_BYTES = 64 * 86 * 1024
QSCALE = 0.25 * 1.4426950408889634
import struct
def f32bits(x):
    return struct.unpack("<I", struct.pack("<f", x))[0]
```

```python
from asmlib import *
from common import *

XBASE = 0
WBASE = 65536
KVBASE = 131072
STBASE = 147456
K1_LDS = STBASE + 12288

def gen_k1(a):
    name = "qkv_kernel"
    kernel_header(a, name)
    R = Regs(1, 128)
    vt = [R.alloc(f"t{i}") for i in range(8)]
    NS = 4
    pool = R.alloc("pool", 116, 4)
    sW, sRB, sCB, sWR, sWC, sH = 20, 21, 22, 23, 44, 45
    sT0, sT1, sXm, sWm, sKm, sSo = 46, 47, 48, 49, 50, 51
    SX, SWQ, SKW, SQ, SKV, SWO = 24, 28, 32, 36, 40, 52
    a(f"""
    s_cmp_ge_u32 s2, 256
    s_cbranch_scc1 K1_END
    s_load_dwordx8 s[8:15], s[0:1], 0
    s_load_dwordx2 s[16:17], s[0:1], 96
    s_load_dwordx2 s[18:19], s[0:1], 32
    v_lshrrev_b32 v{vt[0]}, 6, v0
    v_and_b32 v0, 63, v0
    v_readfirstlane_b32 s{sW}, v{vt[0]}
    s_and_b32 s{sT0}, s2, 7
    s_lshr_b32 s{sT1}, s2, 3
    s_lshl_b32 s{sRB}, s{sT0}, 2
    s_and_b32 s{sT0}, s{sT1}, 3
    s_add_u32 s{sRB}, s{sRB}, s{sT0}
    s_lshr_b32 s{sCB}, s{sT1}, 2
    """)
    stamp_init(a)
    a(f"""
    s_cmp_ge_u32 s{sW}, 4
    s_cbranch_scc1 K1_MM
    """)
    P = Regs(pool, pool + 116)
    vXoff = [P.alloc(f"xoff{e}") for e in range(4)]
    vWoff = [P.alloc(f"woff{e}") for e in range(2)]
    vKoff = P.alloc("koff")
    vXs = [P.alloc(f"xs{i}") for i in range(4)]
    vWs = P.alloc("ws"); vX16a = P.alloc("x16a"); vKWa = P.alloc("kwa")
    vsx = [P.alloc(f"sx{i}") for i in range(2)]
    vsxx = [P.alloc(f"sxx{i}") for i in range(2)]
    vcs = [P.alloc(f"cs{i}") for i in range(2)]
    ones = P.alloc("ones", 4)
    Xs = P.alloc("xsd", 16); Ws = P.alloc("wsd", 16)
    X16 = P.alloc("x16", 4); KW = P.alloc("kw", 4)
    Dk = P.alloc("dk", 4); Dc = P.alloc("dc", 4)
    st = P.alloc("st", 16, 4); pk = P.alloc("pk", 8, 4)
    a("s_setprio 3")
    a(f"""
    v_lshrrev_b32 v{vt[2]}, 4, v0
    v_and_b32 v{vt[3]}, 15, v0
    s_lshl_b32 s{sT0}, s{sW}, 14
    """)
    for e in range(4):
        a(f"""
        v_add_u32 v{vt[4]}, {4*e}, v{vt[2]}
        v_xor_b32 v{vt[5]}, v{vt[3]}, v{vt[4]}
        v_lshlrev_b32 v{vt[5]}, 4, v{vt[5]}
        v_lshl_add_u32 v{vt[5]}, v{vt[4]}, 10, v{vt[5]}
        v_add_u32 v{vXoff[e]}, s{sT0}, v{vt[5]}
        """)
    a(f"""
    v_lshrrev_b32 v{vt[4]}, 2, v0
    v_and_b32 v{vt[5]}, 3, v0
    v_lshlrev_b32 v{vt[5]}, 4, v{vt[5]}
    v_lshl_add_u32 v{vt[7]}, v{vt[4]}, 10, v{vt[5]}
    s_lshl_b32 s{sT0}, s{sCB}, 7
    s_lshl_b32 s{sT1}, s{sW}, 15
    s_add_u32 s{sT0}, s{sT0}, s{sT1}
    v_add_u32 v{vWoff[0]}, s{sT0}, v{vt[7]}
    v_add_u32 v{vWoff[1]}, 0x4000, v{vWoff[0]}
    v_lshrrev_b32 v{vt[4]}, 1, v0
    v_and_b32 v{vt[5]}, 0x13, v{vt[4]}
    v_and_b32 v{vt[6]}, 4, v{vt[4]}
    v_lshl_or_b32 v{vt[5]}, v{vt[6]}, 1, v{vt[5]}
    v_and_b32 v{vt[6]}, 8, v{vt[4]}
    v_lshrrev_b32 v{vt[6]}, 1, v{vt[6]}
    v_or_b32 v{vt[5]}, v{vt[5]}, v{vt[6]}
    v_lshlrev_b32 v{vt[5]}, 5, v{vt[5]}
    v_and_b32 v{vt[6]}, 1, v0
    v_lshl_add_u32 v{vt[5]}, v{vt[6]}, 4, v{vt[5]}
    s_lshl_b32 s{sT0}, s{sW}, 10
    v_add_u32 v{vKoff}, s{sT0}, v{vt[5]}
    s_lshl_b32 s{sXm}, s{sW}, 12
    s_lshl_b32 s{sWm}, s{sW}, 11
    s_add_u32 s{sWm}, s{sWm}, {WBASE}
    s_add_u32 s{sKm}, s{sT0}, {KVBASE}
    s_lshl_b32 s{sT0}, s{sRB}, 16
    s_waitcnt lgkmcnt(0)
    s_add_u32 s{SX}, s8, s{sT0}
    s_addc_u32 s{SX+1}, s9, 0
    s_mov_b32 s{SX+2}, 0x10000
    s_mov_b32 s{SX+3}, 0x20000
    """)
    srd(a, SWQ, 10, 11, 0, 524288)
    a(f"""
    s_bitcmp1_b32 s{sCB}, 0
    s_cselect_b32 s{SKW}, s14, s12
    s_cselect_b32 s{SKW+1}, s15, s13
    s_mov_b32 s{SKW+2}, 0x4000
    s_mov_b32 s{SKW+3}, 0x20000
    """)
    def issue(c):
        for e in range(4):
            a(f"s_add_u32 m0, s{sXm}, {XBASE + c*16384 + e*1024 - c*256}")
            a("s_nop 0")
            a(f"buffer_load_dwordx4 v{vXoff[e]}, {s(SX,4)}, 0 offen offset:{c*256} lds")
        a(f"s_mov_b32 s{sSo}, {c*131072}")
        for kb in range(2):
            for ct in range(2):
                a(f"s_add_u32 m0, s{sWm}, {(ct*32 + c*8 + kb)*1024 - ct*64}")
                a("s_nop 0")
                a(f"buffer_load_dwordx4 v{vWoff[kb]}, {s(SWQ,4)}, s{sSo} offen offset:{ct*64} lds")
        a(f"s_mov_b32 s{sSo}, {c*4096}")
        a(f"s_add_u32 m0, s{sKm}, {c*4096}")
        a("s_nop 0")
        a(f"buffer_load_dwordx4 v{vKoff}, {s(SKW,4)}, s{sSo} offen lds")
    issue(0); issue(1)
    a("s_setprio 0")
    stamp(a, 1)
    a(f"""
    s_lshl_b32 s{sT0}, s{sW}, 12
    v_lshlrev_b32 v{vt[4]}, 8, v{vt[3]}
    v_add_u32 v{vt[4]}, s{sT0}, v{vt[4]}
    v_lshlrev_b32 v{vt[5]}, 2, v{vt[2]}
    """)
    for i in range(4):
        a(f"""
        v_add_u32 v{vt[6]}, {i}, v{vt[5]}
        v_xor_b32 v{vt[6]}, v{vt[6]}, v{vt[3]}
        v_lshl_add_u32 v{vXs[i]}, v{vt[6]}, 4, v{vt[4]}
        """)
    a(f"""
    v_lshrrev_b32 v{vt[1]}, 5, v0
    v_lshlrev_b32 v{vt[4]}, 9, v{vt[1]}
    v_bfe_u32 v{vt[5]}, v0, 2, 2
    v_lshl_add_u32 v{vt[4]}, v{vt[5]}, 6, v{vt[4]}
    v_bfe_u32 v{vt[6]}, v0, 4, 1
    v_lshl_add_u32 v{vt[4]}, v{vt[6]}, 5, v{vt[4]}
    v_and_b32 v{vt[0]}, 3, v0
    v_lshl_add_u32 v{vt[4]}, v{vt[0]}, 3, v{vt[4]}
    s_and_b32 s{sT0}, s{sW}, 1
    s_lshl_b32 s{sT0}, s{sT0}, 15
    s_lshr_b32 s{sT1}, s{sW}, 1
    s_lshl_b32 s{sT1}, s{sT1}, 12
    s_add_u32 s{sT0}, s{sT0}, s{sT1}
    s_add_u32 s{sT0}, s{sT0}, {WBASE}
    v_add_u32 v{vWs}, s{sT0}, v{vt[4]}
    v_lshlrev_b32 v{vt[4]}, 9, v{vt[1]}
    v_lshl_add_u32 v{vt[4]}, v{vt[6]}, 7, v{vt[4]}
    v_lshl_add_u32 v{vt[4]}, v{vt[5]}, 5, v{vt[4]}
    v_lshl_add_u32 v{vt[4]}, v{vt[0]}, 3, v{vt[4]}
    v_add_u32 v{vKWa}, s{sKm}, v{vt[4]}
    s_lshr_b32 s{sT0}, s{sCB}, 1
    s_lshl_b32 s{sT0}, s{sT0}, 12
    s_lshl_b32 s{sT1}, s{sW}, 2
    v_add_u32 v{vt[6]}, s{sT1}, v{vt[2]}
    v_xor_b32 v{vt[6]}, v{vt[6]}, v{vt[3]}
    v_lshlrev_b32 v{vt[6]}, 4, v{vt[6]}
    v_lshl_add_u32 v{vt[6]}, v{vt[3]}, 8, v{vt[6]}
    v_add_u32 v{vX16a}, s{sT0}, v{vt[6]}
    """)
    for i in range(4):
        a(f"v_mov_b32 v{ones+i}, 0x3f803f80")
        a(f"v_mov_b32 v{Dk+i}, 0")
        a(f"v_mov_b32 v{Dc+i}, 0")
    for r in vsx + vsxx + vcs:
        a(f"v_mov_b32 v{r}, 0")
    srd(a, SWO, 18, 19, 0, 524288)
    srd(a, SKV, 16, 17, WS_K, KV_BYTES)
    for c in range(4):
        a(f"s_waitcnt vmcnt({9 if c < 3 else 2})")
        a("s_barrier")
        stamp(a, 2 + c)
        for i in range(4):
            a(f"ds_read_b128 {v(Xs+4*i,4)}, v{vXs[i]} offset:{c*16384}")
        for i in range(4):
            a(f"ds_read_b64_tr_b16 {v(Ws+4*i,2)}, v{vWs} offset:{(c*8+i)*1024}")
            a(f"ds_read_b64_tr_b16 {v(Ws+4*i+2,2)}, v{vWs} offset:{(c*8+i)*1024+256}")
        a(f"ds_read_b128 {v(X16,4)}, v{vX16a} offset:{c*16384}")
        a(f"ds_read_b64_tr_b16 {v(KW,2)}, v{vKWa} offset:{c*4096}")
        a(f"ds_read_b64_tr_b16 {v(KW+2,2)}, v{vKWa} offset:{c*4096+256}")
        if c < 2:
            issue(c + 2)
        if c == 2:
            a.c("wo re-layout job: every helper issues the two loads (waves != 2 with an out-of-range offset)")
            a(f"""
            s_lshr_b32 s{sT0}, s2, 4
            s_lshl_b32 s{sT0}, s{sT0}, 15
            s_and_b32 s{sT1}, s2, 15
            s_lshl_b32 s{sT1}, s{sT1}, 6
            s_add_u32 s{sT0}, s{sT0}, s{sT1}
            s_lshl_b32 s{sT1}, s{sW}, 11
            s_add_u32 m0, s{sT1}, {STBASE + 2048}
            s_cmp_eq_u32 s{sW}, 2
            s_cselect_b32 s{sT0}, s{sT0}, 0x100000
            buffer_load_dwordx4 v{vt[7]}, {s(SWO,4)}, s{sT0} offen lds
            s_add_u32 m0, s{sT1}, {STBASE + 2048 + 1024}
            s_add_u32 s{sT0}, s{sT0}, 0x4000
            buffer_load_dwordx4 v{vt[7]}, {s(SWO,4)}, s{sT0} offen lds
            """)
        a("s_waitcnt lgkmcnt(11)")
        for j in range(16):
            a(f"v_dot2c_f32_bf16 v{vsx[j&1]}, v{Xs+j}, v{ones}")
            a(f"v_dot2c_f32_bf16 v{vsxx[j&1]}, v{Xs+j}, v{Xs+j}")
        a("s_waitcnt lgkmcnt(0)")
        for j in range(16):
            a(f"v_dot2c_f32_bf16 v{vcs[j&1]}, v{Ws+j}, v{ones}")
        a(f"""
        s_bitcmp1_b32 s{sCB}, 0
        s_cbranch_scc1 K1_V{c}
        v_mfma_f32_16x16x32_bf16 {v(Dk,4)}, {v(KW,4)}, {v(X16,4)}, {v(Dk,4)}
        v_mfma_f32_16x16x32_bf16 {v(Dc,4)}, {v(KW,4)}, {v(ones,4)}, {v(Dc,4)}
        s_branch K1_J{c}
        K1_V{c}:
        v_mfma_f32_16x16x32_bf16 {v(Dk,4)}, {v(X16,4)}, {v(KW,4)}, {v(Dk,4)}
        v_mfma_f32_16x16x32_bf16 {v(Dc,4)}, {v(ones,4)}, {v(KW,4)}, {v(Dc,4)}
        K1_J{c}:
        """)
    stamp(a, 6)
    a.c("finish row statistics (rows 16w..16w+15) and column sums")
    a(f"""
    v_add_f32 v{st}, v{vsx[0]}, v{vsx[1]}
    v_add_f32 v{st+1}, v{vsxx[0]}, v{vsxx[1]}
    v_add_f32 v{st+2}, v{vcs[0]}, v{vcs[1]}
    v_mov_b32 v{st+4}, v{st}
    v_mov_b32 v{st+5}, v{st+1}
    v_mov_b32 v{st+6}, v{st+2}
    s_mov_b32 s{sXm}, {hex(f32bits(1.0/512))}
    v_permlane32_swap_b32 v{st}, v{st+4}
    v_permlane32_swap_b32 v{st+1}, v{st+5}
    v_permlane32_swap_b32 v{st+2}, v{st+6}
    v_pk_add_f32 {v(st,2)}, {v(st,2)}, {v(st+4,2)}
    v_add_f32 v{st+2}, v{st+2}, v{st+6}
    v_mov_b32 v{st+4}, v{st}
    v_mov_b32 v{st+5}, v{st+1}
    s_lshr_b32 s{sT0}, s{sW}, 1
    s_lshl_b32 s{sT0}, s{sT0}, 8
    v_permlane16_swap_b32 v{st}, v{st+4}
    v_permlane16_swap_b32 v{st+1}, v{st+5}
    s_and_b32 s{sT1}, s{sW}, 1
    s_lshl_b32 s{sT1}, s{sT1}, 7
    s_add_u32 s{sT0}, s{sT0}, s{sT1}
    s_add_u32 s{sT0}, s{sT0}, {STBASE + 1024}
    v_and_b32 v{vt[0]}, 31, v0
    v_lshlrev_b32 v{vt[0]}, 2, v{vt[0]}
    v_add_u32 v{vt[0]}, s{sT0}, v{vt[0]}
    ds_write_b32 v{vt[0]}, v{st+2}
    v_pk_add_f32 {v(st,2)}, {v(st,2)}, {v(st+4,2)}
    s_mov_b32 s{sWm}, {hex(f32bits(1e-5))}
    v_mul_f32 v{st+3}, s{sXm}, v{st}
    v_mul_f32 v{st+1}, s{sXm}, v{st+1}
    v_fma_f32 v{st+1}, -v{st+3}, v{st+3}, v{st+1}
    v_max_f32 v{st+1}, 0, v{st+1}
    v_add_f32 v{st+1}, s{sWm}, v{st+1}
    v_rsq_f32 v{st+2}, v{st+1}
    s_lshl_b32 s{sT0}, s{sW}, 8
    s_add_u32 s{sT0}, s{sT0}, {STBASE}
    v_lshlrev_b32 v{vt[0]}, 4, v{vt[3]}
    v_mul_f32 v{st}, {hex(f32bits(QSCALE))}, v{st+2}
    v_add_u32 v{vt[0]}, s{sT0}, v{vt[0]}
    v_mul_f32 v{st+1}, v{st}, v{st+3}
    ds_write_b128 v{vt[0]}, {v(st,4)}
    """)
    a.c("wo re-layout (wave 2) before its staging area is reused")
    srd(a, SWO, 16, 17, WS_WO, 524288)
    a(f"""
    v_lshlrev_b32 v{vt[4]}, 4, v0
    s_waitcnt vmcnt(0)
    s_cmp_lg_u32 s{sW}, 2
    s_cbranch_scc1 K1_NOWO2
    v_lshlrev_b32 v{vt[5]}, 9, v{vt[2]}
    v_bfe_u32 v{vt[6]}, v0, 2, 2
    v_lshl_add_u32 v{vt[5]}, v{vt[6]}, 6, v{vt[5]}
    v_and_b32 v{vt[6]}, 3, v0
    v_lshl_add_u32 v{vt[5]}, v{vt[6]}, 3, v{vt[5]}
    v_add_u32 v{vt[5]}, {STBASE + 2048 + 4096}, v{vt[5]}
    ds_read_b64_tr_b16 {v(pk,2)}, v{vt[5]}
    ds_read_b64_tr_b16 {v(pk+2,2)}, v{vt[5]} offset:256
    ds_read_b64_tr_b16 {v(pk+4,2)}, v{vt[5]} offset:32
    ds_read_b64_tr_b16 {v(pk+6,2)}, v{vt[5]} offset:288
    s_lshr_b32 s{sT0}, s2, 5
    s_lshl_b32 s{sT0}, s{sT0}, 16
    s_bfe_u32 s{sT1}, s2, 0x30001
    s_lshl_b32 s{sT1}, s{sT1}, 13
    s_add_u32 s{sT0}, s{sT0}, s{sT1}
    s_bfe_u32 s{sT1}, s2, 0x10004
    s_lshl_b32 s{sT1}, s{sT1}, 12
    s_add_u32 s{sT0}, s{sT0}, s{sT1}
    s_and_b32 s{sT1}, s2, 1
    s_lshl_b32 s{sT1}, s{sT1}, 11
    s_add_u32 s{sT0}, s{sT0}, s{sT1}
    s_waitcnt lgkmcnt(0)
    buffer_store_dwordx4 {v(pk,4)}, v{vt[4]}, {s(SWO,4)}, s{sT0} offen
    buffer_store_dwordx4 {v(pk+4,4)}, v{vt[4]}, {s(SWO,4)}, s{sT0} offen offset:1024
    K1_NOWO2:
    v_add_u32 v{vt[4]}, {STBASE + 2048}, v{vt[4]}
    s_lshl_b32 s{sT0}, s{sW}, 11
    v_add_u32 v{vt[5]}, s{sT0}, v{vt[4]}
    ds_write_b128 v{vt[5]}, {v(Dk,4)}
    ds_write_b128 v{vt[5]}, {v(Dc,4)} offset:1024
    s_waitcnt lgkmcnt(0)
    s_barrier
    s_cmp_lg_u32 s{sW}, 3
    s_cbranch_scc1 K1_DONE
    """)
    a.c("KV epilogue (wave 3)")
    g, d = vt[2], vt[3]
    Pp = Xs
    assert Ws == Xs + 16 and Dc == Dk + 4
    for w in range(4):
        a(f"ds_read_b128 {v(Pp+8*w,4)}, v{vt[4]} offset:{w*2048}")
        a(f"ds_read_b128 {v(Pp+8*w+4,4)}, v{vt[4]} offset:{w*2048+1024}")
    def kvsum():
        for i in range(4):
            a(f"v_pk_add_f32 {v(Pp+2*i,2)}, {v(Pp+2*i,2)}, {v(Pp+8+2*i,2)}")
            a(f"v_pk_add_f32 {v(Pp+16+2*i,2)}, {v(Pp+16+2*i,2)}, {v(Pp+24+2*i,2)}")
        for i in range(4):
            a(f"v_pk_add_f32 {v(Dk+2*i,2)}, {v(Pp+2*i,2)}, {v(Pp+16+2*i,2)}")
    a(f"""
    s_lshr_b32 s{sH}, s{sCB}, 1
    s_lshl_b32 s{sT0}, s{sH}, 8
    s_add_u32 s{sT0}, s{sT0}, {STBASE}
    s_lshl_b32 s{sKm}, s{sRB}, 2
    s_add_u32 s{sKm}, s{sKm}, s{sH}
    s_bitcmp1_b32 s{sCB}, 0
    s_cbranch_scc1 K1_VEP
    """)
    a.c("K tile: lane key = l&15")
    a(f"""
    v_lshlrev_b32 v{vt[0]}, 4, v{d}
    v_add_u32 v{vt[0]}, s{sT0}, v{vt[0]}
    ds_read_b64 {v(st,2)}, v{vt[0]} offset:8
    v_and_b32 v{vt[1]}, 3, v{d}
    v_and_b32 v{vt[5]}, 4, v{d}
    v_lshl_or_b32 v{vt[1]}, v{vt[5]}, 1, v{vt[1]}
    v_and_b32 v{vt[5]}, 8, v{d}
    v_lshrrev_b32 v{vt[5]}, 1, v{vt[5]}
    v_or_b32 v{vt[1]}, v{vt[1]}, v{vt[5]}
    v_lshlrev_b32 v{vt[1]}, 4, v{vt[1]}
    v_and_b32 v{vt[5]}, 1, v{g}
    v_lshl_add_u32 v{vt[1]}, v{vt[5]}, 9, v{vt[1]}
    v_lshrrev_b32 v{vt[5]}, 1, v{g}
    v_lshl_add_u32 v{vt[1]}, v{vt[5]}, 3, v{vt[1]}
    s_lshr_b32 s{sT1}, s{sKm}, 1
    s_lshl_b32 s{sT1}, s{sT1}, 10
    s_and_b32 s{sT0}, s{sKm}, 1
    s_lshl_b32 s{sT0}, s{sT0}, 8
    s_add_u32 s{sT1}, s{sT1}, s{sT0}
    s_waitcnt lgkmcnt(0)
    """)
    kvsum()
    for r in range(4):
        a(f"v_fma_f32 v{Dk+r}, -v{st+1}, v{Dc+r}, v{Dk+r}")
    for r in range(4):
        a(f"v_mul_f32 v{Dk+r}, v{Dk+r}, v{st}")
    a(f"""
    v_cvt_pk_bf16_f32 v{pk}, v{Dk}, v{Dk+1}
    v_cvt_pk_bf16_f32 v{pk+1}, v{Dk+2}, v{Dk+3}
    v_mul_f32 v{st+2}, v{Dk}, v{Dk}
    v_fmac_f32 v{st+2}, v{Dk+1}, v{Dk+1}
    v_fmac_f32 v{st+2}, v{Dk+2}, v{Dk+2}
    v_fmac_f32 v{st+2}, v{Dk+3}, v{Dk+3}
    buffer_store_dwordx2 {v(pk,2)}, v{vt[1]}, {s(SKV,4)}, s{sT1} offen
    v_mov_b32 v{st+3}, v{st+2}
    s_nop 1
    v_permlane32_swap_b32 v{st+2}, v{st+3}
    v_add_f32 v{st+2}, v{st+2}, v{st+3}
    v_mov_b32 v{st+3}, v{st+2}
    s_nop 1
    v_permlane16_swap_b32 v{st+2}, v{st+3}
    v_add_f32 v{st+2}, v{st+2}, v{st+3}
    s_nop 1
    v_max_f32_dpp v{st+2}, v{st+2}, v{st+2} row_ror:8 row_mask:0xf bank_mask:0xf
    s_nop 1
    v_max_f32_dpp v{st+2}, v{st+2}, v{st+2} row_ror:4 row_mask:0xf bank_mask:0xf
    s_nop 1
    v_max_f32_dpp v{st+2}, v{st+2}, v{st+2} row_ror:2 row_mask:0xf bank_mask:0xf
    s_nop 1
    v_max_f32_dpp v{st+2}, v{st+2}, v{st+2} row_ror:1 row_mask:0xf bank_mask:0xf
    s_lshl_b32 s{sKm}, s{sKm}, 2
    s_add_u32 s{sKm}, s{sKm}, 0x21000
    v_mov_b32 v{vt[5]}, 0
    s_mov_b64 exec, 1
    buffer_store_dword v{st+2}, v{vt[5]}, {s(SKV,4)}, s{sKm} offen
    s_branch K1_DONE
    K1_VEP:
    """)
    a.c("V tile: lane d = l&15, keys 4g+r")
    a(f"""
    v_lshlrev_b32 v{vt[0]}, 6, v{g}
    v_add_u32 v{vt[0]}, s{sT0}, v{vt[0]}
    """)
    for r in range(4):
        a(f"ds_read_b64 {v(st+2*r,2)}, v{vt[0]} offset:{16*r+8}")
    a(f"""
    v_lshlrev_b32 v{vt[1]}, 4, v{d}
    v_and_b32 v{vt[5]}, 1, v{g}
    v_lshl_add_u32 v{vt[1]}, v{vt[5]}, 8, v{vt[1]}
    v_lshrrev_b32 v{vt[5]}, 1, v{g}
    v_lshl_add_u32 v{vt[1]}, v{vt[5]}, 3, v{vt[1]}
    s_mul_i32 s{sT1}, s{sKm}, {VSTR}
    s_add_u32 s{sT1}, s{sT1}, 0x10000
    s_waitcnt lgkmcnt(0)
    """)
    kvsum()
    for r in range(4):
        a(f"v_fma_f32 v{Dk+r}, -v{st+2*r+1}, v{Dc+r}, v{Dk+r}")
    for r in range(4):
        a(f"v_mul_f32 v{Dk+r}, v{Dk+r}, v{st+2*r}")
    a(f"""
    v_cvt_pk_bf16_f32 v{pk}, v{Dk}, v{Dk+1}
    v_cvt_pk_bf16_f32 v{pk+1}, v{Dk+2}, v{Dk+3}
    buffer_store_dwordx2 {v(pk,2)}, v{vt[1]}, {s(SKV,4)}, s{sT1} offen
    v_lshlrev_b32 v{vt[1]}, 2, v0
    s_mov_b64 exec, 15
    buffer_store_dword v{ones}, v{vt[1]}, {s(SKV,4)}, s{sT1} offen offset:512
    s_branch K1_DONE
    """)
    P = Regs(pool, pool + 116)
    vXa = [P.alloc(f"xa{i}") for i in range(8)]
    vWa = P.alloc("wa")
    Xf = [P.alloc(f"xf{i}", 4) for i in range(NS)]
    Wf = [P.alloc(f"wf{i}", 4) for i in range(NS)]
    acc = P.alloc("acc", 16); csr = P.alloc("csr", 16); pk = P.alloc("pk", 8); st = P.alloc("st", 2)
    a("K1_MM:")
    a(f"""
    s_and_b32 s{sWR}, s{sW}, 1
    s_bfe_u32 s{sWC}, s{sW}, 0x10001
    v_and_b32 v{vt[0]}, 31, v0
    v_lshrrev_b32 v{vt[1]}, 5, v0
    s_lshl_b32 s{sT0}, s{sWR}, 13
    v_lshlrev_b32 v{vt[2]}, 8, v{vt[0]}
    v_add_u32 v{vt[2]}, s{sT0}, v{vt[2]}
    v_and_b32 v{vt[3]}, 15, v0
    v_xor_b32 v{vt[3]}, v{vt[3]}, v{vt[1]}
    """)
    for i in range(8):
        a(f"v_xor_b32 v{vt[4]}, {2*i}, v{vt[3]}")
        a(f"v_lshl_add_u32 v{vXa[i]}, v{vt[4]}, 4, v{vt[2]}")
    a(f"""
    v_lshlrev_b32 v{vt[4]}, 9, v{vt[1]}
    v_bfe_u32 v{vt[5]}, v0, 2, 2
    v_lshl_add_u32 v{vt[4]}, v{vt[5]}, 6, v{vt[4]}
    v_bfe_u32 v{vt[5]}, v0, 4, 1
    v_lshl_add_u32 v{vt[4]}, v{vt[5]}, 5, v{vt[4]}
    v_and_b32 v{vt[5]}, 3, v0
    v_lshl_add_u32 v{vt[4]}, v{vt[5]}, 3, v{vt[4]}
    s_lshl_b32 s{sT0}, s{sWC}, 15
    s_add_u32 s{sT0}, s{sT0}, {WBASE}
    v_add_u32 v{vWa}, s{sT0}, v{vt[4]}
    s_lshl_b32 s{sT0}, s{sWR}, 9
    s_add_u32 s{sT0}, s{sT0}, {STBASE}
    v_lshlrev_b32 v{vt[2]}, 4, v{vt[0]}
    v_add_u32 v{vt[2]}, s{sT0}, v{vt[2]}
    s_lshl_b32 s{sT1}, s{sWC}, 7
    s_add_u32 s{sT1}, s{sT1}, {STBASE + 1024}
    v_lshlrev_b32 v{vt[5]}, 4, v{vt[1]}
    v_add_u32 v{vt[5]}, s{sT1}, v{vt[5]}
    s_lshl_b32 s{sT0}, s{sRB}, 16
    s_lshl_b32 s{sT1}, s{sWR}, 15
    s_add_u32 s{sT0}, s{sT0}, s{sT1}
    s_lshl_b32 s{sT1}, s{sCB}, 10
    s_add_u32 s{sT0}, s{sT0}, s{sT1}
    s_lshl_b32 s{sT1}, s{sWC}, 8
    s_add_u32 s{sT0}, s{sT0}, s{sT1}
    v_lshrrev_b32 v{vt[6]}, 3, v{vt[0]}
    v_lshlrev_b32 v{vt[6]}, 13, v{vt[6]}
    v_lshl_add_u32 v{vt[6]}, v{vt[1]}, 9, v{vt[6]}
    v_and_b32 v{vt[7]}, 7, v0
    v_lshl_add_u32 v{vt[6]}, v{vt[7]}, 4, v{vt[6]}
    s_waitcnt lgkmcnt(0)
    s_setprio 1
    """)
    srd(a, SQ, 16, 17, WS_Q, 0x200000)
    def reads(i):
        c, ip = i >> 3, i & 7
        sl = i % NS
        a(f"ds_read_b128 {v(Xf[sl],4)}, v{vXa[ip]} offset:{c*16384}")
        a(f"ds_read_b64_tr_b16 {v(Wf[sl],2)}, v{vWa} offset:{i*1024}")
        a(f"ds_read_b64_tr_b16 {v(Wf[sl]+2,2)}, v{vWa} offset:{i*1024+256}")
    for c in range(4):
        a("s_barrier")
        stamp(a, 2 + c)
        for ip in range(NS):
            reads(c*8 + ip)
        for ip in range(8):
            i = c*8 + ip
            sl = i % NS
            a(f"s_waitcnt lgkmcnt({min(NS - 1, 7 - ip) * 3})")
            a(f"v_mfma_f32_32x32x16_bf16 {v(acc,16)}, {v(Wf[sl],4)}, {v(Xf[sl],4)}, {'0' if i == 0 else v(acc,16)}")
            if ip + NS < 8:
                reads(i + NS)
    stamp(a, 6)
    a("s_barrier")
    cs2 = Xf[0]
    a(f"ds_read_b64 {v(st,2)}, v{vt[2]}")
    for q in range(4):
        a(f"ds_read_b128 {v(csr+4*q,4)}, v{vt[5]} offset:{32*q}")
        a(f"ds_read_b128 {v(cs2+4*q,4)}, v{vt[5]} offset:{256+32*q}")
    a("s_nop 0\ns_waitcnt lgkmcnt(8)")
    for r in range(8):
        a(f"v_pk_mul_f32 {v(acc+2*r,2)}, {v(acc+2*r,2)}, {v(st,2)} op_sel_hi:[1,0]")
    a("s_waitcnt lgkmcnt(0)")
    for r in range(8):
        a(f"v_pk_add_f32 {v(csr+2*r,2)}, {v(csr+2*r,2)}, {v(cs2+2*r,2)}")
    for r in range(8):
        a(f"v_pk_fma_f32 {v(acc+2*r,2)}, {v(csr+2*r,2)}, {v(st,2)}, {v(acc+2*r,2)} op_sel:[0,1,0] op_sel_hi:[1,1,1] neg_lo:[1,0,0] neg_hi:[1,0,0]")
    for j in range(8):
        a(f"v_cvt_pk_bf16_f32 v{pk+j}, v{acc+2*j}, v{acc+2*j+1}")
    a(f"""
    buffer_store_dwordx4 {v(pk,4)}, v{vt[6]}, {s(SQ,4)}, s{sT0} offen
    buffer_store_dwordx4 {v(pk+4,4)}, v{vt[6]}, {s(SQ,4)}, s{sT0} offen offset:128
    K1_DONE:
    """)
    stamp_dump(a, 0, sW)
    a("K1_END:")
    a("s_endpgm")
    return name, R.cur, K1_LDS
```

```python
from asmlib import *
from common import *
import os

QL = 0
OACC = 8192
LACC = OACC + 16384
OFB = LACC + 1024
MISC = OFB + 1024
XL = MISC + 2048
K2_LDS = XL + 8 * 1040
THR2 = (40.0 / 1.02) ** 2
PRIO = os.environ.get("PRIO", "2")
PD = int(os.environ.get("PD", "2"))
EXP = os.environ.get("EXP", "").split(",")
SLOW_V0 = min(16, 2*PD + 10)

def gen_k2(a):
    name = "attn_kernel"
    kernel_header(a, name)
    R = Regs(1, 256)
    vt = [R.alloc(f"t{i}") for i in range(6)]
    vidx = R.alloc("idx")
    vQa = R.alloc("qa")
    vOa = R.alloc("oa"); vLa = R.alloc("la")
    vNr = R.alloc("nr"); vNl = R.alloc("nl"); vNw = R.alloc("nw")
    vOFa = R.alloc("ofa")
    vKo = R.alloc("ko"); vVo = R.alloc("vo")
    vP1r = R.alloc("p1r"); vP2r = R.alloc("p2r"); vPw = R.alloc("pw"); vPv = R.alloc("pv"); vCnt = R.alloc("cnt")
    zero = R.alloc("zero", 4)
    Q = R.alloc("q", 4)
    nrm = R.alloc("nrm", 8, 4)
    Kf = R.alloc("k", 32)
    Vf = R.alloc("v", 64)
    S = [R.alloc(f"s{i}", 16) for i in range(2)]
    O = [R.alloc(f"o{i}", 16) for i in range(2)]
    woA = R.alloc("woa", 16)
    T = R.alloc("T", 16)
    OFr = R.alloc("ofr", 8)
    hacc = R.alloc("hacc", 16)
    Qw = OFr
    vM = [vt[1], vt[2]]
    sW, sRB, sT0, sT1, sT2, sWm, sSo, sHalf = 20, 21, 22, 23, 44, 45, 46, 47
    sMaskLo, sV1, sV2 = 48, 50, 51
    SQ, SKV, SWO, SX, SH, SHN, SP = 24, 28, 32, 36, 40, 52, 56
    a(f"""
    s_cmp_ge_u32 s2, 256
    s_cbranch_scc1 K2_END
    s_setprio 3
    s_load_dwordx2 s[16:17], s[0:1], 96
    s_load_dwordx2 s[8:9], s[0:1], 0
    s_load_dwordx2 s[12:13], s[0:1], 48
    s_load_dwordx2 s[14:15], s[0:1], 64
    v_lshrrev_b32 v{vt[0]}, 6, v0
    v_and_b32 v0, 63, v0
    v_readfirstlane_b32 s{sW}, v{vt[0]}
    v_lshlrev_b32 v{vQa}, 4, v0
    s_and_b32 s{sT0}, s2, 7
    s_lshr_b32 s{sT1}, s2, 3
    s_lshl_b32 s{sRB}, s{sT0}, 5
    s_add_u32 s{sRB}, s{sRB}, s{sT1}
    s_lshl_b32 s{sWm}, s{sW}, 13
    v_add_u32 v{vKo}, s{sWm}, v{vQa}
    v_lshrrev_b32 v{vt[3]}, 5, v0
    v_and_b32 v{vt[4]}, 31, v0
    v_lshlrev_b32 v{vt[2]}, 4, v{vt[4]}
    v_lshl_add_u32 v{vt[2]}, v{vt[3]}, 8, v{vt[2]}
    s_mul_i32 s{sT0}, s{sW}, {16*VSTR}
    s_add_u32 s{sT0}, s{sT0}, 0x10000
    v_and_b32 v{vt[1]}, 27, v0
    v_cmp_eq_u32 vcc, 16, v{vt[1]}
    v_mov_b32 v{vt[1]}, 0x40000000
    v_mov_b32 v{vt[5]}, 512
    v_cndmask_b32 v{vt[1]}, v{vt[1]}, v{vt[5]}, vcc
    v_cmp_gt_u32 vcc, 16, v{vt[4]}
    v_lshlrev_b32 v{vt[5]}, 3, v0
    s_nop 0
    v_cndmask_b32 v{vt[1]}, v{vt[1]}, v{vt[2]}, vcc
    v_add_u32 v{vVo}, s{sT0}, v{vt[1]}
    s_lshl_b32 s{sT1}, s{sRB}, 13
    s_lshl_b32 s{sT2}, s{sW}, 10
    s_add_u32 s{sT0}, s{sT1}, s{sT2}
    s_mov_b32 s{sSo}, 0x21000
    s_movk_i32 s{sT2}, 0x1000
    s_movk_i32 s{sV1}, {7*VSTR}
    s_movk_i32 s{sV2}, {14*VSTR}
    s_lshr_b32 s{sHalf}, s{sW}, 2
    """)
    stamp_init(a)
    a("s_waitcnt lgkmcnt(0)")
    srd(a, SQ, 16, 17, WS_Q, 0x200000)
    srd(a, SKV, 16, 17, WS_K, KV_BYTES)
    order = []
    def ldK(j):
        so = "0" if j < 4 else f"s{sT2}"
        order.append(f"K{j}")
        return f"buffer_load_dwordx4 {v(Kf+4*j,4)}, v{vKo}, {s(SKV,4)}, {so} offen offset:{(j&3)*1024}"
    def ldV(i):
        so = ("0", f"s{sV1}", f"s{sV2}")[i // 7]
        order.append(f"V{i}")
        return f"buffer_load_dwordx4 {v(Vf+4*i,4)}, v{vVo}, {s(SKV,4)}, {so} offen offset:{(i%7)*VSTR}"
    def ldW(t, ks, ct, dst):
        order.append(f"W{t}_{ks}_{ct}")
        pre = f"s_mov_b32 s{sSo}, {t*65536 + ks*4096}\n" if ct == 0 else ""
        return pre + f"buffer_load_dwordx4 {v(dst+4*ct,4)}, v{vKo}, {s(SWO,4)}, s{sSo} offen offset:{ct*1024}"
    def wait_for(item):
        return f"s_waitcnt vmcnt({len(order) - 1 - order.index(item)})"
    a(f"buffer_load_dwordx4 {v(Q,4)}, v{vQa}, {s(SQ,4)}, s{sT1} offen"); order.append("Q")
    a(ldK(0)); a(ldK(1)); a(ldV(0)); a(ldV(1)); a(ldK(2))
    a(f"buffer_load_dwordx4 {v(Qw,4)}, v{vQa}, {s(SQ,4)}, s{sT0} offen"); order.append("QW")
    a(f"buffer_load_dwordx2 {v(nrm,2)}, v{vt[5]}, {s(SKV,4)}, s{sSo} offen"); order.append("KM")
    for i in range(1, PD):
        a(ldV(2*i)); a(ldV(2*i + 1))
        if i + 2 < 8:
            a(ldK(i + 2))
    a("s_setprio 0")
    pro_order = list(order)
    srd(a, SWO, 16, 17, WS_WO, 524288)
    for i in range(4):
        a(f"v_mov_b32 v{zero+i}, 0")
    a(f"v_mov_b32 v{vidx}, 0xdddddddd")
    a("s_nop 0")
    for o in O:
        a(f"v_mfma_f32_32x32x16_bf16 {v(o,16)}, {v(zero,4)}, {v(zero,4)}, 0")
    a.c("LDS addresses")
    a(f"""
    s_lshl_b32 s{sT0}, s{sW}, 2
    s_add_u32 s{sT1}, s{sT0}, {MISC + 32}
    v_mov_b32 v{vPw}, s{sT1}
    ds_write2_b32 v{vPw}, v{zero}, v{zero} offset1:8
    s_add_u32 s{sT0}, s{sT0}, {LACC}
    v_lshlrev_b32 v{vLa}, 5, v{vt[4]}
    v_add_u32 v{vLa}, s{sT0}, v{vLa}
    s_lshl_b32 s{sT0}, s{sW}, 11
    s_add_u32 s{sT0}, s{sT0}, {OACC}
    v_add_u32 v{vOa}, s{sT0}, v{vQa}
    s_and_b32 s{sT1}, s{sW}, 3
    v_and_b32 v{vt[2]}, 7, v0
    v_lshlrev_b32 v{vP1r}, 2, v{vt[2]}
    v_add_u32 v{vP1r}, {MISC + 32}, v{vP1r}
    v_and_b32 v{vt[1]}, 3, v0
    v_lshlrev_b32 v{vP2r}, 2, v{vt[1]}
    v_add_u32 v{vP2r}, {MISC + 64}, v{vP2r}
    v_bfe_u32 v{vt[1]}, v0, 4, 1
    v_bfe_u32 v{vt[4]}, v0, 3, 1
    v_lshlrev_b32 v{vNr}, 4, v{vt[2]}
    v_lshl_add_u32 v{vNw}, v{vt[3]}, 7, v{vNr}
    v_lshl_add_u32 v{vNr}, v{vt[3]}, 10, v{vNr}
    v_lshl_add_u32 v{vNr}, v{vt[1]}, 9, v{vNr}
    v_lshl_add_u32 v{vNr}, v{vt[4]}, 3, v{vNr}
    s_lshl_b32 s{sT0}, s{sT1}, 7
    s_add_u32 s{sT0}, s{sT0}, {OACC}
    v_add_u32 v{vNr}, s{sT0}, v{vNr}
    s_lshl_b32 s{sT0}, s{sT1}, 8
    s_add_u32 s{sSo}, s{sT0}, {LACC}
    v_lshlrev_b32 v{vNl}, 5, v{vt[2]}
    v_add_u32 v{vNl}, s{sSo}, v{vNl}
    v_bfe_u32 v{vt[3]}, v0, 3, 2
    v_lshl_add_u32 v{vNw}, v{vt[3]}, 2, v{vNw}
    s_add_u32 s{sSo}, s{sT0}, {OFB}
    v_add_u32 v{vNw}, s{sSo}, v{vNw}
    v_lshrrev_b32 v{vt[3]}, 4, v0
    v_lshlrev_b32 v{vt[2]}, 4, v{vt[2]}
    v_lshl_add_u32 v{vOFa}, v{vt[3]}, 7, v{vt[2]}
    v_add_u32 v{vOFa}, {OFB}, v{vOFa}
    """)
    srd(a, SX, 8, 9, 0, 0x200000)
    srd(a, SHN, 16, 17, WS_HN, 0x200000)
    srd(a, SP, 12, 13, 0, 1409024)
    srd(a, SH, 14, 15, 0, 1409024)
    a(f"""
    s_lshr_b32 s{sT0}, s2, 3
    s_mul_i32 s{sT1}, s{sT0}, 44032
    s_add_u32 s{sT1}, s{sT1}, s{sWm}
    v_lshlrev_b32 v{vt[5]}, 7, v0
    s_lshl_b32 s{sMaskLo}, s{sT0}, 14
    s_and_b32 s{sT0}, s{sWm}, 0x2000
    s_add_u32 s{sMaskLo}, s{sMaskLo}, s{sT0}
    s_mov_b32 s{sMaskLo+1}, s{sT1}
    """)
    stamp(a, 1)
    def bound_check():
        n = nrm
        P = []
        P.append(lambda: f"s_lshl_b32 s{sT0}, s{sW}, 10\nv_add_u32 v{vt[0]}, s{sT0}, v{vQa}\nv_mov_b32 v{n+2}, 0\n{wait_for('KM')}\nds_write_b128 v{vt[0]}, {v(Qw,4)}")
        P.append("\n".join(f"v_dot2c_f32_bf16 v{n+2}, v{Qw+i}, v{Qw+i}" for i in range(4)) + f"\nv_max_f32 v{n}, v{n}, v{n+1}\ns_nop 0")
        P.append(f"v_max_f32_dpp v{n}, v{n}, v{n} row_ror:8 row_mask:0xf bank_mask:0xf\nv_mov_b32 v{n+3}, v{n+2}")
        P.append(f"v_max_f32_dpp v{n}, v{n}, v{n} row_ror:4 row_mask:0xf bank_mask:0xf\nv_permlane32_swap_b32 v{n+2}, v{n+3}")
        P.append(f"v_max_f32_dpp v{n}, v{n}, v{n} row_ror:2 row_mask:0xf bank_mask:0xf\nv_add_f32 v{n+2}, v{n+2}, v{n+3}")
        P.append(f"v_max_f32_dpp v{n}, v{n}, v{n} row_ror:1 row_mask:0xf bank_mask:0xf\nv_mov_b32 v{n+1}, v{n}\ns_nop 0")
        P.append(f"v_permlane32_swap_b32 v{n}, v{n+1}\nv_max_f32 v{n}, v{n}, v{n+1}\nv_mov_b32 v{n+1}, v{n}\ns_nop 0")
        P.append(f"v_permlane16_swap_b32 v{n}, v{n+1}\nv_max_f32 v{n}, v{n}, v{n+1}\nv_mul_f32 v{n}, v{n}, v{n+2}\nv_mov_b32 v{n+1}, {hex(f32bits(THR2))}\n"
                 f"v_cmp_nle_f32 vcc, v{n}, v{n+1}\ns_lshl_b32 s{sT0}, s{sW}, 2\ns_add_u32 s{sT0}, s{sT0}, {MISC}")
        P.append(f"s_cmp_lg_u64 vcc, 0\ns_cselect_b32 s{sT1}, 1, 0\nv_mov_b32 v{vt[0]}, s{sT0}\nv_mov_b32 v{vt[1]}, s{sT1}\nds_write_b32 v{vt[0]}, v{vt[1]}\nv_mov_b32 v{vt[0]}, {MISC}")
        return P
    flag_reads = f"ds_read_b128 {v(nrm,4)}, v{vt[0]}\nds_read_b128 {v(nrm+4,4)}, v{vt[0]} offset:16"
    flag_test = (f"s_waitcnt lgkmcnt(0)\nv_or3_b32 v{nrm}, v{nrm}, v{nrm+1}, v{nrm+2}\nv_or3_b32 v{nrm+3}, v{nrm+3}, v{nrm+4}, v{nrm+5}\n"
                 f"v_or3_b32 v{nrm}, v{nrm}, v{nrm+6}, v{nrm+7}\nv_or_b32 v{nrm}, v{nrm}, v{nrm+3}\ns_nop 0\n"
                 f"v_readfirstlane_b32 s{sT0}, v{nrm}\ns_cmp_lg_u32 s{sT0}, 0\ns_cbranch_scc1 K2_SLOW")

    def smf(tau):
        t, j = divmod(tau, 8)
        return f"v_mfma_f32_32x32x16_bf16 {v(S[tau&1],16)}, {v(Kf+4*j,4)}, {v(Q,4)}, 0"
    def pv(tau, h):
        t, j = divmod(tau, 8)
        return f"v_smfmac_f32_32x32x32_bf16 {v(O[t&1],16)}, {v(Vf+8*j+4*h,4)}, {v(S[tau&1]+8*h,8)}, v{vidx}"
    def drain(t):
        o = O[t & 1]
        return [f"ds_write_b128 v{vOa}, {v(o,4)}", f"ds_write_b128 v{vOa}, {v(o+4,4)} offset:1024", f"ds_write_b32 v{vLa}, v{o+8}"]
    retries = []
    def check(areg, off, val, lab):
        retries.append(f"K2_R{lab}:\nds_read_b32 v{vPv}, v{areg} offset:{off}\ns_waitcnt lgkmcnt(0)\nv_cmp_gt_u32 vcc, {val}, v{vPv}\n"
                       f"s_cbranch_vccnz K2_R{lab}\ns_branch K2_C{lab}")
        return f"s_waitcnt lgkmcnt(0)\nv_cmp_gt_u32 vcc, {val}, v{vPv}\ns_cbranch_vccnz K2_R{lab}\nK2_C{lab}:\n"
    def norm_reads():
        L = f"ds_read_b128 {v(nrm,4)}, v{vNl}\nds_read_b128 {v(nrm+4,4)}, v{vNl} offset:16\n"
        for w in range(8):
            L += f"ds_read_b64 {v(T+2*w,2)}, v{vNr} offset:{w*2048}\n"
        return L
    def norm_comp():
        L = f"s_waitcnt lgkmcnt(0)\n"
        L += f"v_pk_add_f32 {v(nrm,2)}, {v(nrm,2)}, {v(nrm+2,2)}\n"
        L += f"v_pk_add_f32 {v(nrm+4,2)}, {v(nrm+4,2)}, {v(nrm+6,2)}\n"
        for w in range(4):
            L += f"v_pk_add_f32 {v(T+4*w,2)}, {v(T+4*w,2)}, {v(T+4*w+2,2)}\n"
        L += f"v_pk_add_f32 {v(nrm,2)}, {v(nrm,2)}, {v(nrm+4,2)}\n"
        L += f"v_pk_add_f32 {v(T,2)}, {v(T,2)}, {v(T+4,2)}\n"
        L += f"v_add_f32 v{nrm}, v{nrm}, v{nrm+1}\n"
        L += f"v_pk_add_f32 {v(T+8,2)}, {v(T+8,2)}, {v(T+12,2)}\n"
        L += f"v_rcp_f32 v{nrm}, v{nrm}\n"
        L += f"v_pk_add_f32 {v(T,2)}, {v(T,2)}, {v(T+8,2)}\n"
        L += f"v_pk_mul_f32 {v(T,2)}, {v(T,2)}, {v(nrm,2)} op_sel_hi:[1,0]\n"
        L += f"v_cvt_pk_bf16_f32 v{T}, v{T}, v{T+1}\n"
        L += f"ds_write_b32 v{vNw}, v{T}\n"
        return L
    def only_half(t, lab, body):
        return f"s_cmp_lg_u32 s{sHalf}, {t&1}\ns_cbranch_scc1 K2_N{lab}\n{body}K2_N{lab}:\n"
    def of_reads():
        return "\n".join(f"ds_read_b128 {v(OFr+4*ks,4)}, v{vOFa} offset:{ks*512}" for ks in range(2))
    def wo_mfma(ks, ct, src, first=False):
        return f"v_mfma_f32_16x16x32_bf16 {v(hacc+4*ct,4)}, {v(src+4*ct,4)}, {v(OFr+4*ks,4)}, {'0' if first else v(hacc+4*ct,4)}"
    W7 = [Kf, Vf + 8]
    X = Vf

    def mainloop(slow):
        tag = "S" if slow else "F"
        order[:] = [] if slow else list(pro_order)
        if slow:
            a(f"ds_read_b32 v{vM[0]}, v{vt[0]}")
            a("s_waitcnt lgkmcnt(0)")
        else:
            a(wait_for("K0"))
            stamp(a, 2)
        a(smf(0))
        a("s_nop 7")
        a("s_nop 3")
        for tau in range(64):
            t, j = divmod(tau, 8)
            slots = [[] for _ in range(17)]
            p1 = 11
            if PRIO == "1" and (j & 1) == 0:
                slots[0].append(f"s_setprio {3 - j // 2}")
            if PRIO == "2":
                slots[0].append(f"s_setprio {3 - (j & 3)}")
            if tau > 0:
                slots[2].append(pv(tau - 1, 1))
            if t == 0 and not slow:
                if j + PD < 8:
                    slots[0].append(lambda j=j: ldV(2*(j + PD)))
                    slots[4].append(lambda j=j: ldV(2*(j + PD) + 1))
                if j + PD + 2 < 8:
                    slots[8].append(lambda j=j: ldK(j + PD + 2))
                if j == 2:
                    for i, x in enumerate(bound_check()):
                        slots[3 + i].append(x)
                if j == 4:
                    slots[0] += ["s_waitcnt lgkmcnt(0)", "s_barrier", flag_reads]
                    slots[5].append(flag_test)
                if j == 6:
                    slots[13].append(f"s_cmp_lt_u32 s{sW}, 6\ns_cbranch_scc1 K2_PW\nbuffer_load_dword v{vt[3]}, v{vt[5]}, {s(SWO,4)}, s{sMaskLo} offen\nK2_PW:")
            nx = tau + 1
            if nx < 64:
                if t == 0 and nx < 8 and not slow:
                    slots[6].append(lambda nx=nx: wait_for(f"K{nx}"))
                if nx % 8 == 0:
                    slots[6].append("s_waitcnt lgkmcnt(0)")
                slots[6].append(smf(nx))
                if nx % 8 == 7 and t < 7:
                    slots[10].append(f"ds_read_b128 {v(Q,4)}, v{vQa} offset:{(t+1)*1024}")
                    if slow:
                        slots[10].append(f"ds_read_b32 v{vM[(t+1)&1]}, v{vt[0]} offset:{(t+1)*128}")
            if j == 5 and 1 <= t <= 6:
                slots[4].append(f"s_cmp_lg_u32 s{sW}, {t-1}\ns_cbranch_scc1 K2_PA{tag}{t}\nbuffer_load_dword v{vt[3]}, v{vt[5]}, {s(SP,4)}, s{sMaskLo+1} offen\nK2_PA{tag}{t}:")
                slots[8].append(f"s_cmp_lg_u32 s{sW}, {(t+2)%6}\ns_cbranch_scc1 K2_PB{tag}{t}\nbuffer_load_dword v{vt[4]}, v{vt[5]}, {s(SH,4)}, s{sMaskLo+1} offen\nK2_PB{tag}{t}:")
            if t >= 1:
                u = t - 1
                if j == 1:
                    slots[0].append(f"v_mov_b32 v{vCnt}, {t}")
                    for i, x in enumerate(drain(u)):
                        slots[1 + 2*i].append(x)
                    slots[7].append(f"ds_write_b32 v{vPw}, v{vCnt}")
                if j == 2:
                    slots[13].append("s_waitcnt lgkmcnt(0)")
                if j == 3:
                    slots[0].append(f"ds_read_b32 v{vPv}, v{vP1r}")
                    slots[7].append(only_half(u, f"A{tag}{t}", check(vP1r, 0, t, f"A{tag}{t}") + norm_reads()))
                    if DIAG: slots[7].append(stamp_str(2 + t))
                    slots[9] += [f"v_mfma_f32_32x32x16_bf16 {v(O[u&1],16)}, {v(zero,4)}, {v(zero,4)}, 0"]
                    p1 = 12
                    for ct in range(4):
                        slots[(1, 4, 13, 15)[ct]].append(lambda u=u, ct=ct: ldW(u, 0, ct, woA))
                if j == 4:
                    slots[3].append(only_half(u, f"B{tag}{t}", norm_comp() + f"ds_write_b32 v{vPw}, v{vCnt} offset:32\n"))
                if j == 5:
                    for ct in range(4):
                        slots[(1, 7, 9, 13)[ct]].append(lambda u=u, ct=ct: ldW(u, 1, ct, T))
                if j == 6:
                    slots[1].append(f"ds_read_b32 v{vPv}, v{vP2r} offset:{16*(u&1)}")
                    slots[8].append(check(vP2r, 16*(u&1), t, f"D{tag}{t}") + of_reads())
                    slots[15] += ["s_waitcnt lgkmcnt(0)", lambda u=u: wait_for(f"W{u}_0_3"), wo_mfma(0, 0, woA, u == 0)]
                if j == 7:
                    slots[9].append(wo_mfma(0, 1, woA, u == 0)); slots[15].append(wo_mfma(0, 2, woA, u == 0))
            if t >= 2:
                u = t - 2
                if j == 0:
                    slots[9].append(wo_mfma(0, 3, woA, u == 0))
                    slots[15] += [lambda u=u: wait_for(f"W{u}_1_3"), wo_mfma(1, 0, T)]
                if j == 1:
                    slots[9].append(wo_mfma(1, 1, T)); slots[15].append(wo_mfma(1, 2, T))
                if j == 2:
                    slots[9].append(wo_mfma(1, 3, T))
            if tau == 9:
                slots[4].append(lambda: (order.append("X"), f"s_lshl_b32 s{sT0}, s{sRB}, 13\ns_lshl_b32 s{sT1}, s{sW}, 10\ns_add_u32 s{sT0}, s{sT0}, s{sT1}\n"
                    f"s_mul_i32 s{sT1}, s{sW}, 1040\ns_add_u32 m0, s{sT1}, {XL}\ns_nop 0\nbuffer_load_dwordx4 v{vQa}, {s(SX,4)}, s{sT0} offen lds")[1])
            if tau in (60, 62):
                for ct in range(4):
                    slots[(1, 4, 9, 13)[ct]].append(lambda ct=ct, ks=(tau-60)//2: ldW(7, ks, ct, W7[ks]))
            if t == 0 and not slow:
                slots[p1].append(lambda j=j: wait_for(f"V{2*j+1}"))
            slots[p1].append(pv(tau, 0))
            if not slow and sum(len(x) for x in slots[7:]) < 2:
                slots[14].append("s_nop 0")
            for i in range(17):
                for x in slots[i]:
                    x = x() if callable(x) else x
                    if "NOWL" in EXP and f"{s(SWO,4)}" in x: continue
                    if "NOPF" in EXP and ("K2_PA" in x or "K2_PB" in x): continue
                    if "NOWO" in EXP and "16x16x32" in x: continue
                    if "NONORM" in EXP and "K2_N" in x: continue
                    if "NOCHK" in EXP and "K2_R" in x and "K2_N" not in x: x = of_reads()
                    a(x)
                if i < 16:
                    r = S[tau & 1] + i
                    if slow:
                        a(f"v_sub_f32 v{r}, v{r}, v{vM[t&1]}")
                    a(f"v_exp_f32 v{r}, v{r}")
        a("s_nop 1")
        a(pv(63, 1))
    mainloop(False)
    a("K2_TAIL:")
    stamp(a, 10)
    a("s_setprio 0\ns_nop 7\ns_nop 1")
    a(wo_mfma(0, 3, woA))
    for x in drain(7):
        a(x)
    a("s_waitcnt vmcnt(4)")
    for ct in range(4):
        a(wo_mfma(1, ct, T))
    a(f"""
    v_and_b32 v{vt[0]}, 7, v0
    v_lshrrev_b32 v{vt[1]}, 4, v0
    v_lshlrev_b32 v{vVo}, 10, v{vt[0]}
    v_lshl_add_u32 v{vVo}, v{vt[1]}, 3, v{vVo}
    s_lshl_b32 s{sV1}, s{sRB}, 13
    s_lshl_b32 s{sT1}, s{sW}, 7
    s_add_u32 s{sV1}, s{sV1}, s{sT1}
    s_add_u32 s{sT1}, s{sT1}, {XL}
    v_lshl_add_u32 v{vt[2]}, v{vt[0]}, 4, v{vVo}
    v_add_u32 v{vt[2]}, s{sT1}, v{vt[2]}
    """)
    srd(a, SH, 16, 17, WS_H, 0x200000)
    a("s_waitcnt lgkmcnt(0)")
    a("s_barrier")
    for ct in range(4):
        a(f"ds_read_b64 {v(X+2*ct,2)}, v{vt[2]} offset:{32*ct}")
    a(only_half(7, "T", norm_reads() + norm_comp()))
    H = Vf + 32; XU = O[0]; PK = O[1]; ST = woA
    a("s_waitcnt lgkmcnt(0)")
    for i in range(8):
        a(f"v_lshlrev_b32 v{XU+2*i}, 16, v{X+i}")
        a(f"v_and_b32 v{XU+2*i+1}, 0xffff0000, v{X+i}")
    a("s_waitcnt lgkmcnt(0)")
    a("s_barrier")
    a(of_reads())
    a("s_waitcnt vmcnt(0) lgkmcnt(1)")
    for ct in range(4):
        a(wo_mfma(0, ct, W7[0]))
    a("s_waitcnt lgkmcnt(0)")
    for ct in range(4):
        a(wo_mfma(1, ct, W7[1]))
    stamp(a, 11)
    a.c("h = x + attn ; LN2")
    a(f"""
    s_mov_b32 s{sMaskLo}, 0x00ff00ff
    s_mov_b32 s{sMaskLo+1}, 0x00ff00ff
    s_nop 3
    """)
    for i in range(8):
        a(f"v_pk_add_f32 {v(H+2*i,2)}, {v(hacc+2*i,2)}, {v(XU+2*i,2)}")
    def xreduce(r, tmp):
        a(f"""
        v_mov_b32 v{tmp}, v{r}
        s_nop 1
        v_permlane32_swap_b32 v{r}, v{tmp}
        v_add_f32 v{r}, v{r}, v{tmp}
        v_mov_b32 v{tmp}, v{r}
        s_nop 1
        v_permlane16_swap_b32 v{r}, v{tmp}
        v_add_f32 v{r}, v{r}, v{tmp}
        """)
    for i in range(2):
        a(f"v_pk_add_f32 {v(XU+2*i,2)}, {v(H+2*i,2)}, {v(H+4+2*i,2)}")
        a(f"v_pk_add_f32 {v(XU+4+2*i,2)}, {v(H+8+2*i,2)}, {v(H+12+2*i,2)}")
    for i in range(2):
        a(f"v_pk_add_f32 {v(XU+2*i,2)}, {v(XU+2*i,2)}, {v(XU+4+2*i,2)}")
    a(f"""
    v_pk_add_f32 {v(XU,2)}, {v(XU,2)}, {v(XU+2,2)}
    v_add_f32 v{XU}, v{XU}, v{XU+1}
    """)
    xreduce(XU, XU+2)
    a(f"v_mul_f32 v{XU}, {hex(f32bits(1.0/64))}, v{XU}")
    for i in range(8):
        a(f"v_pk_add_f32 {v(hacc+2*i,2)}, {v(H+2*i,2)}, {v(XU,2)} op_sel_hi:[1,0] neg_lo:[0,1] neg_hi:[0,1]")
    a(f"v_pk_mul_f32 {v(XU+2,2)}, {v(hacc,2)}, {v(hacc,2)}")
    a(f"v_pk_mul_f32 {v(XU+4,2)}, {v(hacc+2,2)}, {v(hacc+2,2)}")
    for i in range(2, 8):
        d = XU + 2 + 2*(i & 1)
        a(f"v_pk_fma_f32 {v(d,2)}, {v(hacc+2*i,2)}, {v(hacc+2*i,2)}, {v(d,2)}")
    a(f"v_pk_add_f32 {v(XU+2,2)}, {v(XU+2,2)}, {v(XU+4,2)}")
    a(f"v_add_f32 v{XU+1}, v{XU+2}, v{XU+3}")
    xreduce(XU+1, XU+2)
    a(f"""
    s_lshl_b32 s{sT1}, s{sW}, 3
    s_add_u32 s{sT1}, s{sT1}, {MISC + 128}
    v_lshlrev_b32 v{vt[3]}, 6, v{vt[0]}
    v_add_u32 v{vt[4]}, s{sT1}, v{vt[3]}
    v_add_u32 v{vt[3]}, {MISC + 128}, v{vt[3]}
    ds_write_b64 v{vt[4]}, {v(XU,2)}
    """)
    for i in range(8):
        a(f"v_cvt_pk_bf16_f32 v{PK+i}, v{H+2*i}, v{H+2*i+1}")
    a("s_waitcnt lgkmcnt(0)")
    a("s_barrier")
    for i in range(4):
        a(f"ds_read_b128 {v(ST+4*i,4)}, v{vt[3]} offset:{16*i}")
    a(f"s_mov_b64 exec, {s(sMaskLo,2)}")
    for ct in range(4):
        a(f"buffer_store_dwordx2 {v(PK+2*ct,2)}, v{vVo}, {s(SH,4)}, s{sV1} offen offset:{32*ct}")
    a("s_mov_b64 exec, -1")
    a(f"""
    s_lshr_b32 s{sT0}, s{sRB}, 2
    s_lshl_b32 s{sT0}, s{sT0}, 15
    s_lshl_b32 s{sT1}, s{sW}, 12
    s_add_u32 s{sT0}, s{sT0}, s{sT1}
    s_and_b32 s{sT1}, s{sRB}, 3
    s_lshl_b32 s{sT1}, s{sT1}, 7
    s_add_u32 s{sT0}, s{sT0}, s{sT1}
    v_lshlrev_b32 v{vt[4]}, 4, v{vt[0]}
    v_lshrrev_b32 v{vt[5]}, 5, v0
    v_lshl_add_u32 v{vt[4]}, v{vt[5]}, 9, v{vt[4]}
    v_bfe_u32 v{vt[5]}, v0, 4, 1
    v_lshl_add_u32 v{vt[4]}, v{vt[5]}, 3, v{vt[4]}
    s_waitcnt lgkmcnt(0)
    v_pk_add_f32 {v(XU+2,2)}, {v(ST,2)}, {v(ST+2,2)}
    v_pk_add_f32 {v(XU+4,2)}, {v(ST+4,2)}, {v(ST+6,2)}
    v_pk_add_f32 {v(XU+6,2)}, {v(ST+8,2)}, {v(ST+10,2)}
    v_pk_add_f32 {v(XU+8,2)}, {v(ST+12,2)}, {v(ST+14,2)}
    v_pk_add_f32 {v(XU+2,2)}, {v(XU+2,2)}, {v(XU+4,2)}
    v_pk_add_f32 {v(XU+6,2)}, {v(XU+6,2)}, {v(XU+8,2)}
    v_pk_add_f32 {v(XU+2,2)}, {v(XU+2,2)}, {v(XU+6,2)}
    v_mul_f32 v{XU+2}, 0x3e000000, v{XU+2}
    """)
    for i in range(8):
        a(f"v_sub_f32 v{ST+2*i}, v{ST+2*i}, v{XU+2}")
    a(f"v_mul_f32 v{XU+4}, v{ST}, v{ST}")
    a(f"v_mul_f32 v{XU+5}, v{ST+2}, v{ST+2}")
    for i in range(2, 8):
        a(f"v_fmac_f32 v{XU+4+(i&1)}, v{ST+2*i}, v{ST+2*i}")
    a(f"""
    v_add_f32 v{XU+4}, v{XU+4}, v{XU+5}
    v_fmac_f32 v{XU+3}, 0x42800000, v{XU+4}
    v_mov_b32 v{XU+6}, {hex(f32bits(1e-5))}
    v_fmac_f32 v{XU+6}, {hex(f32bits(1.0/512))}, v{XU+3}
    v_rsq_f32 v{XU+6}, v{XU+6}
    """)
    for i in range(8):
        a(f"v_pk_add_f32 {v(H+2*i,2)}, {v(H+2*i,2)}, {v(XU+2,2)} op_sel_hi:[1,0] neg_lo:[0,1] neg_hi:[0,1]")
    for i in range(8):
        a(f"v_pk_mul_f32 {v(H+2*i,2)}, {v(H+2*i,2)}, {v(XU+6,2)} op_sel_hi:[1,0]")
    for i in range(8):
        a(f"v_cvt_pk_bf16_f32 v{hacc+i}, v{H+2*i}, v{H+2*i+1}")
    a(f"s_mov_b64 exec, {s(sMaskLo,2)}")
    for ct in range(4):
        a(f"buffer_store_dwordx2 {v(hacc+2*ct,2)}, v{vt[4]}, {s(SHN,4)}, s{sT0} offen offset:{1024*ct}")
    stamp_dump(a, 1, sW)
    a("K2_END:")
    a("s_endpgm")
    a.c("slow path: true row maxima first")
    a("K2_SLOW:")
    MB = MISC + 1024
    a("s_setprio 0")
    for i in range(SLOW_V0, 16):
        a(ldV(i))
    a("s_nop 7\ns_nop 7")
    for o in O:
        a(f"v_mfma_f32_32x32x16_bf16 {v(o,16)}, {v(zero,4)}, {v(zero,4)}, 0")
    a(f"""
    v_and_b32 v{vt[0]}, 31, v0
    v_lshlrev_b32 v{vt[0]}, 2, v{vt[0]}
    v_add_u32 v{vt[0]}, {MB}, v{vt[0]}
    s_lshl_b32 s{sT0}, s{sW}, 7
    v_add_u32 v{vt[1]}, s{sT0}, v{vt[0]}
    v_mov_b32 v{vt[2]}, 0xff800000
    ds_write_b32 v{vt[1]}, v{vt[2]}
    s_waitcnt vmcnt(0) lgkmcnt(0)
    s_barrier
    v_mov_b32 v{vt[1]}, v{vt[0]}
    v_mov_b32 v{vt[3]}, v{vQa}
    s_mov_b32 s{sT0}, 0
    K2_P1:
    ds_read_b128 {v(Q,4)}, v{vt[3]}
    v_mov_b32 v{nrm}, 0xff800000
    s_waitcnt lgkmcnt(0)
    """)
    for j in range(8):
        a(f"v_mfma_f32_32x32x16_bf16 {v(S[0],16)}, {v(Kf+4*j,4)}, {v(Q,4)}, 0")
        a("s_nop 7\ns_nop 3")
        for i in range(8):
            a(f"v_max3_f32 v{nrm}, v{nrm}, v{S[0]+2*i}, v{S[0]+2*i+1}")
        a("s_nop 1")
    a(f"""
    ds_max_f32 v{vt[1]}, v{nrm}
    v_add_u32 v{vt[1]}, 128, v{vt[1]}
    v_add_u32 v{vt[3]}, 1024, v{vt[3]}
    s_add_u32 s{sT0}, s{sT0}, 1
    s_cmp_lt_u32 s{sT0}, 8
    s_cbranch_scc1 K2_P1
    ds_read_b128 {v(Q,4)}, v{vQa}
    s_waitcnt lgkmcnt(0)
    s_barrier
    """)
    mainloop(True)
    a("s_branch K2_TAIL")
    for r in retries:
        a(r)
    return name, R.cur, K2_LDS
```

```python
WS_Q  = 0x000000
WS_K  = 0x200000
WS_V  = 0x210000
WS_KM = 0x221000
VSTR = 528
KV_BYTES = 0x22000
WS_FLG = 0x230000
WS_WO = 0x280000
WS_W2 = 0xD00000
W2F_BYTES = 64 * 11 * 2048
WS_H  = 0x300000
WS_HN = 0x500000
WS_G  = 0x700000
G_BYTES = 64 * 86 * 1024
QSCALE = 0.25 * 1.4426950408889634
import struct
def f32bits(x):
    return struct.unpack("<I", struct.pack("<f", x))[0]
```

```python
from asmlib import *
from common import *

XBASE = 0
WBASE = 65536
KVBASE = 131072
STBASE = 147456
K1_LDS = STBASE + 16384

import os
CODEPF = os.environ.get("CODEPF", "1") == "1"
BARS = [int(x) for x in os.environ.get("BARS", "0,2").split(",")]

def gen_k1(a):
    name = "qkv_kernel"
    kernel_header(a, name)
    R = Regs(1, 128)
    R.alloc("pad")
    vt = [R.alloc(f"t{i}") for i in range(8)]
    NS = 4
    pool = R.alloc("pool", 116, 4)
    sW, sRB, sCB, sWR, sWC, sH = 20, 21, 22, 23, 44, 45
    sT0, sT1, sXm, sWm, sKm, sSo, sWv, sB = 46, 47, 48, 49, 50, 51, 56, 57
    SX, SWQ, SKW, SQ, SKV, SWO = 24, 28, 32, 36, 40, 52
    a(f"""
    s_cmp_ge_u32 s2, 256
    s_cbranch_scc1 K1_END
    s_load_dwordx8 s[8:15], s[0:1], 0
    s_load_dwordx2 s[16:17], s[0:1], 96
    s_load_dwordx2 s[18:19], s[0:1], 32
    s_load_dwordx2 s[4:5], s[0:1], 64
    v_lshrrev_b32 v{vt[0]}, 6, v0
    v_and_b32 v0, 63, v0
    v_readfirstlane_b32 s{sW}, v{vt[0]}
    s_and_b32 s{sT0}, s2, 7
    s_lshr_b32 s{sT1}, s2, 3
    s_lshl_b32 s{sRB}, s{sT0}, 2
    s_and_b32 s{sT0}, s{sT1}, 3
    s_add_u32 s{sRB}, s{sRB}, s{sT0}
    s_lshr_b32 s{sCB}, s{sT1}, 2
    """)
    stamp_init(a)
    a(f"""
    s_cmp_ge_u32 s{sW}, 4
    s_cbranch_scc1 K1_MM
    """)
    P = Regs(pool, pool + 116)
    vXoff = [P.alloc(f"xoff{e}") for e in range(4)]
    vWoff = [P.alloc(f"woff{e}") for e in range(2)]
    vKoff = P.alloc("koff")
    vXs = [P.alloc(f"xs{i}") for i in range(4)]
    vX16a = P.alloc("x16a"); vKWa = P.alloc("kwa")
    Gq = P.alloc("gq", 4); Gs = P.alloc("gs", 4)
    ones = P.alloc("ones", 4)
    Xs = P.alloc("xsd", 16); Ws = P.alloc("wsd", 16)
    X16 = P.alloc("x16", 4); KW = P.alloc("kw", 4)
    Dk = P.alloc("dk", 4); Dc = P.alloc("dc", 4)
    st = P.alloc("st", 8, 4); pk = P.alloc("pk", 2, 2)
    a("s_setprio 3")
    a(f"""
    v_lshrrev_b32 v{vt[2]}, 4, v0
    v_and_b32 v{vt[3]}, 15, v0
    s_lshl_b32 s{sT0}, s{sW}, 14
    """)
    for e in range(4):
        a(f"""
        v_add_u32 v{vt[4]}, {4*e}, v{vt[2]}
        v_xor_b32 v{vt[5]}, v{vt[3]}, v{vt[4]}
        v_lshlrev_b32 v{vt[5]}, 4, v{vt[5]}
        v_lshl_add_u32 v{vt[5]}, v{vt[4]}, 10, v{vt[5]}
        v_add_u32 v{vXoff[e]}, s{sT0}, v{vt[5]}
        """)
    a(f"""
    v_lshrrev_b32 v{vt[4]}, 2, v0
    v_and_b32 v{vt[5]}, 3, v0
    v_lshlrev_b32 v{vt[5]}, 4, v{vt[5]}
    v_lshl_add_u32 v{vt[7]}, v{vt[4]}, 10, v{vt[5]}
    s_lshl_b32 s{sT0}, s{sCB}, 7
    s_lshl_b32 s{sT1}, s{sW}, 15
    s_add_u32 s{sT0}, s{sT0}, s{sT1}
    v_add_u32 v{vWoff[0]}, s{sT0}, v{vt[7]}
    v_add_u32 v{vWoff[1]}, 0x4000, v{vWoff[0]}
    v_lshrrev_b32 v{vt[4]}, 1, v0
    v_and_b32 v{vt[5]}, 0x13, v{vt[4]}
    v_and_b32 v{vt[6]}, 4, v{vt[4]}
    v_lshl_or_b32 v{vt[5]}, v{vt[6]}, 1, v{vt[5]}
    v_and_b32 v{vt[6]}, 8, v{vt[4]}
    v_lshrrev_b32 v{vt[6]}, 1, v{vt[6]}
    v_or_b32 v{vt[5]}, v{vt[5]}, v{vt[6]}
    v_lshlrev_b32 v{vt[5]}, 5, v{vt[5]}
    v_and_b32 v{vt[6]}, 1, v0
    v_lshl_add_u32 v{vt[5]}, v{vt[6]}, 4, v{vt[5]}
    s_lshl_b32 s{sT0}, s{sW}, 10
    v_add_u32 v{vKoff}, s{sT0}, v{vt[5]}
    s_lshl_b32 s{sXm}, s{sW}, 12
    s_lshl_b32 s{sWm}, s{sW}, 11
    s_add_u32 s{sWm}, s{sWm}, {WBASE}
    s_add_u32 s{sKm}, s{sT0}, {KVBASE}
    s_lshl_b32 s{sT0}, s{sRB}, 16
    s_waitcnt lgkmcnt(0)
    s_add_u32 s{SX}, s8, s{sT0}
    s_addc_u32 s{SX+1}, s9, 0
    s_mov_b32 s{SX+2}, 0x10000
    s_mov_b32 s{SX+3}, 0x20000
    """)
    srd(a, SWQ, 10, 11, 0, 524288)
    a(f"""
    s_bitcmp1_b32 s{sCB}, 0
    s_cselect_b32 s{SKW}, s14, s12
    s_cselect_b32 s{SKW+1}, s15, s13
    s_mov_b32 s{SKW+2}, 0x4000
    s_mov_b32 s{SKW+3}, 0x20000
    """)
    a(f"s_add_u32 s{sB}, s{sCB}, s{sRB}")
    def issue(c):
        a(f"""
        s_add_u32 s{sWv}, s{sB}, {c}
        s_and_b32 s{sWv}, s{sWv}, 3
        s_lshl_b32 s{sSo}, s{sWv}, 8
        """)
        for e in range(4):
            a(f"s_add_u32 m0, s{sXm}, {XBASE + c*16384 + e*1024}")
            a("s_nop 0")
            a(f"buffer_load_dwordx4 v{vXoff[e]}, {s(SX,4)}, s{sSo} offen lds")
        a(f"s_lshl_b32 s{sSo}, s{sWv}, 17")
        for kb in range(2):
            for ct in range(2):
                a(f"s_add_u32 m0, s{sWm}, {(ct*32 + c*8 + kb)*1024 - ct*64}")
                a("s_nop 0")
                a(f"buffer_load_dwordx4 v{vWoff[kb]}, {s(SWQ,4)}, s{sSo} offen offset:{ct*64} lds")
        a(f"s_lshl_b32 s{sSo}, s{sWv}, 12")
        a(f"s_add_u32 m0, s{sKm}, {c*4096}")
        a("s_nop 0")
        a(f"buffer_load_dwordx4 v{vKoff}, {s(SKW,4)}, s{sSo} offen lds")
    issue(0); issue(1)
    a("s_setprio 0")
    stamp(a, 1)
    a(f"""
    s_lshl_b32 s{sT0}, s{sW}, 12
    v_lshlrev_b32 v{vt[4]}, 8, v{vt[3]}
    v_add_u32 v{vt[4]}, s{sT0}, v{vt[4]}
    v_lshlrev_b32 v{vt[5]}, 2, v{vt[2]}
    """)
    for i in range(4):
        a(f"""
        v_add_u32 v{vt[6]}, {i}, v{vt[5]}
        v_xor_b32 v{vt[6]}, v{vt[6]}, v{vt[3]}
        v_lshl_add_u32 v{vXs[i]}, v{vt[6]}, 4, v{vt[4]}
        """)
    a(f"""
    v_lshrrev_b32 v{vt[1]}, 5, v0
    v_bfe_u32 v{vt[5]}, v0, 2, 2
    v_bfe_u32 v{vt[6]}, v0, 4, 1
    v_and_b32 v{vt[0]}, 3, v0
    v_lshlrev_b32 v{vt[4]}, 9, v{vt[1]}
    v_lshl_add_u32 v{vt[4]}, v{vt[6]}, 7, v{vt[4]}
    v_lshl_add_u32 v{vt[4]}, v{vt[5]}, 5, v{vt[4]}
    v_lshl_add_u32 v{vt[4]}, v{vt[0]}, 3, v{vt[4]}
    v_add_u32 v{vKWa}, s{sKm}, v{vt[4]}
    s_lshr_b32 s{sT0}, s{sCB}, 1
    s_lshl_b32 s{sT0}, s{sT0}, 12
    s_lshl_b32 s{sT1}, s{sW}, 2
    v_add_u32 v{vt[6]}, s{sT1}, v{vt[2]}
    v_xor_b32 v{vt[6]}, v{vt[6]}, v{vt[3]}
    v_lshlrev_b32 v{vt[6]}, 4, v{vt[6]}
    v_lshl_add_u32 v{vt[6]}, v{vt[3]}, 8, v{vt[6]}
    v_add_u32 v{vX16a}, s{sT0}, v{vt[6]}
    """)
    for i in range(4):
        a(f"v_mov_b32 v{ones+i}, 0x3f803f80")
    srd(a, SKV, 16, 17, WS_K, KV_BYTES)
    for c in range(4):
        z = (lambda r: "0") if c == 0 else (lambda r: v(r, 4))
        a(f"s_waitcnt vmcnt({9 if c < 3 else 0})")
        a("s_barrier")
        stamp(a, 2 + c)
        for i in range(4):
            a(f"ds_read_b128 {v(Xs+4*i,4)}, v{vXs[i]} offset:{c*16384}")
        a(f"ds_read_b128 {v(X16,4)}, v{vX16a} offset:{c*16384}")
        a(f"ds_read_b64_tr_b16 {v(KW,2)}, v{vKWa} offset:{c*4096}")
        a(f"ds_read_b64_tr_b16 {v(KW+2,2)}, v{vKWa} offset:{c*4096+256}")
        if c < 2:
            issue(c + 2)
        for i in range(4):
            a(f"s_waitcnt lgkmcnt({6-i})")
            a(f"v_mfma_f32_16x16x32_bf16 {v(Gq,4)}, {v(Xs+4*i,4)}, {v(Xs+4*i,4)}, {z(Gq) if i == 0 else v(Gq,4)}")
            a(f"v_mfma_f32_16x16x32_bf16 {v(Gs,4)}, {v(Xs+4*i,4)}, {v(ones,4)}, {z(Gs) if i == 0 else v(Gs,4)}")
        a(f"""
        s_waitcnt lgkmcnt(0)
        s_bitcmp1_b32 s{sCB}, 0
        s_cbranch_scc1 K1_V{c}
        v_mfma_f32_16x16x32_bf16 {v(Dk,4)}, {v(KW,4)}, {v(X16,4)}, {z(Dk)}
        v_mfma_f32_16x16x32_bf16 {v(Dc,4)}, {v(KW,4)}, {v(ones,4)}, {z(Dc)}
        s_branch K1_J{c}
        K1_V{c}:
        v_mfma_f32_16x16x32_bf16 {v(Dk,4)}, {v(X16,4)}, {v(KW,4)}, {z(Dk)}
        v_mfma_f32_16x16x32_bf16 {v(Dc,4)}, {v(ones,4)}, {v(KW,4)}, {z(Dc)}
        K1_J{c}:
        """)
    stamp(a, 6)
    a.c("row statistics: lane n = 4g + r holds the diagonal of X X^T and the row sum in register r")
    a(f"""
    v_and_b32 v{vt[0]}, 1, v0
    v_cmp_eq_u32 vcc, 1, v{vt[0]}
    v_and_b32 v{vt[0]}, 2, v0
    v_cmp_eq_u32 s[6:7], 2, v{vt[0]}
    s_mov_b32 s{sXm}, {hex(f32bits(1.0/512))}
    s_mov_b32 s{sWm}, {hex(f32bits(1e-5))}
    v_cndmask_b32 v{Gq}, v{Gq}, v{Gq+1}, vcc
    v_cndmask_b32 v{Gq+2}, v{Gq+2}, v{Gq+3}, vcc
    v_cndmask_b32 v{Gs}, v{Gs}, v{Gs+1}, vcc
    v_cndmask_b32 v{Gs+2}, v{Gs+2}, v{Gs+3}, vcc
    v_cndmask_b32 v{st+1}, v{Gq}, v{Gq+2}, s[6:7]
    v_cndmask_b32 v{st}, v{Gs}, v{Gs+2}, s[6:7]
    v_mul_f32 v{st+3}, s{sXm}, v{st}
    v_mul_f32 v{st+1}, s{sXm}, v{st+1}
    v_fma_f32 v{st+1}, -v{st+3}, v{st+3}, v{st+1}
    v_max_f32 v{st+1}, 0, v{st+1}
    v_add_f32 v{st+1}, s{sWm}, v{st+1}
    v_rsq_f32 v{st+2}, v{st+1}
    s_lshl_b32 s{sT0}, s{sW}, 8
    s_add_u32 s{sT0}, s{sT0}, {STBASE}
    v_lshlrev_b32 v{vt[0]}, 4, v{vt[3]}
    v_mul_f32 v{st}, {hex(f32bits(QSCALE))}, v{st+2}
    v_add_u32 v{vt[0]}, s{sT0}, v{vt[0]}
    v_mul_f32 v{st+1}, v{st}, v{st+3}
    s_mov_b32 exec_lo, 0x00f0000f
    s_mov_b32 exec_hi, 0xf0000f00
    ds_write_b128 v{vt[0]}, {v(st,4)}
    s_mov_b64 exec, -1
    """)
    a(f"""
    v_lshlrev_b32 v{vt[4]}, 4, v0
    v_add_u32 v{vt[4]}, {STBASE + 2048}, v{vt[4]}
    s_lshl_b32 s{sT0}, s{sW}, 11
    v_add_u32 v{vt[5]}, s{sT0}, v{vt[4]}
    s_cmp_eq_u32 s{sW}, 3
    s_cbranch_scc1 K1_NOKVP
    ds_write_b128 v{vt[5]}, {v(Dk,4)}
    ds_write_b128 v{vt[5]}, {v(Dc,4)} offset:1024
    K1_NOKVP:
    s_waitcnt lgkmcnt(0)
    s_barrier
    s_cmp_lg_u32 s{sW}, 3
    s_cbranch_scc1 K1_DONE
    """)
    a.c("KV epilogue (wave 3)")
    g, d = vt[2], vt[3]
    Pp = Xs
    assert Ws == Xs + 16 and Dc == Dk + 4
    for w in range(3):
        a(f"ds_read_b128 {v(Pp+8*w,4)}, v{vt[4]} offset:{w*2048}")
        a(f"ds_read_b128 {v(Pp+8*w+4,4)}, v{vt[4]} offset:{w*2048+1024}")
    def kvsum():
        for i in range(4):
            a(f"v_pk_add_f32 {v(Pp+2*i,2)}, {v(Pp+2*i,2)}, {v(Pp+8+2*i,2)}")
            a(f"v_pk_add_f32 {v(Pp+16+2*i,2)}, {v(Pp+16+2*i,2)}, {v(Dk+2*i,2)}")
        for i in range(4):
            a(f"v_pk_add_f32 {v(Dk+2*i,2)}, {v(Pp+2*i,2)}, {v(Pp+16+2*i,2)}")
    a(f"""
    s_lshr_b32 s{sH}, s{sCB}, 1
    s_lshl_b32 s{sT0}, s{sH}, 8
    s_add_u32 s{sT0}, s{sT0}, {STBASE}
    s_lshl_b32 s{sKm}, s{sRB}, 2
    s_add_u32 s{sKm}, s{sKm}, s{sH}
    s_bitcmp1_b32 s{sCB}, 0
    s_cbranch_scc1 K1_VEP
    """)
    a.c("K tile: lane key = l&15")
    a(f"""
    v_lshlrev_b32 v{vt[0]}, 4, v{d}
    v_add_u32 v{vt[0]}, s{sT0}, v{vt[0]}
    ds_read_b64 {v(st,2)}, v{vt[0]} offset:8
    v_and_b32 v{vt[1]}, 3, v{d}
    v_and_b32 v{vt[5]}, 4, v{d}
    v_lshl_or_b32 v{vt[1]}, v{vt[5]}, 1, v{vt[1]}
    v_and_b32 v{vt[5]}, 8, v{d}
    v_lshrrev_b32 v{vt[5]}, 1, v{vt[5]}
    v_or_b32 v{vt[1]}, v{vt[1]}, v{vt[5]}
    v_lshlrev_b32 v{vt[1]}, 4, v{vt[1]}
    v_and_b32 v{vt[5]}, 1, v{g}
    v_lshl_add_u32 v{vt[1]}, v{vt[5]}, 9, v{vt[1]}
    v_lshrrev_b32 v{vt[5]}, 1, v{g}
    v_lshl_add_u32 v{vt[1]}, v{vt[5]}, 3, v{vt[1]}
    s_lshr_b32 s{sT1}, s{sKm}, 1
    s_lshl_b32 s{sT1}, s{sT1}, 10
    s_and_b32 s{sT0}, s{sKm}, 1
    s_lshl_b32 s{sT0}, s{sT0}, 8
    s_add_u32 s{sT1}, s{sT1}, s{sT0}
    s_waitcnt lgkmcnt(0)
    """)
    kvsum()
    for r in range(4):
        a(f"v_fma_f32 v{Dk+r}, -v{st+1}, v{Dc+r}, v{Dk+r}")
    for r in range(4):
        a(f"v_mul_f32 v{Dk+r}, v{Dk+r}, v{st}")
    a(f"""
    v_cvt_pk_bf16_f32 v{pk}, v{Dk}, v{Dk+1}
    v_cvt_pk_bf16_f32 v{pk+1}, v{Dk+2}, v{Dk+3}
    v_mul_f32 v{st+2}, v{Dk}, v{Dk}
    v_fmac_f32 v{st+2}, v{Dk+1}, v{Dk+1}
    v_fmac_f32 v{st+2}, v{Dk+2}, v{Dk+2}
    v_fmac_f32 v{st+2}, v{Dk+3}, v{Dk+3}
    buffer_store_dwordx2 {v(pk,2)}, v{vt[1]}, {s(SKV,4)}, s{sT1} offen
    v_mov_b32 v{st+3}, v{st+2}
    s_nop 1
    v_permlane32_swap_b32 v{st+2}, v{st+3}
    v_add_f32 v{st+2}, v{st+2}, v{st+3}
    v_mov_b32 v{st+3}, v{st+2}
    s_nop 1
    v_permlane16_swap_b32 v{st+2}, v{st+3}
    v_add_f32 v{st+2}, v{st+2}, v{st+3}
    s_nop 1
    v_max_f32_dpp v{st+2}, v{st+2}, v{st+2} row_ror:8 row_mask:0xf bank_mask:0xf
    s_nop 1
    v_max_f32_dpp v{st+2}, v{st+2}, v{st+2} row_ror:4 row_mask:0xf bank_mask:0xf
    s_nop 1
    v_max_f32_dpp v{st+2}, v{st+2}, v{st+2} row_ror:2 row_mask:0xf bank_mask:0xf
    s_nop 1
    v_max_f32_dpp v{st+2}, v{st+2}, v{st+2} row_ror:1 row_mask:0xf bank_mask:0xf
    s_lshl_b32 s{sKm}, s{sKm}, 2
    s_add_u32 s{sKm}, s{sKm}, 0x21000
    v_mov_b32 v{vt[5]}, 0
    s_mov_b64 exec, 1
    buffer_store_dword v{st+2}, v{vt[5]}, {s(SKV,4)}, s{sKm} offen
    s_branch K1_DONE
    K1_VEP:
    """)
    a.c("V tile: lane d = l&15, keys 4g+r")
    a(f"""
    v_lshlrev_b32 v{vt[0]}, 6, v{g}
    v_add_u32 v{vt[0]}, s{sT0}, v{vt[0]}
    """)
    for r in range(4):
        a(f"ds_read_b64 {v(st+2*r,2)}, v{vt[0]} offset:{16*r+8}")
    a(f"""
    v_lshlrev_b32 v{vt[1]}, 4, v{d}
    v_and_b32 v{vt[5]}, 1, v{g}
    v_lshl_add_u32 v{vt[1]}, v{vt[5]}, 8, v{vt[1]}
    v_lshrrev_b32 v{vt[5]}, 1, v{g}
    v_lshl_add_u32 v{vt[1]}, v{vt[5]}, 3, v{vt[1]}
    s_mul_i32 s{sT1}, s{sKm}, {VSTR}
    s_add_u32 s{sT1}, s{sT1}, 0x10000
    s_waitcnt lgkmcnt(0)
    """)
    kvsum()
    for r in range(4):
        a(f"v_fma_f32 v{Dk+r}, -v{st+2*r+1}, v{Dc+r}, v{Dk+r}")
    for r in range(4):
        a(f"v_mul_f32 v{Dk+r}, v{Dk+r}, v{st+2*r}")
    a(f"""
    v_cvt_pk_bf16_f32 v{pk}, v{Dk}, v{Dk+1}
    v_cvt_pk_bf16_f32 v{pk+1}, v{Dk+2}, v{Dk+3}
    buffer_store_dwordx2 {v(pk,2)}, v{vt[1]}, {s(SKV,4)}, s{sT1} offen
    v_lshlrev_b32 v{vt[1]}, 2, v0
    s_mov_b64 exec, 15
    buffer_store_dword v{ones}, v{vt[1]}, {s(SKV,4)}, s{sT1} offen offset:512
    s_branch K1_DONE
    """)
    P = Regs(pool, pool + 116)
    vXa = [P.alloc(f"xa{i}") for i in range(8)]
    vWa = [P.alloc("wa0"), P.alloc("wa1")]
    vcs = [P.alloc("cs0"), P.alloc("cs1")]; onesr = P.alloc("onesr")
    Xf = [P.alloc(f"xf{i}", 4) for i in range(NS)]
    Wf = [P.alloc(f"wf{i}", 4) for i in range(NS)]
    acc = P.alloc("acc", 16); csr = P.alloc("csr", 16); pk = P.alloc("pk", 8); st = P.alloc("st", 2)
    jt = [P.alloc(f"jt{i}") for i in range(8)]
    sJ0, sJ1, sJb, sJs = 58, 59, 60, 61
    a("K1_MM:")
    a(f"s_sub_u32 s{sW}, s{sW}, 4")
    if CODEPF:
        a.c("pull the code of this launch list into L2 (one dword per 128-byte line)")
        a(f"""
        s_getpc_b64 s[6:7]
        K1_PC:
        s_sub_u32 s6, s6, K1_PC-qkv_kernel
        s_subb_u32 s7, s7, 0
        s_lshl_b32 s{sT0}, s{sW}, 13
        s_add_u32 s6, s6, s{sT0}
        s_addc_u32 s7, s7, 0
        v_lshlrev_b32 v{vt[4]}, 7, v0
        v_mov_b32 v{vt[5]}, s7
        v_add_co_u32 v{vt[4]}, vcc, s6, v{vt[4]}
        s_nop 1
        v_addc_co_u32 v{vt[5]}, vcc, 0, v{vt[5]}, vcc
        global_load_dword v{jt[0]}, v[{vt[4]}:{vt[5]}], off
        """)
    def job_issue():
        a(f"""
        v_lshrrev_b32 v{jt[2]}, 4, v0
        v_and_b32 v{jt[3]}, 15, v0
        s_lshl_b32 s{sJ1}, s{sW}, 11
        s_add_u32 s{sJs}, s{sJ1}, {STBASE + 8192}
        v_bfe_u32 v{jt[5]}, v0, 2, 2
        v_and_b32 v{jt[6]}, 3, v0
        v_lshlrev_b32 v{jt[4]}, 4, v0
        s_cmp_eq_u32 s{sW}, 2
        s_cbranch_scc1 K1_WOJ
        """)
        a.c("w2 re-layout: block b = 3*wg + {0,1,2} ; ks = b>>3, cb = b&7")
        srd(a, SWO, 4, 5, 0, 1409024)
        a(f"""
        s_mul_i32 s{sJb}, s2, 3
        s_min_u32 s{sJ0}, s{sW}, 2
        s_add_u32 s{sJb}, s{sJb}, s{sJ0}
        s_lshr_b32 s{sJ0}, s{sJb}, 3
        s_lshl_b32 s{sJ0}, s{sJ0}, 14
        s_and_b32 s{sJ1}, s{sJb}, 7
        s_lshl_b32 s{sJ1}, s{sJ1}, 7
        s_add_u32 s{sJ0}, s{sJ0}, s{sJ1}
        v_lshrrev_b32 v{jt[7]}, 3, v0
        v_lshlrev_b32 v{jt[7]}, 10, v{jt[7]}
        v_and_b32 v{jt[0]}, 7, v0
        v_lshl_add_u32 v{jt[7]}, v{jt[0]}, 4, v{jt[7]}
        s_mov_b32 m0, s{sJs}
        s_add_u32 s{sJ1}, s{sJ0}, 0x2000
        buffer_load_dwordx4 v{jt[7]}, {s(SWO,4)}, s{sJ0} offen lds
        s_add_u32 m0, s{sJs}, 1024
        v_lshrrev_b32 v{jt[0]}, 5, v0
        buffer_load_dwordx4 v{jt[7]}, {s(SWO,4)}, s{sJ1} offen lds
        v_lshlrev_b32 v{jt[0]}, 9, v{jt[0]}
        v_lshl_add_u32 v{jt[0]}, v{jt[5]}, 7, v{jt[0]}
        v_bfe_u32 v{jt[1]}, v0, 4, 1
        v_lshl_add_u32 v{jt[0]}, v{jt[1]}, 5, v{jt[0]}
        v_lshl_add_u32 v{jt[0]}, v{jt[6]}, 3, v{jt[0]}
        v_add_u32 v{jt[0]}, s{sJs}, v{jt[0]}
        s_and_b32 s{sJ0}, s{sJb}, 7
        s_lshl_b32 s{sJ0}, s{sJ0}, 3
        s_bfe_u32 s{sJ1}, s{sJb}, 0x30003
        s_add_u32 s{sJ0}, s{sJ0}, s{sJ1}
        s_mul_i32 s{sJ0}, s{sJ0}, 11
        s_lshr_b32 s{sJ1}, s{sJb}, 6
        s_add_u32 s{sJ0}, s{sJ0}, s{sJ1}
        s_lshl_b32 s{sJ0}, s{sJ0}, 11
        s_cmp_lt_u32 s{sJb}, 704
        s_cselect_b32 s{sJ0}, s{sJ0}, 0x1000000
        """)
        srd(a, SWO, 16, 17, WS_W2, W2F_BYTES)
        a(f"""
        v_add_u32 v{jt[1]}, 1024, v{jt[0]}
        v_add_u32 v{jt[2]}, 64, v{jt[0]}
        v_add_u32 v{jt[3]}, 1088, v{jt[0]}
        s_branch K1_JOBST
        K1_WOJ:
        """)
        a.c("wo re-layout: block rows 32*(wg>>4).., cols 32*(wg&15)..")
        srd(a, SWO, 18, 19, 0, 524288)
        a(f"""
        s_lshr_b32 s{sJ0}, s2, 4
        s_lshl_b32 s{sJ0}, s{sJ0}, 15
        s_and_b32 s{sJ1}, s2, 15
        s_lshl_b32 s{sJ1}, s{sJ1}, 6
        s_add_u32 s{sJ0}, s{sJ0}, s{sJ1}
        v_lshrrev_b32 v{jt[7]}, 2, v0
        v_lshlrev_b32 v{jt[7]}, 10, v{jt[7]}
        v_lshl_add_u32 v{jt[7]}, v{jt[6]}, 4, v{jt[7]}
        s_mov_b32 m0, s{sJs}
        s_add_u32 s{sJ1}, s{sJ0}, 0x4000
        buffer_load_dwordx4 v{jt[7]}, {s(SWO,4)}, s{sJ0} offen lds
        s_add_u32 m0, s{sJs}, 1024
        v_lshlrev_b32 v{jt[0]}, 9, v{jt[2]}
        buffer_load_dwordx4 v{jt[7]}, {s(SWO,4)}, s{sJ1} offen lds
        v_lshl_add_u32 v{jt[0]}, v{jt[5]}, 6, v{jt[0]}
        v_lshl_add_u32 v{jt[0]}, v{jt[6]}, 3, v{jt[0]}
        v_add_u32 v{jt[0]}, s{sJs}, v{jt[0]}
        s_lshr_b32 s{sJ0}, s2, 5
        s_lshl_b32 s{sJ0}, s{sJ0}, 16
        s_bfe_u32 s{sJ1}, s2, 0x30001
        s_lshl_b32 s{sJ1}, s{sJ1}, 13
        s_add_u32 s{sJ0}, s{sJ0}, s{sJ1}
        s_bfe_u32 s{sJ1}, s2, 0x10004
        s_lshl_b32 s{sJ1}, s{sJ1}, 12
        s_add_u32 s{sJ0}, s{sJ0}, s{sJ1}
        s_and_b32 s{sJ1}, s2, 1
        s_lshl_b32 s{sJ1}, s{sJ1}, 11
        s_add_u32 s{sJ0}, s{sJ0}, s{sJ1}
        """)
        srd(a, SWO, 16, 17, WS_WO, 524288)
        a(f"""
        v_add_u32 v{jt[1]}, 256, v{jt[0]}
        v_add_u32 v{jt[2]}, 32, v{jt[0]}
        v_add_u32 v{jt[3]}, 288, v{jt[0]}
        K1_JOBST:
        """)
    a(f"""
    s_and_b32 s{sWR}, s{sW}, 1
    s_bfe_u32 s{sWC}, s{sW}, 0x10001
    v_and_b32 v{vt[0]}, 31, v0
    v_lshrrev_b32 v{vt[1]}, 5, v0
    s_lshl_b32 s{sT0}, s{sWR}, 13
    v_lshlrev_b32 v{vt[2]}, 8, v{vt[0]}
    v_add_u32 v{vt[2]}, s{sT0}, v{vt[2]}
    v_and_b32 v{vt[3]}, 15, v0
    v_xor_b32 v{vt[3]}, v{vt[3]}, v{vt[1]}
    s_lshl_b32 s{sT1}, s{sWR}, 1
    v_xor_b32 v{vt[3]}, s{sT1}, v{vt[3]}
    v_mov_b32 v{onesr}, 0x3f803f80
    v_mov_b32 v{vcs[0]}, 0
    v_mov_b32 v{vcs[1]}, 0
    """)
    for i in range(8):
        a(f"v_xor_b32 v{vt[4]}, {2*i}, v{vt[3]}")
        a(f"v_lshl_add_u32 v{vXa[i]}, v{vt[4]}, 4, v{vt[2]}")
    a(f"""
    v_lshlrev_b32 v{vt[4]}, 9, v{vt[1]}
    v_bfe_u32 v{vt[5]}, v0, 2, 2
    v_lshl_add_u32 v{vt[4]}, v{vt[5]}, 6, v{vt[4]}
    v_bfe_u32 v{vt[5]}, v0, 4, 1
    v_lshl_add_u32 v{vt[4]}, v{vt[5]}, 5, v{vt[4]}
    v_and_b32 v{vt[5]}, 3, v0
    v_lshl_add_u32 v{vt[4]}, v{vt[5]}, 3, v{vt[4]}
    s_lshl_b32 s{sT0}, s{sWC}, 15
    s_add_u32 s{sT0}, s{sT0}, {WBASE}
    s_lshl_b32 s{sT1}, s{sWR}, 10
    s_add_u32 s{sT0}, s{sT0}, s{sT1}
    v_add_u32 v{vWa[0]}, s{sT0}, v{vt[4]}
    v_xor_b32 v{vWa[1]}, 0x400, v{vWa[0]}
    s_lshl_b32 s{sT0}, s{sWR}, 9
    s_add_u32 s{sT0}, s{sT0}, {STBASE}
    v_lshlrev_b32 v{vt[2]}, 4, v{vt[0]}
    v_add_u32 v{vt[2]}, s{sT0}, v{vt[2]}
    s_lshl_b32 s{sT1}, s{sWC}, 7
    s_add_u32 s{sT1}, s{sT1}, {STBASE + 1024}
    v_lshlrev_b32 v{vt[5]}, 4, v{vt[1]}
    v_add_u32 v{vt[5]}, s{sT1}, v{vt[5]}
    s_lshl_b32 s{sT0}, s{sRB}, 16
    s_lshl_b32 s{sT1}, s{sWR}, 15
    s_add_u32 s{sT0}, s{sT0}, s{sT1}
    s_lshl_b32 s{sT1}, s{sCB}, 10
    s_add_u32 s{sT0}, s{sT0}, s{sT1}
    s_lshl_b32 s{sT1}, s{sWC}, 8
    s_add_u32 s{sT0}, s{sT0}, s{sT1}
    v_lshrrev_b32 v{vt[6]}, 3, v{vt[0]}
    v_lshlrev_b32 v{vt[6]}, 13, v{vt[6]}
    v_lshl_add_u32 v{vt[6]}, v{vt[1]}, 9, v{vt[6]}
    v_and_b32 v{vt[7]}, 7, v0
    v_lshl_add_u32 v{vt[6]}, v{vt[7]}, 4, v{vt[6]}
    """)
    a("s_waitcnt lgkmcnt(0)")
    srd(a, SQ, 16, 17, WS_Q, 0x200000)
    def reads(i):
        c, ip = i >> 3, i & 7
        sl = i % NS
        a(f"ds_read_b128 {v(Xf[sl],4)}, v{vXa[ip]} offset:{c*16384}")
        a(f"ds_read_b64_tr_b16 {v(Wf[sl],2)}, v{vWa[i&1]} offset:{(i&~1)*1024}")
        a(f"ds_read_b64_tr_b16 {v(Wf[sl]+2,2)}, v{vWa[i&1]} offset:{(i&~1)*1024+256}")
    a("s_waitcnt lgkmcnt(0)")
    srd(a, SKV, 16, 17, WS_FLG, 4096)
    a(f"""
    v_lshlrev_b32 v{vt[1]}, 2, v0
    v_mov_b32 v{vt[7]}, 0
    s_lshl_b32 s{sT1}, s2, 8
    s_cmp_eq_u32 s{sW}, 0
    s_cselect_b32 s{sT1}, s{sT1}, 0x10000
    buffer_store_dword v{vt[7]}, v{vt[1]}, {s(SKV,4)}, s{sT1} offen
    """)
    nxt = 0
    for i in range(32):
        c = i >> 3
        if i % 8 == 0:
            a("s_barrier")
            stamp(a, 2 + c)
            lim = (c + 1) * 8
        while nxt < min(i + NS, lim):
            reads(nxt); nxt += 1
        a(f"s_waitcnt lgkmcnt({(nxt - 1 - i) * 3})")
        a(f"v_mfma_f32_32x32x16_bf16 {v(acc,16)}, {v(Wf[i % NS],4)}, {v(Xf[i % NS],4)}, {'0' if i == 0 else v(acc,16)}")
        if (i & 1) == 0:
            for j in range(4):
                a(f"v_dot2c_f32_bf16 v{vcs[j&1]}, v{Wf[i % NS]+j}, v{onesr}")
        if i == 3:
            a("s_waitcnt vmcnt(0)")
            job_issue()
    a.c("column sums: [wr][64]")
    a(f"""
    s_nop 0
    v_add_f32 v{vcs[0]}, v{vcs[0]}, v{vcs[1]}
    s_lshl_b32 s{sJ1}, s{sWR}, 8
    v_mov_b32 v{vcs[1]}, v{vcs[0]}
    s_lshl_b32 s{sJb}, s{sWC}, 7
    s_add_u32 s{sJ1}, s{sJ1}, s{sJb}
    v_permlane32_swap_b32 v{vcs[0]}, v{vcs[1]}
    s_add_u32 s{sJ1}, s{sJ1}, {STBASE + 1024}
    v_lshlrev_b32 v{onesr}, 2, v{vt[0]}
    v_add_f32 v{vcs[0]}, v{vcs[0]}, v{vcs[1]}
    v_add_u32 v{onesr}, s{sJ1}, v{onesr}
    ds_write_b32 v{onesr}, v{vcs[0]}
    """)
    a.c("finish the re-layout job")
    a(f"""
    s_waitcnt vmcnt(0)
    ds_read_b64_tr_b16 {v(pk,2)}, v{jt[0]}
    ds_read_b64_tr_b16 {v(pk+2,2)}, v{jt[1]}
    ds_read_b64_tr_b16 {v(pk+4,2)}, v{jt[2]}
    ds_read_b64_tr_b16 {v(pk+6,2)}, v{jt[3]}
    s_waitcnt lgkmcnt(0)
    buffer_store_dwordx4 {v(pk,4)}, v{jt[4]}, {s(SWO,4)}, s{sJ0} offen
    buffer_store_dwordx4 {v(pk+4,4)}, v{jt[4]}, {s(SWO,4)}, s{sJ0} offen offset:1024
    """)
    stamp(a, 6)
    a("s_barrier")
    cs2 = Xf[0]
    a(f"ds_read_b64 {v(st,2)}, v{vt[2]}")
    for q in range(4):
        a(f"ds_read_b128 {v(csr+4*q,4)}, v{vt[5]} offset:{32*q}")
        a(f"ds_read_b128 {v(cs2+4*q,4)}, v{vt[5]} offset:{256+32*q}")
    a("s_nop 0\ns_waitcnt lgkmcnt(8)")
    for r in range(8):
        a(f"v_pk_mul_f32 {v(acc+2*r,2)}, {v(acc+2*r,2)}, {v(st,2)} op_sel_hi:[1,0]")
    a("s_waitcnt lgkmcnt(0)")
    for r in range(8):
        a(f"v_pk_add_f32 {v(csr+2*r,2)}, {v(csr+2*r,2)}, {v(cs2+2*r,2)}")
    for r in range(8):
        a(f"v_pk_fma_f32 {v(acc+2*r,2)}, {v(csr+2*r,2)}, {v(st,2)}, {v(acc+2*r,2)} op_sel:[0,1,0] op_sel_hi:[1,1,1] neg_lo:[1,0,0] neg_hi:[1,0,0]")
    for j in range(8):
        a(f"v_cvt_pk_bf16_f32 v{pk+j}, v{acc+2*j}, v{acc+2*j+1}")
    a(f"""
    buffer_store_dwordx4 {v(pk,4)}, v{vt[6]}, {s(SQ,4)}, s{sT0} offen
    buffer_store_dwordx4 {v(pk+4,4)}, v{vt[6]}, {s(SQ,4)}, s{sT0} offen offset:128
    s_add_u32 s{sW}, s{sW}, 4
    K1_DONE:
    """)
    stamp_dump(a, 0, sW)
    a("K1_END:")
    a("s_endpgm")
    return name, R.cur, K1_LDS
```

```python
from asmlib import *
from common import *
import os

W1L = 0
QL = 98304
EXB = QL
OACC = QL + 8192
LACC = OACC + 16384
OFB = LACC + 1024
MISC = OFB + 1024
XL = MISC + 2048
K2_LDS = EXB + 49152
RSTR = 17408
THR2 = (40.0 / 1.02) ** 2
PRIO = os.environ.get("PRIO", "2")
PD = int(os.environ.get("PD", "2"))
EXP = os.environ.get("EXP", "").split(",")
SLOW_V0 = min(16, 2*PD + 10)

def gen_k2(a):
    name = "attn_kernel"
    kernel_header(a, name)
    R = Regs(1, 256)
    vt = [R.alloc(f"t{i}") for i in range(6)]
    vidx = R.alloc("idx")
    vQa = R.alloc("qa")
    vOa = R.alloc("oa"); vLa = R.alloc("la")
    vNr = R.alloc("nr"); vNl = R.alloc("nl"); vNw = R.alloc("nw")
    vOFa = R.alloc("ofa")
    vKo = R.alloc("ko"); vVo = R.alloc("vo"); vQl = R.alloc("ql"); vW1o = R.alloc("w1o")
    vP1r = R.alloc("p1r"); vP2r = R.alloc("p2r"); vPw = R.alloc("pw"); vPv = R.alloc("pv"); vCnt = R.alloc("cnt")
    zero = R.alloc("zero", 4)
    Q = R.alloc("q", 4)
    nrm = R.alloc("nrm", 8, 4)
    Kf = R.alloc("k", 32)
    Vf = R.alloc("v", 64)
    S = [R.alloc(f"s{i}", 16) for i in range(2)]
    O = [R.alloc(f"o{i}", 16) for i in range(2)]
    woA = R.alloc("woa", 16)
    T = R.alloc("T", 16)
    OFr = R.alloc("ofr", 8)
    hacc = R.alloc("hacc", 16)
    Qw = OFr
    vM = [vt[1], vt[2]]
    sW, sRB, sT0, sT1, sT2, sWm, sSo, sHalf = 20, 21, 22, 23, 44, 45, 46, 47
    sMaskLo, sV1, sV2 = 48, 50, 51
    sG, sMm, sT0f, sW1m, sV2x, sRot = 4, 5, 6, 7, 60, 61
    SQ, SKV, SWO, SX, SH, SHN, SP = 24, 28, 32, 36, 40, 52, 56
    a(f"""
    s_cmp_ge_u32 s2, 256
    s_cbranch_scc1 K2_END
    s_setprio 3
    s_load_dwordx2 s[16:17], s[0:1], 96
    s_load_dwordx2 s[8:9], s[0:1], 0
    s_load_dwordx4 s[12:15], s[0:1], 48
    s_load_dwordx2 s[18:19], s[0:1], 72
    s_load_dwordx2 s[10:11], s[0:1], 80
    v_lshrrev_b32 v{vt[0]}, 6, v0
    v_and_b32 v0, 63, v0
    v_readfirstlane_b32 s{sW}, v{vt[0]}
    v_lshlrev_b32 v{vQa}, 4, v0
    s_and_b32 s{sT0}, s2, 7
    s_lshr_b32 s{sT1}, s2, 3
    s_lshl_b32 s{sRB}, s{sT0}, 5
    s_add_u32 s{sRB}, s{sRB}, s{sT1}
    s_lshl_b32 s{sWm}, s{sW}, 13
    v_add_u32 v{vKo}, s{sWm}, v{vQa}
    v_lshrrev_b32 v{vt[3]}, 5, v0
    v_and_b32 v{vt[4]}, 31, v0
    v_lshlrev_b32 v{vt[2]}, 4, v{vt[4]}
    v_lshl_add_u32 v{vt[2]}, v{vt[3]}, 8, v{vt[2]}
    s_mul_i32 s{sT0}, s{sW}, {16*VSTR}
    s_add_u32 s{sT0}, s{sT0}, 0x10000
    v_and_b32 v{vt[1]}, 27, v0
    v_cmp_eq_u32 vcc, 16, v{vt[1]}
    v_mov_b32 v{vt[1]}, 0x40000000
    v_mov_b32 v{vt[5]}, 512
    v_cndmask_b32 v{vt[1]}, v{vt[1]}, v{vt[5]}, vcc
    v_cmp_gt_u32 vcc, 16, v{vt[4]}
    v_lshlrev_b32 v{vt[5]}, 3, v0
    s_nop 0
    v_cndmask_b32 v{vt[1]}, v{vt[1]}, v{vt[2]}, vcc
    v_add_u32 v{vVo}, s{sT0}, v{vt[1]}
    s_lshl_b32 s{sT1}, s{sRB}, 13
    s_lshl_b32 s{sT2}, s{sW}, 10
    s_add_u32 s{sT0}, s{sT1}, s{sT2}
    s_mov_b32 s{sSo}, 0x21000
    s_movk_i32 s{sT2}, 0x1000
    s_movk_i32 s{sV1}, {7*VSTR}
    s_movk_i32 s{sV2}, {14*VSTR}
    s_lshr_b32 s{sHalf}, s{sW}, 2
    """)
    stamp_init(a)
    a("s_waitcnt lgkmcnt(0)")
    srd(a, SQ, 16, 17, WS_Q, 0x200000)
    srd(a, SKV, 16, 17, WS_K, KV_BYTES)
    order = []
    def ldK(j):
        so = "0" if j < 4 else f"s{sT2}"
        order.append(f"K{j}")
        return f"buffer_load_dwordx4 {v(Kf+4*j,4)}, v{vKo}, {s(SKV,4)}, {so} offen offset:{(j&3)*1024}"
    def ldV(i):
        so = ("0", f"s{sV1}", f"s{sV2}")[i // 7]
        order.append(f"V{i}")
        return f"buffer_load_dwordx4 {v(Vf+4*i,4)}, v{vVo}, {s(SKV,4)}, {so} offen offset:{(i%7)*VSTR}"
    def ldW(t, ks, ct, dst):
        order.append(f"W{t}_{ks}_{ct}")
        pre = f"s_mov_b32 s{sSo}, {t*65536 + ks*4096}\n" if ct == 0 else ""
        return pre + f"buffer_load_dwordx4 {v(dst+4*ct,4)}, v{vKo}, {s(SWO,4)}, s{sSo} offen offset:{ct*1024}"
    def wait_for(item):
        return f"s_waitcnt vmcnt({len(order) - 1 - order.index(item)})"
    a(f"buffer_load_dwordx4 {v(Q,4)}, v{vQa}, {s(SQ,4)}, s{sT1} offen"); order.append("Q")
    a(ldK(0)); a(ldK(1)); a(ldV(0)); a(ldV(1)); a(ldK(2))
    a(f"buffer_load_dwordx4 {v(Qw,4)}, v{vQa}, {s(SQ,4)}, s{sT0} offen"); order.append("QW")
    a(f"buffer_load_dwordx2 {v(nrm,2)}, v{vt[5]}, {s(SKV,4)}, s{sSo} offen"); order.append("KM")
    for i in range(1, PD):
        a(ldV(2*i)); a(ldV(2*i + 1))
        if i + 2 < 8:
            a(ldK(i + 2))
    a("s_setprio 0")
    pro_order = list(order)
    srd(a, SWO, 16, 17, WS_WO, 524288)
    for i in range(4):
        a(f"v_mov_b32 v{zero+i}, 0")
    a(f"v_mov_b32 v{vidx}, 0xdddddddd")
    a("s_nop 0")
    for o in O:
        a(f"v_mfma_f32_32x32x16_bf16 {v(o,16)}, {v(zero,4)}, {v(zero,4)}, 0")
    a.c("LDS addresses")
    a(f"""
    s_lshl_b32 s{sT0}, s{sW}, 2
    s_add_u32 s{sT1}, s{sT0}, {MISC + 32}
    v_mov_b32 v{vPw}, s{sT1}
    ds_write2_b32 v{vPw}, v{zero}, v{zero} offset1:8
    s_add_u32 s{sT0}, s{sT0}, {LACC}
    v_lshlrev_b32 v{vLa}, 5, v{vt[4]}
    v_add_u32 v{vLa}, s{sT0}, v{vLa}
    s_lshl_b32 s{sT0}, s{sW}, 11
    s_add_u32 s{sT0}, s{sT0}, {OACC}
    v_add_u32 v{vOa}, s{sT0}, v{vQa}
    s_and_b32 s{sT1}, s{sW}, 3
    v_and_b32 v{vt[2]}, 7, v0
    v_lshlrev_b32 v{vP1r}, 2, v{vt[2]}
    v_add_u32 v{vP1r}, {MISC + 32}, v{vP1r}
    v_and_b32 v{vt[1]}, 3, v0
    v_lshlrev_b32 v{vP2r}, 2, v{vt[1]}
    v_add_u32 v{vP2r}, {MISC + 64}, v{vP2r}
    v_bfe_u32 v{vt[1]}, v0, 4, 1
    v_bfe_u32 v{vt[4]}, v0, 3, 1
    v_lshlrev_b32 v{vNr}, 4, v{vt[2]}
    v_lshl_add_u32 v{vNw}, v{vt[3]}, 7, v{vNr}
    v_lshl_add_u32 v{vNr}, v{vt[3]}, 10, v{vNr}
    v_lshl_add_u32 v{vNr}, v{vt[1]}, 9, v{vNr}
    v_lshl_add_u32 v{vNr}, v{vt[4]}, 3, v{vNr}
    s_lshl_b32 s{sT0}, s{sT1}, 7
    s_add_u32 s{sT0}, s{sT0}, {OACC}
    v_add_u32 v{vNr}, s{sT0}, v{vNr}
    s_lshl_b32 s{sT0}, s{sT1}, 8
    s_add_u32 s{sSo}, s{sT0}, {LACC}
    v_lshlrev_b32 v{vNl}, 5, v{vt[2]}
    v_add_u32 v{vNl}, s{sSo}, v{vNl}
    v_bfe_u32 v{vt[3]}, v0, 3, 2
    v_lshl_add_u32 v{vNw}, v{vt[3]}, 2, v{vNw}
    s_add_u32 s{sSo}, s{sT0}, {OFB}
    v_add_u32 v{vNw}, s{sSo}, v{vNw}
    v_lshrrev_b32 v{vt[3]}, 4, v0
    v_lshlrev_b32 v{vt[2]}, 4, v{vt[2]}
    v_lshl_add_u32 v{vOFa}, v{vt[3]}, 7, v{vt[2]}
    v_add_u32 v{vOFa}, {OFB}, v{vOFa}
    """)
    srd(a, SX, 8, 9, 0, 0x200000)
    srd(a, SHN, 16, 17, WS_HN, 0x200000)
    srd(a, SP, 12, 13, 0, 1409024)
    srd(a, SH, 16, 17, WS_W2, W2F_BYTES)
    a(f"""
    s_lshr_b32 s{sT0}, s2, 3
    s_mul_i32 s{sT1}, s{sT0}, 44032
    s_add_u32 s{sT1}, s{sT1}, s{sWm}
    v_lshlrev_b32 v{vt[5]}, 7, v0
    s_lshl_b32 s{sMaskLo}, s{sT0}, 14
    s_and_b32 s{sT0}, s{sWm}, 0x2000
    s_add_u32 s{sMaskLo}, s{sMaskLo}, s{sT0}
    s_mov_b32 s{sMaskLo+1}, s{sT1}
    s_lshr_b32 s{sT0}, s2, 3
    s_mul_i32 s{sV2x}, s{sT0}, 45056
    s_add_u32 s{sV2x}, s{sV2x}, s{sWm}
    s_lshr_b32 s{sG}, s{sRB}, 4
    s_and_b32 s{sMm}, s{sRB}, 15
    s_mul_i32 s{sT0f}, s{sMm}, 3
    s_min_u32 s{sT0f}, s{sT0f}, 40
    v_add_u32 v{vQl}, {QL}, v{vQa}
    v_lshrrev_b32 v{vt[3]}, 2, v0
    v_mul_u32_u24 v{vt[3]}, 2752, v{vt[3]}
    v_and_b32 v{vt[4]}, 3, v0
    v_lshl_add_u32 v{vt[3]}, v{vt[4]}, 4, v{vt[3]}
    s_lshl_b32 s{sT0}, s{sT0f}, 6
    s_mul_i32 s{sT1}, s{sHalf}, {16*44032}
    s_add_u32 s{sT0}, s{sT0}, s{sT1}
    v_add_u32 v{vW1o}, s{sT0}, v{vt[3]}
    s_lshl_b32 s{sRot}, s{sW}, 2
    s_add_u32 s{sRot}, s{sRot}, s{sMm}
    s_mul_i32 s{sW1m}, s{sW}, {4*3072}
    """)
    stamp(a, 1)
    def bound_check():
        n = nrm
        P = []
        P.append(lambda: f"s_lshl_b32 s{sT0}, s{sW}, 10\nv_add_u32 v{vt[0]}, s{sT0}, v{vQl}\nv_mov_b32 v{n+2}, 0\n{wait_for('KM')}\nds_write_b128 v{vt[0]}, {v(Qw,4)}")
        P.append("\n".join(f"v_dot2c_f32_bf16 v{n+2}, v{Qw+i}, v{Qw+i}" for i in range(4)) + f"\nv_max_f32 v{n}, v{n}, v{n+1}\ns_nop 0")
        P.append(f"v_max_f32_dpp v{n}, v{n}, v{n} row_ror:8 row_mask:0xf bank_mask:0xf\nv_mov_b32 v{n+3}, v{n+2}")
        P.append(f"v_max_f32_dpp v{n}, v{n}, v{n} row_ror:4 row_mask:0xf bank_mask:0xf\nv_permlane32_swap_b32 v{n+2}, v{n+3}")
        P.append(f"v_max_f32_dpp v{n}, v{n}, v{n} row_ror:2 row_mask:0xf bank_mask:0xf\nv_add_f32 v{n+2}, v{n+2}, v{n+3}")
        P.append(f"v_max_f32_dpp v{n}, v{n}, v{n} row_ror:1 row_mask:0xf bank_mask:0xf\nv_mov_b32 v{n+1}, v{n}\ns_nop 0")
        P.append(f"v_permlane32_swap_b32 v{n}, v{n+1}\nv_max_f32 v{n}, v{n}, v{n+1}\nv_mov_b32 v{n+1}, v{n}\ns_nop 0")
        P.append(f"v_permlane16_swap_b32 v{n}, v{n+1}\nv_max_f32 v{n}, v{n}, v{n+1}\nv_mul_f32 v{n}, v{n}, v{n+2}\nv_mov_b32 v{n+1}, {hex(f32bits(THR2))}\n"
                 f"v_cmp_nle_f32 vcc, v{n}, v{n+1}\ns_lshl_b32 s{sT0}, s{sW}, 2\ns_add_u32 s{sT0}, s{sT0}, {MISC}")
        P.append(f"s_cmp_lg_u64 vcc, 0\ns_cselect_b32 s{sT1}, 1, 0\nv_mov_b32 v{vt[0]}, s{sT0}\nv_mov_b32 v{vt[1]}, s{sT1}\nds_write_b32 v{vt[0]}, v{vt[1]}\nv_mov_b32 v{vt[0]}, {MISC}")
        return P
    flag_reads = f"ds_read_b128 {v(nrm,4)}, v{vt[0]}\nds_read_b128 {v(nrm+4,4)}, v{vt[0]} offset:16"
    flag_test = (f"s_waitcnt lgkmcnt(0)\nv_or3_b32 v{nrm}, v{nrm}, v{nrm+1}, v{nrm+2}\nv_or3_b32 v{nrm+3}, v{nrm+3}, v{nrm+4}, v{nrm+5}\n"
                 f"v_or3_b32 v{nrm}, v{nrm}, v{nrm+6}, v{nrm+7}\nv_or_b32 v{nrm}, v{nrm}, v{nrm+3}\ns_nop 0\n"
                 f"v_readfirstlane_b32 s{sT0}, v{nrm}\ns_cmp_lg_u32 s{sT0}, 0\ns_cbranch_scc1 K2_SLOW")

    def smf(tau):
        t, j = divmod(tau, 8)
        return f"v_mfma_f32_32x32x16_bf16 {v(S[tau&1],16)}, {v(Kf+4*j,4)}, {v(Q,4)}, 0"
    def pv(tau, h):
        t, j = divmod(tau, 8)
        return f"v_smfmac_f32_32x32x32_bf16 {v(O[t&1],16)}, {v(Vf+8*j+4*h,4)}, {v(S[tau&1]+8*h,8)}, v{vidx}"
    def drain(t):
        o = O[t & 1]
        return [f"ds_write_b128 v{vOa}, {v(o,4)}", f"ds_write_b128 v{vOa}, {v(o+4,4)} offset:1024", f"ds_write_b32 v{vLa}, v{o+8}"]
    retries = []
    def check(areg, off, val, lab):
        retries.append(f"K2_R{lab}:\nds_read_b32 v{vPv}, v{areg} offset:{off}\ns_waitcnt lgkmcnt(0)\nv_cmp_gt_u32 vcc, {val}, v{vPv}\n"
                       f"s_cbranch_vccnz K2_R{lab}\ns_branch K2_C{lab}")
        return f"s_waitcnt lgkmcnt(0)\nv_cmp_gt_u32 vcc, {val}, v{vPv}\ns_cbranch_vccnz K2_R{lab}\nK2_C{lab}:\n"
    def norm_reads():
        L = f"ds_read_b128 {v(nrm,4)}, v{vNl}\nds_read_b128 {v(nrm+4,4)}, v{vNl} offset:16\n"
        for w in range(8):
            L += f"ds_read_b64 {v(T+2*w,2)}, v{vNr} offset:{w*2048}\n"
        return L
    def norm_comp():
        L = f"s_waitcnt lgkmcnt(0)\n"
        L += f"v_pk_add_f32 {v(nrm,2)}, {v(nrm,2)}, {v(nrm+2,2)}\n"
        L += f"v_pk_add_f32 {v(nrm+4,2)}, {v(nrm+4,2)}, {v(nrm+6,2)}\n"
        for w in range(4):
            L += f"v_pk_add_f32 {v(T+4*w,2)}, {v(T+4*w,2)}, {v(T+4*w+2,2)}\n"
        L += f"v_pk_add_f32 {v(nrm,2)}, {v(nrm,2)}, {v(nrm+4,2)}\n"
        L += f"v_pk_add_f32 {v(T,2)}, {v(T,2)}, {v(T+4,2)}\n"
        L += f"v_add_f32 v{nrm}, v{nrm}, v{nrm+1}\n"
        L += f"v_pk_add_f32 {v(T+8,2)}, {v(T+8,2)}, {v(T+12,2)}\n"
        L += f"v_rcp_f32 v{nrm}, v{nrm}\n"
        L += f"v_pk_add_f32 {v(T,2)}, {v(T,2)}, {v(T+8,2)}\n"
        L += f"v_pk_mul_f32 {v(T,2)}, {v(T,2)}, {v(nrm,2)} op_sel_hi:[1,0]\n"
        L += f"v_cvt_pk_bf16_f32 v{T}, v{T}, v{T+1}\n"
        L += f"ds_write_b32 v{vNw}, v{T}\n"
        return L
    def only_half(t, lab, body):
        return f"s_cmp_lg_u32 s{sHalf}, {t&1}\ns_cbranch_scc1 K2_N{lab}\n{body}K2_N{lab}:\n"
    def of_reads():
        return "\n".join(f"ds_read_b128 {v(OFr+4*ks,4)}, v{vOFa} offset:{ks*512}" for ks in range(2))
    def wo_mfma(ks, ct, src, first=False):
        return f"v_mfma_f32_16x16x32_bf16 {v(hacc+4*ct,4)}, {v(src+4*ct,4)}, {v(OFr+4*ks,4)}, {'0' if first else v(hacc+4*ct,4)}"
    W7 = [Kf, Kf + 16]
    W2R = Vf + 8
    assert S[0] == Vf + 64 and S[1] == S[0] + 16 and Q == zero + 4 and nrm == Q + 4
    X = Vf

    def mainloop(slow):
        tag = "S" if slow else "F"
        order[:] = [] if slow else list(pro_order)
        if slow:
            a(f"ds_read_b32 v{vM[0]}, v{vt[0]}")
            a("s_waitcnt lgkmcnt(0)")
        else:
            a(wait_for("K0"))
            stamp(a, 2)
        a(smf(0))
        a("s_nop 7")
        a("s_nop 3")
        for tau in range(64):
            t, j = divmod(tau, 8)
            slots = [[] for _ in range(17)]
            p1 = 11
            if PRIO == "1" and (j & 1) == 0:
                slots[0].append(f"s_setprio {3 - j // 2}")
            if PRIO == "2":
                slots[0].append(f"s_setprio {3 - (j & 3)}")
            if tau > 0:
                slots[2].append(pv(tau - 1, 1))
            if t == 0 and not slow:
                if j + PD < 8:
                    slots[0].append(lambda j=j: ldV(2*(j + PD)))
                    slots[4].append(lambda j=j: ldV(2*(j + PD) + 1))
                if j + PD + 2 < 8:
                    slots[8].append(lambda j=j: ldK(j + PD + 2))
                if j == 2:
                    for i, x in enumerate(bound_check()):
                        slots[3 + i].append(x)
                if j == 4:
                    slots[0] += ["s_waitcnt lgkmcnt(0)", "s_barrier", flag_reads]
                    slots[5].append(flag_test)
                if j == 6:
                    slots[13].append(f"s_cmp_lt_u32 s{sW}, 6\ns_cbranch_scc1 K2_PW\nbuffer_load_dword v{vt[3]}, v{vt[5]}, {s(SWO,4)}, s{sMaskLo} offen\nK2_PW:")
            nx = tau + 1
            if nx < 64:
                if t == 0 and nx < 8 and not slow:
                    slots[6].append(lambda nx=nx: wait_for(f"K{nx}"))
                if nx % 8 == 0:
                    slots[6].append("s_waitcnt lgkmcnt(0)")
                slots[6].append(smf(nx))
                if nx % 8 == 7 and t < 7:
                    slots[10].append(f"ds_read_b128 {v(Q,4)}, v{vQl} offset:{(t+1)*1024}")
                    if slow:
                        slots[10].append(f"ds_read_b32 v{vM[(t+1)&1]}, v{vt[0]} offset:{(t+1)*128}")
            if 10 <= tau < 22 and tau % 2 == 0:
                slots[13].append(f"s_cmp_lg_u32 s{sW}, {(tau-10)//2}\ns_cbranch_scc1 K2_PA{tag}{tau}\nbuffer_load_dword v{vt[3]}, v{vt[5]}, {s(SP,4)}, s{sMaskLo+1} offen\nK2_PA{tag}{tau}:")
            if 22 <= tau < 34 and tau % 2 == 0:
                slots[13].append(f"s_cmp_lg_u32 s{sW}, {(tau-22)//2}\ns_cbranch_scc1 K2_PB{tag}{tau}\nbuffer_load_dword v{vt[4]}, v{vt[5]}, {s(SH,4)}, s{sV2x} offen\nK2_PB{tag}{tau}:")
            if 36 <= tau < 60 and tau % 2 == 0:
                n = (tau - 36) // 2
                kb, ft = divmod(n, 3)
                slots[4].append(lambda kb=kb, ft=ft: (order.append("W1"), f"s_add_u32 s{sT0}, s{sRot}, {kb}\ns_and_b32 s{sT0}, s{sT0}, 15\ns_mul_i32 s{sT0}, s{sT0}, 44032\ns_add_u32 m0, s{sW1m}, {kb*3072 + ft*1024 - ft*64}\ns_nop 0\n"
                    f"buffer_load_dwordx4 v{vW1o}, {s(SP,4)}, s{sT0} offen offset:{ft*64} lds")[1])
            if t >= 1:
                u = t - 1
                if j == 1:
                    slots[0].append(f"v_mov_b32 v{vCnt}, {t}")
                    for i, x in enumerate(drain(u)):
                        slots[1 + 2*i].append(x)
                    slots[7].append(f"ds_write_b32 v{vPw}, v{vCnt}")
                if j == 2:
                    slots[13].append("s_waitcnt lgkmcnt(0)")
                if j == 3:
                    slots[0].append(f"ds_read_b32 v{vPv}, v{vP1r}")
                    slots[7].append(only_half(u, f"A{tag}{t}", check(vP1r, 0, t, f"A{tag}{t}") + norm_reads()))
                    slots[9] += [f"v_mfma_f32_32x32x16_bf16 {v(O[u&1],16)}, {v(zero,4)}, {v(zero,4)}, 0"]
                    p1 = 12
                    for ct in range(4):
                        slots[(1, 4, 13, 15)[ct]].append(lambda u=u, ct=ct: ldW(u, 0, ct, woA))
                if j == 4:
                    slots[3].append(only_half(u, f"B{tag}{t}", norm_comp() + f"ds_write_b32 v{vPw}, v{vCnt} offset:32\n"))
                if j == 5:
                    for ct in range(4):
                        slots[(1, 7, 9, 13)[ct]].append(lambda u=u, ct=ct: ldW(u, 1, ct, T))
                if j == 6:
                    slots[1].append(f"ds_read_b32 v{vPv}, v{vP2r} offset:{16*(u&1)}")
                    slots[8].append(check(vP2r, 16*(u&1), t, f"D{tag}{t}") + of_reads())
                    slots[15] += ["s_waitcnt lgkmcnt(0)", lambda u=u: wait_for(f"W{u}_0_3"), wo_mfma(0, 0, woA, u == 0)]
                if j == 7:
                    slots[9].append(wo_mfma(0, 1, woA, u == 0)); slots[15].append(wo_mfma(0, 2, woA, u == 0))
            if t >= 2:
                u = t - 2
                if j == 0:
                    slots[9].append(wo_mfma(0, 3, woA, u == 0))
                    slots[15] += [lambda u=u: wait_for(f"W{u}_1_3"), wo_mfma(1, 0, T)]
                if j == 1:
                    slots[9].append(wo_mfma(1, 1, T)); slots[15].append(wo_mfma(1, 2, T))
                if j == 2:
                    slots[9].append(wo_mfma(1, 3, T))
            if tau == 9:
                slots[4].append(lambda: (order.append("X"), f"s_lshl_b32 s{sT0}, s{sRB}, 13\ns_lshl_b32 s{sT1}, s{sW}, 10\ns_add_u32 s{sT0}, s{sT0}, s{sT1}\n"
                    f"s_mul_i32 s{sT1}, s{sW}, 1040\ns_add_u32 m0, s{sT1}, {XL}\ns_nop 0\nbuffer_load_dwordx4 v{vQa}, {s(SX,4)}, s{sT0} offen lds")[1])
            if tau in (60, 63):
                for ct in range(4):
                    slots[(1, 3, 9, 13)[ct]].append(lambda ct=ct, ks=(tau-60)//3: ldW(7, ks, ct, W7[ks]))
            if t == 0 and not slow:
                slots[p1].append(lambda j=j: wait_for(f"V{2*j+1}"))
            slots[p1].append(pv(tau, 0))
            if not slow and sum(len(x) for x in slots[7:]) < 2:
                slots[14].append("s_nop 0")
            for i in range(17):
                for x in slots[i]:
                    x = x() if callable(x) else x
                    if "NOWL" in EXP and f"{s(SWO,4)}" in x: continue
                    if "NOPF" in EXP and ("K2_PA" in x or "K2_PB" in x): continue
                    if "NOWO" in EXP and "16x16x32" in x: continue
                    if "NONORM" in EXP and "K2_N" in x: continue
                    if "NOCHK" in EXP and "K2_R" in x and "K2_N" not in x: x = of_reads()
                    a(x)
                if i < 16:
                    r = S[tau & 1] + i
                    if slow:
                        a(f"v_sub_f32 v{r}, v{r}, v{vM[t&1]}")
                    a(f"v_exp_f32 v{r}, v{r}")
        a("s_nop 1")
        a(pv(63, 1))
    mainloop(False)
    a("K2_TAIL:")
    stamp(a, 3)
    sCB2, sW2o, sB3 = sV2, sV2x, 48
    def ldW2(i):
        L = (f"s_add_u32 s{sSo}, s{sCB2}, {i}\ns_sub_u32 s{sT1}, s{sSo}, 11\ns_cselect_b32 s{sSo}, s{sSo}, s{sT1}\n"
             f"s_lshl_b32 s{sSo}, s{sSo}, 11\ns_add_u32 s{sSo}, s{sSo}, s{sW2o}\n")
        for ct in range(2):
            L += f"buffer_load_dwordx4 {v(W2R+8*i+4*ct,4)}, v{vQa}, {s(SH,4)}, s{sSo} offen offset:{ct*1024}\n"
        return L
    a(f"""
    s_setprio 0
    s_and_b32 s{sCB2}, s{sMm}, 7
    s_lshl_b32 s{sW2o}, s{sCB2}, 3
    s_add_u32 s{sW2o}, s{sW2o}, s{sW}
    s_mul_i32 s{sW2o}, s{sW2o}, {11*2048}
    """)
    a("s_nop 5")
    a(wo_mfma(0, 3, woA))
    for x in drain(7):
        a(x)
    a("s_waitcnt vmcnt(4)")
    for ct in range(4):
        a(wo_mfma(1, ct, T))
    a(f"""
    v_and_b32 v{vt[0]}, 7, v0
    v_lshrrev_b32 v{vt[1]}, 4, v0
    v_bfe_u32 v{vt[3]}, v0, 3, 1
    v_lshlrev_b32 v{vVo}, 10, v{vt[0]}
    v_lshl_add_u32 v{vVo}, v{vt[1]}, 3, v{vVo}
    v_lshl_add_u32 v{vVo}, v{vt[3]}, 6, v{vVo}
    s_lshl_b32 s{sV1}, s{sRB}, 13
    s_lshl_b32 s{sT1}, s{sW}, 7
    s_add_u32 s{sV1}, s{sV1}, s{sT1}
    s_add_u32 s{sT1}, s{sT1}, {XL}
    v_lshl_add_u32 v{vt[2]}, v{vt[0]}, 4, v{vVo}
    v_add_u32 v{vt[2]}, s{sT1}, v{vt[2]}
    s_waitcnt lgkmcnt(0)
    s_barrier
    """)
    for c in range(2):
        a(f"ds_read_b64 {v(X+2*c,2)}, v{vt[2]} offset:{32*c}")
    a(only_half(7, "T", norm_reads() + norm_comp()))
    H = O[0]; XU = O[0] + 8; PK = O[1]; ST = woA; U = T
    srd(a, SQ, 16, 17, WS_H, 0x200000)
    srd(a, SX, 14, 15, 0, 2752)
    a(f"""
    s_mov_b32 s{sB3}, 0xff00ff00
    s_mov_b32 s{sB3+1}, 0xff00ff00
    s_waitcnt lgkmcnt(0)
    """)
    for i in range(4):
        a(f"v_lshlrev_b32 v{XU+2*i}, 16, v{X+i}")
        a(f"v_and_b32 v{XU+2*i+1}, 0xffff0000, v{X+i}")
    a("s_barrier")
    a(of_reads())
    a("s_waitcnt vmcnt(0) lgkmcnt(1)")
    for ct in range(4):
        a(wo_mfma(0, ct, W7[0]))
    a("s_waitcnt lgkmcnt(0)")
    for ct in (0, 2, 1, 3):
        a(wo_mfma(1, ct, W7[1]))
    stamp(a, 4)
    a.c("b1 fragments (zero for the second k half) land in the dead K registers")
    BI = Kf
    a(f"""
    s_lshl_b32 s{sT0}, s{sT0f}, 6
    s_cmp_ge_u32 s{sW}, 4
    s_cselect_b32 s{sT0}, 0x10000, s{sT0}
    v_lshrrev_b32 v{vt[4]}, 5, v0
    v_lshlrev_b32 v{vt[4]}, 3, v{vt[4]}
    s_nop 0
    """)
    a.c("h = x + attn ; lanes with bit 3 set take column tiles 2,3")
    for i in range(8):
        a(f"v_cndmask_b32 v{H+i}, v{hacc+i}, v{hacc+8+i}, {s(sB3,2)}")
    for ft in range(3):
        for q in range(4):
            a(f"buffer_load_dwordx2 {v(BI+8*ft+2*q,2)}, v{vt[4]}, {s(SX,4)}, s{sT0} offen offset:{ft*64+q*16}")
    for i in range(4):
        a(f"v_pk_add_f32 {v(H+2*i,2)}, {v(H+2*i,2)}, {v(XU+2*i,2)}")
    def xreduce(r, tmp):
        a(f"""
        v_mov_b32 v{tmp}, v{r}
        s_nop 1
        v_permlane32_swap_b32 v{r}, v{tmp}
        v_add_f32 v{r}, v{r}, v{tmp}
        v_mov_b32 v{tmp}, v{r}
        s_nop 1
        v_permlane16_swap_b32 v{r}, v{tmp}
        v_add_f32 v{r}, v{r}, v{tmp}
        s_nop 1
        v_add_f32_dpp v{r}, v{r}, v{r} row_ror:8 row_mask:0xf bank_mask:0xf
        """)
    a(f"""
    v_pk_add_f32 {v(U,2)}, {v(H,2)}, {v(H+2,2)}
    v_pk_add_f32 {v(U+2,2)}, {v(H+4,2)}, {v(H+6,2)}
    v_pk_add_f32 {v(U,2)}, {v(U,2)}, {v(U+2,2)}
    v_add_f32 v{U}, v{U}, v{U+1}
    """)
    xreduce(U, U+2)
    a(f"v_mul_f32 v{U}, {hex(f32bits(1.0/64))}, v{U}")
    for i in range(4):
        a(f"v_pk_add_f32 {v(XU+2*i,2)}, {v(H+2*i,2)}, {v(U,2)} op_sel_hi:[1,0] neg_lo:[0,1] neg_hi:[0,1]")
    a(f"""
    v_pk_mul_f32 {v(U+2,2)}, {v(XU,2)}, {v(XU,2)}
    v_pk_mul_f32 {v(U+4,2)}, {v(XU+2,2)}, {v(XU+2,2)}
    v_pk_fma_f32 {v(U+2,2)}, {v(XU+4,2)}, {v(XU+4,2)}, {v(U+2,2)}
    v_pk_fma_f32 {v(U+4,2)}, {v(XU+6,2)}, {v(XU+6,2)}, {v(U+4,2)}
    v_pk_add_f32 {v(U+2,2)}, {v(U+2,2)}, {v(U+4,2)}
    v_add_f32 v{U+1}, v{U+2}, v{U+3}
    """)
    xreduce(U+1, U+2)
    a(f"""
    s_lshl_b32 s{sT1}, s{sW}, 3
    s_add_u32 s{sT1}, s{sT1}, {MISC + 128}
    v_lshlrev_b32 v{vt[5]}, 6, v{vt[0]}
    v_add_u32 v{vt[4]}, s{sT1}, v{vt[5]}
    v_add_u32 v{vt[5]}, {MISC + 128}, v{vt[5]}
    ds_write_b64 v{vt[4]}, {v(U,2)}
    """)
    for i in range(4):
        a(f"v_cvt_pk_bf16_f32 v{PK+i}, v{H+2*i}, v{H+2*i+1}")
    a("s_waitcnt lgkmcnt(0)")
    a("s_barrier")
    for i in range(4):
        a(f"ds_read_b128 {v(ST+4*i,4)}, v{vt[5]} offset:{16*i}")
    for c in range(2):
        a(f"buffer_store_dwordx2 {v(PK+2*c,2)}, v{vVo}, {s(SQ,4)}, s{sV1} offen offset:{32*c} sc1")
    a(f"""
    s_lshr_b32 s{sT0}, s{sRB}, 2
    s_lshl_b32 s{sT0}, s{sT0}, 15
    s_lshl_b32 s{sT1}, s{sW}, 12
    s_add_u32 s{sT0}, s{sT0}, s{sT1}
    s_and_b32 s{sT1}, s{sRB}, 3
    s_lshl_b32 s{sT1}, s{sT1}, 7
    s_add_u32 s{sT0}, s{sT0}, s{sT1}
    v_lshlrev_b32 v{vt[4]}, 4, v{vt[0]}
    v_lshl_add_u32 v{vt[4]}, v{vt[3]}, 11, v{vt[4]}
    v_lshrrev_b32 v{vt[0]}, 5, v0
    v_lshl_add_u32 v{vt[4]}, v{vt[0]}, 9, v{vt[4]}
    v_and_b32 v{vt[1]}, 1, v{vt[1]}
    v_lshl_add_u32 v{vt[4]}, v{vt[1]}, 3, v{vt[4]}
    s_waitcnt lgkmcnt(0)
    v_pk_add_f32 {v(U+2,2)}, {v(ST,2)}, {v(ST+2,2)}
    v_pk_add_f32 {v(U+4,2)}, {v(ST+4,2)}, {v(ST+6,2)}
    v_pk_add_f32 {v(U+6,2)}, {v(ST+8,2)}, {v(ST+10,2)}
    v_pk_add_f32 {v(U+8,2)}, {v(ST+12,2)}, {v(ST+14,2)}
    v_pk_add_f32 {v(U+2,2)}, {v(U+2,2)}, {v(U+4,2)}
    v_pk_add_f32 {v(U+6,2)}, {v(U+6,2)}, {v(U+8,2)}
    v_pk_add_f32 {v(U+2,2)}, {v(U+2,2)}, {v(U+6,2)}
    v_mul_f32 v{U+2}, 0x3e000000, v{U+2}
    """)
    for i in range(8):
        a(f"v_sub_f32 v{ST+2*i}, v{ST+2*i}, v{U+2}")
    a(f"v_mul_f32 v{U+4}, v{ST}, v{ST}")
    a(f"v_mul_f32 v{U+5}, v{ST+2}, v{ST+2}")
    for i in range(2, 8):
        a(f"v_fmac_f32 v{U+4+(i&1)}, v{ST+2*i}, v{ST+2*i}")
    a(f"""
    v_add_f32 v{U+4}, v{U+4}, v{U+5}
    v_fmac_f32 v{U+3}, 0x42800000, v{U+4}
    v_mov_b32 v{U+6}, {hex(f32bits(1e-5))}
    v_fmac_f32 v{U+6}, {hex(f32bits(1.0/512))}, v{U+3}
    v_rsq_f32 v{U+6}, v{U+6}
    """)
    for i in range(4):
        a(f"v_pk_add_f32 {v(H+2*i,2)}, {v(H+2*i,2)}, {v(U+2,2)} op_sel_hi:[1,0] neg_lo:[0,1] neg_hi:[0,1]")
    for i in range(4):
        a(f"v_pk_mul_f32 {v(H+2*i,2)}, {v(H+2*i,2)}, {v(U+6,2)} op_sel_hi:[1,0]")
    for i in range(4):
        a(f"v_cvt_pk_bf16_f32 v{PK+4+i}, v{H+2*i}, v{H+2*i+1}")
    for c in range(2):
        a(f"buffer_store_dwordx2 {v(PK+4+2*c,2)}, v{vt[4]}, {s(SHN,4)}, s{sT0} offen offset:{1024*c} sc1")
    SF, SG = SKV, SWO
    srd(a, SF, 16, 17, WS_FLG, 4096)
    srd(a, SG, 16, 17, WS_G, G_BYTES)
    def signal(off):
        a(f"""
        s_waitcnt vmcnt(0)
        s_barrier
        {stamp_str(12) if off == 0 else ""}
        s_cmp_lg_u32 s{sW}, 0
        s_cbranch_scc1 K2_NOSIG{off}
        s_lshl_b32 s{sT0}, s{sG}, 8
        s_lshl_b32 s{sT1}, s{sMm}, 2
        s_add_u32 s{sT1}, s{sT1}, s{sT0}
        v_mov_b32 v{vt[0]}, 0
        v_mov_b32 v{vt[1]}, 1
        s_mov_b64 exec, 1
        buffer_store_dword v{vt[1]}, v{vt[0]}, {s(SF,4)}, s{sT1} offen offset:{off} sc1
        s_mov_b64 exec, -1
        K2_NOSIG{off}:
        """)
    def poll(off, mask):
        a(f"""
        s_cmp_lg_u32 s{sW}, 0
        s_cbranch_scc1 K2_NOPOLL{off}
        s_lshl_b32 s{sT0}, s{sG}, 8
        v_and_b32 v{vt[0]}, 15, v0
        v_lshlrev_b32 v{vt[0]}, 2, v{vt[0]}
        s_mov_b32 s{sT2}, 0x200000
        K2_POLL{off}:
        buffer_load_dword v{vt[1]}, v{vt[0]}, {s(SF,4)}, s{sT0} offen offset:{off} sc1
        s_sub_u32 s{sT2}, s{sT2}, 1
        s_waitcnt vmcnt(0)
        v_cmp_ne_u32 vcc, 0, v{vt[1]}
        s_cmp_eq_u32 s{sT2}, 0
        s_cbranch_scc1 K2_NOPOLL{off}
        s_and_b32 s{sT1}, vcc_lo, {hex(mask)}
        s_cmp_lg_u32 s{sT1}, {hex(mask)}
        s_cbranch_scc1 K2_POLL{off}
        K2_NOPOLL{off}:
        s_barrier
        """)
    stamp(a, 5)
    signal(0)
    W2B = "".join(ldW2(i) for i in range(11))
    a(f"""
    s_cmp_eq_u32 s{sMm}, 15
    s_cbranch_scc1 K2_SKIP1
    s_cmp_eq_u32 s{sW}, 0
    s_cbranch_scc1 K2_NW2
    """)
    a(W2B)
    a("K2_NW2:")
    acc1 = [O[0], O[1], hacc]
    for ft in range(3):
        for i in range(8):
            a(f"v_lshlrev_b32 v{acc1[ft]+2*i}, 16, v{BI+8*ft+i}")
            a(f"v_and_b32 v{acc1[ft]+2*i+1}, 0xffff0000, v{BI+8*ft+i}")
    Bf = [Kf + 4*i for i in range(8)] + [woA + 4*i for i in range(4)] + [T + 4*i for i in range(4)]
    Af = [Vf, Vf + 4, OFr, OFr + 4, nrm, nrm + 4, Q, zero]
    vWa = vOa; vEx = vLa; vEr = vNr
    sRT, sKH = sV1, sHalf
    a(f"""
    s_and_b32 s{sRT}, s{sW}, 3
    s_lshl_b32 s{sT0}, s{sG}, 2
    s_add_u32 s{sRT}, s{sRT}, s{sT0}
    v_lshrrev_b32 v{vt[2]}, 5, v0
    v_lshlrev_b32 v{vt[2]}, 9, v{vt[2]}
    v_bfe_u32 v{vt[3]}, v0, 2, 2
    v_lshl_add_u32 v{vt[2]}, v{vt[3]}, 6, v{vt[2]}
    v_bfe_u32 v{vt[3]}, v0, 4, 1
    v_lshl_add_u32 v{vt[2]}, v{vt[3]}, 5, v{vt[2]}
    v_and_b32 v{vt[3]}, 3, v0
    v_lshl_add_u32 v{vt[2]}, v{vt[3]}, 3, v{vt[2]}
    s_mul_i32 s{sT0}, s{sKH}, 49152
    v_add_u32 v{vWa}, s{sT0}, v{vt[2]}
    s_mul_i32 s{sT0}, s{sW}, 6144
    s_add_u32 s{sT0}, s{sT0}, {EXB}
    v_add_u32 v{vEx}, s{sT0}, v{vQa}
    s_xor_b32 s{sT0}, s{sW}, 4
    s_mul_i32 s{sT0}, s{sT0}, 6144
    s_add_u32 s{sT0}, s{sT0}, {EXB}
    v_add_u32 v{vEr}, s{sT0}, v{vQa}
    s_lshl_b32 s{sWm}, s{sRT}, 15
    s_lshl_b32 s{sT0}, s{sKH}, 14
    s_add_u32 s{sWm}, s{sWm}, s{sT0}
    """)
    def areads(f):
        ks, ft = divmod(f, 3)
        off = ks * 3072 + ft * 1024
        a(f"ds_read_b64_tr_b16 {v(Af[f%8],2)}, v{vWa} offset:{off}")
        a(f"ds_read_b64_tr_b16 {v(Af[f%8]+2,2)}, v{vWa} offset:{off+256}")
    for f in range(5):
        areads(f)
    poll(0, 0xffff)
    stamp(a, 6)
    for i in range(16):
        a(f"""
        s_add_u32 s{sSo}, s{sMm}, {i}
        s_and_b32 s{sSo}, s{sSo}, 15
        s_lshl_b32 s{sSo}, s{sSo}, 10
        s_add_u32 s{sSo}, s{sSo}, s{sWm}
        buffer_load_dwordx4 {v(Bf[i],4)}, v{vQa}, {s(SHN,4)}, s{sSo} offen sc1
        """)
    for f in range(48):
        ks, ft = divmod(f, 3)
        later = min(4, 47 - f)
        w = f"lgkmcnt({2*later})"
        if ft == 0:
            w = f"vmcnt({15-ks}) " + w
        a(f"s_waitcnt {w}")
        a(f"v_mfma_f32_32x32x16_bf16 {v(acc1[ft],16)}, {v(Af[f%8],4)}, {v(Bf[ks],4)}, {v(acc1[ft],16)}")
        if f + 5 < 48:
            areads(f + 5)
    stamp(a, 7)
    a(f"""
    s_cmp_lg_u32 s{sW}, 0
    s_cbranch_scc1 K2_NW3
    """)
    a(W2B)
    a("K2_NW3:")
    a(f"""
    s_mul_i32 s{sT0}, s{sRT}, 86
    s_lshl_b32 s{sT1}, s{sT0f}, 1
    s_add_u32 s{sT0}, s{sT0}, s{sT1}
    s_mul_i32 s{sT1}, s{sKH}, 3
    s_add_u32 s{sT0}, s{sT0}, s{sT1}
    s_lshl_b32 s{sT0}, s{sT0}, 10
    s_nop 7
    s_cmp_eq_u32 s{sKH}, 1
    s_cbranch_scc1 K2_EX1
    """)
    lo = [acc1[0], acc1[0] + 8, acc1[1]]
    hi = [acc1[1] + 8, acc1[2], acc1[2] + 8]
    RX = Kf
    def exchange(keep, send):
        for q in range(3):
            a(f"ds_write_b128 v{vEx}, {v(send[q],4)} offset:{q*2048}")
            a(f"ds_write_b128 v{vEx}, {v(send[q]+4,4)} offset:{q*2048+1024}")
        a("s_waitcnt lgkmcnt(0)")
        a("s_barrier")
        for q in range(6):
            a(f"ds_read_b128 {v(RX+4*q,4)}, v{vEr} offset:{q*1024}")
        for q in range(3):
            a(f"s_waitcnt lgkmcnt({4-2*q})")
            for i in range(4):
                a(f"v_pk_add_f32 {v(keep[q]+2*i,2)}, {v(keep[q]+2*i,2)}, {v(RX+8*q+2*i,2)}")
            for i in range(8):
                a(f"v_max_f32 v{keep[q]+i}, 0, v{keep[q]+i}")
            for i in range(4):
                a(f"v_pk_mul_f32 {v(keep[q]+2*i,2)}, {v(keep[q]+2*i,2)}, {v(keep[q]+2*i,2)}")
            for i in range(4):
                a(f"v_cvt_pk_bf16_f32 v{woA+4*q+i}, v{keep[q]+2*i}, v{keep[q]+2*i+1}")
            a(f"buffer_store_dwordx4 {v(woA+4*q,4)}, v{vQa}, {s(SG,4)}, s{sT0} offen offset:{q*1024} sc1")
    exchange(lo, hi)
    a("s_branch K2_EXJ")
    a("K2_EX1:")
    exchange(hi, lo)
    a("K2_EXJ:")
    stamp(a, 8)
    signal(128)
    a("s_branch K2_FFN2")
    a("K2_SKIP1:")
    a(W2B)
    a("K2_FFN2:")
    Gf = [Kf + 4*i for i in range(8)] + [Vf, Vf + 4] + [woA + 4*i for i in range(4)] + [T + 4*i for i in range(4)] + [OFr, OFr + 4]
    Gf += Gf[:2]
    acc2 = [O[0], O[1], hacc, zero]
    vG1 = vOa; vOo = vLa; vRw = vNr; vRr = vNl; vB2 = vNw
    sGo, sOo, sGend = sWm, sV1, sRot
    srd(a, SX, 18, 19, 0, 1024)
    srd(a, SHN, 10, 11, 0, 0x200000)
    a(f"""
    s_lshl_b32 s{sT0}, s{sG}, 1
    s_lshr_b32 s{sT1}, s{sMm}, 3
    s_add_u32 s{sT0}, s{sT0}, s{sT1}
    s_lshl_b32 s{sOo}, s{sT0}, 16
    s_mul_i32 s{sGo}, s{sT0}, {2*86*1024}
    s_add_u32 s{sGend}, s{sGo}, {86*1024}
    s_lshl_b32 s{sT1}, s{sW}, 10
    s_add_u32 s{sGo}, s{sGo}, s{sT1}
    v_add_u32 v{vG1}, {86*1024}, v{vQa}
    v_and_b32 v{vt[2]}, 31, v0
    v_mul_u32_u24 v{vt[2]}, 272, v{vt[2]}
    v_lshrrev_b32 v{vt[3]}, 5, v0
    v_lshl_add_u32 v{vt[2]}, v{vt[3]}, 4, v{vt[2]}
    s_mul_i32 s{sT0}, s{sW}, {RSTR}
    v_add_u32 v{vRw}, s{sT0}, v{vt[2]}
    v_lshrrev_b32 v{vt[2]}, 3, v0
    s_lshl_b32 s{sT0}, s{sW}, 3
    v_add_u32 v{vt[2]}, s{sT0}, v{vt[2]}
    v_and_b32 v{vt[3]}, 7, v0
    v_mul_u32_u24 v{vRr}, 272, v{vt[2]}
    v_lshl_add_u32 v{vRr}, v{vt[3]}, 5, v{vRr}
    s_lshl_b32 s{sT0}, s{sCB2}, 7
    v_lshlrev_b32 v{vB2}, 4, v{vt[3]}
    v_add_u32 v{vB2}, s{sT0}, v{vB2}
    v_lshl_add_u32 v{vOo}, v{vt[2]}, 10, v{vB2}
    """)
    poll(128, 0x7fff)
    stamp(a, 9)
    def ldG(i):
        a(f"""
        s_add_u32 s{sSo}, s{sCB2}, {i}
        s_sub_u32 s{sT1}, s{sSo}, 11
        s_cselect_b32 s{sSo}, s{sSo}, s{sT1}
        s_lshl_b32 s{sSo}, s{sSo}, 13
        s_add_u32 s{sSo}, s{sSo}, s{sGo}
        s_cmp_ge_u32 s{sSo}, s{sGend}
        s_cselect_b32 s{sSo}, 0x1000000, s{sSo}
        """)
        a(f"buffer_load_dwordx4 {v(Gf[2*i],4)}, v{vQa}, {s(SG,4)}, s{sSo} offen sc1")
        a(f"buffer_load_dwordx4 {v(Gf[2*i+1],4)}, v{vG1}, {s(SG,4)}, s{sSo} offen sc1")
    for i in range(10):
        ldG(i)
    for i in range(11):
        a(f"s_waitcnt vmcnt({18 if i == 0 else 2*(10-i)})")
        for ct in range(2):
            for rt in range(2):
                d = acc2[2*ct + rt]
                a(f"v_mfma_f32_32x32x16_bf16 {v(d,16)}, {v(W2R+8*i+4*ct,4)}, {v(Gf[2*i+rt],4)}, {'0' if i == 0 else v(d,16)}")
        if i == 0:
            ldG(10)
    stamp(a, 10)
    HR = woA; B2 = woA + 4
    a(f"""
    buffer_load_dwordx4 {v(HR,4)}, v{vOo}, {s(SQ,4)}, s{sOo} offen sc1
    buffer_load_dwordx4 {v(B2,4)}, v{vB2}, {s(SX,4)}, 0 offen
    v_add_u32 v{vt[2]}, {3*RSTR}, v{vRr}
    v_add_u32 v{vt[3]}, {6*RSTR}, v{vRr}
    s_nop 7
    """)
    for ct in range(2):
        for rt in range(2):
            for q in range(4):
                d = acc2[2*ct + rt] + 4*q
                a(f"ds_write_b128 v{vRw}, {v(d,4)} offset:{rt*32*272 + (32*ct + 8*q)*4}")
    a("s_waitcnt lgkmcnt(0)")
    a("s_barrier")
    stamp(a, 11)
    RR = W2R
    for w in range(8):
        base = (vRr, vt[2], vt[3])[w // 3]
        for q in range(2):
            a(f"ds_read_b128 {v(RR+8*w+4*q,4)}, v{base} offset:{(w % 3)*RSTR + 16*q}")
    a("s_waitcnt vmcnt(0)")
    for i in range(4):
        a(f"v_lshlrev_b32 v{T+2*i}, 16, v{HR+i}")
        a(f"v_and_b32 v{T+2*i+1}, 0xffff0000, v{HR+i}")
        a(f"v_lshlrev_b32 v{T+8+2*i}, 16, v{B2+i}")
        a(f"v_and_b32 v{T+8+2*i+1}, 0xffff0000, v{B2+i}")
    for i in range(4):
        a(f"v_pk_add_f32 {v(T+2*i,2)}, {v(T+2*i,2)}, {v(T+8+2*i,2)}")
    for w in range(0, 8, 2):
        a(f"s_waitcnt lgkmcnt({12 - 2*w})")
        for i in range(4):
            a(f"v_pk_add_f32 {v(RR+8*w+2*i,2)}, {v(RR+8*w+2*i,2)}, {v(RR+8*w+8+2*i,2)}")
        for i in range(4):
            a(f"v_pk_add_f32 {v(T+2*i,2)}, {v(T+2*i,2)}, {v(RR+8*w+2*i,2)}")
    for i in range(4):
        a(f"v_cvt_pk_bf16_f32 v{T+8+i}, v{T+2*i}, v{T+2*i+1}")
    a(f"buffer_store_dwordx4 {v(T+8,4)}, v{vOo}, {s(SHN,4)}, s{sOo} offen")
    stamp_dump(a, 1, sW)
    a("K2_END:")
    a("s_endpgm")
    a.c("slow path: true row maxima first")
    a("K2_SLOW:")
    MB = MISC + 1024
    a("s_setprio 0")
    for i in range(SLOW_V0, 16):
        a(ldV(i))
    a("s_nop 7\ns_nop 7")
    for o in O:
        a(f"v_mfma_f32_32x32x16_bf16 {v(o,16)}, {v(zero,4)}, {v(zero,4)}, 0")
    a(f"""
    v_and_b32 v{vt[0]}, 31, v0
    v_lshlrev_b32 v{vt[0]}, 2, v{vt[0]}
    v_add_u32 v{vt[0]}, {MB}, v{vt[0]}
    s_lshl_b32 s{sT0}, s{sW}, 7
    v_add_u32 v{vt[1]}, s{sT0}, v{vt[0]}
    v_mov_b32 v{vt[2]}, 0xff800000
    ds_write_b32 v{vt[1]}, v{vt[2]}
    s_waitcnt vmcnt(0) lgkmcnt(0)
    s_barrier
    v_mov_b32 v{vt[1]}, v{vt[0]}
    v_mov_b32 v{vt[3]}, v{vQl}
    s_mov_b32 s{sT0}, 0
    K2_P1:
    ds_read_b128 {v(Q,4)}, v{vt[3]}
    v_mov_b32 v{nrm}, 0xff800000
    s_waitcnt lgkmcnt(0)
    """)
    for j in range(8):
        a(f"v_mfma_f32_32x32x16_bf16 {v(S[0],16)}, {v(Kf+4*j,4)}, {v(Q,4)}, 0")
        a("s_nop 7\ns_nop 3")
        for i in range(8):
            a(f"v_max3_f32 v{nrm}, v{nrm}, v{S[0]+2*i}, v{S[0]+2*i+1}")
        a("s_nop 1")
    a(f"""
    ds_max_f32 v{vt[1]}, v{nrm}
    v_add_u32 v{vt[1]}, 128, v{vt[1]}
    v_add_u32 v{vt[3]}, 1024, v{vt[3]}
    s_add_u32 s{sT0}, s{sT0}, 1
    s_cmp_lt_u32 s{sT0}, 8
    s_cbranch_scc1 K2_P1
    ds_read_b128 {v(Q,4)}, v{vQl}
    s_waitcnt lgkmcnt(0)
    s_barrier
    """)
    mainloop(True)
    a("s_branch K2_TAIL")
    for r in retries:
        a(r)
    return name, R.cur, K2_LDS
```

```python
from asmlib import *
from common import *
import os

W1L = 0
QL = 98304
EXB = QL
OACC = QL + 8192
LACC = OACC + 16384
OFB = LACC + 1024
MISC = OFB + 1024
XL = MISC + 2048
B1L = EXB + 49152
K2_LDS = B1L + 256
RSTR = 17408
THR2 = (40.0 / 1.02) ** 2
PRIO = os.environ.get("PRIO", "2")
PD = int(os.environ.get("PD", "2"))
EXP = os.environ.get("EXP", "").split(",")
LDF = os.environ.get("LDF", "sc1").replace("_", " ").replace("none", "")
RELOAD = os.environ.get("RELOAD", "1") == "1"
SLOW_V0 = min(16, 2*PD + 10)

def gen_k2(a):
    name = "attn_kernel"
    kernel_header(a, name)
    R = Regs(1, 256)
    vt = [R.alloc(f"t{i}") for i in range(6)]
    vidx = R.alloc("idx")
    vQa = R.alloc("qa")
    vOa = R.alloc("oa"); vLa = R.alloc("la")
    vNr = R.alloc("nr"); vNl = R.alloc("nl"); vNw = R.alloc("nw")
    vOFa = R.alloc("ofa")
    vKo = R.alloc("ko"); vVo = R.alloc("vo"); vQl = R.alloc("ql"); vW1o = R.alloc("w1o")
    vP1r = R.alloc("p1r"); vP2r = R.alloc("p2r"); vPw = R.alloc("pw"); vPv = R.alloc("pv"); vCnt = R.alloc("cnt")
    zero = R.alloc("zero", 4)
    Q = R.alloc("q", 4)
    nrm = R.alloc("nrm", 8, 4)
    Kf = R.alloc("k", 32)
    Vf = R.alloc("v", 64)
    S = [R.alloc(f"s{i}", 16) for i in range(2)]
    O = [R.alloc(f"o{i}", 16) for i in range(2)]
    woA = R.alloc("woa", 16)
    T = R.alloc("T", 16)
    OFr = R.alloc("ofr", 8)
    hacc = R.alloc("hacc", 16)
    Qw = OFr
    vM = [vt[1], vt[2]]
    sW, sRB, sT0, sT1, sT2, sWm, sSo, sHalf = 20, 21, 22, 23, 44, 45, 46, 47
    sMaskLo, sV1, sV2 = 48, 50, 51
    sG, sMm, sT0f, sW1m, sV2x, sRot = 4, 5, 6, 7, 60, 61
    SQ, SKV, SWO, SX, SH, SHN, SP = 24, 28, 32, 36, 40, 52, 56
    a(f"""
    s_cmp_ge_u32 s2, 256
    s_cbranch_scc1 K2_END
    s_setprio 3
    s_load_dwordx2 s[16:17], s[0:1], 96
    s_load_dwordx2 s[8:9], s[0:1], 0
    s_load_dwordx4 s[12:15], s[0:1], 48
    s_load_dwordx2 s[18:19], s[0:1], 72
    s_load_dwordx2 s[10:11], s[0:1], 80
    v_lshrrev_b32 v{vt[0]}, 6, v0
    v_and_b32 v0, 63, v0
    v_readfirstlane_b32 s{sW}, v{vt[0]}
    v_lshlrev_b32 v{vQa}, 4, v0
    s_and_b32 s{sT0}, s2, 7
    s_lshr_b32 s{sT1}, s2, 3
    s_lshl_b32 s{sRB}, s{sT0}, 5
    s_add_u32 s{sRB}, s{sRB}, s{sT1}
    s_lshl_b32 s{sWm}, s{sW}, 13
    v_add_u32 v{vKo}, s{sWm}, v{vQa}
    v_lshrrev_b32 v{vt[3]}, 5, v0
    v_and_b32 v{vt[4]}, 31, v0
    v_lshlrev_b32 v{vt[2]}, 4, v{vt[4]}
    v_lshl_add_u32 v{vt[2]}, v{vt[3]}, 8, v{vt[2]}
    s_mul_i32 s{sT0}, s{sW}, {16*VSTR}
    s_add_u32 s{sT0}, s{sT0}, 0x10000
    v_and_b32 v{vt[1]}, 27, v0
    v_cmp_eq_u32 vcc, 16, v{vt[1]}
    v_mov_b32 v{vt[1]}, 0x40000000
    v_mov_b32 v{vt[5]}, 512
    v_cndmask_b32 v{vt[1]}, v{vt[1]}, v{vt[5]}, vcc
    v_cmp_gt_u32 vcc, 16, v{vt[4]}
    v_lshlrev_b32 v{vt[5]}, 3, v0
    s_nop 0
    v_cndmask_b32 v{vt[1]}, v{vt[1]}, v{vt[2]}, vcc
    v_add_u32 v{vVo}, s{sT0}, v{vt[1]}
    s_lshl_b32 s{sT1}, s{sRB}, 13
    s_lshl_b32 s{sT2}, s{sW}, 10
    s_add_u32 s{sT0}, s{sT1}, s{sT2}
    s_mov_b32 s{sSo}, 0x21000
    s_movk_i32 s{sT2}, 0x1000
    s_movk_i32 s{sV1}, {7*VSTR}
    s_movk_i32 s{sV2}, {14*VSTR}
    s_lshr_b32 s{sHalf}, s{sW}, 2
    """)
    stamp_init(a)
    a("s_waitcnt lgkmcnt(0)")
    srd(a, SQ, 16, 17, WS_Q, 0x200000)
    srd(a, SKV, 16, 17, WS_K, KV_BYTES)
    order = []
    def ldK(j):
        so = "0" if j < 4 else f"s{sT2}"
        order.append(f"K{j}")
        return f"buffer_load_dwordx4 {v(Kf+4*j,4)}, v{vKo}, {s(SKV,4)}, {so} offen offset:{(j&3)*1024}"
    def ldV(i):
        so = ("0", f"s{sV1}", f"s{sV2}")[i // 7]
        order.append(f"V{i}")
        return f"buffer_load_dwordx4 {v(Vf+4*i,4)}, v{vVo}, {s(SKV,4)}, {so} offen offset:{(i%7)*VSTR}"
    def ldW(t, ks, ct, dst):
        order.append(f"W{t}_{ks}_{ct}")
        pre = f"s_mov_b32 s{sSo}, {t*65536 + ks*4096}\n" if ct == 0 else ""
        return pre + f"buffer_load_dwordx4 {v(dst+4*ct,4)}, v{vKo}, {s(SWO,4)}, s{sSo} offen offset:{ct*1024}"
    def wait_for(item):
        return f"s_waitcnt vmcnt({len(order) - 1 - order.index(item)})"
    a(f"buffer_load_dwordx4 {v(Q,4)}, v{vQa}, {s(SQ,4)}, s{sT1} offen"); order.append("Q")
    a(ldK(0)); a(ldK(1)); a(ldV(0)); a(ldV(1)); a(ldK(2))
    a(f"buffer_load_dwordx4 {v(Qw,4)}, v{vQa}, {s(SQ,4)}, s{sT0} offen"); order.append("QW")
    a(f"buffer_load_dwordx2 {v(nrm,2)}, v{vt[5]}, {s(SKV,4)}, s{sSo} offen"); order.append("KM")
    for i in range(1, PD):
        a(ldV(2*i)); a(ldV(2*i + 1))
        if i + 2 < 8:
            a(ldK(i + 2))
    a("s_setprio 0")
    pro_order = list(order)
    srd(a, SWO, 16, 17, WS_WO, 524288)
    for i in range(4):
        a(f"v_mov_b32 v{zero+i}, 0")
    a(f"v_mov_b32 v{vidx}, 0xdddddddd")
    a("s_nop 0")
    for o in O:
        a(f"v_mfma_f32_32x32x16_bf16 {v(o,16)}, {v(zero,4)}, {v(zero,4)}, 0")
    a.c("LDS addresses")
    a(f"""
    s_lshl_b32 s{sT0}, s{sW}, 2
    s_add_u32 s{sT1}, s{sT0}, {MISC + 32}
    v_mov_b32 v{vPw}, s{sT1}
    ds_write2_b32 v{vPw}, v{zero}, v{zero} offset1:8
    s_add_u32 s{sT0}, s{sT0}, {LACC}
    v_lshlrev_b32 v{vLa}, 5, v{vt[4]}
    v_add_u32 v{vLa}, s{sT0}, v{vLa}
    s_lshl_b32 s{sT0}, s{sW}, 11
    s_add_u32 s{sT0}, s{sT0}, {OACC}
    v_add_u32 v{vOa}, s{sT0}, v{vQa}
    s_and_b32 s{sT1}, s{sW}, 3
    v_and_b32 v{vt[2]}, 7, v0
    v_lshlrev_b32 v{vP1r}, 2, v{vt[2]}
    v_add_u32 v{vP1r}, {MISC + 32}, v{vP1r}
    v_and_b32 v{vt[1]}, 3, v0
    v_lshlrev_b32 v{vP2r}, 2, v{vt[1]}
    v_add_u32 v{vP2r}, {MISC + 64}, v{vP2r}
    v_bfe_u32 v{vt[1]}, v0, 4, 1
    v_bfe_u32 v{vt[4]}, v0, 3, 1
    v_lshlrev_b32 v{vNr}, 4, v{vt[2]}
    v_lshl_add_u32 v{vNw}, v{vt[3]}, 7, v{vNr}
    v_lshl_add_u32 v{vNr}, v{vt[3]}, 10, v{vNr}
    v_lshl_add_u32 v{vNr}, v{vt[1]}, 9, v{vNr}
    v_lshl_add_u32 v{vNr}, v{vt[4]}, 3, v{vNr}
    s_lshl_b32 s{sT0}, s{sT1}, 7
    s_add_u32 s{sT0}, s{sT0}, {OACC}
    v_add_u32 v{vNr}, s{sT0}, v{vNr}
    s_lshl_b32 s{sT0}, s{sT1}, 8
    s_add_u32 s{sSo}, s{sT0}, {LACC}
    v_lshlrev_b32 v{vNl}, 5, v{vt[2]}
    v_add_u32 v{vNl}, s{sSo}, v{vNl}
    v_bfe_u32 v{vt[3]}, v0, 3, 2
    v_lshl_add_u32 v{vNw}, v{vt[3]}, 2, v{vNw}
    s_add_u32 s{sSo}, s{sT0}, {OFB}
    v_add_u32 v{vNw}, s{sSo}, v{vNw}
    v_lshrrev_b32 v{vt[3]}, 4, v0
    v_lshlrev_b32 v{vt[2]}, 4, v{vt[2]}
    v_lshl_add_u32 v{vOFa}, v{vt[3]}, 7, v{vt[2]}
    v_add_u32 v{vOFa}, {OFB}, v{vOFa}
    """)
    srd(a, SX, 8, 9, 0, 0x200000)
    srd(a, SHN, 16, 17, WS_HN, 0x200000)
    srd(a, SP, 12, 13, 0, 1409024)
    srd(a, SH, 16, 17, WS_W2, W2F_BYTES)
    a(f"""
    s_lshr_b32 s{sT0}, s2, 3
    s_mul_i32 s{sT1}, s{sT0}, 44032
    s_add_u32 s{sT1}, s{sT1}, s{sWm}
    v_lshlrev_b32 v{vt[5]}, 7, v0
    s_lshl_b32 s{sMaskLo}, s{sT0}, 14
    s_and_b32 s{sT0}, s{sWm}, 0x2000
    s_add_u32 s{sMaskLo}, s{sMaskLo}, s{sT0}
    s_mov_b32 s{sMaskLo+1}, s{sT1}
    s_lshr_b32 s{sT0}, s2, 3
    s_mul_i32 s{sV2x}, s{sT0}, 45056
    s_add_u32 s{sV2x}, s{sV2x}, s{sWm}
    s_lshr_b32 s{sG}, s{sRB}, 4
    s_and_b32 s{sMm}, s{sRB}, 15
    s_mul_i32 s{sT0f}, s{sMm}, 3
    s_min_u32 s{sT0f}, s{sT0f}, 40
    v_add_u32 v{vQl}, {QL}, v{vQa}
    v_lshrrev_b32 v{vt[3]}, 2, v0
    v_mul_u32_u24 v{vt[3]}, 2752, v{vt[3]}
    v_and_b32 v{vt[4]}, 3, v0
    v_lshl_add_u32 v{vt[3]}, v{vt[4]}, 4, v{vt[3]}
    s_lshl_b32 s{sT0}, s{sT0f}, 6
    s_mul_i32 s{sT1}, s{sHalf}, {16*44032}
    s_add_u32 s{sT0}, s{sT0}, s{sT1}
    v_add_u32 v{vW1o}, s{sT0}, v{vt[3]}
    s_lshl_b32 s{sRot}, s{sW}, 2
    s_add_u32 s{sRot}, s{sRot}, s{sMm}
    s_mul_i32 s{sW1m}, s{sW}, {4*3072}
    """)
    stamp(a, 1)
    def bound_check():
        n = nrm
        P = []
        P.append(lambda: f"s_lshl_b32 s{sT0}, s{sW}, 10\nv_add_u32 v{vt[0]}, s{sT0}, v{vQl}\nv_mov_b32 v{n+2}, 0\n{wait_for('KM')}\nds_write_b128 v{vt[0]}, {v(Qw,4)}")
        P.append("\n".join(f"v_dot2c_f32_bf16 v{n+2}, v{Qw+i}, v{Qw+i}" for i in range(4)) + f"\nv_max_f32 v{n}, v{n}, v{n+1}\ns_nop 0")
        P.append(f"v_max_f32_dpp v{n}, v{n}, v{n} row_ror:8 row_mask:0xf bank_mask:0xf\nv_mov_b32 v{n+3}, v{n+2}")
        P.append(f"v_max_f32_dpp v{n}, v{n}, v{n} row_ror:4 row_mask:0xf bank_mask:0xf\nv_permlane32_swap_b32 v{n+2}, v{n+3}")
        P.append(f"v_max_f32_dpp v{n}, v{n}, v{n} row_ror:2 row_mask:0xf bank_mask:0xf\nv_add_f32 v{n+2}, v{n+2}, v{n+3}")
        P.append(f"v_max_f32_dpp v{n}, v{n}, v{n} row_ror:1 row_mask:0xf bank_mask:0xf\nv_mov_b32 v{n+1}, v{n}\ns_nop 0")
        P.append(f"v_permlane32_swap_b32 v{n}, v{n+1}\nv_max_f32 v{n}, v{n}, v{n+1}\nv_mov_b32 v{n+1}, v{n}\ns_nop 0")
        P.append(f"v_permlane16_swap_b32 v{n}, v{n+1}\nv_max_f32 v{n}, v{n}, v{n+1}\nv_mul_f32 v{n}, v{n}, v{n+2}\nv_mov_b32 v{n+1}, {hex(f32bits(THR2))}\n"
                 f"v_cmp_nle_f32 vcc, v{n}, v{n+1}\ns_lshl_b32 s{sT0}, s{sW}, 2\ns_add_u32 s{sT0}, s{sT0}, {MISC}")
        P.append(f"s_cmp_lg_u64 vcc, 0\ns_cselect_b32 s{sT1}, 1, 0\nv_mov_b32 v{vt[0]}, s{sT0}\nv_mov_b32 v{vt[1]}, s{sT1}\nds_write_b32 v{vt[0]}, v{vt[1]}\nv_mov_b32 v{vt[0]}, {MISC}")
        return P
    flag_reads = f"ds_read_b128 {v(nrm,4)}, v{vt[0]}\nds_read_b128 {v(nrm+4,4)}, v{vt[0]} offset:16"
    flag_test = (f"s_waitcnt lgkmcnt(0)\nv_or3_b32 v{nrm}, v{nrm}, v{nrm+1}, v{nrm+2}\nv_or3_b32 v{nrm+3}, v{nrm+3}, v{nrm+4}, v{nrm+5}\n"
                 f"v_or3_b32 v{nrm}, v{nrm}, v{nrm+6}, v{nrm+7}\nv_or_b32 v{nrm}, v{nrm}, v{nrm+3}\ns_nop 0\n"
                 f"v_readfirstlane_b32 s{sT0}, v{nrm}\ns_cmp_lg_u32 s{sT0}, 0\ns_cbranch_scc1 K2_SLOW")

    def smf(tau):
        t, j = divmod(tau, 8)
        return f"v_mfma_f32_32x32x16_bf16 {v(S[tau&1],16)}, {v(Kf+4*j,4)}, {v(Q,4)}, 0"
    def pv(tau, h):
        t, j = divmod(tau, 8)
        return f"v_smfmac_f32_32x32x32_bf16 {v(O[t&1],16)}, {v(Vf+8*j+4*h,4)}, {v(S[tau&1]+8*h,8)}, v{vidx}"
    def drain(t):
        o = O[t & 1]
        return [f"ds_write_b128 v{vOa}, {v(o,4)}", f"ds_write_b128 v{vOa}, {v(o+4,4)} offset:1024", f"ds_write_b32 v{vLa}, v{o+8}"]
    retries = []
    def check(areg, off, val, lab):
        retries.append(f"K2_R{lab}:\nds_read_b32 v{vPv}, v{areg} offset:{off}\ns_waitcnt lgkmcnt(0)\nv_cmp_gt_u32 vcc, {val}, v{vPv}\n"
                       f"s_cbranch_vccnz K2_R{lab}\ns_branch K2_C{lab}")
        return f"s_waitcnt lgkmcnt(0)\nv_cmp_gt_u32 vcc, {val}, v{vPv}\ns_cbranch_vccnz K2_R{lab}\nK2_C{lab}:\n"
    def norm_reads():
        L = f"ds_read_b128 {v(nrm,4)}, v{vNl}\nds_read_b128 {v(nrm+4,4)}, v{vNl} offset:16\n"
        for w in range(8):
            L += f"ds_read_b64 {v(T+2*w,2)}, v{vNr} offset:{w*2048}\n"
        return L
    def norm_comp():
        L = f"s_waitcnt lgkmcnt(0)\n"
        L += f"v_pk_add_f32 {v(nrm,2)}, {v(nrm,2)}, {v(nrm+2,2)}\n"
        L += f"v_pk_add_f32 {v(nrm+4,2)}, {v(nrm+4,2)}, {v(nrm+6,2)}\n"
        for w in range(4):
            L += f"v_pk_add_f32 {v(T+4*w,2)}, {v(T+4*w,2)}, {v(T+4*w+2,2)}\n"
        L += f"v_pk_add_f32 {v(nrm,2)}, {v(nrm,2)}, {v(nrm+4,2)}\n"
        L += f"v_pk_add_f32 {v(T,2)}, {v(T,2)}, {v(T+4,2)}\n"
        L += f"v_add_f32 v{nrm}, v{nrm}, v{nrm+1}\n"
        L += f"v_pk_add_f32 {v(T+8,2)}, {v(T+8,2)}, {v(T+12,2)}\n"
        L += f"v_rcp_f32 v{nrm}, v{nrm}\n"
        L += f"v_pk_add_f32 {v(T,2)}, {v(T,2)}, {v(T+8,2)}\n"
        L += f"v_pk_mul_f32 {v(T,2)}, {v(T,2)}, {v(nrm,2)} op_sel_hi:[1,0]\n"
        L += f"v_cvt_pk_bf16_f32 v{T}, v{T}, v{T+1}\n"
        L += f"ds_write_b32 v{vNw}, v{T}\n"
        return L
    def only_half(t, lab, body):
        return f"s_cmp_lg_u32 s{sHalf}, {t&1}\ns_cbranch_scc1 K2_N{lab}\n{body}K2_N{lab}:\n"
    def of_reads():
        return "\n".join(f"ds_read_b128 {v(OFr+4*ks,4)}, v{vOFa} offset:{ks*512}" for ks in range(2))
    def wo_mfma(ks, ct, src, first=False):
        return f"v_mfma_f32_16x16x32_bf16 {v(hacc+4*ct,4)}, {v(src+4*ct,4)}, {v(OFr+4*ks,4)}, {'0' if first else v(hacc+4*ct,4)}"
    W7 = [Kf, Kf + 16]
    W2R = Vf + 8
    assert S[0] == Vf + 64 and S[1] == S[0] + 16 and Q == zero + 4 and nrm == Q + 4
    X = Vf

    def mainloop(slow):
        tag = "S" if slow else "F"
        order[:] = [] if slow else list(pro_order)
        if slow:
            a(f"ds_read_b32 v{vM[0]}, v{vt[0]}")
            a("s_waitcnt lgkmcnt(0)")
        else:
            a(wait_for("K0"))
            stamp(a, 2)
        a(smf(0))
        a("s_nop 7")
        a("s_nop 3")
        for tau in range(64):
            t, j = divmod(tau, 8)
            slots = [[] for _ in range(17)]
            p1 = 11
            if PRIO == "1" and (j & 1) == 0:
                slots[0].append(f"s_setprio {3 - j // 2}")
            if PRIO == "2":
                slots[0].append(f"s_setprio {3 - (j & 3)}")
            if tau > 0:
                slots[2].append(pv(tau - 1, 1))
            if t == 0 and not slow:
                if j + PD < 8:
                    slots[0].append(lambda j=j: ldV(2*(j + PD)))
                    slots[4].append(lambda j=j: ldV(2*(j + PD) + 1))
                if j + PD + 2 < 8:
                    slots[8].append(lambda j=j: ldK(j + PD + 2))
                if j == 2:
                    for i, x in enumerate(bound_check()):
                        slots[3 + i].append(x)
                if j == 4:
                    slots[0] += ["s_waitcnt lgkmcnt(0)", "s_barrier", flag_reads]
                    slots[5].append(flag_test)
                if j == 6:
                    slots[13].append(f"s_cmp_lt_u32 s{sW}, 6\ns_cbranch_scc1 K2_PW\nbuffer_load_dword v{vt[3]}, v{vt[5]}, {s(SWO,4)}, s{sMaskLo} offen\nK2_PW:")
            nx = tau + 1
            if nx < 64:
                if t == 0 and nx < 8 and not slow:
                    slots[6].append(lambda nx=nx: wait_for(f"K{nx}"))
                if nx % 8 == 0:
                    slots[6].append("s_waitcnt lgkmcnt(0)")
                slots[6].append(smf(nx))
                if nx % 8 == 7 and t < 7:
                    slots[10].append(f"ds_read_b128 {v(Q,4)}, v{vQl} offset:{(t+1)*1024}")
                    if slow:
                        slots[10].append(f"ds_read_b32 v{vM[(t+1)&1]}, v{vt[0]} offset:{(t+1)*128}")
            if 10 <= tau < 22 and tau % 2 == 0:
                slots[13].append(f"s_cmp_lg_u32 s{sW}, {(tau-10)//2}\ns_cbranch_scc1 K2_PA{tag}{tau}\nbuffer_load_dword v{vt[3]}, v{vt[5]}, {s(SP,4)}, s{sMaskLo+1} offen\nK2_PA{tag}{tau}:")
            if 22 <= tau < 34 and tau % 2 == 0:
                slots[13].append(f"s_cmp_lg_u32 s{sW}, {(tau-22)//2}\ns_cbranch_scc1 K2_PB{tag}{tau}\nbuffer_load_dword v{vt[4]}, v{vt[5]}, {s(SH,4)}, s{sV2x} offen\nK2_PB{tag}{tau}:")
            if 36 <= tau < 60 and tau % 2 == 0:
                n = (tau - 36) // 2
                kb, ft = divmod(n, 3)
                slots[4].append(lambda kb=kb, ft=ft: (order.append("W1"), f"s_add_u32 s{sT0}, s{sRot}, {kb}\ns_and_b32 s{sT0}, s{sT0}, 15\ns_mul_i32 s{sT0}, s{sT0}, 44032\ns_add_u32 m0, s{sW1m}, {kb*3072 + ft*1024 - ft*64}\ns_nop 0\n"
                    f"buffer_load_dwordx4 v{vW1o}, {s(SP,4)}, s{sT0} offen offset:{ft*64} lds")[1])
            if t >= 1:
                u = t - 1
                if j == 1:
                    slots[0].append(f"v_mov_b32 v{vCnt}, {t}")
                    for i, x in enumerate(drain(u)):
                        slots[1 + 2*i].append(x)
                    slots[7].append(f"ds_write_b32 v{vPw}, v{vCnt}")
                if j == 2:
                    slots[13].append("s_waitcnt lgkmcnt(0)")
                if j == 3:
                    slots[0].append(f"ds_read_b32 v{vPv}, v{vP1r}")
                    slots[7].append(only_half(u, f"A{tag}{t}", check(vP1r, 0, t, f"A{tag}{t}") + norm_reads()))
                    slots[9] += [f"v_mfma_f32_32x32x16_bf16 {v(O[u&1],16)}, {v(zero,4)}, {v(zero,4)}, 0"]
                    p1 = 12
                    for ct in range(4):
                        slots[(1, 4, 13, 15)[ct]].append(lambda u=u, ct=ct: ldW(u, 0, ct, woA))
                if j == 4:
                    slots[3].append(only_half(u, f"B{tag}{t}", norm_comp() + f"ds_write_b32 v{vPw}, v{vCnt} offset:32\n"))
                if j == 5:
                    for ct in range(4):
                        slots[(1, 7, 9, 13)[ct]].append(lambda u=u, ct=ct: ldW(u, 1, ct, T))
                if j == 6:
                    slots[1].append(f"ds_read_b32 v{vPv}, v{vP2r} offset:{16*(u&1)}")
                    slots[8].append(check(vP2r, 16*(u&1), t, f"D{tag}{t}") + of_reads())
                    slots[15] += ["s_waitcnt lgkmcnt(0)", lambda u=u: wait_for(f"W{u}_0_3"), wo_mfma(0, 0, woA, u == 0)]
                if j == 7:
                    slots[9].append(wo_mfma(0, 1, woA, u == 0)); slots[15].append(wo_mfma(0, 2, woA, u == 0))
            if t >= 2:
                u = t - 2
                if j == 0:
                    slots[9].append(wo_mfma(0, 3, woA, u == 0))
                    slots[15] += [lambda u=u: wait_for(f"W{u}_1_3"), wo_mfma(1, 0, T)]
                if j == 1:
                    slots[9].append(wo_mfma(1, 1, T)); slots[15].append(wo_mfma(1, 2, T))
                if j == 2:
                    slots[9].append(wo_mfma(1, 3, T))
            if tau == 11:
                slots[4].append(f"s_cmp_lg_u32 s{sW}, 7\ns_cbranch_scc1 K2_B1{tag}\ns_add_u32 s{SQ}, s14, 0\ns_addc_u32 s{SQ+1}, s15, 0\ns_movk_i32 s{SQ+2}, 2752\n"
                    f"s_lshl_b32 s{sT0}, s{sT0f}, 6\nv_lshlrev_b32 v{vt[3]}, 2, v0\ns_mov_b32 m0, {B1L}\ns_nop 0\nbuffer_load_dword v{vt[3]}, {s(SQ,4)}, s{sT0} offen lds\nK2_B1{tag}:")
            if tau == 9:
                slots[4].append(lambda: (order.append("X"), f"s_lshl_b32 s{sT0}, s{sRB}, 13\ns_lshl_b32 s{sT1}, s{sW}, 10\ns_add_u32 s{sT0}, s{sT0}, s{sT1}\n"
                    f"s_mul_i32 s{sT1}, s{sW}, 1040\ns_add_u32 m0, s{sT1}, {XL}\ns_nop 0\nbuffer_load_dwordx4 v{vQa}, {s(SX,4)}, s{sT0} offen lds")[1])
            if tau in (60, 63):
                for ct in range(4):
                    slots[(1, 3, 9, 13)[ct]].append(lambda ct=ct, ks=(tau-60)//3: ldW(7, ks, ct, W7[ks]))
            if t == 0 and not slow:
                slots[p1].append(lambda j=j: wait_for(f"V{2*j+1}"))
            slots[p1].append(pv(tau, 0))
            if not slow and sum(len(x) for x in slots[7:]) < 2:
                slots[14].append("s_nop 0")
            for i in range(17):
                for x in slots[i]:
                    x = x() if callable(x) else x
                    if "NOWL" in EXP and f"{s(SWO,4)}" in x: continue
                    if "NOPF" in EXP and ("K2_PA" in x or "K2_PB" in x): continue
                    if "NOWO" in EXP and "16x16x32" in x: continue
                    if "NONORM" in EXP and "K2_N" in x: continue
                    if "NOCHK" in EXP and "K2_R" in x and "K2_N" not in x: x = of_reads()
                    a(x)
                if i < 16:
                    r = S[tau & 1] + i
                    if slow:
                        a(f"v_sub_f32 v{r}, v{r}, v{vM[t&1]}")
                    a(f"v_exp_f32 v{r}, v{r}")
        a("s_nop 1")
        a(pv(63, 1))
    mainloop(False)
    a("K2_TAIL:")
    stamp(a, 3)
    sCB2, sW2o, sB3 = sV2, sV2x, 48
    def ldW2(i):
        L = (f"s_add_u32 s{sSo}, s{sCB2}, {i}\ns_sub_u32 s{sT1}, s{sSo}, 11\ns_cselect_b32 s{sSo}, s{sSo}, s{sT1}\n"
             f"s_lshl_b32 s{sSo}, s{sSo}, 11\ns_add_u32 s{sSo}, s{sSo}, s{sW2o}\n")
        for ct in range(2):
            L += f"buffer_load_dwordx4 {v(W2R+8*i+4*ct,4)}, v{vQa}, {s(SH,4)}, s{sSo} offen offset:{ct*1024}\n"
        return L
    a(f"""
    s_setprio 0
    s_and_b32 s{sCB2}, s{sMm}, 7
    s_lshl_b32 s{sW2o}, s{sCB2}, 3
    s_add_u32 s{sW2o}, s{sW2o}, s{sW}
    s_mul_i32 s{sW2o}, s{sW2o}, {11*2048}
    """)
    a(ldW2(0) + ldW2(1))
    a(wo_mfma(0, 3, woA))
    for x in drain(7):
        a(x)
    a("s_waitcnt vmcnt(8)")
    for ct in range(4):
        a(wo_mfma(1, ct, T))
    a(f"""
    v_and_b32 v{vt[0]}, 7, v0
    v_lshrrev_b32 v{vt[1]}, 4, v0
    v_bfe_u32 v{vt[3]}, v0, 3, 1
    v_lshlrev_b32 v{vVo}, 10, v{vt[0]}
    v_lshl_add_u32 v{vVo}, v{vt[3]}, 6, v{vVo}
    s_lshl_b32 s{sV1}, s{sRB}, 13
    s_lshl_b32 s{sT1}, s{sW}, 7
    s_add_u32 s{sV1}, s{sV1}, s{sT1}
    s_add_u32 s{sT1}, s{sT1}, {XL}
    v_lshl_add_u32 v{vt[2]}, v{vt[0]}, 4, v{vVo}
    v_lshl_add_u32 v{vt[2]}, v{vt[1]}, 3, v{vt[2]}
    v_add_u32 v{vt[2]}, s{sT1}, v{vt[2]}
    v_bfe_u32 v{vt[1]}, v0, 4, 1
    v_lshl_add_u32 v{vVo}, v{vt[1]}, 5, v{vVo}
    v_lshrrev_b32 v{vt[4]}, 5, v0
    v_lshl_add_u32 v{vVo}, v{vt[4]}, 4, v{vVo}
    s_waitcnt lgkmcnt(0)
    s_barrier
    """)
    for c in range(2):
        a(f"ds_read_b64 {v(X+2*c,2)}, v{vt[2]} offset:{32*c}")
    a(only_half(7, "T", norm_reads() + norm_comp()))
    H = O[0]; XU = O[0] + 8; PK = O[1]; ST = woA; U = T
    srd(a, SQ, 16, 17, WS_H, 0x200000)
    a(f"""
    s_mov_b32 s{sB3}, 0xff00ff00
    s_mov_b32 s{sB3+1}, 0xff00ff00
    s_waitcnt lgkmcnt(0)
    """)
    for i in range(4):
        a(f"v_lshlrev_b32 v{XU+2*i}, 16, v{X+i}")
        a(f"v_and_b32 v{XU+2*i+1}, 0xffff0000, v{X+i}")
    a(ldW2(2) + ldW2(3))
    a("s_barrier")
    a(of_reads())
    a("s_waitcnt vmcnt(8) lgkmcnt(1)")
    for ct in range(4):
        a(wo_mfma(0, ct, W7[0]))
    a("s_waitcnt lgkmcnt(0)")
    for ct in (0, 2, 1, 3):
        a(wo_mfma(1, ct, W7[1]))
    stamp(a, 4)
    a(ldW2(4) + ldW2(5))
    a.c("h = x + attn ; lanes with bit 3 set take column tiles 2,3")
    for i in range(8):
        a(f"v_cndmask_b32 v{H+i}, v{hacc+i}, v{hacc+8+i}, {s(sB3,2)}")
    for i in range(4):
        a(f"v_pk_add_f32 {v(H+2*i,2)}, {v(H+2*i,2)}, {v(XU+2*i,2)}")
    def xreduce(r, tmp):
        a(f"""
        v_mov_b32 v{tmp}, v{r}
        s_nop 1
        v_permlane32_swap_b32 v{r}, v{tmp}
        v_add_f32 v{r}, v{r}, v{tmp}
        v_mov_b32 v{tmp}, v{r}
        s_nop 1
        v_permlane16_swap_b32 v{r}, v{tmp}
        v_add_f32 v{r}, v{r}, v{tmp}
        s_nop 1
        v_add_f32_dpp v{r}, v{r}, v{r} row_ror:8 row_mask:0xf bank_mask:0xf
        """)
    a(f"""
    v_pk_add_f32 {v(U,2)}, {v(H,2)}, {v(H+2,2)}
    v_pk_add_f32 {v(U+2,2)}, {v(H+4,2)}, {v(H+6,2)}
    v_pk_add_f32 {v(U,2)}, {v(U,2)}, {v(U+2,2)}
    v_add_f32 v{U}, v{U}, v{U+1}
    """)
    xreduce(U, U+2)
    a(f"v_mul_f32 v{U}, {hex(f32bits(1.0/64))}, v{U}")
    for i in range(4):
        a(f"v_pk_add_f32 {v(XU+2*i,2)}, {v(H+2*i,2)}, {v(U,2)} op_sel_hi:[1,0] neg_lo:[0,1] neg_hi:[0,1]")
    a(f"""
    v_pk_mul_f32 {v(U+2,2)}, {v(XU,2)}, {v(XU,2)}
    v_pk_mul_f32 {v(U+4,2)}, {v(XU+2,2)}, {v(XU+2,2)}
    v_pk_fma_f32 {v(U+2,2)}, {v(XU+4,2)}, {v(XU+4,2)}, {v(U+2,2)}
    v_pk_fma_f32 {v(U+4,2)}, {v(XU+6,2)}, {v(XU+6,2)}, {v(U+4,2)}
    v_pk_add_f32 {v(U+2,2)}, {v(U+2,2)}, {v(U+4,2)}
    v_add_f32 v{U+1}, v{U+2}, v{U+3}
    """)
    xreduce(U+1, U+2)
    a(f"""
    s_lshl_b32 s{sT1}, s{sW}, 3
    s_add_u32 s{sT1}, s{sT1}, {MISC + 128}
    v_lshlrev_b32 v{vt[5]}, 6, v{vt[0]}
    v_add_u32 v{vt[4]}, s{sT1}, v{vt[5]}
    v_add_u32 v{vt[5]}, {MISC + 128}, v{vt[5]}
    ds_write_b64 v{vt[4]}, {v(U,2)}
    """)
    for i in range(4):
        a(f"v_cvt_pk_bf16_f32 v{PK+i}, v{H+2*i}, v{H+2*i+1}")
    a("s_waitcnt lgkmcnt(0)")
    a("s_barrier")
    for i in range(4):
        a(f"ds_read_b128 {v(ST+4*i,4)}, v{vt[5]} offset:{16*i}")
    a(f"""
    v_permlane16_swap_b32 v{PK}, v{PK+2}
    v_permlane16_swap_b32 v{PK+1}, v{PK+3}
    buffer_store_dwordx4 {v(PK,4)}, v{vVo}, {s(SQ,4)}, s{sV1} offen sc1
    """)
    a(f"""
    s_lshr_b32 s{sT0}, s{sRB}, 2
    s_lshl_b32 s{sT0}, s{sT0}, 15
    s_lshl_b32 s{sT1}, s{sW}, 12
    s_add_u32 s{sT0}, s{sT0}, s{sT1}
    s_and_b32 s{sT1}, s{sRB}, 3
    s_lshl_b32 s{sT1}, s{sT1}, 7
    s_add_u32 s{sT0}, s{sT0}, s{sT1}
    v_lshlrev_b32 v{vt[4]}, 4, v{vt[0]}
    v_lshl_add_u32 v{vt[4]}, v{vt[3]}, 11, v{vt[4]}
    v_lshrrev_b32 v{vt[0]}, 5, v0
    v_lshl_add_u32 v{vt[4]}, v{vt[0]}, 9, v{vt[4]}
    v_lshl_add_u32 v{vt[4]}, v{vt[1]}, 10, v{vt[4]}
    s_waitcnt lgkmcnt(0)
    v_pk_add_f32 {v(U+2,2)}, {v(ST,2)}, {v(ST+2,2)}
    v_pk_add_f32 {v(U+4,2)}, {v(ST+4,2)}, {v(ST+6,2)}
    v_pk_add_f32 {v(U+6,2)}, {v(ST+8,2)}, {v(ST+10,2)}
    v_pk_add_f32 {v(U+8,2)}, {v(ST+12,2)}, {v(ST+14,2)}
    v_pk_add_f32 {v(U+2,2)}, {v(U+2,2)}, {v(U+4,2)}
    v_pk_add_f32 {v(U+6,2)}, {v(U+6,2)}, {v(U+8,2)}
    v_pk_add_f32 {v(U+2,2)}, {v(U+2,2)}, {v(U+6,2)}
    v_mul_f32 v{U+2}, 0x3e000000, v{U+2}
    """)
    for i in range(8):
        a(f"v_sub_f32 v{ST+2*i}, v{ST+2*i}, v{U+2}")
    a(f"v_mul_f32 v{U+4}, v{ST}, v{ST}")
    a(f"v_mul_f32 v{U+5}, v{ST+2}, v{ST+2}")
    for i in range(2, 8):
        a(f"v_fmac_f32 v{U+4+(i&1)}, v{ST+2*i}, v{ST+2*i}")
    a(f"""
    v_add_f32 v{U+4}, v{U+4}, v{U+5}
    v_fmac_f32 v{U+3}, 0x42800000, v{U+4}
    v_mov_b32 v{U+6}, {hex(f32bits(1e-5))}
    v_fmac_f32 v{U+6}, {hex(f32bits(1.0/512))}, v{U+3}
    v_rsq_f32 v{U+6}, v{U+6}
    """)
    for i in range(4):
        a(f"v_pk_add_f32 {v(H+2*i,2)}, {v(H+2*i,2)}, {v(U+2,2)} op_sel_hi:[1,0] neg_lo:[0,1] neg_hi:[0,1]")
    for i in range(4):
        a(f"v_pk_mul_f32 {v(H+2*i,2)}, {v(H+2*i,2)}, {v(U+6,2)} op_sel_hi:[1,0]")
    for i in range(4):
        a(f"v_cvt_pk_bf16_f32 v{PK+4+i}, v{H+2*i}, v{H+2*i+1}")
    a(f"""
    s_nop 1
    v_permlane16_swap_b32 v{PK+4}, v{PK+6}
    v_permlane16_swap_b32 v{PK+5}, v{PK+7}
    buffer_store_dwordx4 {v(PK+4,4)}, v{vt[4]}, {s(SHN,4)}, s{sT0} offen sc1
    """)
    SF, SG = SKV, SWO
    srd(a, SF, 16, 17, WS_FLG, 4096)
    srd(a, SG, 16, 17, WS_G, G_BYTES)
    def signal(off):
        a(f"""
        s_waitcnt vmcnt(0)
        s_barrier
        {stamp_str(12) if off == 0 else ""}
        s_cmp_lg_u32 s{sW}, 0
        s_cbranch_scc1 K2_NOSIG{off}
        s_lshl_b32 s{sT0}, s{sG}, 8
        s_lshl_b32 s{sT1}, s{sMm}, 2
        s_add_u32 s{sT1}, s{sT1}, s{sT0}
        v_mov_b32 v{vt[0]}, 0
        v_mov_b32 v{vt[1]}, 1
        s_mov_b64 exec, 1
        buffer_store_dword v{vt[1]}, v{vt[0]}, {s(SF,4)}, s{sT1} offen offset:{off} sc1
        s_mov_b64 exec, -1
        K2_NOSIG{off}:
        """)
    def poll_start(off):
        a(f"""
        s_cmp_lg_u32 s{sW}, 0
        s_cbranch_scc1 K2_NOPS{off}
        s_lshl_b32 s{sRot}, s{sG}, 8
        v_and_b32 v{vt[0]}, 15, v0
        v_lshlrev_b32 v{vt[0]}, 2, v{vt[0]}
        buffer_load_dword v{vt[1]}, v{vt[0]}, {s(SF,4)}, s{sRot} offen offset:{off} sc1
        K2_NOPS{off}:
        """)
    def poll(off, mask):
        a(f"""
        s_cmp_lg_u32 s{sW}, 0
        s_cbranch_scc1 K2_NOPOLL{off}
        s_lshl_b32 s{sT0}, s{sG}, 8
        s_mov_b32 s{sT2}, 0x200000
        buffer_load_dword v{vt[4]}, v{vt[0]}, {s(SF,4)}, s{sT0} offen offset:{off} sc1
        K2_POLL{off}:
        s_sub_u32 s{sT2}, s{sT2}, 1
        s_cbranch_scc1 K2_PDONE{off}
        s_waitcnt vmcnt(1)
        v_cmp_ne_u32 vcc, 0, v{vt[1]}
        buffer_load_dword v{vt[1]}, v{vt[0]}, {s(SF,4)}, s{sT0} offen offset:{off} sc1
        s_and_b32 s{sT1}, vcc_lo, {hex(mask)}
        s_cmp_eq_u32 s{sT1}, {hex(mask)}
        s_cbranch_scc1 K2_PDONE{off}
        s_waitcnt vmcnt(1)
        v_cmp_ne_u32 vcc, 0, v{vt[4]}
        buffer_load_dword v{vt[4]}, v{vt[0]}, {s(SF,4)}, s{sT0} offen offset:{off} sc1
        s_and_b32 s{sT1}, vcc_lo, {hex(mask)}
        s_cmp_lg_u32 s{sT1}, {hex(mask)}
        s_cbranch_scc1 K2_POLL{off}
        K2_PDONE{off}:
        K2_NOPOLL{off}:
        s_barrier
        """)
    stamp(a, 5)
    signal(0)
    if RELOAD:
        a.c("touch the lines this workgroup just wrote so that they sit in the local L2 (speed only)")
        a(f"""
        s_cmp_lg_u32 s{sW}, 1
        s_cbranch_scc1 K2_NORL0
        s_lshr_b32 s{sT0}, s{sRB}, 2
        s_lshl_b32 s{sT0}, s{sT0}, 15
        s_and_b32 s{sT1}, s{sRB}, 3
        s_lshl_b32 s{sT1}, s{sT1}, 7
        s_add_u32 s{sT0}, s{sT0}, s{sT1}
        v_lshlrev_b32 v{vt[0]}, 9, v0
        buffer_load_dword v{vt[1]}, v{vt[0]}, {s(SHN,4)}, s{sT0} offen sc1
        s_lshl_b32 s{sT0}, s{sRB}, 13
        v_lshlrev_b32 v{vt[0]}, 7, v0
        buffer_load_dword v{vt[4]}, v{vt[0]}, {s(SQ,4)}, s{sT0} offen sc1
        K2_NORL0:
        """)
    W2B = "".join(ldW2(i) for i in range(6, 11))
    a(f"""
    s_cmp_eq_u32 s{sMm}, 15
    s_cbranch_scc1 K2_SKIP1
    """)
    poll_start(0)
    a(f"""
    v_lshrrev_b32 v{vt[2]}, 5, v0
    v_lshlrev_b32 v{vt[2]}, 3, v{vt[2]}
    v_add_u32 v{vt[2]}, {B1L}, v{vt[2]}
    s_cmp_eq_u32 s{sHalf}, 0
    s_cselect_b32 s{sT2}, -1, 0
    s_and_b32 s{sSo}, s{sT2}, 0xffff0000
    """)
    BI = Kf
    acc1 = [O[0], O[1], hacc]
    for ft in range(3):
        for q in range(4):
            a(f"ds_read_b64 {v(BI+8*ft+2*q,2)}, v{vt[2]} offset:{ft*64+q*16}")
    a("s_waitcnt lgkmcnt(0)")
    for ft in range(3):
        for i in range(8):
            a(f"v_and_b32 v{acc1[ft]+2*i+1}, s{sSo}, v{BI+8*ft+i}")
            a(f"v_and_b32 v{BI+8*ft+i}, s{sT2}, v{BI+8*ft+i}")
            a(f"v_lshlrev_b32 v{acc1[ft]+2*i}, 16, v{BI+8*ft+i}")
    Bf = [Kf + 4*i for i in range(8)] + [woA + 4*i for i in range(4)] + [T + 4*i for i in range(4)]
    Af = [Vf, Vf + 4, OFr, OFr + 4, nrm, nrm + 4, Q, zero]
    vWa = vOa; vEx = vLa; vEr = vNr
    sRT, sKH = sV1, sHalf
    a(f"""
    s_and_b32 s{sRT}, s{sW}, 3
    s_lshl_b32 s{sT0}, s{sG}, 2
    s_add_u32 s{sRT}, s{sRT}, s{sT0}
    v_lshrrev_b32 v{vt[2]}, 5, v0
    v_lshlrev_b32 v{vt[2]}, 9, v{vt[2]}
    v_bfe_u32 v{vt[3]}, v0, 2, 2
    v_lshl_add_u32 v{vt[2]}, v{vt[3]}, 6, v{vt[2]}
    v_bfe_u32 v{vt[3]}, v0, 4, 1
    v_lshl_add_u32 v{vt[2]}, v{vt[3]}, 5, v{vt[2]}
    v_and_b32 v{vt[3]}, 3, v0
    v_lshl_add_u32 v{vt[2]}, v{vt[3]}, 3, v{vt[2]}
    s_mul_i32 s{sT0}, s{sKH}, 49152
    v_add_u32 v{vWa}, s{sT0}, v{vt[2]}
    s_mul_i32 s{sT0}, s{sW}, 6144
    s_add_u32 s{sT0}, s{sT0}, {EXB}
    v_add_u32 v{vEx}, s{sT0}, v{vQa}
    s_xor_b32 s{sT0}, s{sW}, 4
    s_mul_i32 s{sT0}, s{sT0}, 6144
    s_add_u32 s{sT0}, s{sT0}, {EXB}
    v_add_u32 v{vEr}, s{sT0}, v{vQa}
    s_lshl_b32 s{sWm}, s{sRT}, 15
    s_lshl_b32 s{sT0}, s{sKH}, 14
    s_add_u32 s{sWm}, s{sWm}, s{sT0}
    """)
    def areads(f):
        ks, ft = divmod(f, 3)
        off = ks * 3072 + ft * 1024
        a(f"ds_read_b64_tr_b16 {v(Af[f%8],2)}, v{vWa} offset:{off}")
        a(f"ds_read_b64_tr_b16 {v(Af[f%8]+2,2)}, v{vWa} offset:{off+256}")
    for f in range(5):
        areads(f)
    poll(0, 0xffff)
    stamp(a, 6)
    for i in range(16):
        a(f"""
        s_add_u32 s{sSo}, s{sMm}, {i}
        s_and_b32 s{sSo}, s{sSo}, 15
        s_lshl_b32 s{sSo}, s{sSo}, 10
        s_add_u32 s{sSo}, s{sSo}, s{sWm}
        buffer_load_dwordx4 {v(Bf[i],4)}, v{vQa}, {s(SHN,4)}, s{sSo} offen {LDF}
        """)
    for f in range(48):
        ks, ft = divmod(f, 3)
        later = min(4, 47 - f)
        w = f"lgkmcnt({2*later})"
        if ft == 0:
            w = f"vmcnt({15 - ks + 2*min(5, max(0, ks - 6))}) " + w
        a(f"s_waitcnt {w}")
        a(f"v_mfma_f32_32x32x16_bf16 {v(acc1[ft],16)}, {v(Af[f%8],4)}, {v(Bf[ks],4)}, {v(acc1[ft],16)}")
        if f + 5 < 48:
            areads(f + 5)
        if ft == 2 and 6 <= ks < 11:
            a(ldW2(ks))
    stamp(a, 7)
    a(f"""
    s_mul_i32 s{sT0}, s{sRT}, 86
    s_lshl_b32 s{sT1}, s{sT0f}, 1
    s_add_u32 s{sT0}, s{sT0}, s{sT1}
    s_mul_i32 s{sT1}, s{sKH}, 3
    s_add_u32 s{sT0}, s{sT0}, s{sT1}
    s_lshl_b32 s{sT0}, s{sT0}, 10
    s_nop 7
    s_cmp_eq_u32 s{sKH}, 1
    s_cbranch_scc1 K2_EX1
    """)
    lo = [acc1[0], acc1[0] + 8, acc1[1]]
    hi = [acc1[1] + 8, acc1[2], acc1[2] + 8]
    RX = Kf
    def exchange(keep, send):
        for q in range(3):
            a(f"ds_write_b128 v{vEx}, {v(send[q],4)} offset:{q*2048}")
            a(f"ds_write_b128 v{vEx}, {v(send[q]+4,4)} offset:{q*2048+1024}")
        a("s_waitcnt lgkmcnt(0)")
        a("s_barrier")
        for q in range(6):
            a(f"ds_read_b128 {v(RX+4*q,4)}, v{vEr} offset:{q*1024}")
        for q in range(3):
            a(f"s_waitcnt lgkmcnt({4-2*q})")
            for i in range(4):
                a(f"v_pk_add_f32 {v(keep[q]+2*i,2)}, {v(keep[q]+2*i,2)}, {v(RX+8*q+2*i,2)}")
            for i in range(8):
                a(f"v_max_f32 v{keep[q]+i}, 0, v{keep[q]+i}")
            for i in range(4):
                a(f"v_pk_mul_f32 {v(keep[q]+2*i,2)}, {v(keep[q]+2*i,2)}, {v(keep[q]+2*i,2)}")
            for i in range(4):
                a(f"v_cvt_pk_bf16_f32 v{woA+4*q+i}, v{keep[q]+2*i}, v{keep[q]+2*i+1}")
            a(f"buffer_store_dwordx4 {v(woA+4*q,4)}, v{vQa}, {s(SG,4)}, s{sT0} offen offset:{q*1024} sc1")
    exchange(lo, hi)
    a("s_branch K2_EXJ")
    a("K2_EX1:")
    exchange(hi, lo)
    a("K2_EXJ:")
    stamp(a, 8)
    a(f"s_mov_b32 s{sRot}, s{sT0}")
    signal(128)
    if RELOAD:
        a(f"""
        s_cmp_lt_u32 s{sW}, 4
        s_cbranch_scc1 K2_NORL1
        s_sub_u32 s{sRot}, s{sRot}, 3072
        v_lshlrev_b32 v{vt[0]}, 7, v0
        s_mov_b32 exec_hi, 0xffff
        buffer_load_dword v{vt[1]}, v{vt[0]}, {s(SG,4)}, s{sRot} offen sc1
        s_mov_b64 exec, -1
        K2_NORL1:
        """)
    a("s_branch K2_FFN2")
    a("K2_SKIP1:")
    a(W2B)
    a("K2_FFN2:")
    poll_start(128)
    Gf = [Kf + 4*i for i in range(8)] + [Vf, Vf + 4] + [woA + 4*i for i in range(4)] + [T + 4*i for i in range(4)] + [OFr, OFr + 4]
    Gf += Gf[:2]
    acc2 = [O[0], O[1], hacc, zero]
    vG1 = vOa; vOo = vLa; vRw = vNr; vRr = vNl; vB2 = vNw
    sGo, sOo, sGend = sWm, sV1, sRot
    srd(a, SX, 18, 19, 0, 1024)
    srd(a, SHN, 10, 11, 0, 0x200000)
    a(f"""
    s_lshl_b32 s{sT0}, s{sG}, 1
    s_lshr_b32 s{sT1}, s{sMm}, 3
    s_add_u32 s{sT0}, s{sT0}, s{sT1}
    s_lshl_b32 s{sOo}, s{sT0}, 16
    s_mul_i32 s{sGo}, s{sT0}, {2*86*1024}
    s_add_u32 s{sGend}, s{sGo}, {86*1024}
    s_lshl_b32 s{sT1}, s{sW}, 10
    s_add_u32 s{sGo}, s{sGo}, s{sT1}
    v_add_u32 v{vG1}, {86*1024}, v{vQa}
    v_and_b32 v{vt[2]}, 31, v0
    v_mul_u32_u24 v{vt[2]}, 272, v{vt[2]}
    v_lshrrev_b32 v{vt[3]}, 5, v0
    v_lshl_add_u32 v{vt[2]}, v{vt[3]}, 4, v{vt[2]}
    s_mul_i32 s{sT0}, s{sW}, {RSTR}
    v_add_u32 v{vRw}, s{sT0}, v{vt[2]}
    v_lshrrev_b32 v{vt[2]}, 3, v0
    s_lshl_b32 s{sT0}, s{sW}, 3
    v_add_u32 v{vt[2]}, s{sT0}, v{vt[2]}
    v_and_b32 v{vt[3]}, 7, v0
    v_mul_u32_u24 v{vRr}, 272, v{vt[2]}
    v_lshl_add_u32 v{vRr}, v{vt[3]}, 5, v{vRr}
    s_lshl_b32 s{sT0}, s{sCB2}, 7
    v_lshlrev_b32 v{vB2}, 4, v{vt[3]}
    v_add_u32 v{vB2}, s{sT0}, v{vB2}
    v_lshl_add_u32 v{vOo}, v{vt[2]}, 10, v{vB2}
    """)
    poll(128, 0x7fff)
    stamp(a, 9)
    def ldG(i):
        a(f"""
        s_add_u32 s{sSo}, s{sCB2}, {i}
        s_sub_u32 s{sT1}, s{sSo}, 11
        s_cselect_b32 s{sSo}, s{sSo}, s{sT1}
        s_lshl_b32 s{sSo}, s{sSo}, 13
        s_add_u32 s{sSo}, s{sSo}, s{sGo}
        s_cmp_ge_u32 s{sSo}, s{sGend}
        s_cselect_b32 s{sSo}, 0x1000000, s{sSo}
        """)
        a(f"buffer_load_dwordx4 {v(Gf[2*i],4)}, v{vQa}, {s(SG,4)}, s{sSo} offen {LDF}")
        a(f"buffer_load_dwordx4 {v(Gf[2*i+1],4)}, v{vG1}, {s(SG,4)}, s{sSo} offen {LDF}")
    for i in range(10):
        ldG(i)
    for i in range(11):
        a(f"s_waitcnt vmcnt({18 if i == 0 else 2*(10-i)})")
        for ct in range(2):
            for rt in range(2):
                d = acc2[2*ct + rt]
                a(f"v_mfma_f32_32x32x16_bf16 {v(d,16)}, {v(W2R+8*i+4*ct,4)}, {v(Gf[2*i+rt],4)}, {'0' if i == 0 else v(d,16)}")
        if i == 0:
            ldG(10)
    stamp(a, 10)
    HR = woA; B2 = woA + 4
    a(f"""
    buffer_load_dwordx4 {v(HR,4)}, v{vOo}, {s(SQ,4)}, s{sOo} offen sc1
    buffer_load_dwordx4 {v(B2,4)}, v{vB2}, {s(SX,4)}, 0 offen
    v_add_u32 v{vt[2]}, {3*RSTR}, v{vRr}
    v_add_u32 v{vt[3]}, {6*RSTR}, v{vRr}
    s_nop 7
    """)
    for ct in range(2):
        for rt in range(2):
            for q in range(4):
                d = acc2[2*ct + rt] + 4*q
                a(f"ds_write_b128 v{vRw}, {v(d,4)} offset:{rt*32*272 + (32*ct + 8*q)*4}")
    a("s_waitcnt lgkmcnt(0)")
    a("s_barrier")
    stamp(a, 11)
    RR = W2R
    for w in range(8):
        base = (vRr, vt[2], vt[3])[w // 3]
        for q in range(2):
            a(f"ds_read_b128 {v(RR+8*w+4*q,4)}, v{base} offset:{(w % 3)*RSTR + 16*q}")
    a("s_waitcnt vmcnt(0)")
    for i in range(4):
        a(f"v_lshlrev_b32 v{T+2*i}, 16, v{HR+i}")
        a(f"v_and_b32 v{T+2*i+1}, 0xffff0000, v{HR+i}")
        a(f"v_lshlrev_b32 v{T+8+2*i}, 16, v{B2+i}")
        a(f"v_and_b32 v{T+8+2*i+1}, 0xffff0000, v{B2+i}")
    for i in range(4):
        a(f"v_pk_add_f32 {v(T+2*i,2)}, {v(T+2*i,2)}, {v(T+8+2*i,2)}")
    for w in range(0, 8, 2):
        a(f"s_waitcnt lgkmcnt({12 - 2*w})")
        for i in range(4):
            a(f"v_pk_add_f32 {v(RR+8*w+2*i,2)}, {v(RR+8*w+2*i,2)}, {v(RR+8*w+8+2*i,2)}")
        for i in range(4):
            a(f"v_pk_add_f32 {v(T+2*i,2)}, {v(T+2*i,2)}, {v(RR+8*w+2*i,2)}")
    for i in range(4):
        a(f"v_cvt_pk_bf16_f32 v{T+8+i}, v{T+2*i}, v{T+2*i+1}")
    a(f"buffer_store_dwordx4 {v(T+8,4)}, v{vOo}, {s(SHN,4)}, s{sOo} offen")
    stamp_dump(a, 1, sW)
    a("K2_END:")
    a("s_endpgm")
    a.c("slow path: true row maxima first")
    a("K2_SLOW:")
    MB = MISC + 1024
    a("s_setprio 0")
    for i in range(SLOW_V0, 16):
        a(ldV(i))
    a("s_nop 7\ns_nop 7")
    for o in O:
        a(f"v_mfma_f32_32x32x16_bf16 {v(o,16)}, {v(zero,4)}, {v(zero,4)}, 0")
    a(f"""
    v_and_b32 v{vt[0]}, 31, v0
    v_lshlrev_b32 v{vt[0]}, 2, v{vt[0]}
    v_add_u32 v{vt[0]}, {MB}, v{vt[0]}
    s_lshl_b32 s{sT0}, s{sW}, 7
    v_add_u32 v{vt[1]}, s{sT0}, v{vt[0]}
    v_mov_b32 v{vt[2]}, 0xff800000
    ds_write_b32 v{vt[1]}, v{vt[2]}
    s_waitcnt vmcnt(0) lgkmcnt(0)
    s_barrier
    v_mov_b32 v{vt[1]}, v{vt[0]}
    v_mov_b32 v{vt[3]}, v{vQl}
    s_mov_b32 s{sT0}, 0
    K2_P1:
    ds_read_b128 {v(Q,4)}, v{vt[3]}
    v_mov_b32 v{nrm}, 0xff800000
    s_waitcnt lgkmcnt(0)
    """)
    for j in range(8):
        a(f"v_mfma_f32_32x32x16_bf16 {v(S[0],16)}, {v(Kf+4*j,4)}, {v(Q,4)}, 0")
        a("s_nop 7\ns_nop 3")
        for i in range(8):
            a(f"v_max3_f32 v{nrm}, v{nrm}, v{S[0]+2*i}, v{S[0]+2*i+1}")
        a("s_nop 1")
    a(f"""
    ds_max_f32 v{vt[1]}, v{nrm}
    v_add_u32 v{vt[1]}, 128, v{vt[1]}
    v_add_u32 v{vt[3]}, 1024, v{vt[3]}
    s_add_u32 s{sT0}, s{sT0}, 1
    s_cmp_lt_u32 s{sT0}, 8
    s_cbranch_scc1 K2_P1
    ds_read_b128 {v(Q,4)}, v{vQl}
    s_waitcnt lgkmcnt(0)
    s_barrier
    """)
    mainloop(True)
    a("s_branch K2_TAIL")
    for r in retries:
        a(r)
    return name, R.cur, K2_LDS
```

```python
from asmlib import *
from common import *
import os

W1L = 0
QL = 98304
EXB = QL
OACC = QL + 8192
LACC = OACC + 16384
OFB = LACC + 1024
MISC = OFB + 1024
XL = MISC + 2048
B1L = EXB + 49152
K2_LDS = B1L + 256
RSTR = 17408
THR2 = (40.0 / 1.02) ** 2
PRIO = os.environ.get("PRIO", "2")
PD = int(os.environ.get("PD", "2"))
EXP = os.environ.get("EXP", "").split(",")
LDF = os.environ.get("LDF", "sc1").replace("_", " ").replace("none", "")
RELOAD = os.environ.get("RELOAD", "1") == "1"
SLOW_V0 = min(16, 2*PD + 10)

def gen_k2(a):
    name = "attn_kernel"
    kernel_header(a, name)
    R = Regs(1, 256)
    vt = [R.alloc(f"t{i}") for i in range(6)]
    vidx = R.alloc("idx")
    vQa = R.alloc("qa")
    vOa = R.alloc("oa"); vLa = R.alloc("la")
    vNr = R.alloc("nr"); vNl = R.alloc("nl"); vNw = R.alloc("nw")
    vOFa = R.alloc("ofa")
    vKo = R.alloc("ko"); vVo = R.alloc("vo"); vQl = R.alloc("ql"); vW1o = R.alloc("w1o")
    vP1r = R.alloc("p1r"); vP2r = R.alloc("p2r"); vPw = R.alloc("pw"); vPv = R.alloc("pv"); vCnt = R.alloc("cnt")
    zero = R.alloc("zero", 4)
    Q = R.alloc("q", 4)
    nrm = R.alloc("nrm", 8, 4)
    Kf = R.alloc("k", 32)
    Vf = R.alloc("v", 64)
    S = [R.alloc(f"s{i}", 16) for i in range(2)]
    O = [R.alloc(f"o{i}", 16) for i in range(2)]
    woA = R.alloc("woa", 16)
    T = R.alloc("T", 16)
    OFr = R.alloc("ofr", 8)
    hacc = R.alloc("hacc", 16)
    Qw = OFr
    vM = [vt[1], vt[2]]
    sW, sRB, sT0, sT1, sT2, sWm, sSo, sHalf = 20, 21, 22, 23, 44, 45, 46, 47
    sMaskLo, sV1, sV2 = 48, 50, 51
    sG, sMm, sT0f, sW1m, sV2x, sRot = 4, 5, 6, 7, 60, 61
    SQ, SKV, SWO, SX, SH, SHN, SP = 24, 28, 32, 36, 40, 52, 56
    a(f"""
    s_cmp_ge_u32 s2, 256
    s_cbranch_scc1 K2_END
    s_setprio 3
    s_load_dwordx2 s[16:17], s[0:1], 96
    s_load_dwordx2 s[8:9], s[0:1], 0
    s_load_dwordx4 s[12:15], s[0:1], 48
    s_load_dwordx2 s[18:19], s[0:1], 72
    s_load_dwordx2 s[10:11], s[0:1], 80
    v_lshrrev_b32 v{vt[0]}, 6, v0
    v_and_b32 v0, 63, v0
    v_readfirstlane_b32 s{sW}, v{vt[0]}
    v_lshlrev_b32 v{vQa}, 4, v0
    s_and_b32 s{sT0}, s2, 7
    s_lshr_b32 s{sT1}, s2, 3
    s_lshl_b32 s{sRB}, s{sT0}, 5
    s_add_u32 s{sRB}, s{sRB}, s{sT1}
    s_lshl_b32 s{sWm}, s{sW}, 13
    v_add_u32 v{vKo}, s{sWm}, v{vQa}
    v_lshrrev_b32 v{vt[3]}, 5, v0
    v_and_b32 v{vt[4]}, 31, v0
    v_lshlrev_b32 v{vt[2]}, 4, v{vt[4]}
    v_lshl_add_u32 v{vt[2]}, v{vt[3]}, 8, v{vt[2]}
    s_mul_i32 s{sT0}, s{sW}, {16*VSTR}
    s_add_u32 s{sT0}, s{sT0}, 0x10000
    v_and_b32 v{vt[1]}, 27, v0
    v_cmp_eq_u32 vcc, 16, v{vt[1]}
    v_mov_b32 v{vt[1]}, 0x40000000
    v_mov_b32 v{vt[5]}, 512
    v_cndmask_b32 v{vt[1]}, v{vt[1]}, v{vt[5]}, vcc
    v_cmp_gt_u32 vcc, 16, v{vt[4]}
    v_lshlrev_b32 v{vt[5]}, 3, v0
    s_nop 0
    v_cndmask_b32 v{vt[1]}, v{vt[1]}, v{vt[2]}, vcc
    v_add_u32 v{vVo}, s{sT0}, v{vt[1]}
    s_lshl_b32 s{sT1}, s{sRB}, 13
    s_lshl_b32 s{sT2}, s{sW}, 10
    s_add_u32 s{sT0}, s{sT1}, s{sT2}
    s_mov_b32 s{sSo}, 0x21000
    s_movk_i32 s{sT2}, 0x1000
    s_movk_i32 s{sV1}, {7*VSTR}
    s_movk_i32 s{sV2}, {14*VSTR}
    s_lshr_b32 s{sHalf}, s{sW}, 2
    """)
    stamp_init(a)
    a("s_waitcnt lgkmcnt(0)")
    srd(a, SQ, 16, 17, WS_Q, 0x200000)
    srd(a, SKV, 16, 17, WS_K, KV_BYTES)
    order = []
    def ldK(j):
        so = "0" if j < 4 else f"s{sT2}"
        order.append(f"K{j}")
        return f"buffer_load_dwordx4 {v(Kf+4*j,4)}, v{vKo}, {s(SKV,4)}, {so} offen offset:{(j&3)*1024}"
    def ldV(i):
        so = ("0", f"s{sV1}", f"s{sV2}")[i // 7]
        order.append(f"V{i}")
        return f"buffer_load_dwordx4 {v(Vf+4*i,4)}, v{vVo}, {s(SKV,4)}, {so} offen offset:{(i%7)*VSTR}"
    def ldW(t, ks, ct, dst):
        order.append(f"W{t}_{ks}_{ct}")
        pre = f"s_mov_b32 s{sSo}, {t*65536 + ks*4096}\n" if ct == 0 else ""
        return pre + f"buffer_load_dwordx4 {v(dst+4*ct,4)}, v{vKo}, {s(SWO,4)}, s{sSo} offen offset:{ct*1024}"
    def wait_for(item):
        return f"s_waitcnt vmcnt({len(order) - 1 - order.index(item)})"
    a(f"buffer_load_dwordx4 {v(Q,4)}, v{vQa}, {s(SQ,4)}, s{sT1} offen"); order.append("Q")
    a(ldK(0)); a(ldK(1)); a(ldV(0)); a(ldV(1)); a(ldK(2))
    a(f"buffer_load_dwordx4 {v(Qw,4)}, v{vQa}, {s(SQ,4)}, s{sT0} offen"); order.append("QW")
    a(f"buffer_load_dwordx2 {v(nrm,2)}, v{vt[5]}, {s(SKV,4)}, s{sSo} offen"); order.append("KM")
    for i in range(1, PD):
        a(ldV(2*i)); a(ldV(2*i + 1))
        if i + 2 < 8:
            a(ldK(i + 2))
    a("s_setprio 0")
    pro_order = list(order)
    srd(a, SWO, 16, 17, WS_WO, 524288)
    for i in range(4):
        a(f"v_mov_b32 v{zero+i}, 0")
    a(f"v_mov_b32 v{vidx}, 0xdddddddd")
    a("s_nop 0")
    for o in O:
        a(f"v_mfma_f32_32x32x16_bf16 {v(o,16)}, {v(zero,4)}, {v(zero,4)}, 0")
    a.c("LDS addresses")
    a(f"""
    s_lshl_b32 s{sT0}, s{sW}, 2
    s_add_u32 s{sT1}, s{sT0}, {MISC + 32}
    v_mov_b32 v{vPw}, s{sT1}
    ds_write2_b32 v{vPw}, v{zero}, v{zero} offset1:8
    s_add_u32 s{sT0}, s{sT0}, {LACC}
    v_lshlrev_b32 v{vLa}, 5, v{vt[4]}
    v_add_u32 v{vLa}, s{sT0}, v{vLa}
    s_lshl_b32 s{sT0}, s{sW}, 11
    s_add_u32 s{sT0}, s{sT0}, {OACC}
    v_add_u32 v{vOa}, s{sT0}, v{vQa}
    s_and_b32 s{sT1}, s{sW}, 3
    v_and_b32 v{vt[2]}, 7, v0
    v_lshlrev_b32 v{vP1r}, 2, v{vt[2]}
    v_add_u32 v{vP1r}, {MISC + 32}, v{vP1r}
    v_and_b32 v{vt[1]}, 3, v0
    v_lshlrev_b32 v{vP2r}, 2, v{vt[1]}
    v_add_u32 v{vP2r}, {MISC + 64}, v{vP2r}
    v_bfe_u32 v{vt[1]}, v0, 4, 1
    v_bfe_u32 v{vt[4]}, v0, 3, 1
    v_lshlrev_b32 v{vNr}, 4, v{vt[2]}
    v_lshl_add_u32 v{vNw}, v{vt[3]}, 7, v{vNr}
    v_lshl_add_u32 v{vNr}, v{vt[3]}, 10, v{vNr}
    v_lshl_add_u32 v{vNr}, v{vt[1]}, 9, v{vNr}
    v_lshl_add_u32 v{vNr}, v{vt[4]}, 3, v{vNr}
    s_lshl_b32 s{sT0}, s{sT1}, 7
    s_add_u32 s{sT0}, s{sT0}, {OACC}
    v_add_u32 v{vNr}, s{sT0}, v{vNr}
    s_lshl_b32 s{sT0}, s{sT1}, 8
    s_add_u32 s{sSo}, s{sT0}, {LACC}
    v_lshlrev_b32 v{vNl}, 5, v{vt[2]}
    v_add_u32 v{vNl}, s{sSo}, v{vNl}
    v_bfe_u32 v{vt[3]}, v0, 3, 2
    v_lshl_add_u32 v{vNw}, v{vt[3]}, 2, v{vNw}
    s_add_u32 s{sSo}, s{sT0}, {OFB}
    v_add_u32 v{vNw}, s{sSo}, v{vNw}
    v_lshrrev_b32 v{vt[3]}, 4, v0
    v_lshlrev_b32 v{vt[2]}, 4, v{vt[2]}
    v_lshl_add_u32 v{vOFa}, v{vt[3]}, 7, v{vt[2]}
    v_add_u32 v{vOFa}, {OFB}, v{vOFa}
    """)
    srd(a, SX, 8, 9, 0, 0x200000)
    srd(a, SHN, 16, 17, WS_HN, 0x200000)
    srd(a, SP, 12, 13, 0, 1409024)
    srd(a, SH, 16, 17, WS_W2, W2F_BYTES)
    a(f"""
    s_lshr_b32 s{sT0}, s2, 3
    s_mul_i32 s{sT1}, s{sT0}, 44032
    s_add_u32 s{sT1}, s{sT1}, s{sWm}
    v_lshlrev_b32 v{vt[5]}, 7, v0
    s_lshl_b32 s{sMaskLo}, s{sT0}, 14
    s_and_b32 s{sT0}, s{sWm}, 0x2000
    s_add_u32 s{sMaskLo}, s{sMaskLo}, s{sT0}
    s_mov_b32 s{sMaskLo+1}, s{sT1}
    s_lshr_b32 s{sT0}, s2, 3
    s_mul_i32 s{sV2x}, s{sT0}, 45056
    s_add_u32 s{sV2x}, s{sV2x}, s{sWm}
    s_lshr_b32 s{sG}, s{sRB}, 4
    s_and_b32 s{sMm}, s{sRB}, 15
    s_mul_i32 s{sT0f}, s{sMm}, 3
    s_min_u32 s{sT0f}, s{sT0f}, 40
    v_add_u32 v{vQl}, {QL}, v{vQa}
    v_lshrrev_b32 v{vt[3]}, 2, v0
    v_mul_u32_u24 v{vt[3]}, 2752, v{vt[3]}
    v_and_b32 v{vt[4]}, 3, v0
    v_lshl_add_u32 v{vt[3]}, v{vt[4]}, 4, v{vt[3]}
    s_lshl_b32 s{sT0}, s{sT0f}, 6
    s_mul_i32 s{sT1}, s{sHalf}, {16*44032}
    s_add_u32 s{sT0}, s{sT0}, s{sT1}
    v_add_u32 v{vW1o}, s{sT0}, v{vt[3]}
    s_lshl_b32 s{sRot}, s{sW}, 2
    s_add_u32 s{sRot}, s{sRot}, s{sMm}
    s_mul_i32 s{sW1m}, s{sW}, {4*3072}
    """)
    stamp(a, 1)
    def bound_check():
        n = nrm
        P = []
        P.append(lambda: f"s_lshl_b32 s{sT0}, s{sW}, 10\nv_add_u32 v{vt[0]}, s{sT0}, v{vQl}\nv_mov_b32 v{n+2}, 0\n{wait_for('KM')}\nds_write_b128 v{vt[0]}, {v(Qw,4)}")
        P.append("\n".join(f"v_dot2c_f32_bf16 v{n+2}, v{Qw+i}, v{Qw+i}" for i in range(4)) + f"\nv_max_f32 v{n}, v{n}, v{n+1}\ns_nop 0")
        P.append(f"v_max_f32_dpp v{n}, v{n}, v{n} row_ror:8 row_mask:0xf bank_mask:0xf\nv_mov_b32 v{n+3}, v{n+2}")
        P.append(f"v_max_f32_dpp v{n}, v{n}, v{n} row_ror:4 row_mask:0xf bank_mask:0xf\nv_permlane32_swap_b32 v{n+2}, v{n+3}")
        P.append(f"v_max_f32_dpp v{n}, v{n}, v{n} row_ror:2 row_mask:0xf bank_mask:0xf\nv_add_f32 v{n+2}, v{n+2}, v{n+3}")
        P.append(f"v_max_f32_dpp v{n}, v{n}, v{n} row_ror:1 row_mask:0xf bank_mask:0xf\nv_mov_b32 v{n+1}, v{n}\ns_nop 0")
        P.append(f"v_permlane32_swap_b32 v{n}, v{n+1}\nv_max_f32 v{n}, v{n}, v{n+1}\nv_mov_b32 v{n+1}, v{n}\ns_nop 0")
        P.append(f"v_permlane16_swap_b32 v{n}, v{n+1}\nv_max_f32 v{n}, v{n}, v{n+1}\nv_mul_f32 v{n}, v{n}, v{n+2}\nv_mov_b32 v{n+1}, {hex(f32bits(THR2))}\n"
                 f"v_cmp_nle_f32 vcc, v{n}, v{n+1}\ns_lshl_b32 s{sT0}, s{sW}, 2\ns_add_u32 s{sT0}, s{sT0}, {MISC}")
        P.append(f"s_cmp_lg_u64 vcc, 0\ns_cselect_b32 s{sT1}, 1, 0\nv_mov_b32 v{vt[0]}, s{sT0}\nv_mov_b32 v{vt[1]}, s{sT1}\nds_write_b32 v{vt[0]}, v{vt[1]}\nv_mov_b32 v{vt[0]}, {MISC}")
        return P
    flag_reads = f"ds_read_b128 {v(nrm,4)}, v{vt[0]}\nds_read_b128 {v(nrm+4,4)}, v{vt[0]} offset:16"
    flag_test = (f"s_waitcnt lgkmcnt(0)\nv_or3_b32 v{nrm}, v{nrm}, v{nrm+1}, v{nrm+2}\nv_or3_b32 v{nrm+3}, v{nrm+3}, v{nrm+4}, v{nrm+5}\n"
                 f"v_or3_b32 v{nrm}, v{nrm}, v{nrm+6}, v{nrm+7}\nv_or_b32 v{nrm}, v{nrm}, v{nrm+3}\ns_nop 0\n"
                 f"v_readfirstlane_b32 s{sT0}, v{nrm}\ns_cmp_lg_u32 s{sT0}, 0\ns_cbranch_scc1 K2_SLOW")

    def smf(tau):
        t, j = divmod(tau, 8)
        return f"v_mfma_f32_32x32x16_bf16 {v(S[tau&1],16)}, {v(Kf+4*j,4)}, {v(Q,4)}, 0"
    def pv(tau, h):
        t, j = divmod(tau, 8)
        return f"v_smfmac_f32_32x32x32_bf16 {v(O[t&1],16)}, {v(Vf+8*j+4*h,4)}, {v(S[tau&1]+8*h,8)}, v{vidx}"
    def drain(t):
        o = O[t & 1]
        return [f"ds_write_b128 v{vOa}, {v(o,4)}", f"ds_write_b128 v{vOa}, {v(o+4,4)} offset:1024", f"ds_write_b32 v{vLa}, v{o+8}"]
    retries = []
    def check(areg, off, val, lab):
        retries.append(f"K2_R{lab}:\nds_read_b32 v{vPv}, v{areg} offset:{off}\ns_waitcnt lgkmcnt(0)\nv_cmp_gt_u32 vcc, {val}, v{vPv}\n"
                       f"s_cbranch_vccnz K2_R{lab}\ns_branch K2_C{lab}")
        return f"s_waitcnt lgkmcnt(0)\nv_cmp_gt_u32 vcc, {val}, v{vPv}\ns_cbranch_vccnz K2_R{lab}\nK2_C{lab}:\n"
    def norm_reads():
        L = f"ds_read_b128 {v(nrm,4)}, v{vNl}\nds_read_b128 {v(nrm+4,4)}, v{vNl} offset:16\n"
        for w in range(8):
            L += f"ds_read_b64 {v(T+2*w,2)}, v{vNr} offset:{w*2048}\n"
        return L
    def norm_comp():
        L = f"s_waitcnt lgkmcnt(0)\n"
        L += f"v_pk_add_f32 {v(nrm,2)}, {v(nrm,2)}, {v(nrm+2,2)}\n"
        L += f"v_pk_add_f32 {v(nrm+4,2)}, {v(nrm+4,2)}, {v(nrm+6,2)}\n"
        for w in range(4):
            L += f"v_pk_add_f32 {v(T+4*w,2)}, {v(T+4*w,2)}, {v(T+4*w+2,2)}\n"
        L += f"v_pk_add_f32 {v(nrm,2)}, {v(nrm,2)}, {v(nrm+4,2)}\n"
        L += f"v_pk_add_f32 {v(T,2)}, {v(T,2)}, {v(T+4,2)}\n"
        L += f"v_add_f32 v{nrm}, v{nrm}, v{nrm+1}\n"
        L += f"v_pk_add_f32 {v(T+8,2)}, {v(T+8,2)}, {v(T+12,2)}\n"
        L += f"v_rcp_f32 v{nrm}, v{nrm}\n"
        L += f"v_pk_add_f32 {v(T,2)}, {v(T,2)}, {v(T+8,2)}\n"
        L += f"v_pk_mul_f32 {v(T,2)}, {v(T,2)}, {v(nrm,2)} op_sel_hi:[1,0]\n"
        L += f"v_cvt_pk_bf16_f32 v{T}, v{T}, v{T+1}\n"
        L += f"ds_write_b32 v{vNw}, v{T}\n"
        return L
    def only_half(t, lab, body):
        return f"s_cmp_lg_u32 s{sHalf}, {t&1}\ns_cbranch_scc1 K2_N{lab}\n{body}K2_N{lab}:\n"
    def of_reads():
        return "\n".join(f"ds_read_b128 {v(OFr+4*ks,4)}, v{vOFa} offset:{ks*512}" for ks in range(2))
    def wo_mfma(ks, ct, src, first=False):
        return f"v_mfma_f32_16x16x32_bf16 {v(hacc+4*ct,4)}, {v(src+4*ct,4)}, {v(OFr+4*ks,4)}, {'0' if first else v(hacc+4*ct,4)}"
    W7 = [Kf, Kf + 16]
    W2R = Vf + 8
    assert S[0] == Vf + 64 and S[1] == S[0] + 16 and Q == zero + 4 and nrm == Q + 4
    X = Vf

    sCB2, sW2o, sB3 = sV2, sV2x, 48
    def ldW2(i):
        L = (f"s_add_u32 s{sSo}, s{sCB2}, {i}\ns_sub_u32 s{sT1}, s{sSo}, 11\ns_cselect_b32 s{sSo}, s{sSo}, s{sT1}\n"
             f"s_lshl_b32 s{sSo}, s{sSo}, 11\ns_add_u32 s{sSo}, s{sSo}, s{sW2o}\n")
        for ct in range(2):
            L += f"buffer_load_dwordx4 {v(W2R+8*i+4*ct,4)}, v{vQa}, {s(SH,4)}, s{sSo} offen offset:{ct*1024}\n"
        return L

    def mainloop(slow):
        tag = "S" if slow else "F"
        order[:] = [] if slow else list(pro_order)
        if slow:
            a(f"ds_read_b32 v{vM[0]}, v{vt[0]}")
            a("s_waitcnt lgkmcnt(0)")
        else:
            a(wait_for("K0"))
            stamp(a, 2)
        a(smf(0))
        a("s_nop 7")
        a("s_nop 3")
        for tau in range(64):
            t, j = divmod(tau, 8)
            slots = [[] for _ in range(17)]
            p1 = 11
            if PRIO == "1" and (j & 1) == 0:
                slots[0].append(f"s_setprio {3 - j // 2}")
            if PRIO == "2":
                slots[0].append(f"s_setprio {3 - (j & 3)}")
            if tau > 0:
                slots[2].append(pv(tau - 1, 1))
            if t == 0 and not slow:
                if j + PD < 8:
                    slots[0].append(lambda j=j: ldV(2*(j + PD)))
                    slots[4].append(lambda j=j: ldV(2*(j + PD) + 1))
                if j + PD + 2 < 8:
                    slots[8].append(lambda j=j: ldK(j + PD + 2))
                if j == 2:
                    for i, x in enumerate(bound_check()):
                        slots[3 + i].append(x)
                if j == 4:
                    slots[0] += ["s_waitcnt lgkmcnt(0)", "s_barrier", flag_reads]
                    slots[5].append(flag_test)
                if j == 6:
                    slots[13].append(f"s_cmp_lt_u32 s{sW}, 6\ns_cbranch_scc1 K2_PW\nbuffer_load_dword v{vt[3]}, v{vt[5]}, {s(SWO,4)}, s{sMaskLo} offen\nK2_PW:")
            nx = tau + 1
            if nx < 64:
                if t == 0 and nx < 8 and not slow:
                    slots[6].append(lambda nx=nx: wait_for(f"K{nx}"))
                if nx % 8 == 0:
                    slots[6].append("s_waitcnt lgkmcnt(0)")
                slots[6].append(smf(nx))
                if nx % 8 == 7 and t < 7:
                    slots[10].append(f"ds_read_b128 {v(Q,4)}, v{vQl} offset:{(t+1)*1024}")
                    if slow:
                        slots[10].append(f"ds_read_b32 v{vM[(t+1)&1]}, v{vt[0]} offset:{(t+1)*128}")
            if 10 <= tau < 22 and tau % 2 == 0:
                slots[13].append(f"s_cmp_lg_u32 s{sW}, {(tau-10)//2}\ns_cbranch_scc1 K2_PA{tag}{tau}\nbuffer_load_dword v{vt[3]}, v{vt[5]}, {s(SP,4)}, s{sMaskLo+1} offen\nK2_PA{tag}{tau}:")
            if 22 <= tau < 34 and tau % 2 == 0:
                slots[13].append(f"s_cmp_lg_u32 s{sW}, {(tau-22)//2}\ns_cbranch_scc1 K2_PB{tag}{tau}\nbuffer_load_dword v{vt[4]}, v{vt[5]}, {s(SH,4)}, s{sV2x} offen\nK2_PB{tag}{tau}:")
            if 36 <= tau < 60 and tau % 2 == 0:
                n = (tau - 36) // 2
                kb, ft = divmod(n, 3)
                slots[4].append(lambda kb=kb, ft=ft: (order.append("W1"), f"s_add_u32 s{sT0}, s{sRot}, {kb}\ns_and_b32 s{sT0}, s{sT0}, 15\ns_mul_i32 s{sT0}, s{sT0}, 44032\ns_add_u32 m0, s{sW1m}, {kb*3072 + ft*1024 - ft*64}\ns_nop 0\n"
                    f"buffer_load_dwordx4 v{vW1o}, {s(SP,4)}, s{sT0} offen offset:{ft*64} lds")[1])
            if t >= 1:
                u = t - 1
                if j == 1:
                    slots[0].append(f"v_mov_b32 v{vCnt}, {t}")
                    for i, x in enumerate(drain(u)):
                        slots[1 + 2*i].append(x)
                    slots[7].append(f"ds_write_b32 v{vPw}, v{vCnt}")
                if j == 2:
                    slots[13].append("s_waitcnt lgkmcnt(0)")
                if j == 3:
                    slots[0].append(f"ds_read_b32 v{vPv}, v{vP1r}")
                    slots[7].append(only_half(u, f"A{tag}{t}", check(vP1r, 0, t, f"A{tag}{t}") + norm_reads()))
                    slots[9] += [f"v_mfma_f32_32x32x16_bf16 {v(O[u&1],16)}, {v(zero,4)}, {v(zero,4)}, 0"]
                    p1 = 12
                    for ct in range(4):
                        slots[(1, 4, 13, 15)[ct]].append(lambda u=u, ct=ct: ldW(u, 0, ct, woA))
                if j == 4:
                    slots[3].append(only_half(u, f"B{tag}{t}", norm_comp() + f"ds_write_b32 v{vPw}, v{vCnt} offset:32\n"))
                if j == 5:
                    for ct in range(4):
                        slots[(1, 7, 9, 13)[ct]].append(lambda u=u, ct=ct: ldW(u, 1, ct, T))
                if j == 6:
                    slots[1].append(f"ds_read_b32 v{vPv}, v{vP2r} offset:{16*(u&1)}")
                    slots[8].append(check(vP2r, 16*(u&1), t, f"D{tag}{t}") + of_reads())
                    slots[15] += ["s_waitcnt lgkmcnt(0)", lambda u=u: wait_for(f"W{u}_0_3"), wo_mfma(0, 0, woA, u == 0)]
                if j == 7:
                    slots[9].append(wo_mfma(0, 1, woA, u == 0)); slots[15].append(wo_mfma(0, 2, woA, u == 0))
            if t >= 2:
                u = t - 2
                if j == 0:
                    slots[9].append(wo_mfma(0, 3, woA, u == 0))
                    slots[15] += [lambda u=u: wait_for(f"W{u}_1_3"), wo_mfma(1, 0, T)]
                if j == 1:
                    slots[9].append(wo_mfma(1, 1, T)); slots[15].append(wo_mfma(1, 2, T))
                if j == 2:
                    slots[9].append(wo_mfma(1, 3, T))
            if tau == 11:
                slots[4].append(f"s_cmp_lg_u32 s{sW}, 7\ns_cbranch_scc1 K2_B1{tag}\ns_add_u32 s{SQ}, s14, 0\ns_addc_u32 s{SQ+1}, s15, 0\ns_movk_i32 s{SQ+2}, 2752\n"
                    f"s_lshl_b32 s{sT0}, s{sT0f}, 6\nv_lshlrev_b32 v{vt[3]}, 2, v0\ns_mov_b32 m0, {B1L}\ns_nop 0\nbuffer_load_dword v{vt[3]}, {s(SQ,4)}, s{sT0} offen lds\nK2_B1{tag}:")
            if tau == 9:
                slots[4].append(lambda: (order.append("X"), f"s_lshl_b32 s{sT0}, s{sRB}, 13\ns_lshl_b32 s{sT1}, s{sW}, 10\ns_add_u32 s{sT0}, s{sT0}, s{sT1}\n"
                    f"s_mul_i32 s{sT1}, s{sW}, 1040\ns_add_u32 m0, s{sT1}, {XL}\ns_nop 0\nbuffer_load_dwordx4 v{vQa}, {s(SX,4)}, s{sT0} offen lds")[1])
            if tau == 58:
                slots[1].append(f"s_and_b32 s{sCB2}, s{sMm}, 7\ns_lshl_b32 s{sW2o}, s{sCB2}, 3\ns_add_u32 s{sW2o}, s{sW2o}, s{sW}\ns_mul_i32 s{sW2o}, s{sW2o}, {11*2048}")
            if tau >= 59:
                slots[16].append(lambda i=tau-59: (order.extend(["W2", "W2"]), ldW2(i))[1])
            if tau in (60, 63):
                for ct in range(4):
                    slots[(1, 3, 9, 13)[ct]].append(lambda ct=ct, ks=(tau-60)//3: ldW(7, ks, ct, W7[ks]))
            if t == 0 and not slow:
                slots[p1].append(lambda j=j: wait_for(f"V{2*j+1}"))
            slots[p1].append(pv(tau, 0))
            if not slow and sum(len(x) for x in slots[7:]) < 2:
                slots[14].append("s_nop 0")
            for i in range(17):
                for x in slots[i]:
                    x = x() if callable(x) else x
                    if "NOWL" in EXP and f"{s(SWO,4)}" in x: continue
                    if "NOPF" in EXP and ("K2_PA" in x or "K2_PB" in x): continue
                    if "NOWO" in EXP and "16x16x32" in x: continue
                    if "NONORM" in EXP and "K2_N" in x: continue
                    if "NOCHK" in EXP and "K2_R" in x and "K2_N" not in x: x = of_reads()
                    a(x)
                if i < 16:
                    r = S[tau & 1] + i
                    if slow:
                        a(f"v_sub_f32 v{r}, v{r}, v{vM[t&1]}")
                    a(f"v_exp_f32 v{r}, v{r}")
        a("s_nop 1")
        a(pv(63, 1))
    mainloop(False)
    a("K2_TAIL:")
    stamp(a, 3)
    a("s_setprio 0")
    a(ldW2(5) + ldW2(6))
    a(wo_mfma(0, 3, woA))
    for x in drain(7):
        a(x)
    a(f"s_waitcnt vmcnt({len(order) - 1 - order.index('W6_1_3') + 4})")
    for ct in range(4):
        a(wo_mfma(1, ct, T))
    a(f"""
    v_and_b32 v{vt[0]}, 7, v0
    v_lshrrev_b32 v{vt[1]}, 4, v0
    v_bfe_u32 v{vt[3]}, v0, 3, 1
    v_lshlrev_b32 v{vVo}, 10, v{vt[0]}
    v_lshl_add_u32 v{vVo}, v{vt[3]}, 6, v{vVo}
    s_lshl_b32 s{sV1}, s{sRB}, 13
    s_lshl_b32 s{sT1}, s{sW}, 7
    s_add_u32 s{sV1}, s{sV1}, s{sT1}
    s_add_u32 s{sT1}, s{sT1}, {XL}
    v_lshl_add_u32 v{vt[2]}, v{vt[0]}, 4, v{vVo}
    v_lshl_add_u32 v{vt[2]}, v{vt[1]}, 3, v{vt[2]}
    v_add_u32 v{vt[2]}, s{sT1}, v{vt[2]}
    v_bfe_u32 v{vt[1]}, v0, 4, 1
    v_lshl_add_u32 v{vVo}, v{vt[1]}, 5, v{vVo}
    v_lshrrev_b32 v{vt[4]}, 5, v0
    v_lshl_add_u32 v{vVo}, v{vt[4]}, 4, v{vVo}
    s_waitcnt lgkmcnt(0)
    s_barrier
    """)
    for c in range(2):
        a(f"ds_read_b64 {v(X+2*c,2)}, v{vt[2]} offset:{32*c}")
    a(only_half(7, "T", norm_reads() + norm_comp()))
    H = O[0]; XU = O[0] + 8; PK = O[1]; ST = woA; U = T
    srd(a, SQ, 16, 17, WS_H, 0x200000)
    a(f"""
    s_mov_b32 s{sB3}, 0xff00ff00
    s_mov_b32 s{sB3+1}, 0xff00ff00
    s_waitcnt lgkmcnt(0)
    """)
    for i in range(4):
        a(f"v_lshlrev_b32 v{XU+2*i}, 16, v{X+i}")
        a(f"v_and_b32 v{XU+2*i+1}, 0xffff0000, v{X+i}")
    a(ldW2(7) + ldW2(8))
    a("s_barrier")
    a(of_reads())
    a(f"s_waitcnt vmcnt({len(order) - 1 - order.index('W7_1_3') + 8}) lgkmcnt(1)")
    for ct in range(4):
        a(wo_mfma(0, ct, W7[0]))
    a("s_waitcnt lgkmcnt(0)")
    for ct in (0, 2, 1, 3):
        a(wo_mfma(1, ct, W7[1]))
    stamp(a, 4)
    a(ldW2(9) + ldW2(10))
    a.c("h = x + attn ; lanes with bit 3 set take column tiles 2,3")
    for i in range(8):
        a(f"v_cndmask_b32 v{H+i}, v{hacc+i}, v{hacc+8+i}, {s(sB3,2)}")
    for i in range(4):
        a(f"v_pk_add_f32 {v(H+2*i,2)}, {v(H+2*i,2)}, {v(XU+2*i,2)}")
    def xreduce(r, tmp):
        a(f"""
        v_mov_b32 v{tmp}, v{r}
        s_nop 1
        v_permlane32_swap_b32 v{r}, v{tmp}
        v_add_f32 v{r}, v{r}, v{tmp}
        v_mov_b32 v{tmp}, v{r}
        s_nop 1
        v_permlane16_swap_b32 v{r}, v{tmp}
        v_add_f32 v{r}, v{r}, v{tmp}
        s_nop 1
        v_add_f32_dpp v{r}, v{r}, v{r} row_ror:8 row_mask:0xf bank_mask:0xf
        """)
    a(f"""
    v_pk_add_f32 {v(U,2)}, {v(H,2)}, {v(H+2,2)}
    v_pk_add_f32 {v(U+2,2)}, {v(H+4,2)}, {v(H+6,2)}
    v_pk_add_f32 {v(U,2)}, {v(U,2)}, {v(U+2,2)}
    v_add_f32 v{U}, v{U}, v{U+1}
    """)
    xreduce(U, U+2)
    a(f"v_mul_f32 v{U}, {hex(f32bits(1.0/64))}, v{U}")
    for i in range(4):
        a(f"v_pk_add_f32 {v(XU+2*i,2)}, {v(H+2*i,2)}, {v(U,2)} op_sel_hi:[1,0] neg_lo:[0,1] neg_hi:[0,1]")
    a(f"""
    v_pk_mul_f32 {v(U+2,2)}, {v(XU,2)}, {v(XU,2)}
    v_pk_mul_f32 {v(U+4,2)}, {v(XU+2,2)}, {v(XU+2,2)}
    v_pk_fma_f32 {v(U+2,2)}, {v(XU+4,2)}, {v(XU+4,2)}, {v(U+2,2)}
    v_pk_fma_f32 {v(U+4,2)}, {v(XU+6,2)}, {v(XU+6,2)}, {v(U+4,2)}
    v_pk_add_f32 {v(U+2,2)}, {v(U+2,2)}, {v(U+4,2)}
    v_add_f32 v{U+1}, v{U+2}, v{U+3}
    """)
    xreduce(U+1, U+2)
    a(f"""
    s_lshl_b32 s{sT1}, s{sW}, 3
    s_add_u32 s{sT1}, s{sT1}, {MISC + 128}
    v_lshlrev_b32 v{vt[5]}, 6, v{vt[0]}
    v_add_u32 v{vt[4]}, s{sT1}, v{vt[5]}
    v_add_u32 v{vt[5]}, {MISC + 128}, v{vt[5]}
    ds_write_b64 v{vt[4]}, {v(U,2)}
    """)
    for i in range(4):
        a(f"v_cvt_pk_bf16_f32 v{PK+i}, v{H+2*i}, v{H+2*i+1}")
    a("s_waitcnt lgkmcnt(0)")
    a("s_barrier")
    for i in range(4):
        a(f"ds_read_b128 {v(ST+4*i,4)}, v{vt[5]} offset:{16*i}")
    a(f"""
    v_permlane16_swap_b32 v{PK}, v{PK+2}
    v_permlane16_swap_b32 v{PK+1}, v{PK+3}
    buffer_store_dwordx4 {v(PK,4)}, v{vVo}, {s(SQ,4)}, s{sV1} offen sc1
    """)
    a(f"""
    s_lshr_b32 s{sT0}, s{sRB}, 2
    s_lshl_b32 s{sT0}, s{sT0}, 15
    s_lshl_b32 s{sT1}, s{sW}, 12
    s_add_u32 s{sT0}, s{sT0}, s{sT1}
    s_and_b32 s{sT1}, s{sRB}, 3
    s_lshl_b32 s{sT1}, s{sT1}, 7
    s_add_u32 s{sT0}, s{sT0}, s{sT1}
    v_lshlrev_b32 v{vt[4]}, 4, v{vt[0]}
    v_lshl_add_u32 v{vt[4]}, v{vt[3]}, 11, v{vt[4]}
    v_lshrrev_b32 v{vt[0]}, 5, v0
    v_lshl_add_u32 v{vt[4]}, v{vt[0]}, 9, v{vt[4]}
    v_lshl_add_u32 v{vt[4]}, v{vt[1]}, 10, v{vt[4]}
    s_waitcnt lgkmcnt(0)
    v_pk_add_f32 {v(U+2,2)}, {v(ST,2)}, {v(ST+2,2)}
    v_pk_add_f32 {v(U+4,2)}, {v(ST+4,2)}, {v(ST+6,2)}
    v_pk_add_f32 {v(U+6,2)}, {v(ST+8,2)}, {v(ST+10,2)}
    v_pk_add_f32 {v(U+8,2)}, {v(ST+12,2)}, {v(ST+14,2)}
    v_pk_add_f32 {v(U+2,2)}, {v(U+2,2)}, {v(U+4,2)}
    v_pk_add_f32 {v(U+6,2)}, {v(U+6,2)}, {v(U+8,2)}
    v_pk_add_f32 {v(U+2,2)}, {v(U+2,2)}, {v(U+6,2)}
    v_mul_f32 v{U+2}, 0x3e000000, v{U+2}
    """)
    for i in range(8):
        a(f"v_sub_f32 v{ST+2*i}, v{ST+2*i}, v{U+2}")
    a(f"v_mul_f32 v{U+4}, v{ST}, v{ST}")
    a(f"v_mul_f32 v{U+5}, v{ST+2}, v{ST+2}")
    for i in range(2, 8):
        a(f"v_fmac_f32 v{U+4+(i&1)}, v{ST+2*i}, v{ST+2*i}")
    a(f"""
    v_add_f32 v{U+4}, v{U+4}, v{U+5}
    v_fmac_f32 v{U+3}, 0x42800000, v{U+4}
    v_mov_b32 v{U+6}, {hex(f32bits(1e-5))}
    v_fmac_f32 v{U+6}, {hex(f32bits(1.0/512))}, v{U+3}
    v_rsq_f32 v{U+6}, v{U+6}
    """)
    for i in range(4):
        a(f"v_pk_add_f32 {v(H+2*i,2)}, {v(H+2*i,2)}, {v(U+2,2)} op_sel_hi:[1,0] neg_lo:[0,1] neg_hi:[0,1]")
    for i in range(4):
        a(f"v_pk_mul_f32 {v(H+2*i,2)}, {v(H+2*i,2)}, {v(U+6,2)} op_sel_hi:[1,0]")
    for i in range(4):
        a(f"v_cvt_pk_bf16_f32 v{PK+4+i}, v{H+2*i}, v{H+2*i+1}")
    a(f"""
    s_nop 1
    v_permlane16_swap_b32 v{PK+4}, v{PK+6}
    v_permlane16_swap_b32 v{PK+5}, v{PK+7}
    buffer_store_dwordx4 {v(PK+4,4)}, v{vt[4]}, {s(SHN,4)}, s{sT0} offen sc1
    """)
    SF, SG = SKV, SWO
    srd(a, SF, 16, 17, WS_FLG, 4096)
    srd(a, SG, 16, 17, WS_G, G_BYTES)
    def signal(off, young):
        a(f"""
        s_waitcnt vmcnt({young})
        s_barrier
        {stamp_str(12) if off == 0 else ""}
        s_cmp_lg_u32 s{sW}, 0
        s_cbranch_scc1 K2_NOSIG{off}
        s_lshl_b32 s{sT0}, s{sG}, 8
        s_lshl_b32 s{sT1}, s{sMm}, 2
        s_add_u32 s{sT1}, s{sT1}, s{sT0}
        v_mov_b32 v{vt[0]}, 0
        v_mov_b32 v{vt[1]}, 1
        s_mov_b64 exec, 1
        buffer_store_dword v{vt[1]}, v{vt[0]}, {s(SF,4)}, s{sT1} offen offset:{off} sc1
        s_mov_b64 exec, -1
        K2_NOSIG{off}:
        """)
    def poll_start(off):
        a(f"""
        s_cmp_lg_u32 s{sW}, 0
        s_cbranch_scc1 K2_NOPS{off}
        s_lshl_b32 s{sRot}, s{sG}, 8
        v_and_b32 v{vt[0]}, 15, v0
        v_lshlrev_b32 v{vt[0]}, 2, v{vt[0]}
        buffer_load_dword v{vt[1]}, v{vt[0]}, {s(SF,4)}, s{sRot} offen offset:{off} sc1
        K2_NOPS{off}:
        """)
    def poll(off, mask):
        a(f"""
        s_cmp_lg_u32 s{sW}, 0
        s_cbranch_scc1 K2_NOPOLL{off}
        s_lshl_b32 s{sT0}, s{sG}, 8
        s_mov_b32 s{sT2}, 0x200000
        buffer_load_dword v{vt[4]}, v{vt[0]}, {s(SF,4)}, s{sT0} offen offset:{off} sc1
        K2_POLL{off}:
        s_sub_u32 s{sT2}, s{sT2}, 1
        s_cbranch_scc1 K2_PDONE{off}
        s_waitcnt vmcnt(1)
        v_cmp_ne_u32 vcc, 0, v{vt[1]}
        buffer_load_dword v{vt[1]}, v{vt[0]}, {s(SF,4)}, s{sT0} offen offset:{off} sc1
        s_and_b32 s{sT1}, vcc_lo, {hex(mask)}
        s_cmp_eq_u32 s{sT1}, {hex(mask)}
        s_cbranch_scc1 K2_PDONE{off}
        s_waitcnt vmcnt(1)
        v_cmp_ne_u32 vcc, 0, v{vt[4]}
        buffer_load_dword v{vt[4]}, v{vt[0]}, {s(SF,4)}, s{sT0} offen offset:{off} sc1
        s_and_b32 s{sT1}, vcc_lo, {hex(mask)}
        s_cmp_lg_u32 s{sT1}, {hex(mask)}
        s_cbranch_scc1 K2_POLL{off}
        K2_PDONE{off}:
        K2_NOPOLL{off}:
        s_barrier
        """)
    stamp(a, 5)
    if RELOAD:
        a.c("touch the lines just written so that they sit in the local L2 (speed only)")
        a(f"""
        buffer_load_dword v{T+12}, v{vt[4]}, {s(SHN,4)}, s{sT0} offen sc1
        buffer_load_dword v{T+13}, v{vVo}, {s(SQ,4)}, s{sV1} offen sc1
        """)
    signal(0, 2 if RELOAD else 0)
    a(f"""
    s_cmp_eq_u32 s{sMm}, 15
    s_cbranch_scc1 K2_SKIP1
    """)
    poll_start(0)
    a(f"""
    v_lshrrev_b32 v{vt[2]}, 5, v0
    v_lshlrev_b32 v{vt[2]}, 3, v{vt[2]}
    v_add_u32 v{vt[2]}, {B1L}, v{vt[2]}
    s_cmp_eq_u32 s{sHalf}, 0
    s_cselect_b32 s{sT2}, -1, 0
    s_and_b32 s{sSo}, s{sT2}, 0xffff0000
    """)
    BI = Kf
    acc1 = [O[0], O[1], hacc]
    for ft in range(3):
        for q in range(4):
            a(f"ds_read_b64 {v(BI+8*ft+2*q,2)}, v{vt[2]} offset:{ft*64+q*16}")
    a("s_waitcnt lgkmcnt(0)")
    for ft in range(3):
        for i in range(8):
            a(f"v_and_b32 v{acc1[ft]+2*i+1}, s{sSo}, v{BI+8*ft+i}")
            a(f"v_and_b32 v{BI+8*ft+i}, s{sT2}, v{BI+8*ft+i}")
            a(f"v_lshlrev_b32 v{acc1[ft]+2*i}, 16, v{BI+8*ft+i}")
    Bf = [Kf + 4*i for i in range(8)] + [woA + 4*i for i in range(4)] + [T + 4*i for i in range(4)]
    Af = [Vf, Vf + 4, OFr, OFr + 4, nrm, nrm + 4, Q, zero]
    vWa = vOa; vEx = vLa; vEr = vNr
    sRT, sKH = sV1, sHalf
    a(f"""
    s_and_b32 s{sRT}, s{sW}, 3
    s_lshl_b32 s{sT0}, s{sG}, 2
    s_add_u32 s{sRT}, s{sRT}, s{sT0}
    v_lshrrev_b32 v{vt[2]}, 5, v0
    v_lshlrev_b32 v{vt[2]}, 9, v{vt[2]}
    v_bfe_u32 v{vt[3]}, v0, 2, 2
    v_lshl_add_u32 v{vt[2]}, v{vt[3]}, 6, v{vt[2]}
    v_bfe_u32 v{vt[3]}, v0, 4, 1
    v_lshl_add_u32 v{vt[2]}, v{vt[3]}, 5, v{vt[2]}
    v_and_b32 v{vt[3]}, 3, v0
    v_lshl_add_u32 v{vt[2]}, v{vt[3]}, 3, v{vt[2]}
    s_mul_i32 s{sT0}, s{sKH}, 49152
    v_add_u32 v{vWa}, s{sT0}, v{vt[2]}
    s_mul_i32 s{sT0}, s{sW}, 6144
    s_add_u32 s{sT0}, s{sT0}, {EXB}
    v_add_u32 v{vEx}, s{sT0}, v{vQa}
    s_xor_b32 s{sT0}, s{sW}, 4
    s_mul_i32 s{sT0}, s{sT0}, 6144
    s_add_u32 s{sT0}, s{sT0}, {EXB}
    v_add_u32 v{vEr}, s{sT0}, v{vQa}
    s_lshl_b32 s{sWm}, s{sRT}, 15
    s_lshl_b32 s{sT0}, s{sKH}, 14
    s_add_u32 s{sWm}, s{sWm}, s{sT0}
    """)
    def areads(f):
        ks, ft = divmod(f, 3)
        off = ks * 3072 + ft * 1024
        a(f"ds_read_b64_tr_b16 {v(Af[f%8],2)}, v{vWa} offset:{off}")
        a(f"ds_read_b64_tr_b16 {v(Af[f%8]+2,2)}, v{vWa} offset:{off+256}")
    for f in range(5):
        areads(f)
    poll(0, 0xffff)
    stamp(a, 6)
    for i in range(16):
        a(f"""
        s_add_u32 s{sSo}, s{sMm}, {i}
        s_and_b32 s{sSo}, s{sSo}, 15
        s_lshl_b32 s{sSo}, s{sSo}, 10
        s_add_u32 s{sSo}, s{sSo}, s{sWm}
        buffer_load_dwordx4 {v(Bf[i],4)}, v{vQa}, {s(SHN,4)}, s{sSo} offen {LDF}
        """)
    for f in range(48):
        ks, ft = divmod(f, 3)
        later = min(4, 47 - f)
        w = f"lgkmcnt({2*later})"
        if ft == 0:
            w = f"vmcnt({15 - ks}) " + w
        a(f"s_waitcnt {w}")
        a(f"v_mfma_f32_32x32x16_bf16 {v(acc1[ft],16)}, {v(Af[f%8],4)}, {v(Bf[ks],4)}, {v(acc1[ft],16)}")
        if f + 5 < 48:
            areads(f + 5)
    stamp(a, 7)
    a(f"""
    s_mul_i32 s{sT0}, s{sRT}, 86
    s_lshl_b32 s{sT1}, s{sT0f}, 1
    s_add_u32 s{sT0}, s{sT0}, s{sT1}
    s_mul_i32 s{sT1}, s{sKH}, 3
    s_add_u32 s{sT0}, s{sT0}, s{sT1}
    s_lshl_b32 s{sT0}, s{sT0}, 10
    s_nop 7
    s_cmp_eq_u32 s{sKH}, 1
    s_cbranch_scc1 K2_EX1
    """)
    lo = [acc1[0], acc1[0] + 8, acc1[1]]
    hi = [acc1[1] + 8, acc1[2], acc1[2] + 8]
    RX = Kf
    def exchange(keep, send):
        for q in range(3):
            a(f"ds_write_b128 v{vEx}, {v(send[q],4)} offset:{q*2048}")
            a(f"ds_write_b128 v{vEx}, {v(send[q]+4,4)} offset:{q*2048+1024}")
        a("s_waitcnt lgkmcnt(0)")
        a("s_barrier")
        for q in range(6):
            a(f"ds_read_b128 {v(RX+4*q,4)}, v{vEr} offset:{q*1024}")
        for q in range(3):
            a(f"s_waitcnt lgkmcnt({4-2*q})")
            for i in range(4):
                a(f"v_pk_add_f32 {v(keep[q]+2*i,2)}, {v(keep[q]+2*i,2)}, {v(RX+8*q+2*i,2)}")
            for i in range(8):
                a(f"v_max_f32 v{keep[q]+i}, 0, v{keep[q]+i}")
            for i in range(4):
                a(f"v_pk_mul_f32 {v(keep[q]+2*i,2)}, {v(keep[q]+2*i,2)}, {v(keep[q]+2*i,2)}")
            for i in range(4):
                a(f"v_cvt_pk_bf16_f32 v{woA+4*q+i}, v{keep[q]+2*i}, v{keep[q]+2*i+1}")
            a(f"buffer_store_dwordx4 {v(woA+4*q,4)}, v{vQa}, {s(SG,4)}, s{sT0} offen offset:{q*1024} sc1")
    exchange(lo, hi)
    a("s_branch K2_EXJ")
    a("K2_EX1:")
    exchange(hi, lo)
    a("K2_EXJ:")
    stamp(a, 8)
    if RELOAD:
        for q in range(3):
            a(f"buffer_load_dword v{hacc+q}, v{vQa}, {s(SG,4)}, s{sT0} offen offset:{q*1024} sc1")
    signal(128, 3 if RELOAD else 0)
    a("s_branch K2_FFN2")
    a("K2_SKIP1:")
    a("K2_FFN2:")
    poll_start(128)
    Gf = [Kf + 4*i for i in range(8)] + [Vf, Vf + 4] + [woA + 4*i for i in range(4)] + [T + 4*i for i in range(4)] + [OFr, OFr + 4]
    Gf += Gf[:2]
    acc2 = [O[0], O[1], hacc, zero]
    vG1 = vOa; vOo = vLa; vRw = vNr; vRr = vNl; vB2 = vNw
    sGo, sOo, sGend = sWm, sV1, sRot
    srd(a, SX, 18, 19, 0, 1024)
    srd(a, SHN, 10, 11, 0, 0x200000)
    a(f"""
    s_lshl_b32 s{sT0}, s{sG}, 1
    s_lshr_b32 s{sT1}, s{sMm}, 3
    s_add_u32 s{sT0}, s{sT0}, s{sT1}
    s_lshl_b32 s{sOo}, s{sT0}, 16
    s_mul_i32 s{sGo}, s{sT0}, {2*86*1024}
    s_add_u32 s{sGend}, s{sGo}, {86*1024}
    s_lshl_b32 s{sT1}, s{sW}, 10
    s_add_u32 s{sGo}, s{sGo}, s{sT1}
    v_add_u32 v{vG1}, {86*1024}, v{vQa}
    v_and_b32 v{vt[2]}, 31, v0
    v_mul_u32_u24 v{vt[2]}, 272, v{vt[2]}
    v_lshrrev_b32 v{vt[3]}, 5, v0
    v_lshl_add_u32 v{vt[2]}, v{vt[3]}, 4, v{vt[2]}
    s_mul_i32 s{sT0}, s{sW}, {RSTR}
    v_add_u32 v{vRw}, s{sT0}, v{vt[2]}
    v_lshrrev_b32 v{vt[2]}, 3, v0
    s_lshl_b32 s{sT0}, s{sW}, 3
    v_add_u32 v{vt[2]}, s{sT0}, v{vt[2]}
    v_and_b32 v{vt[3]}, 7, v0
    v_mul_u32_u24 v{vRr}, 272, v{vt[2]}
    v_lshl_add_u32 v{vRr}, v{vt[3]}, 5, v{vRr}
    s_lshl_b32 s{sT0}, s{sCB2}, 7
    v_lshlrev_b32 v{vB2}, 4, v{vt[3]}
    v_add_u32 v{vB2}, s{sT0}, v{vB2}
    v_lshl_add_u32 v{vOo}, v{vt[2]}, 10, v{vB2}
    """)
    poll(128, 0x7fff)
    stamp(a, 9)
    def ldG(i):
        a(f"""
        s_add_u32 s{sSo}, s{sCB2}, {i}
        s_sub_u32 s{sT1}, s{sSo}, 11
        s_cselect_b32 s{sSo}, s{sSo}, s{sT1}
        s_lshl_b32 s{sSo}, s{sSo}, 13
        s_add_u32 s{sSo}, s{sSo}, s{sGo}
        s_cmp_ge_u32 s{sSo}, s{sGend}
        s_cselect_b32 s{sSo}, 0x1000000, s{sSo}
        """)
        a(f"buffer_load_dwordx4 {v(Gf[2*i],4)}, v{vQa}, {s(SG,4)}, s{sSo} offen {LDF}")
        a(f"buffer_load_dwordx4 {v(Gf[2*i+1],4)}, v{vG1}, {s(SG,4)}, s{sSo} offen {LDF}")
    for i in range(10):
        ldG(i)
    for i in range(11):
        a(f"s_waitcnt vmcnt({18 if i == 0 else 2*(10-i)})")
        for ct in range(2):
            for rt in range(2):
                d = acc2[2*ct + rt]
                a(f"v_mfma_f32_32x32x16_bf16 {v(d,16)}, {v(W2R+8*i+4*ct,4)}, {v(Gf[2*i+rt],4)}, {'0' if i == 0 else v(d,16)}")
        if i == 0:
            ldG(10)
    stamp(a, 10)
    HR = woA; B2 = woA + 4
    a(f"""
    buffer_load_dwordx4 {v(HR,4)}, v{vOo}, {s(SQ,4)}, s{sOo} offen sc1
    buffer_load_dwordx4 {v(B2,4)}, v{vB2}, {s(SX,4)}, 0 offen
    v_add_u32 v{vt[2]}, {3*RSTR}, v{vRr}
    v_add_u32 v{vt[3]}, {6*RSTR}, v{vRr}
    s_nop 7
    """)
    for ct in range(2):
        for rt in range(2):
            for q in range(4):
                d = acc2[2*ct + rt] + 4*q
                a(f"ds_write_b128 v{vRw}, {v(d,4)} offset:{rt*32*272 + (32*ct + 8*q)*4}")
    a("s_waitcnt lgkmcnt(0)")
    a("s_barrier")
    stamp(a, 11)
    RR = W2R
    for w in range(8):
        base = (vRr, vt[2], vt[3])[w // 3]
        for q in range(2):
            a(f"ds_read_b128 {v(RR+8*w+4*q,4)}, v{base} offset:{(w % 3)*RSTR + 16*q}")
    a("s_waitcnt vmcnt(0)")
    for i in range(4):
        a(f"v_lshlrev_b32 v{T+2*i}, 16, v{HR+i}")
        a(f"v_and_b32 v{T+2*i+1}, 0xffff0000, v{HR+i}")
        a(f"v_lshlrev_b32 v{T+8+2*i}, 16, v{B2+i}")
        a(f"v_and_b32 v{T+8+2*i+1}, 0xffff0000, v{B2+i}")
    for i in range(4):
        a(f"v_pk_add_f32 {v(T+2*i,2)}, {v(T+2*i,2)}, {v(T+8+2*i,2)}")
    for w in range(0, 8, 2):
        a(f"s_waitcnt lgkmcnt({12 - 2*w})")
        for i in range(4):
            a(f"v_pk_add_f32 {v(RR+8*w+2*i,2)}, {v(RR+8*w+2*i,2)}, {v(RR+8*w+8+2*i,2)}")
        for i in range(4):
            a(f"v_pk_add_f32 {v(T+2*i,2)}, {v(T+2*i,2)}, {v(RR+8*w+2*i,2)}")
    for i in range(4):
        a(f"v_cvt_pk_bf16_f32 v{T+8+i}, v{T+2*i}, v{T+2*i+1}")
    a(f"buffer_store_dwordx4 {v(T+8,4)}, v{vOo}, {s(SHN,4)}, s{sOo} offen")
    stamp_dump(a, 1, sW)
    a("K2_END:")
    a("s_endpgm")
    a.c("slow path: true row maxima first")
    a("K2_SLOW:")
    MB = MISC + 1024
    a("s_setprio 0")
    for i in range(SLOW_V0, 16):
        a(ldV(i))
    a("s_nop 7\ns_nop 7")
    for o in O:
        a(f"v_mfma_f32_32x32x16_bf16 {v(o,16)}, {v(zero,4)}, {v(zero,4)}, 0")
    a(f"""
    v_and_b32 v{vt[0]}, 31, v0
    v_lshlrev_b32 v{vt[0]}, 2, v{vt[0]}
    v_add_u32 v{vt[0]}, {MB}, v{vt[0]}
    s_lshl_b32 s{sT0}, s{sW}, 7
    v_add_u32 v{vt[1]}, s{sT0}, v{vt[0]}
    v_mov_b32 v{vt[2]}, 0xff800000
    ds_write_b32 v{vt[1]}, v{vt[2]}
    s_waitcnt vmcnt(0) lgkmcnt(0)
    s_barrier
    v_mov_b32 v{vt[1]}, v{vt[0]}
    v_mov_b32 v{vt[3]}, v{vQl}
    s_mov_b32 s{sT0}, 0
    K2_P1:
    ds_read_b128 {v(Q,4)}, v{vt[3]}
    v_mov_b32 v{nrm}, 0xff800000
    s_waitcnt lgkmcnt(0)
    """)
    for j in range(8):
        a(f"v_mfma_f32_32x32x16_bf16 {v(S[0],16)}, {v(Kf+4*j,4)}, {v(Q,4)}, 0")
        a("s_nop 7\ns_nop 3")
        for i in range(8):
            a(f"v_max3_f32 v{nrm}, v{nrm}, v{S[0]+2*i}, v{S[0]+2*i+1}")
        a("s_nop 1")
    a(f"""
    ds_max_f32 v{vt[1]}, v{nrm}
    v_add_u32 v{vt[1]}, 128, v{vt[1]}
    v_add_u32 v{vt[3]}, 1024, v{vt[3]}
    s_add_u32 s{sT0}, s{sT0}, 1
    s_cmp_lt_u32 s{sT0}, 8
    s_cbranch_scc1 K2_P1
    ds_read_b128 {v(Q,4)}, v{vQl}
    s_waitcnt lgkmcnt(0)
    s_barrier
    """)
    mainloop(True)
    a("s_branch K2_TAIL")
    for r in retries:
        a(r)
    return name, R.cur, K2_LDS
```

```python
from asmlib import *
from common import *

XBASE = 0
WBASE = 65536
KVBASE = 131072
STBASE = 147456
K1_LDS = STBASE + 16384

import os
CODEPF = os.environ.get("CODEPF", "1") == "1"
K1F = os.environ.get("K1F", "").replace("_", " ")
K1Q = os.environ.get("K1Q", "").replace("_", " ")
BARS = [int(x) for x in os.environ.get("BARS", "0,2").split(",")]

def gen_k1(a):
    name = "qkv_kernel"
    kernel_header(a, name)
    R = Regs(1, 128)
    R.alloc("pad")
    vt = [R.alloc(f"t{i}") for i in range(8)]
    NS = 4
    pool = R.alloc("pool", 116, 4)
    sW, sRB, sCB, sWR, sWC, sH = 20, 21, 22, 23, 44, 45
    sT0, sT1, sXm, sWm, sKm, sSo, sWv, sB = 46, 47, 48, 49, 50, 51, 56, 57
    SX, SWQ, SKW, SQ, SKV, SWO = 24, 28, 32, 36, 40, 52
    a(f"""
    s_cmp_ge_u32 s2, 256
    s_cbranch_scc1 K1_END
    s_load_dwordx8 s[8:15], s[0:1], 0
    s_load_dwordx2 s[16:17], s[0:1], 96
    s_load_dwordx2 s[18:19], s[0:1], 32
    s_load_dwordx2 s[4:5], s[0:1], 64
    v_lshrrev_b32 v{vt[0]}, 6, v0
    v_and_b32 v0, 63, v0
    v_readfirstlane_b32 s{sW}, v{vt[0]}
    s_and_b32 s{sT0}, s2, 7
    s_lshr_b32 s{sT1}, s2, 3
    s_lshl_b32 s{sRB}, s{sT0}, 2
    s_and_b32 s{sT0}, s{sT1}, 3
    s_add_u32 s{sRB}, s{sRB}, s{sT0}
    s_lshr_b32 s{sCB}, s{sT1}, 2
    """)
    stamp_init(a)
    a(f"""
    s_cmp_ge_u32 s{sW}, 4
    s_cbranch_scc1 K1_MM
    """)
    P = Regs(pool, pool + 116)
    vXoff = [P.alloc(f"xoff{e}") for e in range(4)]
    vWoff = [P.alloc(f"woff{e}") for e in range(2)]
    vKoff = P.alloc("koff")
    vXs = [P.alloc(f"xs{i}") for i in range(4)]
    vX16a = P.alloc("x16a"); vKWa = P.alloc("kwa")
    Gq = P.alloc("gq", 4); Gs = P.alloc("gs", 4)
    ones = P.alloc("ones", 4)
    Xs = P.alloc("xsd", 16); Ws = P.alloc("wsd", 16)
    X16 = P.alloc("x16", 4); KW = P.alloc("kw", 4)
    Dk = P.alloc("dk", 4); Dc = P.alloc("dc", 4)
    st = P.alloc("st", 8, 4); pk = P.alloc("pk", 2, 2)
    a("s_setprio 3")
    a(f"""
    v_lshrrev_b32 v{vt[2]}, 4, v0
    v_and_b32 v{vt[3]}, 15, v0
    s_lshl_b32 s{sT0}, s{sW}, 14
    """)
    for e in range(4):
        a(f"""
        v_add_u32 v{vt[4]}, {4*e}, v{vt[2]}
        v_xor_b32 v{vt[5]}, v{vt[3]}, v{vt[4]}
        v_lshlrev_b32 v{vt[5]}, 4, v{vt[5]}
        v_lshl_add_u32 v{vt[5]}, v{vt[4]}, 10, v{vt[5]}
        v_add_u32 v{vXoff[e]}, s{sT0}, v{vt[5]}
        """)
    a(f"""
    v_lshrrev_b32 v{vt[4]}, 2, v0
    v_and_b32 v{vt[5]}, 3, v0
    v_lshlrev_b32 v{vt[5]}, 4, v{vt[5]}
    v_lshl_add_u32 v{vt[7]}, v{vt[4]}, 10, v{vt[5]}
    s_lshl_b32 s{sT0}, s{sCB}, 7
    s_lshl_b32 s{sT1}, s{sW}, 15
    s_add_u32 s{sT0}, s{sT0}, s{sT1}
    v_add_u32 v{vWoff[0]}, s{sT0}, v{vt[7]}
    v_add_u32 v{vWoff[1]}, 0x4000, v{vWoff[0]}
    v_lshrrev_b32 v{vt[4]}, 1, v0
    v_and_b32 v{vt[5]}, 0x13, v{vt[4]}
    v_and_b32 v{vt[6]}, 4, v{vt[4]}
    v_lshl_or_b32 v{vt[5]}, v{vt[6]}, 1, v{vt[5]}
    v_and_b32 v{vt[6]}, 8, v{vt[4]}
    v_lshrrev_b32 v{vt[6]}, 1, v{vt[6]}
    v_or_b32 v{vt[5]}, v{vt[5]}, v{vt[6]}
    v_lshlrev_b32 v{vt[5]}, 5, v{vt[5]}
    v_and_b32 v{vt[6]}, 1, v0
    v_lshl_add_u32 v{vt[5]}, v{vt[6]}, 4, v{vt[5]}
    s_lshl_b32 s{sT0}, s{sW}, 10
    v_add_u32 v{vKoff}, s{sT0}, v{vt[5]}
    s_lshl_b32 s{sXm}, s{sW}, 12
    s_lshl_b32 s{sWm}, s{sW}, 11
    s_add_u32 s{sWm}, s{sWm}, {WBASE}
    s_add_u32 s{sKm}, s{sT0}, {KVBASE}
    s_lshl_b32 s{sT0}, s{sRB}, 16
    s_waitcnt lgkmcnt(0)
    s_add_u32 s{SX}, s8, s{sT0}
    s_addc_u32 s{SX+1}, s9, 0
    s_mov_b32 s{SX+2}, 0x10000
    s_mov_b32 s{SX+3}, 0x20000
    """)
    srd(a, SWQ, 10, 11, 0, 524288)
    a(f"""
    s_bitcmp1_b32 s{sCB}, 0
    s_cselect_b32 s{SKW}, s14, s12
    s_cselect_b32 s{SKW+1}, s15, s13
    s_mov_b32 s{SKW+2}, 0x4000
    s_mov_b32 s{SKW+3}, 0x20000
    """)
    a(f"s_add_u32 s{sB}, s{sCB}, s{sRB}")
    def issue(c):
        a(f"""
        s_add_u32 s{sWv}, s{sB}, {c}
        s_and_b32 s{sWv}, s{sWv}, 3
        s_lshl_b32 s{sSo}, s{sWv}, 8
        """)
        for e in range(4):
            a(f"s_add_u32 m0, s{sXm}, {XBASE + c*16384 + e*1024}")
            a("s_nop 0")
            a(f"buffer_load_dwordx4 v{vXoff[e]}, {s(SX,4)}, s{sSo} offen lds")
        a(f"s_lshl_b32 s{sSo}, s{sWv}, 17")
        for kb in range(2):
            for ct in range(2):
                a(f"s_add_u32 m0, s{sWm}, {(ct*32 + c*8 + kb)*1024 - ct*64}")
                a("s_nop 0")
                a(f"buffer_load_dwordx4 v{vWoff[kb]}, {s(SWQ,4)}, s{sSo} offen offset:{ct*64} lds")
        a(f"s_lshl_b32 s{sSo}, s{sWv}, 12")
        a(f"s_add_u32 m0, s{sKm}, {c*4096}")
        a("s_nop 0")
        a(f"buffer_load_dwordx4 v{vKoff}, {s(SKW,4)}, s{sSo} offen lds")
    issue(0); issue(1)
    a("s_setprio 0")
    stamp(a, 1)
    a(f"""
    s_lshl_b32 s{sT0}, s{sW}, 12
    v_lshlrev_b32 v{vt[4]}, 8, v{vt[3]}
    v_add_u32 v{vt[4]}, s{sT0}, v{vt[4]}
    v_lshlrev_b32 v{vt[5]}, 2, v{vt[2]}
    """)
    for i in range(4):
        a(f"""
        v_add_u32 v{vt[6]}, {i}, v{vt[5]}
        v_xor_b32 v{vt[6]}, v{vt[6]}, v{vt[3]}
        v_lshl_add_u32 v{vXs[i]}, v{vt[6]}, 4, v{vt[4]}
        """)
    a(f"""
    v_lshrrev_b32 v{vt[1]}, 5, v0
    v_bfe_u32 v{vt[5]}, v0, 2, 2
    v_bfe_u32 v{vt[6]}, v0, 4, 1
    v_and_b32 v{vt[0]}, 3, v0
    v_lshlrev_b32 v{vt[4]}, 9, v{vt[1]}
    v_lshl_add_u32 v{vt[4]}, v{vt[6]}, 7, v{vt[4]}
    v_lshl_add_u32 v{vt[4]}, v{vt[5]}, 5, v{vt[4]}
    v_lshl_add_u32 v{vt[4]}, v{vt[0]}, 3, v{vt[4]}
    v_add_u32 v{vKWa}, s{sKm}, v{vt[4]}
    s_lshr_b32 s{sT0}, s{sCB}, 1
    s_lshl_b32 s{sT0}, s{sT0}, 12
    s_lshl_b32 s{sT1}, s{sW}, 2
    v_add_u32 v{vt[6]}, s{sT1}, v{vt[2]}
    v_xor_b32 v{vt[6]}, v{vt[6]}, v{vt[3]}
    v_lshlrev_b32 v{vt[6]}, 4, v{vt[6]}
    v_lshl_add_u32 v{vt[6]}, v{vt[3]}, 8, v{vt[6]}
    v_add_u32 v{vX16a}, s{sT0}, v{vt[6]}
    """)
    for i in range(4):
        a(f"v_mov_b32 v{ones+i}, 0x3f803f80")
    srd(a, SKV, 16, 17, WS_K, KV_BYTES)
    for c in range(4):
        z = (lambda r: "0") if c == 0 else (lambda r: v(r, 4))
        a(f"s_waitcnt vmcnt({9 if c < 3 else 0})")
        a("s_barrier")
        stamp(a, 2 + c)
        for i in range(4):
            a(f"ds_read_b128 {v(Xs+4*i,4)}, v{vXs[i]} offset:{c*16384}")
        a(f"ds_read_b128 {v(X16,4)}, v{vX16a} offset:{c*16384}")
        a(f"ds_read_b64_tr_b16 {v(KW,2)}, v{vKWa} offset:{c*4096}")
        a(f"ds_read_b64_tr_b16 {v(KW+2,2)}, v{vKWa} offset:{c*4096+256}")
        if c < 2:
            issue(c + 2)
        for i in range(4):
            a(f"s_waitcnt lgkmcnt({6-i})")
            a(f"v_mfma_f32_16x16x32_bf16 {v(Gq,4)}, {v(Xs+4*i,4)}, {v(Xs+4*i,4)}, {z(Gq) if i == 0 else v(Gq,4)}")
            a(f"v_mfma_f32_16x16x32_bf16 {v(Gs,4)}, {v(Xs+4*i,4)}, {v(ones,4)}, {z(Gs) if i == 0 else v(Gs,4)}")
        a(f"""
        s_waitcnt lgkmcnt(0)
        s_bitcmp1_b32 s{sCB}, 0
        s_cbranch_scc1 K1_V{c}
        v_mfma_f32_16x16x32_bf16 {v(Dk,4)}, {v(KW,4)}, {v(X16,4)}, {z(Dk)}
        v_mfma_f32_16x16x32_bf16 {v(Dc,4)}, {v(KW,4)}, {v(ones,4)}, {z(Dc)}
        s_branch K1_J{c}
        K1_V{c}:
        v_mfma_f32_16x16x32_bf16 {v(Dk,4)}, {v(X16,4)}, {v(KW,4)}, {z(Dk)}
        v_mfma_f32_16x16x32_bf16 {v(Dc,4)}, {v(ones,4)}, {v(KW,4)}, {z(Dc)}
        K1_J{c}:
        """)
    stamp(a, 6)
    a.c("row statistics: lane n = 4g + r holds the diagonal of X X^T and the row sum in register r")
    a(f"""
    v_and_b32 v{vt[0]}, 1, v0
    v_cmp_eq_u32 vcc, 1, v{vt[0]}
    v_and_b32 v{vt[0]}, 2, v0
    v_cmp_eq_u32 s[6:7], 2, v{vt[0]}
    s_mov_b32 s{sXm}, {hex(f32bits(1.0/512))}
    s_mov_b32 s{sWm}, {hex(f32bits(1e-5))}
    v_cndmask_b32 v{Gq}, v{Gq}, v{Gq+1}, vcc
    v_cndmask_b32 v{Gq+2}, v{Gq+2}, v{Gq+3}, vcc
    v_cndmask_b32 v{Gs}, v{Gs}, v{Gs+1}, vcc
    v_cndmask_b32 v{Gs+2}, v{Gs+2}, v{Gs+3}, vcc
    v_cndmask_b32 v{st+1}, v{Gq}, v{Gq+2}, s[6:7]
    v_cndmask_b32 v{st}, v{Gs}, v{Gs+2}, s[6:7]
    v_mul_f32 v{st+3}, s{sXm}, v{st}
    v_mul_f32 v{st+1}, s{sXm}, v{st+1}
    v_fma_f32 v{st+1}, -v{st+3}, v{st+3}, v{st+1}
    v_max_f32 v{st+1}, 0, v{st+1}
    v_add_f32 v{st+1}, s{sWm}, v{st+1}
    v_rsq_f32 v{st+2}, v{st+1}
    s_lshl_b32 s{sT0}, s{sW}, 8
    s_add_u32 s{sT0}, s{sT0}, {STBASE}
    v_lshlrev_b32 v{vt[0]}, 4, v{vt[3]}
    v_mul_f32 v{st}, {hex(f32bits(QSCALE))}, v{st+2}
    v_add_u32 v{vt[0]}, s{sT0}, v{vt[0]}
    v_mul_f32 v{st+1}, v{st}, v{st+3}
    s_mov_b32 exec_lo, 0x00f0000f
    s_mov_b32 exec_hi, 0xf0000f00
    ds_write_b128 v{vt[0]}, {v(st,4)}
    s_mov_b64 exec, -1
    """)
    a(f"""
    v_lshlrev_b32 v{vt[4]}, 4, v0
    v_add_u32 v{vt[4]}, {STBASE + 2048}, v{vt[4]}
    s_lshl_b32 s{sT0}, s{sW}, 11
    v_add_u32 v{vt[5]}, s{sT0}, v{vt[4]}
    s_cmp_eq_u32 s{sW}, 3
    s_cbranch_scc1 K1_NOKVP
    ds_write_b128 v{vt[5]}, {v(Dk,4)}
    ds_write_b128 v{vt[5]}, {v(Dc,4)} offset:1024
    K1_NOKVP:
    s_waitcnt lgkmcnt(0)
    s_barrier
    s_cmp_lg_u32 s{sW}, 3
    s_cbranch_scc1 K1_DONE
    """)
    a.c("KV epilogue (wave 3)")
    g, d = vt[2], vt[3]
    Pp = Xs
    assert Ws == Xs + 16 and Dc == Dk + 4
    for w in range(3):
        a(f"ds_read_b128 {v(Pp+8*w,4)}, v{vt[4]} offset:{w*2048}")
        a(f"ds_read_b128 {v(Pp+8*w+4,4)}, v{vt[4]} offset:{w*2048+1024}")
    def kvsum():
        for i in range(4):
            a(f"v_pk_add_f32 {v(Pp+2*i,2)}, {v(Pp+2*i,2)}, {v(Pp+8+2*i,2)}")
            a(f"v_pk_add_f32 {v(Pp+16+2*i,2)}, {v(Pp+16+2*i,2)}, {v(Dk+2*i,2)}")
        for i in range(4):
            a(f"v_pk_add_f32 {v(Dk+2*i,2)}, {v(Pp+2*i,2)}, {v(Pp+16+2*i,2)}")
    a(f"""
    s_lshr_b32 s{sH}, s{sCB}, 1
    s_lshl_b32 s{sT0}, s{sH}, 8
    s_add_u32 s{sT0}, s{sT0}, {STBASE}
    s_lshl_b32 s{sKm}, s{sRB}, 2
    s_add_u32 s{sKm}, s{sKm}, s{sH}
    s_bitcmp1_b32 s{sCB}, 0
    s_cbranch_scc1 K1_VEP
    """)
    a.c("K tile: lane key = l&15")
    a(f"""
    v_lshlrev_b32 v{vt[0]}, 4, v{d}
    v_add_u32 v{vt[0]}, s{sT0}, v{vt[0]}
    ds_read_b64 {v(st,2)}, v{vt[0]} offset:8
    v_and_b32 v{vt[1]}, 3, v{d}
    v_and_b32 v{vt[5]}, 4, v{d}
    v_lshl_or_b32 v{vt[1]}, v{vt[5]}, 1, v{vt[1]}
    v_and_b32 v{vt[5]}, 8, v{d}
    v_lshrrev_b32 v{vt[5]}, 1, v{vt[5]}
    v_or_b32 v{vt[1]}, v{vt[1]}, v{vt[5]}
    v_lshlrev_b32 v{vt[1]}, 4, v{vt[1]}
    v_and_b32 v{vt[5]}, 1, v{g}
    v_lshl_add_u32 v{vt[1]}, v{vt[5]}, 9, v{vt[1]}
    v_lshrrev_b32 v{vt[5]}, 1, v{g}
    v_lshl_add_u32 v{vt[1]}, v{vt[5]}, 3, v{vt[1]}
    s_lshr_b32 s{sT1}, s{sKm}, 1
    s_lshl_b32 s{sT1}, s{sT1}, 10
    s_and_b32 s{sT0}, s{sKm}, 1
    s_lshl_b32 s{sT0}, s{sT0}, 8
    s_add_u32 s{sT1}, s{sT1}, s{sT0}
    s_waitcnt lgkmcnt(0)
    """)
    kvsum()
    for r in range(4):
        a(f"v_fma_f32 v{Dk+r}, -v{st+1}, v{Dc+r}, v{Dk+r}")
    for r in range(4):
        a(f"v_mul_f32 v{Dk+r}, v{Dk+r}, v{st}")
    a(f"""
    v_cvt_pk_bf16_f32 v{pk}, v{Dk}, v{Dk+1}
    v_cvt_pk_bf16_f32 v{pk+1}, v{Dk+2}, v{Dk+3}
    v_mul_f32 v{st+2}, v{Dk}, v{Dk}
    v_fmac_f32 v{st+2}, v{Dk+1}, v{Dk+1}
    v_fmac_f32 v{st+2}, v{Dk+2}, v{Dk+2}
    v_fmac_f32 v{st+2}, v{Dk+3}, v{Dk+3}
    buffer_store_dwordx2 {v(pk,2)}, v{vt[1]}, {s(SKV,4)}, s{sT1} offen
    v_mov_b32 v{st+3}, v{st+2}
    s_nop 1
    v_permlane32_swap_b32 v{st+2}, v{st+3}
    v_add_f32 v{st+2}, v{st+2}, v{st+3}
    v_mov_b32 v{st+3}, v{st+2}
    s_nop 1
    v_permlane16_swap_b32 v{st+2}, v{st+3}
    v_add_f32 v{st+2}, v{st+2}, v{st+3}
    s_nop 1
    v_max_f32_dpp v{st+2}, v{st+2}, v{st+2} row_ror:8 row_mask:0xf bank_mask:0xf
    s_nop 1
    v_max_f32_dpp v{st+2}, v{st+2}, v{st+2} row_ror:4 row_mask:0xf bank_mask:0xf
    s_nop 1
    v_max_f32_dpp v{st+2}, v{st+2}, v{st+2} row_ror:2 row_mask:0xf bank_mask:0xf
    s_nop 1
    v_max_f32_dpp v{st+2}, v{st+2}, v{st+2} row_ror:1 row_mask:0xf bank_mask:0xf
    s_lshl_b32 s{sKm}, s{sKm}, 2
    s_add_u32 s{sKm}, s{sKm}, 0x21000
    v_mov_b32 v{vt[5]}, 0
    s_mov_b64 exec, 1
    buffer_store_dword v{st+2}, v{vt[5]}, {s(SKV,4)}, s{sKm} offen
    s_branch K1_DONE
    K1_VEP:
    """)
    a.c("V tile: lane d = l&15, keys 4g+r")
    a(f"""
    v_lshlrev_b32 v{vt[0]}, 6, v{g}
    v_add_u32 v{vt[0]}, s{sT0}, v{vt[0]}
    """)
    for r in range(4):
        a(f"ds_read_b64 {v(st+2*r,2)}, v{vt[0]} offset:{16*r+8}")
    a(f"""
    v_lshlrev_b32 v{vt[1]}, 4, v{d}
    v_and_b32 v{vt[5]}, 1, v{g}
    v_lshl_add_u32 v{vt[1]}, v{vt[5]}, 8, v{vt[1]}
    v_lshrrev_b32 v{vt[5]}, 1, v{g}
    v_lshl_add_u32 v{vt[1]}, v{vt[5]}, 3, v{vt[1]}
    s_mul_i32 s{sT1}, s{sKm}, {VSTR}
    s_add_u32 s{sT1}, s{sT1}, 0x10000
    s_waitcnt lgkmcnt(0)
    """)
    kvsum()
    for r in range(4):
        a(f"v_fma_f32 v{Dk+r}, -v{st+2*r+1}, v{Dc+r}, v{Dk+r}")
    for r in range(4):
        a(f"v_mul_f32 v{Dk+r}, v{Dk+r}, v{st+2*r}")
    a(f"""
    v_cvt_pk_bf16_f32 v{pk}, v{Dk}, v{Dk+1}
    v_cvt_pk_bf16_f32 v{pk+1}, v{Dk+2}, v{Dk+3}
    buffer_store_dwordx2 {v(pk,2)}, v{vt[1]}, {s(SKV,4)}, s{sT1} offen
    v_lshlrev_b32 v{vt[1]}, 2, v0
    s_mov_b64 exec, 15
    buffer_store_dword v{ones}, v{vt[1]}, {s(SKV,4)}, s{sT1} offen offset:512
    s_branch K1_DONE
    """)
    P = Regs(pool, pool + 116)
    vXa = [P.alloc(f"xa{i}") for i in range(8)]
    vWa = [P.alloc("wa0"), P.alloc("wa1")]
    vcs = [P.alloc("cs0"), P.alloc("cs1")]; onesr = P.alloc("onesr")
    Xf = [P.alloc(f"xf{i}", 4) for i in range(NS)]
    Wf = [P.alloc(f"wf{i}", 4) for i in range(NS)]
    acc = P.alloc("acc", 16); csr = P.alloc("csr", 16); pk = P.alloc("pk", 8); st = P.alloc("st", 2)
    jt = [P.alloc(f"jt{i}") for i in range(8)]
    sJ0, sJ1, sJb, sJs = 58, 59, 60, 61
    a("K1_MM:")
    a(f"s_sub_u32 s{sW}, s{sW}, 4")
    if CODEPF:
        a.c("pull the code of this launch list into L2 (one dword per 128-byte line)")
        a(f"""
        s_getpc_b64 s[6:7]
        K1_PC:
        s_sub_u32 s6, s6, K1_PC-qkv_kernel
        s_subb_u32 s7, s7, 0
        s_lshl_b32 s{sT0}, s{sW}, 13
        s_add_u32 s6, s6, s{sT0}
        s_addc_u32 s7, s7, 0
        v_lshlrev_b32 v{vt[4]}, 7, v0
        v_mov_b32 v{vt[5]}, s7
        v_add_co_u32 v{vt[4]}, vcc, s6, v{vt[4]}
        s_nop 1
        v_addc_co_u32 v{vt[5]}, vcc, 0, v{vt[5]}, vcc
        global_load_dword v{jt[0]}, v[{vt[4]}:{vt[5]}], off
        """)
    def job_issue():
        a(f"""
        v_lshrrev_b32 v{jt[2]}, 4, v0
        v_and_b32 v{jt[3]}, 15, v0
        s_lshl_b32 s{sJ1}, s{sW}, 11
        s_add_u32 s{sJs}, s{sJ1}, {STBASE + 8192}
        v_bfe_u32 v{jt[5]}, v0, 2, 2
        v_and_b32 v{jt[6]}, 3, v0
        v_lshlrev_b32 v{jt[4]}, 4, v0
        s_cmp_eq_u32 s{sW}, 2
        s_cbranch_scc1 K1_WOJ
        """)
        a.c("w2 re-layout: block b = 3*wg + {0,1,2} ; ks = b>>3, cb = b&7")
        srd(a, SWO, 4, 5, 0, 1409024)
        a(f"""
        s_mul_i32 s{sJb}, s2, 3
        s_min_u32 s{sJ0}, s{sW}, 2
        s_add_u32 s{sJb}, s{sJb}, s{sJ0}
        s_lshr_b32 s{sJ0}, s{sJb}, 3
        s_lshl_b32 s{sJ0}, s{sJ0}, 14
        s_and_b32 s{sJ1}, s{sJb}, 7
        s_lshl_b32 s{sJ1}, s{sJ1}, 7
        s_add_u32 s{sJ0}, s{sJ0}, s{sJ1}
        v_lshrrev_b32 v{jt[7]}, 3, v0
        v_lshlrev_b32 v{jt[7]}, 10, v{jt[7]}
        v_and_b32 v{jt[0]}, 7, v0
        v_lshl_add_u32 v{jt[7]}, v{jt[0]}, 4, v{jt[7]}
        s_mov_b32 m0, s{sJs}
        s_add_u32 s{sJ1}, s{sJ0}, 0x2000
        buffer_load_dwordx4 v{jt[7]}, {s(SWO,4)}, s{sJ0} offen lds
        s_add_u32 m0, s{sJs}, 1024
        v_lshrrev_b32 v{jt[0]}, 5, v0
        buffer_load_dwordx4 v{jt[7]}, {s(SWO,4)}, s{sJ1} offen lds
        v_lshlrev_b32 v{jt[0]}, 9, v{jt[0]}
        v_lshl_add_u32 v{jt[0]}, v{jt[5]}, 7, v{jt[0]}
        v_bfe_u32 v{jt[1]}, v0, 4, 1
        v_lshl_add_u32 v{jt[0]}, v{jt[1]}, 5, v{jt[0]}
        v_lshl_add_u32 v{jt[0]}, v{jt[6]}, 3, v{jt[0]}
        v_add_u32 v{jt[0]}, s{sJs}, v{jt[0]}
        s_and_b32 s{sJ0}, s{sJb}, 7
        s_lshl_b32 s{sJ0}, s{sJ0}, 3
        s_bfe_u32 s{sJ1}, s{sJb}, 0x30003
        s_add_u32 s{sJ0}, s{sJ0}, s{sJ1}
        s_mul_i32 s{sJ0}, s{sJ0}, 11
        s_lshr_b32 s{sJ1}, s{sJb}, 6
        s_add_u32 s{sJ0}, s{sJ0}, s{sJ1}
        s_lshl_b32 s{sJ0}, s{sJ0}, 11
        s_cmp_lt_u32 s{sJb}, 704
        s_cselect_b32 s{sJ0}, s{sJ0}, 0x1000000
        """)
        srd(a, SWO, 16, 17, WS_W2, W2F_BYTES)
        a(f"""
        v_add_u32 v{jt[1]}, 1024, v{jt[0]}
        v_add_u32 v{jt[2]}, 64, v{jt[0]}
        v_add_u32 v{jt[3]}, 1088, v{jt[0]}
        s_branch K1_JOBST
        K1_WOJ:
        """)
        a.c("wo re-layout: block rows 32*(wg>>4).., cols 32*(wg&15)..")
        srd(a, SWO, 18, 19, 0, 524288)
        a(f"""
        s_lshr_b32 s{sJ0}, s2, 4
        s_lshl_b32 s{sJ0}, s{sJ0}, 15
        s_and_b32 s{sJ1}, s2, 15
        s_lshl_b32 s{sJ1}, s{sJ1}, 6
        s_add_u32 s{sJ0}, s{sJ0}, s{sJ1}
        v_lshrrev_b32 v{jt[7]}, 2, v0
        v_lshlrev_b32 v{jt[7]}, 10, v{jt[7]}
        v_lshl_add_u32 v{jt[7]}, v{jt[6]}, 4, v{jt[7]}
        s_mov_b32 m0, s{sJs}
        s_add_u32 s{sJ1}, s{sJ0}, 0x4000
        buffer_load_dwordx4 v{jt[7]}, {s(SWO,4)}, s{sJ0} offen lds
        s_add_u32 m0, s{sJs}, 1024
        v_lshlrev_b32 v{jt[0]}, 9, v{jt[2]}
        buffer_load_dwordx4 v{jt[7]}, {s(SWO,4)}, s{sJ1} offen lds
        v_lshl_add_u32 v{jt[0]}, v{jt[5]}, 6, v{jt[0]}
        v_lshl_add_u32 v{jt[0]}, v{jt[6]}, 3, v{jt[0]}
        v_add_u32 v{jt[0]}, s{sJs}, v{jt[0]}
        s_lshr_b32 s{sJ0}, s2, 5
        s_lshl_b32 s{sJ0}, s{sJ0}, 16
        s_bfe_u32 s{sJ1}, s2, 0x30001
        s_lshl_b32 s{sJ1}, s{sJ1}, 13
        s_add_u32 s{sJ0}, s{sJ0}, s{sJ1}
        s_bfe_u32 s{sJ1}, s2, 0x10004
        s_lshl_b32 s{sJ1}, s{sJ1}, 12
        s_add_u32 s{sJ0}, s{sJ0}, s{sJ1}
        s_and_b32 s{sJ1}, s2, 1
        s_lshl_b32 s{sJ1}, s{sJ1}, 11
        s_add_u32 s{sJ0}, s{sJ0}, s{sJ1}
        """)
        srd(a, SWO, 16, 17, WS_WO, 524288)
        a(f"""
        v_add_u32 v{jt[1]}, 256, v{jt[0]}
        v_add_u32 v{jt[2]}, 32, v{jt[0]}
        v_add_u32 v{jt[3]}, 288, v{jt[0]}
        K1_JOBST:
        """)
    a(f"""
    s_and_b32 s{sWR}, s{sW}, 1
    s_bfe_u32 s{sWC}, s{sW}, 0x10001
    v_and_b32 v{vt[0]}, 31, v0
    v_lshrrev_b32 v{vt[1]}, 5, v0
    s_lshl_b32 s{sT0}, s{sWR}, 13
    v_lshlrev_b32 v{vt[2]}, 8, v{vt[0]}
    v_add_u32 v{vt[2]}, s{sT0}, v{vt[2]}
    v_and_b32 v{vt[3]}, 15, v0
    v_xor_b32 v{vt[3]}, v{vt[3]}, v{vt[1]}
    s_lshl_b32 s{sT1}, s{sWR}, 1
    v_xor_b32 v{vt[3]}, s{sT1}, v{vt[3]}
    v_mov_b32 v{onesr}, 0x3f803f80
    v_mov_b32 v{vcs[0]}, 0
    v_mov_b32 v{vcs[1]}, 0
    """)
    for i in range(8):
        a(f"v_xor_b32 v{vt[4]}, {2*i}, v{vt[3]}")
        a(f"v_lshl_add_u32 v{vXa[i]}, v{vt[4]}, 4, v{vt[2]}")
    a(f"""
    v_lshlrev_b32 v{vt[4]}, 9, v{vt[1]}
    v_bfe_u32 v{vt[5]}, v0, 2, 2
    v_lshl_add_u32 v{vt[4]}, v{vt[5]}, 6, v{vt[4]}
    v_bfe_u32 v{vt[5]}, v0, 4, 1
    v_lshl_add_u32 v{vt[4]}, v{vt[5]}, 5, v{vt[4]}
    v_and_b32 v{vt[5]}, 3, v0
    v_lshl_add_u32 v{vt[4]}, v{vt[5]}, 3, v{vt[4]}
    s_lshl_b32 s{sT0}, s{sWC}, 15
    s_add_u32 s{sT0}, s{sT0}, {WBASE}
    s_lshl_b32 s{sT1}, s{sWR}, 10
    s_add_u32 s{sT0}, s{sT0}, s{sT1}
    v_add_u32 v{vWa[0]}, s{sT0}, v{vt[4]}
    v_xor_b32 v{vWa[1]}, 0x400, v{vWa[0]}
    s_lshl_b32 s{sT0}, s{sWR}, 9
    s_add_u32 s{sT0}, s{sT0}, {STBASE}
    v_lshlrev_b32 v{vt[2]}, 4, v{vt[0]}
    v_add_u32 v{vt[2]}, s{sT0}, v{vt[2]}
    s_lshl_b32 s{sT1}, s{sWC}, 7
    s_add_u32 s{sT1}, s{sT1}, {STBASE + 1024}
    v_lshlrev_b32 v{vt[5]}, 4, v{vt[1]}
    v_add_u32 v{vt[5]}, s{sT1}, v{vt[5]}
    s_lshl_b32 s{sT0}, s{sRB}, 16
    s_lshl_b32 s{sT1}, s{sWR}, 15
    s_add_u32 s{sT0}, s{sT0}, s{sT1}
    s_lshl_b32 s{sT1}, s{sCB}, 10
    s_add_u32 s{sT0}, s{sT0}, s{sT1}
    s_lshl_b32 s{sT1}, s{sWC}, 8
    s_add_u32 s{sT0}, s{sT0}, s{sT1}
    v_lshrrev_b32 v{vt[6]}, 3, v{vt[0]}
    v_lshlrev_b32 v{vt[6]}, 13, v{vt[6]}
    v_lshl_add_u32 v{vt[6]}, v{vt[1]}, 9, v{vt[6]}
    v_and_b32 v{vt[7]}, 7, v0
    v_lshl_add_u32 v{vt[6]}, v{vt[7]}, 4, v{vt[6]}
    """)
    a("s_waitcnt lgkmcnt(0)")
    srd(a, SQ, 16, 17, WS_Q, 0x200000)
    def reads(i):
        c, ip = i >> 3, i & 7
        sl = i % NS
        a(f"ds_read_b128 {v(Xf[sl],4)}, v{vXa[ip]} offset:{c*16384}")
        a(f"ds_read_b64_tr_b16 {v(Wf[sl],2)}, v{vWa[i&1]} offset:{(i&~1)*1024}")
        a(f"ds_read_b64_tr_b16 {v(Wf[sl]+2,2)}, v{vWa[i&1]} offset:{(i&~1)*1024+256}")
    a("s_waitcnt lgkmcnt(0)")
    srd(a, SKV, 16, 17, WS_FLG, 4096)
    a(f"""
    v_lshlrev_b32 v{vt[1]}, 2, v0
    v_mov_b32 v{vt[7]}, 0
    s_lshl_b32 s{sT1}, s2, 8
    s_cmp_eq_u32 s{sW}, 0
    s_cselect_b32 s{sT1}, s{sT1}, 0x10000
    buffer_store_dword v{vt[7]}, v{vt[1]}, {s(SKV,4)}, s{sT1} offen
    """)
    nxt = 0
    for i in range(32):
        c = i >> 3
        if i % 8 == 0:
            a("s_barrier")
            stamp(a, 2 + c)
            lim = (c + 1) * 8
        while nxt < min(i + NS, lim):
            reads(nxt); nxt += 1
        a(f"s_waitcnt lgkmcnt({(nxt - 1 - i) * 3})")
        a(f"v_mfma_f32_32x32x16_bf16 {v(acc,16)}, {v(Wf[i % NS],4)}, {v(Xf[i % NS],4)}, {'0' if i == 0 else v(acc,16)}")
        if (i & 1) == 0:
            for j in range(4):
                a(f"v_dot2c_f32_bf16 v{vcs[j&1]}, v{Wf[i % NS]+j}, v{onesr}")
        if i == 3:
            a("s_waitcnt vmcnt(0)")
            job_issue()
    a.c("column sums: [wr][64]")
    a(f"""
    s_nop 0
    v_add_f32 v{vcs[0]}, v{vcs[0]}, v{vcs[1]}
    s_lshl_b32 s{sJ1}, s{sWR}, 8
    v_mov_b32 v{vcs[1]}, v{vcs[0]}
    s_lshl_b32 s{sJb}, s{sWC}, 7
    s_add_u32 s{sJ1}, s{sJ1}, s{sJb}
    v_permlane32_swap_b32 v{vcs[0]}, v{vcs[1]}
    s_add_u32 s{sJ1}, s{sJ1}, {STBASE + 1024}
    v_lshlrev_b32 v{onesr}, 2, v{vt[0]}
    v_add_f32 v{vcs[0]}, v{vcs[0]}, v{vcs[1]}
    v_add_u32 v{onesr}, s{sJ1}, v{onesr}
    ds_write_b32 v{onesr}, v{vcs[0]}
    """)
    a.c("finish the re-layout job")
    a(f"""
    s_waitcnt vmcnt(0)
    ds_read_b64_tr_b16 {v(pk,2)}, v{jt[0]}
    ds_read_b64_tr_b16 {v(pk+2,2)}, v{jt[1]}
    ds_read_b64_tr_b16 {v(pk+4,2)}, v{jt[2]}
    ds_read_b64_tr_b16 {v(pk+6,2)}, v{jt[3]}
    s_waitcnt lgkmcnt(0)
    buffer_store_dwordx4 {v(pk,4)}, v{jt[4]}, {s(SWO,4)}, s{sJ0} offen {K1F}
    buffer_store_dwordx4 {v(pk+4,4)}, v{jt[4]}, {s(SWO,4)}, s{sJ0} offen offset:1024 {K1F}
    """)
    stamp(a, 6)
    a("s_barrier")
    cs2 = Xf[0]
    a(f"ds_read_b64 {v(st,2)}, v{vt[2]}")
    for q in range(4):
        a(f"ds_read_b128 {v(csr+4*q,4)}, v{vt[5]} offset:{32*q}")
        a(f"ds_read_b128 {v(cs2+4*q,4)}, v{vt[5]} offset:{256+32*q}")
    a("s_nop 0\ns_waitcnt lgkmcnt(8)")
    for r in range(8):
        a(f"v_pk_mul_f32 {v(acc+2*r,2)}, {v(acc+2*r,2)}, {v(st,2)} op_sel_hi:[1,0]")
    a("s_waitcnt lgkmcnt(0)")
    for r in range(8):
        a(f"v_pk_add_f32 {v(csr+2*r,2)}, {v(csr+2*r,2)}, {v(cs2+2*r,2)}")
    for r in range(8):
        a(f"v_pk_fma_f32 {v(acc+2*r,2)}, {v(csr+2*r,2)}, {v(st,2)}, {v(acc+2*r,2)} op_sel:[0,1,0] op_sel_hi:[1,1,1] neg_lo:[1,0,0] neg_hi:[1,0,0]")
    for j in range(8):
        a(f"v_cvt_pk_bf16_f32 v{pk+j}, v{acc+2*j}, v{acc+2*j+1}")
    a(f"""
    buffer_store_dwordx4 {v(pk,4)}, v{vt[6]}, {s(SQ,4)}, s{sT0} offen {K1Q}
    buffer_store_dwordx4 {v(pk+4,4)}, v{vt[6]}, {s(SQ,4)}, s{sT0} offen offset:128 {K1Q}
    s_add_u32 s{sW}, s{sW}, 4
    K1_DONE:
    """)
    stamp_dump(a, 0, sW)
    a("K1_END:")
    a("s_endpgm")
    return name, R.cur, K1_LDS
```

```python
from asmlib import *
from common import *
import os

W1L = 0
QL = 98304
EXB = QL
OACC = QL + 8192
LACC = OACC + 16384
OFB = LACC + 1024
MISC = OFB + 1024
XL = MISC + 2048
B1L = EXB + 49152
K2_LDS = B1L + 256
RSTR = 17408
THR2 = (40.0 / 1.02) ** 2
PRIO = os.environ.get("PRIO", "2")
PD = int(os.environ.get("PD", "2"))
EXP = os.environ.get("EXP", "").split(",")
LDF = os.environ.get("LDF", "sc1").replace("_", " ").replace("none", "")
RELOAD = os.environ.get("RELOAD", "0") == "1"
OUTF = os.environ.get("OUTF", "").replace("_", " ")
SLOW_V0 = min(16, 2*PD + 10)

def gen_k2(a):
    name = "attn_kernel"
    kernel_header(a, name)
    R = Regs(1, 256)
    vt = [R.alloc(f"t{i}") for i in range(6)]
    vidx = R.alloc("idx")
    vQa = R.alloc("qa")
    vOa = R.alloc("oa"); vLa = R.alloc("la")
    vNr = R.alloc("nr"); vNl = R.alloc("nl"); vNw = R.alloc("nw")
    vOFa = R.alloc("ofa")
    vKo = R.alloc("ko"); vVo = R.alloc("vo"); vQl = R.alloc("ql"); vW1o = R.alloc("w1o")
    vP1r = R.alloc("p1r"); vP2r = R.alloc("p2r"); vPw = R.alloc("pw"); vPv = R.alloc("pv"); vCnt = R.alloc("cnt")
    zero = R.alloc("zero", 4)
    Q = R.alloc("q", 4)
    nrm = R.alloc("nrm", 8, 4)
    Kf = R.alloc("k", 32)
    Vf = R.alloc("v", 64)
    S = [R.alloc(f"s{i}", 16) for i in range(2)]
    O = [R.alloc(f"o{i}", 16) for i in range(2)]
    woA = R.alloc("woa", 16)
    T = R.alloc("T", 16)
    OFr = R.alloc("ofr", 8)
    hacc = R.alloc("hacc", 16)
    Qw = OFr
    vM = [vt[1], vt[2]]
    sW, sRB, sT0, sT1, sT2, sWm, sSo, sHalf = 20, 21, 22, 23, 44, 45, 46, 47
    sMaskLo, sV1, sV2 = 48, 50, 51
    sG, sMm, sT0f, sW1m, sV2x, sRot = 4, 5, 6, 7, 60, 61
    SQ, SKV, SWO, SX, SH, SHN, SP = 24, 28, 32, 36, 40, 52, 56
    a(f"""
    s_cmp_ge_u32 s2, 256
    s_cbranch_scc1 K2_END
    s_setprio 3
    s_load_dwordx2 s[16:17], s[0:1], 96
    s_load_dwordx2 s[8:9], s[0:1], 0
    s_load_dwordx4 s[12:15], s[0:1], 48
    s_load_dwordx2 s[18:19], s[0:1], 72
    s_load_dwordx2 s[10:11], s[0:1], 80
    v_lshrrev_b32 v{vt[0]}, 6, v0
    v_and_b32 v0, 63, v0
    v_readfirstlane_b32 s{sW}, v{vt[0]}
    v_lshlrev_b32 v{vQa}, 4, v0
    s_and_b32 s{sT0}, s2, 7
    s_lshr_b32 s{sT1}, s2, 3
    s_lshl_b32 s{sRB}, s{sT0}, 5
    s_add_u32 s{sRB}, s{sRB}, s{sT1}
    s_lshl_b32 s{sWm}, s{sW}, 13
    v_add_u32 v{vKo}, s{sWm}, v{vQa}
    v_lshrrev_b32 v{vt[3]}, 5, v0
    v_and_b32 v{vt[4]}, 31, v0
    v_lshlrev_b32 v{vt[2]}, 4, v{vt[4]}
    v_lshl_add_u32 v{vt[2]}, v{vt[3]}, 8, v{vt[2]}
    s_mul_i32 s{sT0}, s{sW}, {16*VSTR}
    s_add_u32 s{sT0}, s{sT0}, 0x10000
    v_and_b32 v{vt[1]}, 27, v0
    v_cmp_eq_u32 vcc, 16, v{vt[1]}
    v_mov_b32 v{vt[1]}, 0x40000000
    v_mov_b32 v{vt[5]}, 512
    v_cndmask_b32 v{vt[1]}, v{vt[1]}, v{vt[5]}, vcc
    v_cmp_gt_u32 vcc, 16, v{vt[4]}
    v_lshlrev_b32 v{vt[5]}, 3, v0
    s_nop 0
    v_cndmask_b32 v{vt[1]}, v{vt[1]}, v{vt[2]}, vcc
    v_add_u32 v{vVo}, s{sT0}, v{vt[1]}
    s_lshl_b32 s{sT1}, s{sRB}, 13
    s_lshl_b32 s{sT2}, s{sW}, 10
    s_add_u32 s{sT0}, s{sT1}, s{sT2}
    s_mov_b32 s{sSo}, 0x21000
    s_movk_i32 s{sT2}, 0x1000
    s_movk_i32 s{sV1}, {7*VSTR}
    s_movk_i32 s{sV2}, {14*VSTR}
    s_lshr_b32 s{sHalf}, s{sW}, 2
    """)
    stamp_init(a)
    a("s_waitcnt lgkmcnt(0)")
    srd(a, SQ, 16, 17, WS_Q, 0x200000)
    srd(a, SKV, 16, 17, WS_K, KV_BYTES)
    order = []
    def ldK(j):
        so = "0" if j < 4 else f"s{sT2}"
        order.append(f"K{j}")
        return f"buffer_load_dwordx4 {v(Kf+4*j,4)}, v{vKo}, {s(SKV,4)}, {so} offen offset:{(j&3)*1024}"
    def ldV(i):
        so = ("0", f"s{sV1}", f"s{sV2}")[i // 7]
        order.append(f"V{i}")
        return f"buffer_load_dwordx4 {v(Vf+4*i,4)}, v{vVo}, {s(SKV,4)}, {so} offen offset:{(i%7)*VSTR}"
    def ldW(t, ks, ct, dst):
        order.append(f"W{t}_{ks}_{ct}")
        pre = f"s_mov_b32 s{sSo}, {t*65536 + ks*4096}\n"
        return pre + f"buffer_load_dwordx4 {v(dst+4*ct,4)}, v{vKo}, {s(SWO,4)}, s{sSo} offen offset:{ct*1024}"
    def wait_for(item):
        return f"s_waitcnt vmcnt({len(order) - 1 - order.index(item)})"
    a(f"buffer_load_dwordx4 {v(Q,4)}, v{vQa}, {s(SQ,4)}, s{sT1} offen"); order.append("Q")
    a(ldK(0)); a(ldK(1)); a(ldV(0)); a(ldV(1)); a(ldK(2))
    a(f"buffer_load_dwordx4 {v(Qw,4)}, v{vQa}, {s(SQ,4)}, s{sT0} offen"); order.append("QW")
    a(f"buffer_load_dwordx2 {v(nrm,2)}, v{vt[5]}, {s(SKV,4)}, s{sSo} offen"); order.append("KM")
    for i in range(1, PD):
        a(ldV(2*i)); a(ldV(2*i + 1))
        if i + 2 < 8:
            a(ldK(i + 2))
    a("s_setprio 0")
    pro_order = list(order)
    srd(a, SWO, 16, 17, WS_WO, 524288)
    for i in range(4):
        a(f"v_mov_b32 v{zero+i}, 0")
    a(f"v_mov_b32 v{vidx}, 0xdddddddd")
    a("s_nop 0")
    for o in O:
        a(f"v_mfma_f32_32x32x16_bf16 {v(o,16)}, {v(zero,4)}, {v(zero,4)}, 0")
    a.c("LDS addresses")
    a(f"""
    s_lshl_b32 s{sT0}, s{sW}, 2
    s_add_u32 s{sT1}, s{sT0}, {MISC + 32}
    v_mov_b32 v{vPw}, s{sT1}
    ds_write2_b32 v{vPw}, v{zero}, v{zero} offset1:8
    s_add_u32 s{sT0}, s{sT0}, {LACC}
    v_lshlrev_b32 v{vLa}, 5, v{vt[4]}
    v_add_u32 v{vLa}, s{sT0}, v{vLa}
    s_lshl_b32 s{sT0}, s{sW}, 11
    s_add_u32 s{sT0}, s{sT0}, {OACC}
    v_add_u32 v{vOa}, s{sT0}, v{vQa}
    s_and_b32 s{sT1}, s{sW}, 3
    v_and_b32 v{vt[2]}, 7, v0
    v_lshlrev_b32 v{vP1r}, 2, v{vt[2]}
    v_add_u32 v{vP1r}, {MISC + 32}, v{vP1r}
    v_and_b32 v{vt[1]}, 3, v0
    v_lshlrev_b32 v{vP2r}, 2, v{vt[1]}
    v_add_u32 v{vP2r}, {MISC + 64}, v{vP2r}
    v_bfe_u32 v{vt[1]}, v0, 4, 1
    v_bfe_u32 v{vt[4]}, v0, 3, 1
    v_lshlrev_b32 v{vNr}, 4, v{vt[2]}
    v_lshl_add_u32 v{vNw}, v{vt[3]}, 7, v{vNr}
    v_lshl_add_u32 v{vNr}, v{vt[3]}, 10, v{vNr}
    v_lshl_add_u32 v{vNr}, v{vt[1]}, 9, v{vNr}
    v_lshl_add_u32 v{vNr}, v{vt[4]}, 3, v{vNr}
    s_lshl_b32 s{sT0}, s{sT1}, 7
    s_add_u32 s{sT0}, s{sT0}, {OACC}
    v_add_u32 v{vNr}, s{sT0}, v{vNr}
    s_lshl_b32 s{sT0}, s{sT1}, 8
    s_add_u32 s{sSo}, s{sT0}, {LACC}
    v_lshlrev_b32 v{vNl}, 5, v{vt[2]}
    v_add_u32 v{vNl}, s{sSo}, v{vNl}
    v_bfe_u32 v{vt[3]}, v0, 3, 2
    v_lshl_add_u32 v{vNw}, v{vt[3]}, 2, v{vNw}
    s_add_u32 s{sSo}, s{sT0}, {OFB}
    v_add_u32 v{vNw}, s{sSo}, v{vNw}
    v_lshrrev_b32 v{vt[3]}, 4, v0
    v_lshlrev_b32 v{vt[2]}, 4, v{vt[2]}
    v_lshl_add_u32 v{vOFa}, v{vt[3]}, 7, v{vt[2]}
    v_add_u32 v{vOFa}, {OFB}, v{vOFa}
    """)
    srd(a, SX, 8, 9, 0, 0x200000)
    srd(a, SHN, 16, 17, WS_HN, 0x200000)
    srd(a, SP, 12, 13, 0, 1409024)
    srd(a, SH, 16, 17, WS_W2, W2F_BYTES)
    a(f"""
    s_lshr_b32 s{sT0}, s2, 3
    s_mul_i32 s{sT1}, s{sT0}, 44032
    s_add_u32 s{sT1}, s{sT1}, s{sWm}
    v_lshlrev_b32 v{vt[5]}, 7, v0
    s_lshl_b32 s{sMaskLo}, s{sT0}, 14
    s_and_b32 s{sT0}, s{sWm}, 0x2000
    s_add_u32 s{sMaskLo}, s{sMaskLo}, s{sT0}
    s_mov_b32 s{sMaskLo+1}, s{sT1}
    s_lshr_b32 s{sT0}, s2, 3
    s_mul_i32 s{sV2x}, s{sT0}, 45056
    s_add_u32 s{sV2x}, s{sV2x}, s{sWm}
    s_lshr_b32 s{sG}, s{sRB}, 4
    s_and_b32 s{sMm}, s{sRB}, 15
    s_mul_i32 s{sT0f}, s{sMm}, 3
    s_min_u32 s{sT0f}, s{sT0f}, 40
    v_add_u32 v{vQl}, {QL}, v{vQa}
    v_lshrrev_b32 v{vt[3]}, 2, v0
    v_mul_u32_u24 v{vt[3]}, 2752, v{vt[3]}
    v_and_b32 v{vt[4]}, 3, v0
    v_lshl_add_u32 v{vt[3]}, v{vt[4]}, 4, v{vt[3]}
    s_lshl_b32 s{sT0}, s{sT0f}, 6
    s_mul_i32 s{sT1}, s{sHalf}, {16*44032}
    s_add_u32 s{sT0}, s{sT0}, s{sT1}
    v_add_u32 v{vW1o}, s{sT0}, v{vt[3]}
    s_lshl_b32 s{sRot}, s{sW}, 2
    s_add_u32 s{sRot}, s{sRot}, s{sMm}
    s_mul_i32 s{sW1m}, s{sW}, {4*3072}
    """)
    stamp(a, 1)
    def bound_check():
        n = nrm
        P = []
        P.append(lambda: f"s_lshl_b32 s{sT0}, s{sW}, 10\nv_add_u32 v{vt[0]}, s{sT0}, v{vQl}\nv_mov_b32 v{n+2}, 0\n{wait_for('KM')}\nds_write_b128 v{vt[0]}, {v(Qw,4)}")
        P.append("\n".join(f"v_dot2c_f32_bf16 v{n+2}, v{Qw+i}, v{Qw+i}" for i in range(4)) + f"\nv_max_f32 v{n}, v{n}, v{n+1}\ns_nop 0")
        P.append(f"v_max_f32_dpp v{n}, v{n}, v{n} row_ror:8 row_mask:0xf bank_mask:0xf\nv_mov_b32 v{n+3}, v{n+2}")
        P.append(f"v_max_f32_dpp v{n}, v{n}, v{n} row_ror:4 row_mask:0xf bank_mask:0xf\nv_permlane32_swap_b32 v{n+2}, v{n+3}")
        P.append(f"v_max_f32_dpp v{n}, v{n}, v{n} row_ror:2 row_mask:0xf bank_mask:0xf\nv_add_f32 v{n+2}, v{n+2}, v{n+3}")
        P.append(f"v_max_f32_dpp v{n}, v{n}, v{n} row_ror:1 row_mask:0xf bank_mask:0xf\nv_mov_b32 v{n+1}, v{n}\ns_nop 0")
        P.append(f"v_permlane32_swap_b32 v{n}, v{n+1}\nv_max_f32 v{n}, v{n}, v{n+1}\nv_mov_b32 v{n+1}, v{n}\ns_nop 0")
        P.append(f"v_permlane16_swap_b32 v{n}, v{n+1}\nv_max_f32 v{n}, v{n}, v{n+1}\nv_mul_f32 v{n}, v{n}, v{n+2}\nv_mov_b32 v{n+1}, {hex(f32bits(THR2))}\n"
                 f"v_cmp_nle_f32 vcc, v{n}, v{n+1}\ns_lshl_b32 s{sT0}, s{sW}, 2\ns_add_u32 s{sT0}, s{sT0}, {MISC}")
        P.append(f"s_cmp_lg_u64 vcc, 0\ns_cselect_b32 s{sT1}, 1, 0\nv_mov_b32 v{vt[0]}, s{sT0}\nv_mov_b32 v{vt[1]}, s{sT1}\nds_write_b32 v{vt[0]}, v{vt[1]}\nv_mov_b32 v{vt[0]}, {MISC}")
        return P
    flag_reads = f"ds_read_b128 {v(nrm,4)}, v{vt[0]}\nds_read_b128 {v(nrm+4,4)}, v{vt[0]} offset:16"
    flag_test = (f"s_waitcnt lgkmcnt(0)\nv_or3_b32 v{nrm}, v{nrm}, v{nrm+1}, v{nrm+2}\nv_or3_b32 v{nrm+3}, v{nrm+3}, v{nrm+4}, v{nrm+5}\n"
                 f"v_or3_b32 v{nrm}, v{nrm}, v{nrm+6}, v{nrm+7}\nv_or_b32 v{nrm}, v{nrm}, v{nrm+3}\ns_nop 0\n"
                 f"v_readfirstlane_b32 s{sT0}, v{nrm}\ns_cmp_lg_u32 s{sT0}, 0\ns_cbranch_scc1 K2_SLOW")

    def smf(tau):
        t, j = divmod(tau, 8)
        return f"v_mfma_f32_32x32x16_bf16 {v(S[tau&1],16)}, {v(Kf+4*j,4)}, {v(Q,4)}, 0"
    def pv(tau, h):
        t, j = divmod(tau, 8)
        return f"v_smfmac_f32_32x32x32_bf16 {v(O[t&1],16)}, {v(Vf+8*j+4*h,4)}, {v(S[tau&1]+8*h,8)}, v{vidx}"
    def drain(t):
        o = O[t & 1]
        return [f"ds_write_b128 v{vOa}, {v(o,4)}", f"ds_write_b128 v{vOa}, {v(o+4,4)} offset:1024", f"ds_write_b32 v{vLa}, v{o+8}"]
    retries = []
    def check(areg, off, val, lab):
        retries.append(f"K2_R{lab}:\nds_read_b32 v{vPv}, v{areg} offset:{off}\ns_waitcnt lgkmcnt(0)\nv_cmp_gt_u32 vcc, {val}, v{vPv}\n"
                       f"s_cbranch_vccnz K2_R{lab}\ns_branch K2_C{lab}")
        return f"s_waitcnt lgkmcnt(0)\nv_cmp_gt_u32 vcc, {val}, v{vPv}\ns_cbranch_vccnz K2_R{lab}\nK2_C{lab}:\n"
    def norm_reads():
        L = f"ds_read_b128 {v(nrm,4)}, v{vNl}\nds_read_b128 {v(nrm+4,4)}, v{vNl} offset:16\n"
        for w in range(8):
            L += f"ds_read_b64 {v(T+2*w,2)}, v{vNr} offset:{w*2048}\n"
        return L
    def norm_comp():
        L = f"s_waitcnt lgkmcnt(0)\n"
        L += f"v_pk_add_f32 {v(nrm,2)}, {v(nrm,2)}, {v(nrm+2,2)}\n"
        L += f"v_pk_add_f32 {v(nrm+4,2)}, {v(nrm+4,2)}, {v(nrm+6,2)}\n"
        for w in range(4):
            L += f"v_pk_add_f32 {v(T+4*w,2)}, {v(T+4*w,2)}, {v(T+4*w+2,2)}\n"
        L += f"v_pk_add_f32 {v(nrm,2)}, {v(nrm,2)}, {v(nrm+4,2)}\n"
        L += f"v_pk_add_f32 {v(T,2)}, {v(T,2)}, {v(T+4,2)}\n"
        L += f"v_add_f32 v{nrm}, v{nrm}, v{nrm+1}\n"
        L += f"v_pk_add_f32 {v(T+8,2)}, {v(T+8,2)}, {v(T+12,2)}\n"
        L += f"v_rcp_f32 v{nrm}, v{nrm}\n"
        L += f"v_pk_add_f32 {v(T,2)}, {v(T,2)}, {v(T+8,2)}\n"
        L += f"v_pk_mul_f32 {v(T,2)}, {v(T,2)}, {v(nrm,2)} op_sel_hi:[1,0]\n"
        L += f"v_cvt_pk_bf16_f32 v{T}, v{T}, v{T+1}\n"
        L += f"ds_write_b32 v{vNw}, v{T}\n"
        return L
    def only_half(t, lab, body):
        return f"s_cmp_lg_u32 s{sHalf}, {t&1}\ns_cbranch_scc1 K2_N{lab}\n{body}K2_N{lab}:\n"
    def of_reads():
        return "\n".join(f"ds_read_b128 {v(OFr+4*ks,4)}, v{vOFa} offset:{ks*512}" for ks in range(2))
    def wo_mfma(ks, ct, src, first=False):
        return f"v_mfma_f32_16x16x32_bf16 {v(hacc+4*ct,4)}, {v(src+4*ct,4)}, {v(OFr+4*ks,4)}, {'0' if first else v(hacc+4*ct,4)}"
    W7 = [Kf, Kf + 16]
    W2R = Vf + 8
    assert S[0] == Vf + 64 and S[1] == S[0] + 16 and Q == zero + 4 and nrm == Q + 4
    X = Vf

    sCB2, sW2o, sB3 = sV2, sV2x, 48
    def ldW2(i):
        if "NOW2A" in EXP and i < 8: return "s_nop 7\ns_nop 1\n"
        if "NOW2B" in EXP and i >= 8: return ""
        L = (f"s_add_u32 s{sSo}, s{sCB2}, {i}\ns_sub_u32 s{sT1}, s{sSo}, 11\ns_cselect_b32 s{sSo}, s{sSo}, s{sT1}\n"
             f"s_lshl_b32 s{sSo}, s{sSo}, 11\ns_add_u32 s{sSo}, s{sSo}, s{sW2o}\n")
        for ct in range(2):
            L += f"buffer_load_dwordx4 {v(W2R+8*i+4*ct,4)}, v{vQa}, {s(SH,4)}, s{sSo} offen offset:{ct*1024}\n"
        return L

    def mainloop(slow):
        tag = "S" if slow else "F"
        order[:] = [] if slow else list(pro_order)
        if slow:
            a(f"ds_read_b32 v{vM[0]}, v{vt[0]}")
            a("s_waitcnt lgkmcnt(0)")
        else:
            a(wait_for("K0"))
            stamp(a, 2)
        a(smf(0))
        a("s_nop 7")
        a("s_nop 3")
        for tau in range(64):
            t, j = divmod(tau, 8)
            slots = [[] for _ in range(17)]
            p1 = 11
            if PRIO == "1" and (j & 1) == 0:
                slots[0].append(f"s_setprio {3 - j // 2}")
            if PRIO == "2":
                slots[0].append(f"s_setprio {3 - (j & 3)}")
            if tau > 0:
                slots[3].append(pv(tau - 1, 1))
            if t == 0 and not slow:
                if j + PD < 8:
                    slots[0].append(lambda j=j: ldV(2*(j + PD)))
                    slots[4].append(lambda j=j: ldV(2*(j + PD) + 1))
                if j + PD + 2 < 8:
                    slots[8].append(lambda j=j: ldK(j + PD + 2))
                if j == 2:
                    for i, x in enumerate(bound_check()):
                        slots[3 + i].append(x)
                if j == 4:
                    slots[0] += ["s_waitcnt lgkmcnt(0)", "s_barrier", flag_reads]
                    slots[5].append(flag_test)
                if j == 6:
                    slots[13].append(f"s_cmp_lt_u32 s{sW}, 6\ns_cbranch_scc1 K2_PW\nbuffer_load_dword v{vt[3]}, v{vt[5]}, {s(SWO,4)}, s{sMaskLo} offen\nK2_PW:")
            nx = tau + 1
            if nx < 64:
                if t == 0 and nx < 8 and not slow:
                    slots[6].append(lambda nx=nx: wait_for(f"K{nx}"))
                if nx % 8 == 0:
                    slots[6].append("s_waitcnt lgkmcnt(0)")
                slots[6].append(smf(nx))
                if nx % 8 == 7 and t < 7:
                    slots[10].append(f"ds_read_b128 {v(Q,4)}, v{vQl} offset:{(t+1)*1024}")
                    if slow:
                        slots[10].append(f"ds_read_b32 v{vM[(t+1)&1]}, v{vt[0]} offset:{(t+1)*128}")
            if 10 <= tau < 22 and tau % 2 == 0:
                slots[13].append(f"s_cmp_lg_u32 s{sW}, {(tau-10)//2}\ns_cbranch_scc1 K2_PA{tag}{tau}\nbuffer_load_dword v{vt[3]}, v{vt[5]}, {s(SP,4)}, s{sMaskLo+1} offen\nK2_PA{tag}{tau}:")
            if 22 <= tau < 34 and tau % 2 == 0:
                slots[13].append(f"s_cmp_lg_u32 s{sW}, {(tau-22)//2}\ns_cbranch_scc1 K2_PB{tag}{tau}\nbuffer_load_dword v{vt[4]}, v{vt[5]}, {s(SH,4)}, s{sV2x} offen\nK2_PB{tag}{tau}:")
            if 36 <= tau < 60 and tau % 2 == 0:
                n = (tau - 36) // 2
                kb, ft = divmod(n, 3)
                slots[4].append(lambda kb=kb, ft=ft: (order.append("W1"), f"s_add_u32 s{sT0}, s{sRot}, {kb}\ns_and_b32 s{sT0}, s{sT0}, 15\ns_mul_i32 s{sT0}, s{sT0}, 44032\ns_add_u32 m0, s{sW1m}, {kb*3072 + ft*1024 - ft*64}\ns_nop 0\n"
                    f"buffer_load_dwordx4 v{vW1o}, {s(SP,4)}, s{sT0} offen offset:{ft*64} lds")[1])
            if t >= 1:
                u = t - 1
                if j == 1:
                    slots[0].append(f"v_mov_b32 v{vCnt}, {t}")
                    for i, x in enumerate(drain(u)):
                        slots[1 + 2*i].append(x)
                    slots[7].append(f"ds_write_b32 v{vPw}, v{vCnt}")
                if j == 2:
                    slots[13].append("s_waitcnt lgkmcnt(0)")
                if j == 3 and t == 2 and DIAG:
                    slots[0].append(stamp_str(12))
                if j == 3:
                    slots[0].append(f"ds_read_b32 v{vPv}, v{vP1r}")
                    slots[7].append(only_half(u, f"A{tag}{t}", check(vP1r, 0, t, f"A{tag}{t}") + norm_reads()))
                    slots[9] += [f"v_mfma_f32_32x32x16_bf16 {v(O[u&1],16)}, {v(zero,4)}, {v(zero,4)}, 0"]
                    p1 = 12
                if j == 4:
                    slots[3].append(only_half(u, f"B{tag}{t}", norm_comp() + f"ds_write_b32 v{vPw}, v{vCnt} offset:32\n"))
                if 1 <= j <= 4:
                    slots[13].append(lambda u=u, ct=j-1: ldW(u, 0, ct, woA))
                if 4 <= j <= 7:
                    slots[8 if j != 6 else 1].append(lambda u=u, ct=j-4: ldW(u, 1, ct, T))
                if j == 6:
                    slots[1].append(f"ds_read_b32 v{vPv}, v{vP2r} offset:{16*(u&1)}")
                    slots[8].append(check(vP2r, 16*(u&1), t, f"D{tag}{t}") + of_reads())
                    slots[15] += ["s_waitcnt lgkmcnt(0)", lambda u=u: wait_for(f"W{u}_0_1"), wo_mfma(0, 0, woA, u == 0)]
                if j == 7:
                    slots[9].append(wo_mfma(0, 1, woA, u == 0)); slots[15] += [lambda u=u: wait_for(f"W{u}_0_3"), wo_mfma(0, 2, woA, u == 0)]
            if t >= 2:
                u = t - 2
                if j == 0:
                    slots[9].append(wo_mfma(0, 3, woA, u == 0))
                    slots[15] += [lambda u=u: wait_for(f"W{u}_1_1"), wo_mfma(1, 0, T)]
                if j == 1:
                    slots[9].append(wo_mfma(1, 1, T)); slots[15] += [lambda u=u: wait_for(f"W{u}_1_2"), wo_mfma(1, 2, T)]
                if j == 2:
                    slots[9] += [lambda u=u: wait_for(f"W{u}_1_3"), wo_mfma(1, 3, T)]
            if tau == 11:
                slots[4].append(f"s_cmp_lg_u32 s{sW}, 7\ns_cbranch_scc1 K2_B1{tag}\ns_add_u32 s{SQ}, s14, 0\ns_addc_u32 s{SQ+1}, s15, 0\ns_movk_i32 s{SQ+2}, 2752\n"
                    f"s_lshl_b32 s{sT0}, s{sT0f}, 6\nv_lshlrev_b32 v{vt[3]}, 2, v0\ns_mov_b32 m0, {B1L}\ns_nop 0\nbuffer_load_dword v{vt[3]}, {s(SQ,4)}, s{sT0} offen lds\nK2_B1{tag}:")
            if tau == 9:
                slots[4].append(lambda: (order.append("X"), f"s_lshl_b32 s{sT0}, s{sRB}, 13\ns_lshl_b32 s{sT1}, s{sW}, 10\ns_add_u32 s{sT0}, s{sT0}, s{sT1}\n"
                    f"s_mul_i32 s{sT1}, s{sW}, 1040\ns_add_u32 m0, s{sT1}, {XL}\ns_nop 0\nbuffer_load_dwordx4 v{vQa}, {s(SX,4)}, s{sT0} offen lds")[1])
            if tau == 58:
                slots[1].append(f"s_and_b32 s{sCB2}, s{sMm}, 7\ns_lshl_b32 s{sW2o}, s{sCB2}, 3\ns_add_u32 s{sW2o}, s{sW2o}, s{sW}\ns_mul_i32 s{sW2o}, s{sW2o}, {11*2048}")
            if 59 <= tau <= 62:
                slots[4].append(lambda ct=tau-59: ldW(7, 0, ct, W7[0]))
            if 60 <= tau <= 63:
                slots[16].append(lambda ct=tau-60: ldW(7, 1, ct, W7[1]))
            if t == 0 and not slow:
                slots[p1].append(lambda j=j: wait_for(f"V{2*j+1}"))
            slots[p1].append(pv(tau, 0))
            if not slow and sum(len(x) for x in slots[7:]) < 2:
                slots[14].append("s_nop 0")
            for i in range(17):
                for x in slots[i]:
                    x = x() if callable(x) else x
                    if "NOWL" in EXP and f"{s(SWO,4)}" in x: continue
                    if "NOPF" in EXP and ("K2_PA" in x or "K2_PB" in x): continue
                    if "NOW1" in EXP and " lds" in x: continue
                    if "NOW2" in EXP and f"{s(SH,4)}" in x: continue
                    if "NODRAIN" in EXP and "ds_write" in x: continue
                    if "NOZERO" in EXP and f"{v(zero,4)}" in x: continue
                    if "NOWO" in EXP and "16x16x32" in x: continue
                    if "NONORM" in EXP and "K2_N" in x: continue
                    if "NOCHK" in EXP and "K2_R" in x and "K2_N" not in x: x = of_reads()
                    a(x)
                if i < 16:
                    r = S[tau & 1] + i
                    if slow:
                        a(f"v_sub_f32 v{r}, v{r}, v{vM[t&1]}")
                    a(f"v_exp_f32 v{r}, v{r}")
        a("s_nop 1")
        a(pv(63, 1))
    mainloop(False)
    a("K2_TAIL:")
    stamp(a, 3)
    a("s_setprio 0")
    nvm = len(order) - 1 - order.index('W6_1_3')
    a(ldW2(0) + ldW2(1))
    a(wo_mfma(0, 3, woA))
    for x in drain(7):
        a(x)
    a(f"s_waitcnt vmcnt({nvm + 4})")
    for ct in range(4):
        a(wo_mfma(1, ct, T))
    a(f"""
    v_and_b32 v{vt[0]}, 7, v0
    v_lshrrev_b32 v{vt[1]}, 4, v0
    v_bfe_u32 v{vt[3]}, v0, 3, 1
    v_lshlrev_b32 v{vVo}, 10, v{vt[0]}
    v_lshl_add_u32 v{vVo}, v{vt[3]}, 6, v{vVo}
    s_lshl_b32 s{sV1}, s{sRB}, 13
    s_lshl_b32 s{sT1}, s{sW}, 7
    s_add_u32 s{sV1}, s{sV1}, s{sT1}
    s_add_u32 s{sT1}, s{sT1}, {XL}
    v_lshl_add_u32 v{vt[2]}, v{vt[0]}, 4, v{vVo}
    v_lshl_add_u32 v{vt[2]}, v{vt[1]}, 3, v{vt[2]}
    v_add_u32 v{vt[2]}, s{sT1}, v{vt[2]}
    v_bfe_u32 v{vt[1]}, v0, 4, 1
    v_lshl_add_u32 v{vVo}, v{vt[1]}, 5, v{vVo}
    v_lshrrev_b32 v{vt[4]}, 5, v0
    v_lshl_add_u32 v{vVo}, v{vt[4]}, 4, v{vVo}
    s_waitcnt lgkmcnt(0)
    s_barrier
    """)
    for c in range(2):
        a(f"ds_read_b64 {v(X+2*c,2)}, v{vt[2]} offset:{32*c}")
    a(only_half(7, "T", norm_reads() + norm_comp()))
    a(ldW2(2) + ldW2(3))
    H = O[0]; XU = O[0] + 8; PK = O[1]; ST = woA; U = T
    srd(a, SQ, 16, 17, WS_H, 0x200000)
    a(f"""
    s_mov_b32 s{sB3}, 0xff00ff00
    s_mov_b32 s{sB3+1}, 0xff00ff00
    s_waitcnt lgkmcnt(0)
    """)
    for i in range(4):
        a(f"v_lshlrev_b32 v{XU+2*i}, 16, v{X+i}")
        a(f"v_and_b32 v{XU+2*i+1}, 0xffff0000, v{X+i}")
    a("s_barrier")
    a(of_reads())
    a(f"s_waitcnt vmcnt(8) lgkmcnt(1)")
    for ct in range(4):
        a(wo_mfma(0, ct, W7[0]))
    a("s_waitcnt lgkmcnt(0)")
    for ct in (0, 2, 1, 3):
        a(wo_mfma(1, ct, W7[1]))
    stamp(a, 4)
    a(ldW2(4) + ldW2(5))
    a.c("h = x + attn ; lanes with bit 3 set take column tiles 2,3")
    for i in range(8):
        a(f"v_cndmask_b32 v{H+i}, v{hacc+i}, v{hacc+8+i}, {s(sB3,2)}")
    for i in range(4):
        a(f"v_pk_add_f32 {v(H+2*i,2)}, {v(H+2*i,2)}, {v(XU+2*i,2)}")
    def xreduce(r, tmp):
        a(f"""
        v_mov_b32 v{tmp}, v{r}
        s_nop 1
        v_permlane32_swap_b32 v{r}, v{tmp}
        v_add_f32 v{r}, v{r}, v{tmp}
        v_mov_b32 v{tmp}, v{r}
        s_nop 1
        v_permlane16_swap_b32 v{r}, v{tmp}
        v_add_f32 v{r}, v{r}, v{tmp}
        s_nop 1
        v_add_f32_dpp v{r}, v{r}, v{r} row_ror:8 row_mask:0xf bank_mask:0xf
        """)
    a(f"""
    v_pk_add_f32 {v(U,2)}, {v(H,2)}, {v(H+2,2)}
    v_pk_add_f32 {v(U+2,2)}, {v(H+4,2)}, {v(H+6,2)}
    v_pk_add_f32 {v(U,2)}, {v(U,2)}, {v(U+2,2)}
    v_add_f32 v{U}, v{U}, v{U+1}
    """)
    xreduce(U, U+2)
    a(f"v_mul_f32 v{U}, {hex(f32bits(1.0/64))}, v{U}")
    for i in range(4):
        a(f"v_pk_add_f32 {v(XU+2*i,2)}, {v(H+2*i,2)}, {v(U,2)} op_sel_hi:[1,0] neg_lo:[0,1] neg_hi:[0,1]")
    a(f"""
    v_pk_mul_f32 {v(U+2,2)}, {v(XU,2)}, {v(XU,2)}
    v_pk_mul_f32 {v(U+4,2)}, {v(XU+2,2)}, {v(XU+2,2)}
    v_pk_fma_f32 {v(U+2,2)}, {v(XU+4,2)}, {v(XU+4,2)}, {v(U+2,2)}
    v_pk_fma_f32 {v(U+4,2)}, {v(XU+6,2)}, {v(XU+6,2)}, {v(U+4,2)}
    v_pk_add_f32 {v(U+2,2)}, {v(U+2,2)}, {v(U+4,2)}
    v_add_f32 v{U+1}, v{U+2}, v{U+3}
    """)
    a(ldW2(6) + ldW2(7))
    xreduce(U+1, U+2)
    a(f"""
    s_lshl_b32 s{sT1}, s{sW}, 3
    s_add_u32 s{sT1}, s{sT1}, {MISC + 128}
    v_lshlrev_b32 v{vt[5]}, 6, v{vt[0]}
    v_add_u32 v{vt[4]}, s{sT1}, v{vt[5]}
    v_add_u32 v{vt[5]}, {MISC + 128}, v{vt[5]}
    ds_write_b64 v{vt[4]}, {v(U,2)}
    """)
    for i in range(4):
        a(f"v_cvt_pk_bf16_f32 v{PK+i}, v{H+2*i}, v{H+2*i+1}")
    a("s_waitcnt lgkmcnt(0)")
    a("s_barrier")
    for i in range(4):
        a(f"ds_read_b128 {v(ST+4*i,4)}, v{vt[5]} offset:{16*i}")
    a(f"""
    v_permlane16_swap_b32 v{PK}, v{PK+2}
    v_permlane16_swap_b32 v{PK+1}, v{PK+3}
    buffer_store_dwordx4 {v(PK,4)}, v{vVo}, {s(SQ,4)}, s{sV1} offen sc1
    """)
    a(f"""
    s_lshr_b32 s{sT0}, s{sRB}, 2
    s_lshl_b32 s{sT0}, s{sT0}, 15
    s_lshl_b32 s{sT1}, s{sW}, 12
    s_add_u32 s{sT0}, s{sT0}, s{sT1}
    s_and_b32 s{sT1}, s{sRB}, 3
    s_lshl_b32 s{sT1}, s{sT1}, 7
    s_add_u32 s{sT0}, s{sT0}, s{sT1}
    v_lshlrev_b32 v{vt[4]}, 4, v{vt[0]}
    v_lshl_add_u32 v{vt[4]}, v{vt[3]}, 11, v{vt[4]}
    v_lshrrev_b32 v{vt[0]}, 5, v0
    v_lshl_add_u32 v{vt[4]}, v{vt[0]}, 9, v{vt[4]}
    v_lshl_add_u32 v{vt[4]}, v{vt[1]}, 10, v{vt[4]}
    s_waitcnt lgkmcnt(0)
    v_pk_add_f32 {v(U+2,2)}, {v(ST,2)}, {v(ST+2,2)}
    v_pk_add_f32 {v(U+4,2)}, {v(ST+4,2)}, {v(ST+6,2)}
    v_pk_add_f32 {v(U+6,2)}, {v(ST+8,2)}, {v(ST+10,2)}
    v_pk_add_f32 {v(U+8,2)}, {v(ST+12,2)}, {v(ST+14,2)}
    v_pk_add_f32 {v(U+2,2)}, {v(U+2,2)}, {v(U+4,2)}
    v_pk_add_f32 {v(U+6,2)}, {v(U+6,2)}, {v(U+8,2)}
    v_pk_add_f32 {v(U+2,2)}, {v(U+2,2)}, {v(U+6,2)}
    v_mul_f32 v{U+2}, 0x3e000000, v{U+2}
    """)
    for i in range(8):
        a(f"v_sub_f32 v{ST+2*i}, v{ST+2*i}, v{U+2}")
    a(f"v_mul_f32 v{U+4}, v{ST}, v{ST}")
    a(f"v_mul_f32 v{U+5}, v{ST+2}, v{ST+2}")
    for i in range(2, 8):
        a(f"v_fmac_f32 v{U+4+(i&1)}, v{ST+2*i}, v{ST+2*i}")
    a(f"""
    v_add_f32 v{U+4}, v{U+4}, v{U+5}
    v_fmac_f32 v{U+3}, 0x42800000, v{U+4}
    v_mov_b32 v{U+6}, {hex(f32bits(1e-5))}
    v_fmac_f32 v{U+6}, {hex(f32bits(1.0/512))}, v{U+3}
    v_rsq_f32 v{U+6}, v{U+6}
    """)
    for i in range(4):
        a(f"v_pk_add_f32 {v(H+2*i,2)}, {v(H+2*i,2)}, {v(U+2,2)} op_sel_hi:[1,0] neg_lo:[0,1] neg_hi:[0,1]")
    for i in range(4):
        a(f"v_pk_mul_f32 {v(H+2*i,2)}, {v(H+2*i,2)}, {v(U+6,2)} op_sel_hi:[1,0]")
    for i in range(4):
        a(f"v_cvt_pk_bf16_f32 v{PK+4+i}, v{H+2*i}, v{H+2*i+1}")
    a(f"""
    s_nop 1
    v_permlane16_swap_b32 v{PK+4}, v{PK+6}
    v_permlane16_swap_b32 v{PK+5}, v{PK+7}
    buffer_store_dwordx4 {v(PK+4,4)}, v{vt[4]}, {s(SHN,4)}, s{sT0} offen sc1
    """)
    SF, SG = SKV, SWO
    srd(a, SF, 16, 17, WS_FLG, 4096)
    srd(a, SG, 16, 17, WS_G, G_BYTES)
    def signal(off, young):
        a(f"""
        s_waitcnt vmcnt({young})
        s_barrier
        {stamp_str(1 if off == 0 else 2)}
        s_cmp_lg_u32 s{sW}, 0
        s_cbranch_scc1 K2_NOSIG{off}
        s_lshl_b32 s{sT0}, s{sG}, 8
        s_lshl_b32 s{sT1}, s{sMm}, 2
        s_add_u32 s{sT1}, s{sT1}, s{sT0}
        v_mov_b32 v{vt[0]}, 0
        v_mov_b32 v{vt[1]}, 1
        s_mov_b64 exec, 1
        buffer_store_dword v{vt[1]}, v{vt[0]}, {s(SF,4)}, s{sT1} offen offset:{off} sc1
        s_mov_b64 exec, -1
        K2_NOSIG{off}:
        """)
    def poll_start(off):
        a(f"""
        s_cmp_lg_u32 s{sW}, 0
        s_cbranch_scc1 K2_NOPS{off}
        s_lshl_b32 s{sRot}, s{sG}, 8
        v_and_b32 v{vt[0]}, 15, v0
        v_lshlrev_b32 v{vt[0]}, 2, v{vt[0]}
        buffer_load_dword v{vt[1]}, v{vt[0]}, {s(SF,4)}, s{sRot} offen offset:{off} sc1
        K2_NOPS{off}:
        """)
    def poll(off, mask):
        a(f"""
        s_cmp_lg_u32 s{sW}, 0
        s_cbranch_scc1 K2_NOPOLL{off}
        s_lshl_b32 s{sT0}, s{sG}, 8
        s_mov_b32 s{sT2}, 0x200000
        buffer_load_dword v{vt[4]}, v{vt[0]}, {s(SF,4)}, s{sT0} offen offset:{off} sc1
        K2_POLL{off}:
        s_sub_u32 s{sT2}, s{sT2}, 1
        s_cbranch_scc1 K2_PDONE{off}
        s_waitcnt vmcnt(1)
        v_cmp_ne_u32 vcc, 0, v{vt[1]}
        buffer_load_dword v{vt[1]}, v{vt[0]}, {s(SF,4)}, s{sT0} offen offset:{off} sc1
        s_and_b32 s{sT1}, vcc_lo, {hex(mask)}
        s_cmp_eq_u32 s{sT1}, {hex(mask)}
        s_cbranch_scc1 K2_PDONE{off}
        s_waitcnt vmcnt(1)
        v_cmp_ne_u32 vcc, 0, v{vt[4]}
        buffer_load_dword v{vt[4]}, v{vt[0]}, {s(SF,4)}, s{sT0} offen offset:{off} sc1
        s_and_b32 s{sT1}, vcc_lo, {hex(mask)}
        s_cmp_lg_u32 s{sT1}, {hex(mask)}
        s_cbranch_scc1 K2_POLL{off}
        K2_PDONE{off}:
        K2_NOPOLL{off}:
        s_barrier
        """)
    stamp(a, 5)
    if RELOAD:
        a.c("touch the lines just written so that they sit in the local L2 (speed only)")
        a(f"""
        buffer_load_dword v{T+12}, v{vt[4]}, {s(SHN,4)}, s{sT0} offen sc1
        buffer_load_dword v{T+13}, v{vVo}, {s(SQ,4)}, s{sV1} offen sc1
        """)
    signal(0, 2 if RELOAD else 0)
    a(f"""
    s_cmp_eq_u32 s{sMm}, 15
    s_cbranch_scc1 K2_SKIP1
    """)
    poll_start(0)
    a(f"""
    v_lshrrev_b32 v{vt[2]}, 5, v0
    v_lshlrev_b32 v{vt[2]}, 3, v{vt[2]}
    v_add_u32 v{vt[2]}, {B1L}, v{vt[2]}
    s_cmp_eq_u32 s{sHalf}, 0
    s_cselect_b32 s{sT2}, -1, 0
    s_and_b32 s{sSo}, s{sT2}, 0xffff0000
    """)
    BI = Kf
    acc1 = [O[0], O[1], hacc]
    for ft in range(3):
        for q in range(4):
            a(f"ds_read_b64 {v(BI+8*ft+2*q,2)}, v{vt[2]} offset:{ft*64+q*16}")
    a("s_waitcnt lgkmcnt(0)")
    for ft in range(3):
        for i in range(8):
            a(f"v_and_b32 v{acc1[ft]+2*i+1}, s{sSo}, v{BI+8*ft+i}")
            a(f"v_and_b32 v{BI+8*ft+i}, s{sT2}, v{BI+8*ft+i}")
            a(f"v_lshlrev_b32 v{acc1[ft]+2*i}, 16, v{BI+8*ft+i}")
    Bf = [Kf + 4*i for i in range(8)] + [woA + 4*i for i in range(4)] + [T + 4*i for i in range(4)]
    Af = [Vf, Vf + 4, OFr, OFr + 4, nrm, nrm + 4, Q, zero]
    vWa = vOa; vEx = vLa; vEr = vNr
    sRT, sKH = sV1, sHalf
    a(f"""
    s_and_b32 s{sRT}, s{sW}, 3
    s_lshl_b32 s{sT0}, s{sG}, 2
    s_add_u32 s{sRT}, s{sRT}, s{sT0}
    v_lshrrev_b32 v{vt[2]}, 5, v0
    v_lshlrev_b32 v{vt[2]}, 9, v{vt[2]}
    v_bfe_u32 v{vt[3]}, v0, 2, 2
    v_lshl_add_u32 v{vt[2]}, v{vt[3]}, 6, v{vt[2]}
    v_bfe_u32 v{vt[3]}, v0, 4, 1
    v_lshl_add_u32 v{vt[2]}, v{vt[3]}, 5, v{vt[2]}
    v_and_b32 v{vt[3]}, 3, v0
    v_lshl_add_u32 v{vt[2]}, v{vt[3]}, 3, v{vt[2]}
    s_mul_i32 s{sT0}, s{sKH}, 49152
    v_add_u32 v{vWa}, s{sT0}, v{vt[2]}
    s_mul_i32 s{sT0}, s{sW}, 6144
    s_add_u32 s{sT0}, s{sT0}, {EXB}
    v_add_u32 v{vEx}, s{sT0}, v{vQa}
    s_xor_b32 s{sT0}, s{sW}, 4
    s_mul_i32 s{sT0}, s{sT0}, 6144
    s_add_u32 s{sT0}, s{sT0}, {EXB}
    v_add_u32 v{vEr}, s{sT0}, v{vQa}
    s_lshl_b32 s{sWm}, s{sRT}, 15
    s_lshl_b32 s{sT0}, s{sKH}, 14
    s_add_u32 s{sWm}, s{sWm}, s{sT0}
    """)
    def areads(f):
        ks, ft = divmod(f, 3)
        off = ks * 3072 + ft * 1024
        a(f"ds_read_b64_tr_b16 {v(Af[f%8],2)}, v{vWa} offset:{off}")
        a(f"ds_read_b64_tr_b16 {v(Af[f%8]+2,2)}, v{vWa} offset:{off+256}")
    for f in range(5):
        areads(f)
    a(f"""
    s_cmp_eq_u32 s{sW}, 0
    s_cbranch_scc1 K2_NW2
    """)
    for i in range(8, 11):
        a(ldW2(i))
        if i < 10:
            a("s_waitcnt vmcnt(0)")
    a("K2_NW2:")
    poll(0, 0xffff)
    stamp(a, 6)
    for i in range(16):
        a(f"""
        s_add_u32 s{sSo}, s{sMm}, {i}
        s_and_b32 s{sSo}, s{sSo}, 15
        s_lshl_b32 s{sSo}, s{sSo}, 10
        s_add_u32 s{sSo}, s{sSo}, s{sWm}
        buffer_load_dwordx4 {v(Bf[i],4)}, v{vQa}, {s(SHN,4)}, s{sSo} offen {LDF}
        """)
    for f in range(48):
        ks, ft = divmod(f, 3)
        later = min(4, 47 - f)
        w = f"lgkmcnt({2*later})"
        if ft == 0:
            w = f"vmcnt({15 - ks}) " + w
        a(f"s_waitcnt {w}")
        a(f"v_mfma_f32_32x32x16_bf16 {v(acc1[ft],16)}, {v(Af[f%8],4)}, {v(Bf[ks],4)}, {v(acc1[ft],16)}")
        if f + 5 < 48:
            areads(f + 5)
    stamp(a, 7)
    a(f"""
    s_cmp_lg_u32 s{sW}, 0
    s_cbranch_scc1 K2_NW3
    """)
    a(ldW2(8) + ldW2(9) + ldW2(10))
    a("K2_NW3:")
    a(f"""
    s_mul_i32 s{sT0}, s{sRT}, 86
    s_lshl_b32 s{sT1}, s{sT0f}, 1
    s_add_u32 s{sT0}, s{sT0}, s{sT1}
    s_mul_i32 s{sT1}, s{sKH}, 3
    s_add_u32 s{sT0}, s{sT0}, s{sT1}
    s_lshl_b32 s{sT0}, s{sT0}, 10
    s_nop 7
    s_cmp_eq_u32 s{sKH}, 1
    s_cbranch_scc1 K2_EX1
    """)
    lo = [acc1[0], acc1[0] + 8, acc1[1]]
    hi = [acc1[1] + 8, acc1[2], acc1[2] + 8]
    RX = Kf
    def exchange(keep, send):
        for q in range(3):
            a(f"ds_write_b128 v{vEx}, {v(send[q],4)} offset:{q*2048}")
            a(f"ds_write_b128 v{vEx}, {v(send[q]+4,4)} offset:{q*2048+1024}")
        a("s_waitcnt lgkmcnt(0)")
        a("s_barrier")
        for q in range(6):
            a(f"ds_read_b128 {v(RX+4*q,4)}, v{vEr} offset:{q*1024}")
        for q in range(3):
            a(f"s_waitcnt lgkmcnt({4-2*q})")
            for i in range(4):
                a(f"v_pk_add_f32 {v(keep[q]+2*i,2)}, {v(keep[q]+2*i,2)}, {v(RX+8*q+2*i,2)}")
            for i in range(8):
                a(f"v_max_f32 v{keep[q]+i}, 0, v{keep[q]+i}")
            for i in range(4):
                a(f"v_pk_mul_f32 {v(keep[q]+2*i,2)}, {v(keep[q]+2*i,2)}, {v(keep[q]+2*i,2)}")
            for i in range(4):
                a(f"v_cvt_pk_bf16_f32 v{woA+4*q+i}, v{keep[q]+2*i}, v{keep[q]+2*i+1}")
            a(f"buffer_store_dwordx4 {v(woA+4*q,4)}, v{vQa}, {s(SG,4)}, s{sT0} offen offset:{q*1024} sc1")
    exchange(lo, hi)
    a("s_branch K2_EXJ")
    a("K2_EX1:")
    exchange(hi, lo)
    a("K2_EXJ:")
    stamp(a, 8)
    if RELOAD:
        for q in range(3):
            a(f"buffer_load_dword v{hacc+q}, v{vQa}, {s(SG,4)}, s{sT0} offen offset:{q*1024} sc1")
    signal(128, 3 if RELOAD else 0)
    a("s_branch K2_FFN2")
    a("K2_SKIP1:")
    a(ldW2(8) + ldW2(9) + ldW2(10))
    a("K2_FFN2:")
    poll_start(128)
    Gf = [Kf + 4*i for i in range(8)] + [Vf, Vf + 4] + [woA + 4*i for i in range(4)] + [T + 4*i for i in range(4)] + [OFr, OFr + 4]
    Gf += Gf[:2]
    acc2 = [O[0], O[1], hacc, zero]
    vG1 = vOa; vOo = vLa; vRw = vNr; vRr = vNl; vB2 = vNw
    sGo, sOo, sGend = sWm, sV1, sRot
    srd(a, SX, 18, 19, 0, 1024)
    srd(a, SHN, 10, 11, 0, 0x200000)
    a(f"""
    s_lshl_b32 s{sT0}, s{sG}, 1
    s_lshr_b32 s{sT1}, s{sMm}, 3
    s_add_u32 s{sT0}, s{sT0}, s{sT1}
    s_lshl_b32 s{sOo}, s{sT0}, 16
    s_mul_i32 s{sGo}, s{sT0}, {2*86*1024}
    s_add_u32 s{sGend}, s{sGo}, {86*1024}
    s_lshl_b32 s{sT1}, s{sW}, 10
    s_add_u32 s{sGo}, s{sGo}, s{sT1}
    v_add_u32 v{vG1}, {86*1024}, v{vQa}
    v_and_b32 v{vt[2]}, 31, v0
    v_mul_u32_u24 v{vt[2]}, 272, v{vt[2]}
    v_lshrrev_b32 v{vt[3]}, 5, v0
    v_lshl_add_u32 v{vt[2]}, v{vt[3]}, 4, v{vt[2]}
    s_mul_i32 s{sT0}, s{sW}, {RSTR}
    v_add_u32 v{vRw}, s{sT0}, v{vt[2]}
    v_lshrrev_b32 v{vt[2]}, 3, v0
    s_lshl_b32 s{sT0}, s{sW}, 3
    v_add_u32 v{vt[2]}, s{sT0}, v{vt[2]}
    v_and_b32 v{vt[3]}, 7, v0
    v_mul_u32_u24 v{vRr}, 272, v{vt[2]}
    v_lshl_add_u32 v{vRr}, v{vt[3]}, 5, v{vRr}
    s_lshl_b32 s{sT0}, s{sCB2}, 7
    v_lshlrev_b32 v{vB2}, 4, v{vt[3]}
    v_add_u32 v{vB2}, s{sT0}, v{vB2}
    v_lshl_add_u32 v{vOo}, v{vt[2]}, 10, v{vB2}
    """)
    poll(128, 0x7fff)
    stamp(a, 9)
    def ldG(i):
        a(f"""
        s_add_u32 s{sSo}, s{sCB2}, {i}
        s_sub_u32 s{sT1}, s{sSo}, 11
        s_cselect_b32 s{sSo}, s{sSo}, s{sT1}
        s_lshl_b32 s{sSo}, s{sSo}, 13
        s_add_u32 s{sSo}, s{sSo}, s{sGo}
        s_cmp_ge_u32 s{sSo}, s{sGend}
        s_cselect_b32 s{sSo}, 0x1000000, s{sSo}
        """)
        a(f"buffer_load_dwordx4 {v(Gf[2*i],4)}, v{vQa}, {s(SG,4)}, s{sSo} offen {LDF}")
        a(f"buffer_load_dwordx4 {v(Gf[2*i+1],4)}, v{vG1}, {s(SG,4)}, s{sSo} offen {LDF}")
    for i in range(10):
        ldG(i)
    for i in range(11):
        a(f"s_waitcnt vmcnt({18 if i == 0 else 2*(10-i)})")
        for ct in range(2):
            for rt in range(2):
                d = acc2[2*ct + rt]
                a(f"v_mfma_f32_32x32x16_bf16 {v(d,16)}, {v(W2R+8*i+4*ct,4)}, {v(Gf[2*i+rt],4)}, {'0' if i == 0 else v(d,16)}")
        if i == 0:
            ldG(10)
    stamp(a, 10)
    HR = woA; B2 = woA + 4
    a(f"""
    buffer_load_dwordx4 {v(HR,4)}, v{vOo}, {s(SQ,4)}, s{sOo} offen sc1
    buffer_load_dwordx4 {v(B2,4)}, v{vB2}, {s(SX,4)}, 0 offen
    v_add_u32 v{vt[2]}, {3*RSTR}, v{vRr}
    v_add_u32 v{vt[3]}, {6*RSTR}, v{vRr}
    s_nop 7
    """)
    for ct in range(2):
        for rt in range(2):
            for q in range(4):
                d = acc2[2*ct + rt] + 4*q
                a(f"ds_write_b128 v{vRw}, {v(d,4)} offset:{rt*32*272 + (32*ct + 8*q)*4}")
    a("s_waitcnt lgkmcnt(0)")
    a("s_barrier")
    stamp(a, 11)
    RR = W2R
    for w in range(8):
        base = (vRr, vt[2], vt[3])[w // 3]
        for q in range(2):
            a(f"ds_read_b128 {v(RR+8*w+4*q,4)}, v{base} offset:{(w % 3)*RSTR + 16*q}")
    a("s_waitcnt vmcnt(0)")
    for i in range(4):
        a(f"v_lshlrev_b32 v{T+2*i}, 16, v{HR+i}")
        a(f"v_and_b32 v{T+2*i+1}, 0xffff0000, v{HR+i}")
        a(f"v_lshlrev_b32 v{T+8+2*i}, 16, v{B2+i}")
        a(f"v_and_b32 v{T+8+2*i+1}, 0xffff0000, v{B2+i}")
    for i in range(4):
        a(f"v_pk_add_f32 {v(T+2*i,2)}, {v(T+2*i,2)}, {v(T+8+2*i,2)}")
    for w in range(0, 8, 2):
        a(f"s_waitcnt lgkmcnt({12 - 2*w})")
        for i in range(4):
            a(f"v_pk_add_f32 {v(RR+8*w+2*i,2)}, {v(RR+8*w+2*i,2)}, {v(RR+8*w+8+2*i,2)}")
        for i in range(4):
            a(f"v_pk_add_f32 {v(T+2*i,2)}, {v(T+2*i,2)}, {v(RR+8*w+2*i,2)}")
    for i in range(4):
        a(f"v_cvt_pk_bf16_f32 v{T+8+i}, v{T+2*i}, v{T+2*i+1}")
    a(f"buffer_store_dwordx4 {v(T+8,4)}, v{vOo}, {s(SHN,4)}, s{sOo} offen {OUTF}")
    stamp_dump(a, 1, sW)
    a("K2_END:")
    a("s_endpgm")
    a.c("slow path: true row maxima first")
    a("K2_SLOW:")
    MB = MISC + 1024
    a("s_setprio 0")
    for i in range(SLOW_V0, 16):
        a(ldV(i))
    a("s_nop 7\ns_nop 7")
    for o in O:
        a(f"v_mfma_f32_32x32x16_bf16 {v(o,16)}, {v(zero,4)}, {v(zero,4)}, 0")
    a(f"""
    v_and_b32 v{vt[0]}, 31, v0
    v_lshlrev_b32 v{vt[0]}, 2, v{vt[0]}
    v_add_u32 v{vt[0]}, {MB}, v{vt[0]}
    s_lshl_b32 s{sT0}, s{sW}, 7
    v_add_u32 v{vt[1]}, s{sT0}, v{vt[0]}
    v_mov_b32 v{vt[2]}, 0xff800000
    ds_write_b32 v{vt[1]}, v{vt[2]}
    s_waitcnt vmcnt(0) lgkmcnt(0)
    s_barrier
    v_mov_b32 v{vt[1]}, v{vt[0]}
    v_mov_b32 v{vt[3]}, v{vQl}
    s_mov_b32 s{sT0}, 0
    K2_P1:
    ds_read_b128 {v(Q,4)}, v{vt[3]}
    v_mov_b32 v{nrm}, 0xff800000
    s_waitcnt lgkmcnt(0)
    """)
    for j in range(8):
        a(f"v_mfma_f32_32x32x16_bf16 {v(S[0],16)}, {v(Kf+4*j,4)}, {v(Q,4)}, 0")
        a("s_nop 7\ns_nop 3")
        for i in range(8):
            a(f"v_max3_f32 v{nrm}, v{nrm}, v{S[0]+2*i}, v{S[0]+2*i+1}")
        a("s_nop 1")
    a(f"""
    ds_max_f32 v{vt[1]}, v{nrm}
    v_add_u32 v{vt[1]}, 128, v{vt[1]}
    v_add_u32 v{vt[3]}, 1024, v{vt[3]}
    s_add_u32 s{sT0}, s{sT0}, 1
    s_cmp_lt_u32 s{sT0}, 8
    s_cbranch_scc1 K2_P1
    ds_read_b128 {v(Q,4)}, v{vQl}
    s_waitcnt lgkmcnt(0)
    s_barrier
    """)
    mainloop(True)
    a("s_branch K2_TAIL")
    for r in retries:
        lab = r.split(":")[0]
        if any(("s_cbranch_vccnz " + lab) == l.strip() for l in a.lines):
            a(r)
    return name, R.cur, K2_LDS
```

```python
from asmlib import *
from common import *

XBASE = 0
WBASE = 65536
KVBASE = 131072
STBASE = 147456
K1_LDS = STBASE + 16384

import os
CODEPF = os.environ.get("CODEPF", "1") == "1"
K1F = os.environ.get("K1F", "").replace("_", " ")
K1Q = os.environ.get("K1Q", "").replace("_", " ")
UP = int(os.environ.get("UP", "2"))
JF = int(os.environ.get("JF", "23"))
BARS = [int(x) for x in os.environ.get("BARS", "0,2").split(",")]

def gen_k1(a):
    name = "qkv_kernel"
    kernel_header(a, name)
    R = Regs(1, 128)
    R.alloc("pad")
    vt = [R.alloc(f"t{i}") for i in range(8)]
    NS = 4
    pool = R.alloc("pool", 116, 4)
    sW, sRB, sCB, sWR, sWC, sH = 20, 21, 22, 23, 44, 45
    sT0, sT1, sXm, sWm, sKm, sSo, sWv, sB = 46, 47, 48, 49, 50, 51, 56, 57
    SX, SWQ, SKW, SQ, SKV, SWO = 24, 28, 32, 36, 40, 52
    a(f"""
    s_cmp_ge_u32 s2, 256
    s_cbranch_scc1 K1_END
    s_load_dwordx8 s[8:15], s[0:1], 0
    s_load_dwordx2 s[16:17], s[0:1], 96
    s_load_dwordx2 s[18:19], s[0:1], 32
    s_load_dwordx2 s[4:5], s[0:1], 64
    v_lshrrev_b32 v{vt[0]}, 6, v0
    v_and_b32 v0, 63, v0
    v_readfirstlane_b32 s{sW}, v{vt[0]}
    s_and_b32 s{sT0}, s2, 7
    s_lshr_b32 s{sT1}, s2, 3
    s_lshl_b32 s{sRB}, s{sT0}, 2
    s_and_b32 s{sT0}, s{sT1}, 3
    s_add_u32 s{sRB}, s{sRB}, s{sT0}
    s_lshr_b32 s{sCB}, s{sT1}, 2
    """)
    stamp_init(a)
    a(f"""
    s_cmp_ge_u32 s{sW}, 4
    s_cbranch_scc1 K1_MM
    """)
    P = Regs(pool, pool + 116)
    vXoff = [P.alloc(f"xoff{e}") for e in range(4)]
    vWoff = [P.alloc(f"woff{e}") for e in range(2)]
    vKoff = P.alloc("koff")
    vXs = [P.alloc(f"xs{i}") for i in range(4)]
    vX16a = P.alloc("x16a"); vKWa = P.alloc("kwa")
    Gq = P.alloc("gq", 4); Gs = P.alloc("gs", 4)
    ones = P.alloc("ones", 4)
    Xs = P.alloc("xsd", 16); Ws = P.alloc("wsd", 16)
    X16 = P.alloc("x16", 4); KW = P.alloc("kw", 4)
    Dk = P.alloc("dk", 4); Dc = P.alloc("dc", 4)
    st = P.alloc("st", 8, 4); pk = P.alloc("pk", 2, 2)
    a("s_setprio 3")
    a(f"""
    v_lshrrev_b32 v{vt[2]}, 4, v0
    v_and_b32 v{vt[3]}, 15, v0
    s_lshl_b32 s{sT0}, s{sW}, 14
    """)
    for e in range(4):
        a(f"""
        v_add_u32 v{vt[4]}, {4*e}, v{vt[2]}
        v_xor_b32 v{vt[5]}, v{vt[3]}, v{vt[4]}
        v_lshlrev_b32 v{vt[5]}, 4, v{vt[5]}
        v_lshl_add_u32 v{vt[5]}, v{vt[4]}, 10, v{vt[5]}
        v_add_u32 v{vXoff[e]}, s{sT0}, v{vt[5]}
        """)
    a(f"""
    v_lshrrev_b32 v{vt[4]}, 2, v0
    v_and_b32 v{vt[5]}, 3, v0
    v_lshlrev_b32 v{vt[5]}, 4, v{vt[5]}
    v_lshl_add_u32 v{vt[7]}, v{vt[4]}, 10, v{vt[5]}
    s_lshl_b32 s{sT0}, s{sCB}, 7
    s_lshl_b32 s{sT1}, s{sW}, 15
    s_add_u32 s{sT0}, s{sT0}, s{sT1}
    v_add_u32 v{vWoff[0]}, s{sT0}, v{vt[7]}
    v_add_u32 v{vWoff[1]}, 0x4000, v{vWoff[0]}
    v_lshrrev_b32 v{vt[4]}, 1, v0
    v_and_b32 v{vt[5]}, 0x13, v{vt[4]}
    v_and_b32 v{vt[6]}, 4, v{vt[4]}
    v_lshl_or_b32 v{vt[5]}, v{vt[6]}, 1, v{vt[5]}
    v_and_b32 v{vt[6]}, 8, v{vt[4]}
    v_lshrrev_b32 v{vt[6]}, 1, v{vt[6]}
    v_or_b32 v{vt[5]}, v{vt[5]}, v{vt[6]}
    v_lshlrev_b32 v{vt[5]}, 5, v{vt[5]}
    v_and_b32 v{vt[6]}, 1, v0
    v_lshl_add_u32 v{vt[5]}, v{vt[6]}, 4, v{vt[5]}
    s_lshl_b32 s{sT0}, s{sW}, 10
    v_add_u32 v{vKoff}, s{sT0}, v{vt[5]}
    s_lshl_b32 s{sXm}, s{sW}, 12
    s_lshl_b32 s{sWm}, s{sW}, 11
    s_add_u32 s{sWm}, s{sWm}, {WBASE}
    s_add_u32 s{sKm}, s{sT0}, {KVBASE}
    s_lshl_b32 s{sT0}, s{sRB}, 16
    s_waitcnt lgkmcnt(0)
    s_add_u32 s{SX}, s8, s{sT0}
    s_addc_u32 s{SX+1}, s9, 0
    s_mov_b32 s{SX+2}, 0x10000
    s_mov_b32 s{SX+3}, 0x20000
    """)
    srd(a, SWQ, 10, 11, 0, 524288)
    a(f"""
    s_bitcmp1_b32 s{sCB}, 0
    s_cselect_b32 s{SKW}, s14, s12
    s_cselect_b32 s{SKW+1}, s15, s13
    s_mov_b32 s{SKW+2}, 0x4000
    s_mov_b32 s{SKW+3}, 0x20000
    """)
    a(f"s_add_u32 s{sB}, s{sCB}, s{sRB}")
    def issue(c):
        a(f"""
        s_add_u32 s{sWv}, s{sB}, {c}
        s_and_b32 s{sWv}, s{sWv}, 3
        s_lshl_b32 s{sSo}, s{sWv}, 8
        """)
        for e in range(4):
            a(f"s_add_u32 m0, s{sXm}, {XBASE + c*16384 + e*1024}")
            a("s_nop 0")
            a(f"buffer_load_dwordx4 v{vXoff[e]}, {s(SX,4)}, s{sSo} offen lds")
        a(f"s_lshl_b32 s{sSo}, s{sWv}, 17")
        for kb in range(2):
            for ct in range(2):
                a(f"s_add_u32 m0, s{sWm}, {(ct*32 + c*8 + kb)*1024 - ct*64}")
                a("s_nop 0")
                a(f"buffer_load_dwordx4 v{vWoff[kb]}, {s(SWQ,4)}, s{sSo} offen offset:{ct*64} lds")
        a(f"s_lshl_b32 s{sSo}, s{sWv}, 12")
        a(f"s_add_u32 m0, s{sKm}, {c*4096}")
        a("s_nop 0")
        a(f"buffer_load_dwordx4 v{vKoff}, {s(SKW,4)}, s{sSo} offen lds")
    for c in range(UP):
        issue(c)
    a("s_setprio 0")
    stamp(a, 1)
    a(f"""
    s_lshl_b32 s{sT0}, s{sW}, 12
    v_lshlrev_b32 v{vt[4]}, 8, v{vt[3]}
    v_add_u32 v{vt[4]}, s{sT0}, v{vt[4]}
    v_lshlrev_b32 v{vt[5]}, 2, v{vt[2]}
    """)
    for i in range(4):
        a(f"""
        v_add_u32 v{vt[6]}, {i}, v{vt[5]}
        v_xor_b32 v{vt[6]}, v{vt[6]}, v{vt[3]}
        v_lshl_add_u32 v{vXs[i]}, v{vt[6]}, 4, v{vt[4]}
        """)
    a(f"""
    v_lshrrev_b32 v{vt[1]}, 5, v0
    v_bfe_u32 v{vt[5]}, v0, 2, 2
    v_bfe_u32 v{vt[6]}, v0, 4, 1
    v_and_b32 v{vt[0]}, 3, v0
    v_lshlrev_b32 v{vt[4]}, 9, v{vt[1]}
    v_lshl_add_u32 v{vt[4]}, v{vt[6]}, 7, v{vt[4]}
    v_lshl_add_u32 v{vt[4]}, v{vt[5]}, 5, v{vt[4]}
    v_lshl_add_u32 v{vt[4]}, v{vt[0]}, 3, v{vt[4]}
    v_add_u32 v{vKWa}, s{sKm}, v{vt[4]}
    s_lshr_b32 s{sT0}, s{sCB}, 1
    s_lshl_b32 s{sT0}, s{sT0}, 12
    s_lshl_b32 s{sT1}, s{sW}, 2
    v_add_u32 v{vt[6]}, s{sT1}, v{vt[2]}
    v_xor_b32 v{vt[6]}, v{vt[6]}, v{vt[3]}
    v_lshlrev_b32 v{vt[6]}, 4, v{vt[6]}
    v_lshl_add_u32 v{vt[6]}, v{vt[3]}, 8, v{vt[6]}
    v_add_u32 v{vX16a}, s{sT0}, v{vt[6]}
    """)
    for i in range(4):
        a(f"v_mov_b32 v{ones+i}, 0x3f803f80")
    srd(a, SKV, 16, 17, WS_K, KV_BYTES)
    for c in range(4):
        z = (lambda r: "0") if c == 0 else (lambda r: v(r, 4))
        a(f"s_waitcnt vmcnt({9 * min(UP - 1, 3 - c)})")
        a("s_barrier")
        stamp(a, 2 + c)
        for i in range(4):
            a(f"ds_read_b128 {v(Xs+4*i,4)}, v{vXs[i]} offset:{c*16384}")
        a(f"ds_read_b128 {v(X16,4)}, v{vX16a} offset:{c*16384}")
        a(f"ds_read_b64_tr_b16 {v(KW,2)}, v{vKWa} offset:{c*4096}")
        a(f"ds_read_b64_tr_b16 {v(KW+2,2)}, v{vKWa} offset:{c*4096+256}")
        if c + UP < 4:
            issue(c + UP)
        for i in range(4):
            a(f"s_waitcnt lgkmcnt({6-i})")
            a(f"v_mfma_f32_16x16x32_bf16 {v(Gq,4)}, {v(Xs+4*i,4)}, {v(Xs+4*i,4)}, {z(Gq) if i == 0 else v(Gq,4)}")
            a(f"v_mfma_f32_16x16x32_bf16 {v(Gs,4)}, {v(Xs+4*i,4)}, {v(ones,4)}, {z(Gs) if i == 0 else v(Gs,4)}")
        a(f"""
        s_waitcnt lgkmcnt(0)
        s_bitcmp1_b32 s{sCB}, 0
        s_cbranch_scc1 K1_V{c}
        v_mfma_f32_16x16x32_bf16 {v(Dk,4)}, {v(KW,4)}, {v(X16,4)}, {z(Dk)}
        v_mfma_f32_16x16x32_bf16 {v(Dc,4)}, {v(KW,4)}, {v(ones,4)}, {z(Dc)}
        s_branch K1_J{c}
        K1_V{c}:
        v_mfma_f32_16x16x32_bf16 {v(Dk,4)}, {v(X16,4)}, {v(KW,4)}, {z(Dk)}
        v_mfma_f32_16x16x32_bf16 {v(Dc,4)}, {v(ones,4)}, {v(KW,4)}, {z(Dc)}
        K1_J{c}:
        """)
    stamp(a, 6)
    a.c("row statistics: lane n = 4g + r holds the diagonal of X X^T and the row sum in register r")
    a(f"""
    v_and_b32 v{vt[0]}, 1, v0
    v_cmp_eq_u32 vcc, 1, v{vt[0]}
    v_and_b32 v{vt[0]}, 2, v0
    v_cmp_eq_u32 s[6:7], 2, v{vt[0]}
    s_mov_b32 s{sXm}, {hex(f32bits(1.0/512))}
    s_mov_b32 s{sWm}, {hex(f32bits(1e-5))}
    v_cndmask_b32 v{Gq}, v{Gq}, v{Gq+1}, vcc
    v_cndmask_b32 v{Gq+2}, v{Gq+2}, v{Gq+3}, vcc
    v_cndmask_b32 v{Gs}, v{Gs}, v{Gs+1}, vcc
    v_cndmask_b32 v{Gs+2}, v{Gs+2}, v{Gs+3}, vcc
    v_cndmask_b32 v{st+1}, v{Gq}, v{Gq+2}, s[6:7]
    v_cndmask_b32 v{st}, v{Gs}, v{Gs+2}, s[6:7]
    v_mul_f32 v{st+3}, s{sXm}, v{st}
    v_mul_f32 v{st+1}, s{sXm}, v{st+1}
    v_fma_f32 v{st+1}, -v{st+3}, v{st+3}, v{st+1}
    v_max_f32 v{st+1}, 0, v{st+1}
    v_add_f32 v{st+1}, s{sWm}, v{st+1}
    v_rsq_f32 v{st+2}, v{st+1}
    s_lshl_b32 s{sT0}, s{sW}, 8
    s_add_u32 s{sT0}, s{sT0}, {STBASE}
    v_lshlrev_b32 v{vt[0]}, 4, v{vt[3]}
    v_mul_f32 v{st}, {hex(f32bits(QSCALE))}, v{st+2}
    v_add_u32 v{vt[0]}, s{sT0}, v{vt[0]}
    v_mul_f32 v{st+1}, v{st}, v{st+3}
    s_mov_b32 exec_lo, 0x00f0000f
    s_mov_b32 exec_hi, 0xf0000f00
    ds_write_b128 v{vt[0]}, {v(st,4)}
    s_mov_b64 exec, -1
    """)
    a(f"""
    v_lshlrev_b32 v{vt[4]}, 4, v0
    v_add_u32 v{vt[4]}, {STBASE + 2048}, v{vt[4]}
    s_lshl_b32 s{sT0}, s{sW}, 11
    v_add_u32 v{vt[5]}, s{sT0}, v{vt[4]}
    s_cmp_eq_u32 s{sW}, 3
    s_cbranch_scc1 K1_NOKVP
    ds_write_b128 v{vt[5]}, {v(Dk,4)}
    ds_write_b128 v{vt[5]}, {v(Dc,4)} offset:1024
    K1_NOKVP:
    s_waitcnt lgkmcnt(0)
    s_barrier
    s_cmp_lg_u32 s{sW}, 3
    s_cbranch_scc1 K1_DONE
    """)
    a.c("KV epilogue (wave 3)")
    g, d = vt[2], vt[3]
    Pp = Xs
    assert Ws == Xs + 16 and Dc == Dk + 4
    for w in range(3):
        a(f"ds_read_b128 {v(Pp+8*w,4)}, v{vt[4]} offset:{w*2048}")
        a(f"ds_read_b128 {v(Pp+8*w+4,4)}, v{vt[4]} offset:{w*2048+1024}")
    def kvsum():
        for i in range(4):
            a(f"v_pk_add_f32 {v(Pp+2*i,2)}, {v(Pp+2*i,2)}, {v(Pp+8+2*i,2)}")
            a(f"v_pk_add_f32 {v(Pp+16+2*i,2)}, {v(Pp+16+2*i,2)}, {v(Dk+2*i,2)}")
        for i in range(4):
            a(f"v_pk_add_f32 {v(Dk+2*i,2)}, {v(Pp+2*i,2)}, {v(Pp+16+2*i,2)}")
    a(f"""
    s_lshr_b32 s{sH}, s{sCB}, 1
    s_lshl_b32 s{sT0}, s{sH}, 8
    s_add_u32 s{sT0}, s{sT0}, {STBASE}
    s_lshl_b32 s{sKm}, s{sRB}, 2
    s_add_u32 s{sKm}, s{sKm}, s{sH}
    s_bitcmp1_b32 s{sCB}, 0
    s_cbranch_scc1 K1_VEP
    """)
    a.c("K tile: lane key = l&15")
    a(f"""
    v_lshlrev_b32 v{vt[0]}, 4, v{d}
    v_add_u32 v{vt[0]}, s{sT0}, v{vt[0]}
    ds_read_b64 {v(st,2)}, v{vt[0]} offset:8
    v_and_b32 v{vt[1]}, 3, v{d}
    v_and_b32 v{vt[5]}, 4, v{d}
    v_lshl_or_b32 v{vt[1]}, v{vt[5]}, 1, v{vt[1]}
    v_and_b32 v{vt[5]}, 8, v{d}
    v_lshrrev_b32 v{vt[5]}, 1, v{vt[5]}
    v_or_b32 v{vt[1]}, v{vt[1]}, v{vt[5]}
    v_lshlrev_b32 v{vt[1]}, 4, v{vt[1]}
    v_and_b32 v{vt[5]}, 1, v{g}
    v_lshl_add_u32 v{vt[1]}, v{vt[5]}, 9, v{vt[1]}
    v_lshrrev_b32 v{vt[5]}, 1, v{g}
    v_lshl_add_u32 v{vt[1]}, v{vt[5]}, 3, v{vt[1]}
    s_lshr_b32 s{sT1}, s{sKm}, 1
    s_lshl_b32 s{sT1}, s{sT1}, 10
    s_and_b32 s{sT0}, s{sKm}, 1
    s_lshl_b32 s{sT0}, s{sT0}, 8
    s_add_u32 s{sT1}, s{sT1}, s{sT0}
    s_waitcnt lgkmcnt(0)
    """)
    kvsum()
    for r in range(4):
        a(f"v_fma_f32 v{Dk+r}, -v{st+1}, v{Dc+r}, v{Dk+r}")
    for r in range(4):
        a(f"v_mul_f32 v{Dk+r}, v{Dk+r}, v{st}")
    a(f"""
    v_cvt_pk_bf16_f32 v{pk}, v{Dk}, v{Dk+1}
    v_cvt_pk_bf16_f32 v{pk+1}, v{Dk+2}, v{Dk+3}
    v_mul_f32 v{st+2}, v{Dk}, v{Dk}
    v_fmac_f32 v{st+2}, v{Dk+1}, v{Dk+1}
    v_fmac_f32 v{st+2}, v{Dk+2}, v{Dk+2}
    v_fmac_f32 v{st+2}, v{Dk+3}, v{Dk+3}
    buffer_store_dwordx2 {v(pk,2)}, v{vt[1]}, {s(SKV,4)}, s{sT1} offen
    v_mov_b32 v{st+3}, v{st+2}
    s_nop 1
    v_permlane32_swap_b32 v{st+2}, v{st+3}
    v_add_f32 v{st+2}, v{st+2}, v{st+3}
    v_mov_b32 v{st+3}, v{st+2}
    s_nop 1
    v_permlane16_swap_b32 v{st+2}, v{st+3}
    v_add_f32 v{st+2}, v{st+2}, v{st+3}
    s_nop 1
    v_max_f32_dpp v{st+2}, v{st+2}, v{st+2} row_ror:8 row_mask:0xf bank_mask:0xf
    s_nop 1
    v_max_f32_dpp v{st+2}, v{st+2}, v{st+2} row_ror:4 row_mask:0xf bank_mask:0xf
    s_nop 1
    v_max_f32_dpp v{st+2}, v{st+2}, v{st+2} row_ror:2 row_mask:0xf bank_mask:0xf
    s_nop 1
    v_max_f32_dpp v{st+2}, v{st+2}, v{st+2} row_ror:1 row_mask:0xf bank_mask:0xf
    s_lshl_b32 s{sKm}, s{sKm}, 2
    s_add_u32 s{sKm}, s{sKm}, 0x21000
    v_mov_b32 v{vt[5]}, 0
    s_mov_b64 exec, 1
    buffer_store_dword v{st+2}, v{vt[5]}, {s(SKV,4)}, s{sKm} offen
    s_branch K1_DONE
    K1_VEP:
    """)
    a.c("V tile: lane d = l&15, keys 4g+r")
    a(f"""
    v_lshlrev_b32 v{vt[0]}, 6, v{g}
    v_add_u32 v{vt[0]}, s{sT0}, v{vt[0]}
    """)
    for r in range(4):
        a(f"ds_read_b64 {v(st+2*r,2)}, v{vt[0]} offset:{16*r+8}")
    a(f"""
    v_lshlrev_b32 v{vt[1]}, 4, v{d}
    v_and_b32 v{vt[5]}, 1, v{g}
    v_lshl_add_u32 v{vt[1]}, v{vt[5]}, 8, v{vt[1]}
    v_lshrrev_b32 v{vt[5]}, 1, v{g}
    v_lshl_add_u32 v{vt[1]}, v{vt[5]}, 3, v{vt[1]}
    s_mul_i32 s{sT1}, s{sKm}, {VSTR}
    s_add_u32 s{sT1}, s{sT1}, 0x10000
    s_waitcnt lgkmcnt(0)
    """)
    kvsum()
    for r in range(4):
        a(f"v_fma_f32 v{Dk+r}, -v{st+2*r+1}, v{Dc+r}, v{Dk+r}")
    for r in range(4):
        a(f"v_mul_f32 v{Dk+r}, v{Dk+r}, v{st+2*r}")
    a(f"""
    v_cvt_pk_bf16_f32 v{pk}, v{Dk}, v{Dk+1}
    v_cvt_pk_bf16_f32 v{pk+1}, v{Dk+2}, v{Dk+3}
    buffer_store_dwordx2 {v(pk,2)}, v{vt[1]}, {s(SKV,4)}, s{sT1} offen
    v_lshlrev_b32 v{vt[1]}, 2, v0
    s_mov_b64 exec, 15
    buffer_store_dword v{ones}, v{vt[1]}, {s(SKV,4)}, s{sT1} offen offset:512
    s_branch K1_DONE
    """)
    P = Regs(pool, pool + 116)
    vXa = [P.alloc(f"xa{i}") for i in range(8)]
    vWa = [P.alloc("wa0"), P.alloc("wa1")]
    vcs = [P.alloc("cs0"), P.alloc("cs1")]; onesr = P.alloc("onesr")
    Xf = [P.alloc(f"xf{i}", 4) for i in range(NS)]
    Wf = [P.alloc(f"wf{i}", 4) for i in range(NS)]
    acc = P.alloc("acc", 16); csr = P.alloc("csr", 16); pk = P.alloc("pk", 8); st = P.alloc("st", 2)
    jt = [P.alloc(f"jt{i}") for i in range(8)]
    sJ0, sJ1, sJb, sJs = 58, 59, 60, 61
    a("K1_MM:")
    a(f"s_sub_u32 s{sW}, s{sW}, 4")
    if CODEPF:
        a.c("pull the code of this launch list into L2 (one dword per 128-byte line)")
        a(f"""
        s_getpc_b64 s[6:7]
        K1_PC:
        s_sub_u32 s6, s6, K1_PC-qkv_kernel
        s_subb_u32 s7, s7, 0
        s_lshl_b32 s{sT0}, s{sW}, 13
        s_add_u32 s6, s6, s{sT0}
        s_addc_u32 s7, s7, 0
        v_lshlrev_b32 v{vt[4]}, 7, v0
        v_mov_b32 v{vt[5]}, s7
        v_add_co_u32 v{vt[4]}, vcc, s6, v{vt[4]}
        s_nop 1
        v_addc_co_u32 v{vt[5]}, vcc, 0, v{vt[5]}, vcc
        global_load_dword v{jt[0]}, v[{vt[4]}:{vt[5]}], off
        """)
    def job_issue():
        a(f"""
        v_lshrrev_b32 v{jt[2]}, 4, v0
        v_and_b32 v{jt[3]}, 15, v0
        s_lshl_b32 s{sJ1}, s{sW}, 11
        s_add_u32 s{sJs}, s{sJ1}, {STBASE + 8192}
        v_bfe_u32 v{jt[5]}, v0, 2, 2
        v_and_b32 v{jt[6]}, 3, v0
        v_lshlrev_b32 v{jt[4]}, 4, v0
        s_cmp_eq_u32 s{sW}, 2
        s_cbranch_scc1 K1_WOJ
        """)
        a.c("w2 re-layout: block b = 3*wg + {0,1,2} ; ks = b>>3, cb = b&7")
        srd(a, SWO, 4, 5, 0, 1409024)
        a(f"""
        s_mul_i32 s{sJb}, s2, 3
        s_min_u32 s{sJ0}, s{sW}, 2
        s_add_u32 s{sJb}, s{sJb}, s{sJ0}
        s_lshr_b32 s{sJ0}, s{sJb}, 3
        s_lshl_b32 s{sJ0}, s{sJ0}, 14
        s_and_b32 s{sJ1}, s{sJb}, 7
        s_lshl_b32 s{sJ1}, s{sJ1}, 7
        s_add_u32 s{sJ0}, s{sJ0}, s{sJ1}
        v_lshrrev_b32 v{jt[7]}, 3, v0
        v_lshlrev_b32 v{jt[7]}, 10, v{jt[7]}
        v_and_b32 v{jt[0]}, 7, v0
        v_lshl_add_u32 v{jt[7]}, v{jt[0]}, 4, v{jt[7]}
        s_mov_b32 m0, s{sJs}
        s_add_u32 s{sJ1}, s{sJ0}, 0x2000
        buffer_load_dwordx4 v{jt[7]}, {s(SWO,4)}, s{sJ0} offen lds
        s_add_u32 m0, s{sJs}, 1024
        v_lshrrev_b32 v{jt[0]}, 5, v0
        buffer_load_dwordx4 v{jt[7]}, {s(SWO,4)}, s{sJ1} offen lds
        v_lshlrev_b32 v{jt[0]}, 9, v{jt[0]}
        v_lshl_add_u32 v{jt[0]}, v{jt[5]}, 7, v{jt[0]}
        v_bfe_u32 v{jt[1]}, v0, 4, 1
        v_lshl_add_u32 v{jt[0]}, v{jt[1]}, 5, v{jt[0]}
        v_lshl_add_u32 v{jt[0]}, v{jt[6]}, 3, v{jt[0]}
        v_add_u32 v{jt[0]}, s{sJs}, v{jt[0]}
        s_and_b32 s{sJ0}, s{sJb}, 7
        s_lshl_b32 s{sJ0}, s{sJ0}, 3
        s_bfe_u32 s{sJ1}, s{sJb}, 0x30003
        s_add_u32 s{sJ0}, s{sJ0}, s{sJ1}
        s_mul_i32 s{sJ0}, s{sJ0}, 11
        s_lshr_b32 s{sJ1}, s{sJb}, 6
        s_add_u32 s{sJ0}, s{sJ0}, s{sJ1}
        s_lshl_b32 s{sJ0}, s{sJ0}, 11
        s_cmp_lt_u32 s{sJb}, 704
        s_cselect_b32 s{sJ0}, s{sJ0}, 0x1000000
        """)
        srd(a, SWO, 16, 17, WS_W2, W2F_BYTES)
        a(f"""
        v_add_u32 v{jt[1]}, 1024, v{jt[0]}
        v_add_u32 v{jt[2]}, 64, v{jt[0]}
        v_add_u32 v{jt[3]}, 1088, v{jt[0]}
        s_branch K1_JOBST
        K1_WOJ:
        """)
        a.c("wo re-layout: block rows 32*(wg>>4).., cols 32*(wg&15)..")
        srd(a, SWO, 18, 19, 0, 524288)
        a(f"""
        s_lshr_b32 s{sJ0}, s2, 4
        s_lshl_b32 s{sJ0}, s{sJ0}, 15
        s_and_b32 s{sJ1}, s2, 15
        s_lshl_b32 s{sJ1}, s{sJ1}, 6
        s_add_u32 s{sJ0}, s{sJ0}, s{sJ1}
        v_lshrrev_b32 v{jt[7]}, 2, v0
        v_lshlrev_b32 v{jt[7]}, 10, v{jt[7]}
        v_lshl_add_u32 v{jt[7]}, v{jt[6]}, 4, v{jt[7]}
        s_mov_b32 m0, s{sJs}
        s_add_u32 s{sJ1}, s{sJ0}, 0x4000
        buffer_load_dwordx4 v{jt[7]}, {s(SWO,4)}, s{sJ0} offen lds
        s_add_u32 m0, s{sJs}, 1024
        v_lshlrev_b32 v{jt[0]}, 9, v{jt[2]}
        buffer_load_dwordx4 v{jt[7]}, {s(SWO,4)}, s{sJ1} offen lds
        v_lshl_add_u32 v{jt[0]}, v{jt[5]}, 6, v{jt[0]}
        v_lshl_add_u32 v{jt[0]}, v{jt[6]}, 3, v{jt[0]}
        v_add_u32 v{jt[0]}, s{sJs}, v{jt[0]}
        s_lshr_b32 s{sJ0}, s2, 5
        s_lshl_b32 s{sJ0}, s{sJ0}, 16
        s_bfe_u32 s{sJ1}, s2, 0x30001
        s_lshl_b32 s{sJ1}, s{sJ1}, 13
        s_add_u32 s{sJ0}, s{sJ0}, s{sJ1}
        s_bfe_u32 s{sJ1}, s2, 0x10004
        s_lshl_b32 s{sJ1}, s{sJ1}, 12
        s_add_u32 s{sJ0}, s{sJ0}, s{sJ1}
        s_and_b32 s{sJ1}, s2, 1
        s_lshl_b32 s{sJ1}, s{sJ1}, 11
        s_add_u32 s{sJ0}, s{sJ0}, s{sJ1}
        """)
        srd(a, SWO, 16, 17, WS_WO, 524288)
        a(f"""
        v_add_u32 v{jt[1]}, 256, v{jt[0]}
        v_add_u32 v{jt[2]}, 32, v{jt[0]}
        v_add_u32 v{jt[3]}, 288, v{jt[0]}
        K1_JOBST:
        """)
    a(f"""
    s_and_b32 s{sWR}, s{sW}, 1
    s_bfe_u32 s{sWC}, s{sW}, 0x10001
    v_and_b32 v{vt[0]}, 31, v0
    v_lshrrev_b32 v{vt[1]}, 5, v0
    s_lshl_b32 s{sT0}, s{sWR}, 13
    v_lshlrev_b32 v{vt[2]}, 8, v{vt[0]}
    v_add_u32 v{vt[2]}, s{sT0}, v{vt[2]}
    v_and_b32 v{vt[3]}, 15, v0
    v_xor_b32 v{vt[3]}, v{vt[3]}, v{vt[1]}
    s_lshl_b32 s{sT1}, s{sWR}, 1
    v_xor_b32 v{vt[3]}, s{sT1}, v{vt[3]}
    v_mov_b32 v{onesr}, 0x3f803f80
    v_mov_b32 v{vcs[0]}, 0
    v_mov_b32 v{vcs[1]}, 0
    """)
    for i in range(8):
        a(f"v_xor_b32 v{vt[4]}, {2*i}, v{vt[3]}")
        a(f"v_lshl_add_u32 v{vXa[i]}, v{vt[4]}, 4, v{vt[2]}")
    a(f"""
    v_lshlrev_b32 v{vt[4]}, 9, v{vt[1]}
    v_bfe_u32 v{vt[5]}, v0, 2, 2
    v_lshl_add_u32 v{vt[4]}, v{vt[5]}, 6, v{vt[4]}
    v_bfe_u32 v{vt[5]}, v0, 4, 1
    v_lshl_add_u32 v{vt[4]}, v{vt[5]}, 5, v{vt[4]}
    v_and_b32 v{vt[5]}, 3, v0
    v_lshl_add_u32 v{vt[4]}, v{vt[5]}, 3, v{vt[4]}
    s_lshl_b32 s{sT0}, s{sWC}, 15
    s_add_u32 s{sT0}, s{sT0}, {WBASE}
    s_lshl_b32 s{sT1}, s{sWR}, 10
    s_add_u32 s{sT0}, s{sT0}, s{sT1}
    v_add_u32 v{vWa[0]}, s{sT0}, v{vt[4]}
    v_xor_b32 v{vWa[1]}, 0x400, v{vWa[0]}
    s_lshl_b32 s{sT0}, s{sWR}, 9
    s_add_u32 s{sT0}, s{sT0}, {STBASE}
    v_lshlrev_b32 v{vt[2]}, 4, v{vt[0]}
    v_add_u32 v{vt[2]}, s{sT0}, v{vt[2]}
    s_lshl_b32 s{sT1}, s{sWC}, 7
    s_add_u32 s{sT1}, s{sT1}, {STBASE + 1024}
    v_lshlrev_b32 v{vt[5]}, 4, v{vt[1]}
    v_add_u32 v{vt[5]}, s{sT1}, v{vt[5]}
    s_lshl_b32 s{sT0}, s{sRB}, 16
    s_lshl_b32 s{sT1}, s{sWR}, 15
    s_add_u32 s{sT0}, s{sT0}, s{sT1}
    s_lshl_b32 s{sT1}, s{sCB}, 10
    s_add_u32 s{sT0}, s{sT0}, s{sT1}
    s_lshl_b32 s{sT1}, s{sWC}, 8
    s_add_u32 s{sT0}, s{sT0}, s{sT1}
    v_lshrrev_b32 v{vt[6]}, 3, v{vt[0]}
    v_lshlrev_b32 v{vt[6]}, 13, v{vt[6]}
    v_lshl_add_u32 v{vt[6]}, v{vt[1]}, 9, v{vt[6]}
    v_and_b32 v{vt[7]}, 7, v0
    v_lshl_add_u32 v{vt[6]}, v{vt[7]}, 4, v{vt[6]}
    """)
    a("s_waitcnt lgkmcnt(0)")
    srd(a, SQ, 16, 17, WS_Q, 0x200000)
    def reads(i):
        c, ip = i >> 3, i & 7
        sl = i % NS
        a(f"ds_read_b128 {v(Xf[sl],4)}, v{vXa[ip]} offset:{c*16384}")
        a(f"ds_read_b64_tr_b16 {v(Wf[sl],2)}, v{vWa[i&1]} offset:{(i&~1)*1024}")
        a(f"ds_read_b64_tr_b16 {v(Wf[sl]+2,2)}, v{vWa[i&1]} offset:{(i&~1)*1024+256}")
    a("s_waitcnt lgkmcnt(0)")
    srd(a, SKV, 16, 17, WS_FLG, 4096)
    a(f"""
    v_lshlrev_b32 v{vt[1]}, 2, v0
    v_mov_b32 v{vt[7]}, 0
    s_lshl_b32 s{sT1}, s2, 8
    s_cmp_eq_u32 s{sW}, 0
    s_cselect_b32 s{sT1}, s{sT1}, 0x10000
    buffer_store_dword v{vt[7]}, v{vt[1]}, {s(SKV,4)}, s{sT1} offen
    """)
    def job_finish():
        a.c("finish the re-layout job")
        a(f"""
        s_waitcnt vmcnt(0)
        ds_read_b64_tr_b16 {v(pk,2)}, v{jt[0]}
        ds_read_b64_tr_b16 {v(pk+2,2)}, v{jt[1]}
        ds_read_b64_tr_b16 {v(pk+4,2)}, v{jt[2]}
        ds_read_b64_tr_b16 {v(pk+6,2)}, v{jt[3]}
        s_waitcnt lgkmcnt(0)
        buffer_store_dwordx4 {v(pk,4)}, v{jt[4]}, {s(SWO,4)}, s{sJ0} offen {K1F}
        buffer_store_dwordx4 {v(pk+4,4)}, v{jt[4]}, {s(SWO,4)}, s{sJ0} offen offset:1024 {K1F}
        """)
    nxt = 0
    for i in range(32):
        c = i >> 3
        if i % 8 == 0:
            a("s_barrier")
            stamp(a, 2 + c)
            lim = (c + 1) * 8
        while nxt < min(i + NS, lim):
            reads(nxt); nxt += 1
        a(f"s_waitcnt lgkmcnt({(nxt - 1 - i) * 3})")
        a(f"v_mfma_f32_32x32x16_bf16 {v(acc,16)}, {v(Wf[i % NS],4)}, {v(Xf[i % NS],4)}, {'0' if i == 0 else v(acc,16)}")
        if (i & 1) == 0:
            for j in range(4):
                a(f"v_dot2c_f32_bf16 v{vcs[j&1]}, v{Wf[i % NS]+j}, v{onesr}")
        if i == 3:
            a("s_waitcnt vmcnt(0)")
            job_issue()
        if i == JF:
            job_finish()
    a.c("column sums: [wr][64]")
    a(f"""
    s_nop 0
    v_add_f32 v{vcs[0]}, v{vcs[0]}, v{vcs[1]}
    s_lshl_b32 s{sJ1}, s{sWR}, 8
    v_mov_b32 v{vcs[1]}, v{vcs[0]}
    s_lshl_b32 s{sJb}, s{sWC}, 7
    s_add_u32 s{sJ1}, s{sJ1}, s{sJb}
    v_permlane32_swap_b32 v{vcs[0]}, v{vcs[1]}
    s_add_u32 s{sJ1}, s{sJ1}, {STBASE + 1024}
    v_lshlrev_b32 v{onesr}, 2, v{vt[0]}
    v_add_f32 v{vcs[0]}, v{vcs[0]}, v{vcs[1]}
    v_add_u32 v{onesr}, s{sJ1}, v{onesr}
    ds_write_b32 v{onesr}, v{vcs[0]}
    """)
    a("s_waitcnt lgkmcnt(0)")
    stamp(a, 6)
    a("s_barrier")
    cs2 = Xf[0]
    a(f"ds_read_b64 {v(st,2)}, v{vt[2]}")
    for q in range(4):
        a(f"ds_read_b128 {v(csr+4*q,4)}, v{vt[5]} offset:{32*q}")
        a(f"ds_read_b128 {v(cs2+4*q,4)}, v{vt[5]} offset:{256+32*q}")
    a("s_nop 0\ns_waitcnt lgkmcnt(8)")
    for r in range(8):
        a(f"v_pk_mul_f32 {v(acc+2*r,2)}, {v(acc+2*r,2)}, {v(st,2)} op_sel_hi:[1,0]")
    a("s_waitcnt lgkmcnt(0)")
    for r in range(8):
        a(f"v_pk_add_f32 {v(csr+2*r,2)}, {v(csr+2*r,2)}, {v(cs2+2*r,2)}")
    for r in range(8):
        a(f"v_pk_fma_f32 {v(acc+2*r,2)}, {v(csr+2*r,2)}, {v(st,2)}, {v(acc+2*r,2)} op_sel:[0,1,0] op_sel_hi:[1,1,1] neg_lo:[1,0,0] neg_hi:[1,0,0]")
    for j in range(8):
        a(f"v_cvt_pk_bf16_f32 v{pk+j}, v{acc+2*j}, v{acc+2*j+1}")
    a(f"""
    buffer_store_dwordx4 {v(pk,4)}, v{vt[6]}, {s(SQ,4)}, s{sT0} offen {K1Q}
    buffer_store_dwordx4 {v(pk+4,4)}, v{vt[6]}, {s(SQ,4)}, s{sT0} offen offset:128 {K1Q}
    s_add_u32 s{sW}, s{sW}, 4
    K1_DONE:
    """)
    stamp_dump(a, 0, sW)
    a("K1_END:")
    a("s_endpgm")
    return name, R.cur, K1_LDS
```

```python
WS_Q  = 0x000000
WS_K  = 0x200000
WS_V  = 0x210000
WS_KM = 0x221000
VSTR = 528
KV_BYTES = 0x22000
WS_FLG = 0x230000
WS_WO = 0x280000
WS_W2 = 0xD00000
W2F_BYTES = 64 * 11 * 2048
WS_H  = 0x300000
WS_HN = 0x500000
WS_G  = 0x700000
G_BYTES = 64 * 86 * 1024
QSCALE = 0.25 * 1.4426950408889634
import struct
def f32bits(x):
    return struct.unpack("<I", struct.pack("<f", x))[0]

KNAME = "sequential_preLN__grouped_kv_mqa__dense_activation_squared_relu__prompt_kernel"
FLG0 = 8192
NONCE = 16384
sNonce = 3
```

```python
from asmlib import *
from common import *
import os

W1L = 0
QL = 98304
EXB = QL
OACC = QL + 8192
LACC = OACC + 16384
OFB = LACC + 1024
MISC = OFB + 1024
XL = MISC + 2048
B1L = EXB + 49152
K2_LDS = B1L + 256
RSTR = 17408
THR2 = (40.0 / 1.02) ** 2
PRIO = os.environ.get("PRIO", "2")
PD = int(os.environ.get("PD", "2"))
EXP = os.environ.get("EXP", "").split(",")
LDF = os.environ.get("LDF", "sc1").replace("_", " ").replace("none", "")
RELOAD = os.environ.get("RELOAD", "0") == "1"
OUTF = os.environ.get("OUTF", "").replace("_", " ")
W2L = os.environ.get("W2L", "thin")
NPOLL = int(os.environ.get("NPOLL", "2"))
SLOW_V0 = min(16, 2*PD + 10)

def gen_k2(a):
    name = "attn_kernel"
    kernel_header(a, name)
    R = Regs(1, 256)
    vt = [R.alloc(f"t{i}") for i in range(6)]
    vidx = R.alloc("idx")
    vQa = R.alloc("qa")
    vOa = R.alloc("oa"); vLa = R.alloc("la")
    vNr = R.alloc("nr"); vNl = R.alloc("nl"); vNw = R.alloc("nw")
    vOFa = R.alloc("ofa")
    vKo = R.alloc("ko"); vVo = R.alloc("vo"); vQl = R.alloc("ql"); vW1o = R.alloc("w1o")
    vP1r = R.alloc("p1r"); vP2r = R.alloc("p2r"); vPw = R.alloc("pw"); vPv = R.alloc("pv"); vCnt = R.alloc("cnt")
    zero = R.alloc("zero", 4)
    Q = R.alloc("q", 4)
    nrm = R.alloc("nrm", 8, 4)
    Kf = R.alloc("k", 32)
    Vf = R.alloc("v", 64)
    S = [R.alloc(f"s{i}", 16) for i in range(2)]
    O = [R.alloc(f"o{i}", 16) for i in range(2)]
    woA = R.alloc("woa", 16)
    T = R.alloc("T", 16)
    OFr = R.alloc("ofr", 8)
    hacc = R.alloc("hacc", 16)
    Qw = OFr
    vM = [vt[1], vt[2]]
    sW, sRB, sT0, sT1, sT2, sWm, sSo, sHalf = 20, 21, 22, 23, 44, 45, 46, 47
    sMaskLo, sV1, sV2 = 48, 50, 51
    sG, sMm, sT0f, sW1m, sV2x, sRot = 4, 5, 6, 7, 60, 61
    SQ, SKV, SWO, SX, SH, SHN, SP = 24, 28, 32, 36, 40, 52, 56
    a(f"""
    s_cmp_ge_u32 s2, 256
    s_cbranch_scc1 K2_END
    s_setprio 3
    s_load_dwordx2 s[16:17], s[0:1], 96
    s_load_dwordx2 s[8:9], s[0:1], 0
    s_load_dwordx4 s[12:15], s[0:1], 48
    s_load_dwordx2 s[18:19], s[0:1], 72
    s_load_dwordx2 s[10:11], s[0:1], 80
    v_lshrrev_b32 v{vt[0]}, 6, v0
    v_and_b32 v0, 63, v0
    v_readfirstlane_b32 s{sW}, v{vt[0]}
    v_lshlrev_b32 v{vQa}, 4, v0
    s_and_b32 s{sT0}, s2, 7
    s_lshr_b32 s{sT1}, s2, 3
    s_lshl_b32 s{sRB}, s{sT0}, 5
    s_add_u32 s{sRB}, s{sRB}, s{sT1}
    s_lshl_b32 s{sWm}, s{sW}, 13
    v_add_u32 v{vKo}, s{sWm}, v{vQa}
    v_lshrrev_b32 v{vt[3]}, 5, v0
    v_and_b32 v{vt[4]}, 31, v0
    v_lshlrev_b32 v{vt[2]}, 4, v{vt[4]}
    v_lshl_add_u32 v{vt[2]}, v{vt[3]}, 8, v{vt[2]}
    s_mul_i32 s{sT0}, s{sW}, {16*VSTR}
    s_add_u32 s{sT0}, s{sT0}, 0x10000
    v_and_b32 v{vt[1]}, 27, v0
    v_cmp_eq_u32 vcc, 16, v{vt[1]}
    v_mov_b32 v{vt[1]}, 0x40000000
    v_mov_b32 v{vt[5]}, 512
    v_cndmask_b32 v{vt[1]}, v{vt[1]}, v{vt[5]}, vcc
    v_cmp_gt_u32 vcc, 16, v{vt[4]}
    v_lshlrev_b32 v{vt[5]}, 3, v0
    s_nop 0
    v_cndmask_b32 v{vt[1]}, v{vt[1]}, v{vt[2]}, vcc
    v_add_u32 v{vVo}, s{sT0}, v{vt[1]}
    s_lshl_b32 s{sT1}, s{sRB}, 13
    s_lshl_b32 s{sT2}, s{sW}, 10
    s_add_u32 s{sT0}, s{sT1}, s{sT2}
    s_mov_b32 s{sSo}, 0x21000
    s_movk_i32 s{sT2}, 0x1000
    s_movk_i32 s{sV1}, {7*VSTR}
    s_movk_i32 s{sV2}, {14*VSTR}
    s_lshr_b32 s{sHalf}, s{sW}, 2
    """)
    stamp_init(a)
    a("s_waitcnt lgkmcnt(0)")
    srd(a, SQ, 16, 17, WS_Q, 0x200000)
    srd(a, SKV, 16, 17, WS_K, KV_BYTES)
    order = []
    def ldK(j):
        so = "0" if j < 4 else f"s{sT2}"
        order.append(f"K{j}")
        return f"buffer_load_dwordx4 {v(Kf+4*j,4)}, v{vKo}, {s(SKV,4)}, {so} offen offset:{(j&3)*1024}"
    def ldV(i):
        so = ("0", f"s{sV1}", f"s{sV2}")[i // 7]
        order.append(f"V{i}")
        return f"buffer_load_dwordx4 {v(Vf+4*i,4)}, v{vVo}, {s(SKV,4)}, {so} offen offset:{(i%7)*VSTR}"
    def ldW(t, ks, ct, dst):
        order.append(f"W{t}_{ks}_{ct}")
        pre = f"s_mov_b32 s{sSo}, {t*65536 + ks*4096}\n"
        return pre + f"buffer_load_dwordx4 {v(dst+4*ct,4)}, v{vKo}, {s(SWO,4)}, s{sSo} offen offset:{ct*1024}"
    def wait_for(item):
        return f"s_waitcnt vmcnt({len(order) - 1 - order.index(item)})"
    a(f"buffer_load_dwordx4 {v(Q,4)}, v{vQa}, {s(SQ,4)}, s{sT1} offen"); order.append("Q")
    a(ldK(0)); a(ldK(1)); a(ldV(0)); a(ldV(1)); a(ldK(2))
    a(f"buffer_load_dwordx4 {v(Qw,4)}, v{vQa}, {s(SQ,4)}, s{sT0} offen"); order.append("QW")
    a(f"buffer_load_dwordx2 {v(nrm,2)}, v{vt[5]}, {s(SKV,4)}, s{sSo} offen"); order.append("KM")
    for i in range(1, PD):
        a(ldV(2*i)); a(ldV(2*i + 1))
        if i + 2 < 8:
            a(ldK(i + 2))
    a("s_setprio 0")
    pro_order = list(order)
    srd(a, SWO, 16, 17, WS_WO, 524288)
    for i in range(4):
        a(f"v_mov_b32 v{zero+i}, 0")
    a(f"v_mov_b32 v{vidx}, 0xdddddddd")
    a("s_nop 0")
    for o in O:
        a(f"v_mfma_f32_32x32x16_bf16 {v(o,16)}, {v(zero,4)}, {v(zero,4)}, 0")
    a.c("LDS addresses")
    a(f"""
    s_lshl_b32 s{sT0}, s{sW}, 2
    s_add_u32 s{sT1}, s{sT0}, {MISC + 32}
    v_mov_b32 v{vPw}, s{sT1}
    ds_write2_b32 v{vPw}, v{zero}, v{zero} offset1:8
    s_add_u32 s{sT0}, s{sT0}, {LACC}
    v_lshlrev_b32 v{vLa}, 5, v{vt[4]}
    v_add_u32 v{vLa}, s{sT0}, v{vLa}
    s_lshl_b32 s{sT0}, s{sW}, 11
    s_add_u32 s{sT0}, s{sT0}, {OACC}
    v_add_u32 v{vOa}, s{sT0}, v{vQa}
    s_and_b32 s{sT1}, s{sW}, 3
    v_and_b32 v{vt[2]}, 7, v0
    v_lshlrev_b32 v{vP1r}, 2, v{vt[2]}
    v_add_u32 v{vP1r}, {MISC + 32}, v{vP1r}
    v_and_b32 v{vt[1]}, 3, v0
    v_lshlrev_b32 v{vP2r}, 2, v{vt[1]}
    v_add_u32 v{vP2r}, {MISC + 64}, v{vP2r}
    v_bfe_u32 v{vt[1]}, v0, 4, 1
    v_bfe_u32 v{vt[4]}, v0, 3, 1
    v_lshlrev_b32 v{vNr}, 4, v{vt[2]}
    v_lshl_add_u32 v{vNw}, v{vt[3]}, 7, v{vNr}
    v_lshl_add_u32 v{vNr}, v{vt[3]}, 10, v{vNr}
    v_lshl_add_u32 v{vNr}, v{vt[1]}, 9, v{vNr}
    v_lshl_add_u32 v{vNr}, v{vt[4]}, 3, v{vNr}
    s_lshl_b32 s{sT0}, s{sT1}, 7
    s_add_u32 s{sT0}, s{sT0}, {OACC}
    v_add_u32 v{vNr}, s{sT0}, v{vNr}
    s_lshl_b32 s{sT0}, s{sT1}, 8
    s_add_u32 s{sSo}, s{sT0}, {LACC}
    v_lshlrev_b32 v{vNl}, 5, v{vt[2]}
    v_add_u32 v{vNl}, s{sSo}, v{vNl}
    v_bfe_u32 v{vt[3]}, v0, 3, 2
    v_lshl_add_u32 v{vNw}, v{vt[3]}, 2, v{vNw}
    s_add_u32 s{sSo}, s{sT0}, {OFB}
    v_add_u32 v{vNw}, s{sSo}, v{vNw}
    v_lshrrev_b32 v{vt[3]}, 4, v0
    v_lshlrev_b32 v{vt[2]}, 4, v{vt[2]}
    v_lshl_add_u32 v{vOFa}, v{vt[3]}, 7, v{vt[2]}
    v_add_u32 v{vOFa}, {OFB}, v{vOFa}
    """)
    srd(a, SX, 8, 9, 0, 0x200000)
    srd(a, SHN, 16, 17, WS_HN, 0x200000)
    srd(a, SP, 12, 13, 0, 1409024)
    srd(a, SH, 16, 17, WS_W2, W2F_BYTES)
    a(f"""
    s_lshr_b32 s{sT0}, s2, 3
    s_mul_i32 s{sT1}, s{sT0}, 44032
    s_add_u32 s{sT1}, s{sT1}, s{sWm}
    v_lshlrev_b32 v{vt[5]}, 7, v0
    s_lshl_b32 s{sMaskLo}, s{sT0}, 14
    s_and_b32 s{sT0}, s{sWm}, 0x2000
    s_add_u32 s{sMaskLo}, s{sMaskLo}, s{sT0}
    s_mov_b32 s{sMaskLo+1}, s{sT1}
    s_lshr_b32 s{sT0}, s2, 3
    s_mul_i32 s{sV2x}, s{sT0}, 45056
    s_add_u32 s{sV2x}, s{sV2x}, s{sWm}
    s_lshr_b32 s{sG}, s{sRB}, 4
    s_and_b32 s{sMm}, s{sRB}, 15
    s_mul_i32 s{sT0f}, s{sMm}, 3
    s_min_u32 s{sT0f}, s{sT0f}, 40
    v_add_u32 v{vQl}, {QL}, v{vQa}
    v_lshrrev_b32 v{vt[3]}, 2, v0
    v_mul_u32_u24 v{vt[3]}, 2752, v{vt[3]}
    v_and_b32 v{vt[4]}, 3, v0
    v_lshl_add_u32 v{vt[3]}, v{vt[4]}, 4, v{vt[3]}
    s_lshl_b32 s{sT0}, s{sT0f}, 6
    s_mul_i32 s{sT1}, s{sHalf}, {16*44032}
    s_add_u32 s{sT0}, s{sT0}, s{sT1}
    v_add_u32 v{vW1o}, s{sT0}, v{vt[3]}
    s_lshl_b32 s{sRot}, s{sW}, 2
    s_add_u32 s{sRot}, s{sRot}, s{sMm}
    s_mul_i32 s{sW1m}, s{sW}, {4*3072}
    """)
    stamp(a, 1)
    def bound_check():
        n = nrm
        P = []
        P.append(lambda: f"s_lshl_b32 s{sT0}, s{sW}, 10\nv_add_u32 v{vt[0]}, s{sT0}, v{vQl}\nv_mov_b32 v{n+2}, 0\n{wait_for('KM')}\nds_write_b128 v{vt[0]}, {v(Qw,4)}")
        P.append("\n".join(f"v_dot2c_f32_bf16 v{n+2}, v{Qw+i}, v{Qw+i}" for i in range(4)) + f"\nv_max_f32 v{n}, v{n}, v{n+1}\ns_nop 0")
        P.append(f"v_max_f32_dpp v{n}, v{n}, v{n} row_ror:8 row_mask:0xf bank_mask:0xf\nv_mov_b32 v{n+3}, v{n+2}")
        P.append(f"v_max_f32_dpp v{n}, v{n}, v{n} row_ror:4 row_mask:0xf bank_mask:0xf\nv_permlane32_swap_b32 v{n+2}, v{n+3}")
        P.append(f"v_max_f32_dpp v{n}, v{n}, v{n} row_ror:2 row_mask:0xf bank_mask:0xf\nv_add_f32 v{n+2}, v{n+2}, v{n+3}")
        P.append(f"v_max_f32_dpp v{n}, v{n}, v{n} row_ror:1 row_mask:0xf bank_mask:0xf\nv_mov_b32 v{n+1}, v{n}\ns_nop 0")
        P.append(f"v_permlane32_swap_b32 v{n}, v{n+1}\nv_max_f32 v{n}, v{n}, v{n+1}\nv_mov_b32 v{n+1}, v{n}\ns_nop 0")
        P.append(f"v_permlane16_swap_b32 v{n}, v{n+1}\nv_max_f32 v{n}, v{n}, v{n+1}\nv_mul_f32 v{n}, v{n}, v{n+2}\nv_mov_b32 v{n+1}, {hex(f32bits(THR2))}\n"
                 f"v_cmp_nle_f32 vcc, v{n}, v{n+1}\ns_lshl_b32 s{sT0}, s{sW}, 2\ns_add_u32 s{sT0}, s{sT0}, {MISC}")
        P.append(f"s_cmp_lg_u64 vcc, 0\ns_cselect_b32 s{sT1}, 1, 0\nv_mov_b32 v{vt[0]}, s{sT0}\nv_mov_b32 v{vt[1]}, s{sT1}\nds_write_b32 v{vt[0]}, v{vt[1]}\nv_mov_b32 v{vt[0]}, {MISC}")
        return P
    flag_reads = f"ds_read_b128 {v(nrm,4)}, v{vt[0]}\nds_read_b128 {v(nrm+4,4)}, v{vt[0]} offset:16"
    flag_test = (f"s_waitcnt lgkmcnt(0)\nv_or3_b32 v{nrm}, v{nrm}, v{nrm+1}, v{nrm+2}\nv_or3_b32 v{nrm+3}, v{nrm+3}, v{nrm+4}, v{nrm+5}\n"
                 f"v_or3_b32 v{nrm}, v{nrm}, v{nrm+6}, v{nrm+7}\nv_or_b32 v{nrm}, v{nrm}, v{nrm+3}\ns_nop 0\n"
                 f"v_readfirstlane_b32 s{sT0}, v{nrm}\ns_cmp_lg_u32 s{sT0}, 0\ns_cbranch_scc1 K2_SLOW")

    def smf(tau):
        t, j = divmod(tau, 8)
        return f"v_mfma_f32_32x32x16_bf16 {v(S[tau&1],16)}, {v(Kf+4*j,4)}, {v(Q,4)}, 0"
    def pv(tau, h):
        t, j = divmod(tau, 8)
        return f"v_smfmac_f32_32x32x32_bf16 {v(O[t&1],16)}, {v(Vf+8*j+4*h,4)}, {v(S[tau&1]+8*h,8)}, v{vidx}"
    def drain(t):
        o = O[t & 1]
        return [f"ds_write_b128 v{vOa}, {v(o,4)}", f"ds_write_b128 v{vOa}, {v(o+4,4)} offset:1024", f"ds_write_b32 v{vLa}, v{o+8}"]
    retries = []
    def check(areg, off, val, lab):
        retries.append(f"K2_R{lab}:\nds_read_b32 v{vPv}, v{areg} offset:{off}\ns_waitcnt lgkmcnt(0)\nv_cmp_gt_u32 vcc, {val}, v{vPv}\n"
                       f"s_cbranch_vccnz K2_R{lab}\ns_branch K2_C{lab}")
        return f"s_waitcnt lgkmcnt(0)\nv_cmp_gt_u32 vcc, {val}, v{vPv}\ns_cbranch_vccnz K2_R{lab}\nK2_C{lab}:\n"
    def norm_reads():
        L = f"ds_read_b128 {v(nrm,4)}, v{vNl}\nds_read_b128 {v(nrm+4,4)}, v{vNl} offset:16\n"
        for w in range(8):
            L += f"ds_read_b64 {v(T+2*w,2)}, v{vNr} offset:{w*2048}\n"
        return L
    def norm_comp():
        L = f"s_waitcnt lgkmcnt(0)\n"
        L += f"v_pk_add_f32 {v(nrm,2)}, {v(nrm,2)}, {v(nrm+2,2)}\n"
        L += f"v_pk_add_f32 {v(nrm+4,2)}, {v(nrm+4,2)}, {v(nrm+6,2)}\n"
        for w in range(4):
            L += f"v_pk_add_f32 {v(T+4*w,2)}, {v(T+4*w,2)}, {v(T+4*w+2,2)}\n"
        L += f"v_pk_add_f32 {v(nrm,2)}, {v(nrm,2)}, {v(nrm+4,2)}\n"
        L += f"v_pk_add_f32 {v(T,2)}, {v(T,2)}, {v(T+4,2)}\n"
        L += f"v_add_f32 v{nrm}, v{nrm}, v{nrm+1}\n"
        L += f"v_pk_add_f32 {v(T+8,2)}, {v(T+8,2)}, {v(T+12,2)}\n"
        L += f"v_rcp_f32 v{nrm}, v{nrm}\n"
        L += f"v_pk_add_f32 {v(T,2)}, {v(T,2)}, {v(T+8,2)}\n"
        L += f"v_pk_mul_f32 {v(T,2)}, {v(T,2)}, {v(nrm,2)} op_sel_hi:[1,0]\n"
        L += f"v_cvt_pk_bf16_f32 v{T}, v{T}, v{T+1}\n"
        L += f"ds_write_b32 v{vNw}, v{T}\n"
        return L
    def only_half(t, lab, body):
        return f"s_cmp_lg_u32 s{sHalf}, {t&1}\ns_cbranch_scc1 K2_N{lab}\n{body}K2_N{lab}:\n"
    def of_reads():
        return "\n".join(f"ds_read_b128 {v(OFr+4*ks,4)}, v{vOFa} offset:{ks*512}" for ks in range(2))
    def wo_mfma(ks, ct, src, first=False):
        return f"v_mfma_f32_16x16x32_bf16 {v(hacc+4*ct,4)}, {v(src+4*ct,4)}, {v(OFr+4*ks,4)}, {'0' if first else v(hacc+4*ct,4)}"
    W7 = [Kf, Kf + 16]
    W2R = Vf + 8
    assert S[0] == Vf + 64 and S[1] == S[0] + 16 and Q == zero + 4 and nrm == Q + 4
    X = Vf

    sCB2, sW2o, sB3 = sV2, sV2x, 48
    def ldW2(i):
        if "NOW2A" in EXP and i < 8: return "s_nop 7\ns_nop 1\n"
        if "NOW2B" in EXP and i >= 8: return ""
        L = (f"s_add_u32 s{sSo}, s{sCB2}, {i}\ns_sub_u32 s{sT1}, s{sSo}, 11\ns_cselect_b32 s{sSo}, s{sSo}, s{sT1}\n"
             f"s_lshl_b32 s{sSo}, s{sSo}, 11\ns_add_u32 s{sSo}, s{sSo}, s{sW2o}\n")
        for ct in range(2):
            L += f"buffer_load_dwordx4 {v(W2R+8*i+4*ct,4)}, v{vQa}, {s(SH,4)}, s{sSo} offen offset:{ct*1024}\n"
        return L

    def mainloop(slow):
        tag = "S" if slow else "F"
        order[:] = [] if slow else list(pro_order)
        if slow:
            a(f"ds_read_b32 v{vM[0]}, v{vt[0]}")
            a("s_waitcnt lgkmcnt(0)")
        else:
            a(wait_for("K0"))
            stamp(a, 2)
        a(smf(0))
        a("s_nop 7")
        a("s_nop 3")
        for tau in range(64):
            t, j = divmod(tau, 8)
            slots = [[] for _ in range(17)]
            p1 = 11
            if PRIO == "1" and (j & 1) == 0:
                slots[0].append(f"s_setprio {3 - j // 2}")
            if PRIO == "2":
                slots[0].append(f"s_setprio {3 - (j & 3)}")
            if tau > 0:
                slots[3].append(pv(tau - 1, 1))
            if t == 0 and not slow:
                if j + PD < 8:
                    slots[0].append(lambda j=j: ldV(2*(j + PD)))
                    slots[4].append(lambda j=j: ldV(2*(j + PD) + 1))
                if j + PD + 2 < 8:
                    slots[8].append(lambda j=j: ldK(j + PD + 2))
                if j == 2:
                    for i, x in enumerate(bound_check()):
                        slots[3 + i].append(x)
                if j == 4:
                    slots[0] += ["s_waitcnt lgkmcnt(0)", "s_barrier", flag_reads]
                    slots[5].append(flag_test)
                if j == 6:
                    slots[13].append(f"s_cmp_lt_u32 s{sW}, 6\ns_cbranch_scc1 K2_PW\nbuffer_load_dword v{vt[3]}, v{vt[5]}, {s(SWO,4)}, s{sMaskLo} offen\nK2_PW:")
            nx = tau + 1
            if nx < 64:
                if t == 0 and nx < 8 and not slow:
                    slots[6].append(lambda nx=nx: wait_for(f"K{nx}"))
                if nx % 8 == 0:
                    slots[6].append("s_waitcnt lgkmcnt(0)")
                slots[6].append(smf(nx))
                if nx % 8 == 7 and t < 7:
                    slots[10].append(f"ds_read_b128 {v(Q,4)}, v{vQl} offset:{(t+1)*1024}")
                    if slow:
                        slots[10].append(f"ds_read_b32 v{vM[(t+1)&1]}, v{vt[0]} offset:{(t+1)*128}")
            if 10 <= tau < 22 and tau % 2 == 0:
                slots[13].append(f"s_cmp_lg_u32 s{sW}, {(tau-10)//2}\ns_cbranch_scc1 K2_PA{tag}{tau}\nbuffer_load_dword v{vt[3]}, v{vt[5]}, {s(SP,4)}, s{sMaskLo+1} offen\nK2_PA{tag}{tau}:")
            if 22 <= tau < 34 and tau % 2 == 0:
                slots[13].append(f"s_cmp_lg_u32 s{sW}, {(tau-22)//2}\ns_cbranch_scc1 K2_PB{tag}{tau}\nbuffer_load_dword v{vt[4]}, v{vt[5]}, {s(SH,4)}, s{sV2x} offen\nK2_PB{tag}{tau}:")
            if 36 <= tau < 60 and tau % 2 == 0:
                n = (tau - 36) // 2
                kb, ft = divmod(n, 3)
                slots[4].append(lambda kb=kb, ft=ft: (order.append("W1"), f"s_add_u32 s{sT0}, s{sRot}, {kb}\ns_and_b32 s{sT0}, s{sT0}, 15\ns_mul_i32 s{sT0}, s{sT0}, 44032\ns_add_u32 m0, s{sW1m}, {kb*3072 + ft*1024 - ft*64}\ns_nop 0\n"
                    f"buffer_load_dwordx4 v{vW1o}, {s(SP,4)}, s{sT0} offen offset:{ft*64} lds")[1])
            if t >= 1:
                u = t - 1
                if j == 1:
                    slots[0].append(f"v_mov_b32 v{vCnt}, {t}")
                    for i, x in enumerate(drain(u)):
                        slots[1 + 2*i].append(x)
                    slots[7].append(f"ds_write_b32 v{vPw}, v{vCnt}")
                if j == 2:
                    slots[13].append("s_waitcnt lgkmcnt(0)")
                if j == 3 and t == 2 and DIAG:
                    slots[0].append(stamp_str(12))
                if j == 3:
                    slots[0].append(f"ds_read_b32 v{vPv}, v{vP1r}")
                    slots[7].append(only_half(u, f"A{tag}{t}", check(vP1r, 0, t, f"A{tag}{t}") + norm_reads()))
                    slots[9] += [f"v_mfma_f32_32x32x16_bf16 {v(O[u&1],16)}, {v(zero,4)}, {v(zero,4)}, 0"]
                    p1 = 12
                if j == 4:
                    slots[3].append(only_half(u, f"B{tag}{t}", norm_comp() + f"ds_write_b32 v{vPw}, v{vCnt} offset:32\n"))
                if 1 <= j <= 4:
                    slots[13].append(lambda u=u, ct=j-1: ldW(u, 0, ct, woA))
                if 4 <= j <= 7:
                    slots[8 if j != 6 else 1].append(lambda u=u, ct=j-4: ldW(u, 1, ct, T))
                if j == 6:
                    slots[1].append(f"ds_read_b32 v{vPv}, v{vP2r} offset:{16*(u&1)}")
                    slots[8].append(check(vP2r, 16*(u&1), t, f"D{tag}{t}") + of_reads())
                    slots[15] += ["s_waitcnt lgkmcnt(0)", lambda u=u: wait_for(f"W{u}_0_1"), wo_mfma(0, 0, woA, u == 0)]
                if j == 7:
                    slots[9].append(wo_mfma(0, 1, woA, u == 0)); slots[15] += [lambda u=u: wait_for(f"W{u}_0_3"), wo_mfma(0, 2, woA, u == 0)]
            if t >= 2:
                u = t - 2
                if j == 0:
                    slots[9].append(wo_mfma(0, 3, woA, u == 0))
                    slots[15] += [lambda u=u: wait_for(f"W{u}_1_1"), wo_mfma(1, 0, T)]
                if j == 1:
                    slots[9].append(wo_mfma(1, 1, T)); slots[15] += [lambda u=u: wait_for(f"W{u}_1_2"), wo_mfma(1, 2, T)]
                if j == 2:
                    slots[9] += [lambda u=u: wait_for(f"W{u}_1_3"), wo_mfma(1, 3, T)]
            if tau == 11:
                slots[4].append(f"s_cmp_lg_u32 s{sW}, 7\ns_cbranch_scc1 K2_B1{tag}\ns_add_u32 s{SQ}, s14, 0\ns_addc_u32 s{SQ+1}, s15, 0\ns_movk_i32 s{SQ+2}, 2752\n"
                    f"s_lshl_b32 s{sT0}, s{sT0f}, 6\nv_lshlrev_b32 v{vt[3]}, 2, v0\ns_mov_b32 m0, {B1L}\ns_nop 0\nbuffer_load_dword v{vt[3]}, {s(SQ,4)}, s{sT0} offen lds\nK2_B1{tag}:")
            if tau == 9:
                slots[4].append(lambda: (order.append("X"), f"s_lshl_b32 s{sT0}, s{sRB}, 13\ns_lshl_b32 s{sT1}, s{sW}, 10\ns_add_u32 s{sT0}, s{sT0}, s{sT1}\n"
                    f"s_mul_i32 s{sT1}, s{sW}, 1040\ns_add_u32 m0, s{sT1}, {XL}\ns_nop 0\nbuffer_load_dwordx4 v{vQa}, {s(SX,4)}, s{sT0} offen lds")[1])
            if tau == 58:
                slots[1].append(f"s_and_b32 s{sCB2}, s{sMm}, 7\ns_lshl_b32 s{sW2o}, s{sCB2}, 3\ns_add_u32 s{sW2o}, s{sW2o}, s{sW}\ns_mul_i32 s{sW2o}, s{sW2o}, {11*2048}")
            if 59 <= tau <= 62:
                slots[4].append(lambda ct=tau-59: ldW(7, 0, ct, W7[0]))
            if 60 <= tau <= 63:
                slots[16].append(lambda ct=tau-60: ldW(7, 1, ct, W7[1]))
            if t == 0 and not slow:
                slots[p1].append(lambda j=j: wait_for(f"V{2*j+1}"))
            slots[p1].append(pv(tau, 0))
            if not slow and sum(len(x) for x in slots[7:]) < 2:
                slots[14].append("s_nop 0")
            for i in range(17):
                for x in slots[i]:
                    x = x() if callable(x) else x
                    if "NOWL" in EXP and f"{s(SWO,4)}" in x: continue
                    if "NOPF" in EXP and ("K2_PA" in x or "K2_PB" in x): continue
                    if "NOW1" in EXP and " lds" in x: continue
                    if "NOW2" in EXP and f"{s(SH,4)}" in x: continue
                    if "NODRAIN" in EXP and "ds_write" in x: continue
                    if "NOZERO" in EXP and f"{v(zero,4)}" in x: continue
                    if "NOWO" in EXP and "16x16x32" in x: continue
                    if "NONORM" in EXP and "K2_N" in x: continue
                    if "NOCHK" in EXP and "K2_R" in x and "K2_N" not in x: x = of_reads()
                    a(x)
                if i < 16:
                    r = S[tau & 1] + i
                    if slow:
                        a(f"v_sub_f32 v{r}, v{r}, v{vM[t&1]}")
                    a(f"v_exp_f32 v{r}, v{r}")
        a("s_nop 1")
        a(pv(63, 1))
    mainloop(False)
    a("K2_TAIL:")
    stamp(a, 3)
    a("s_setprio 0")
    nvm = len(order) - 1 - order.index('W6_1_3')
    a(ldW2(0) + ldW2(1))
    a(wo_mfma(0, 3, woA))
    for x in drain(7):
        a(x)
    a(f"s_waitcnt vmcnt({nvm + 4})")
    for ct in range(4):
        a(wo_mfma(1, ct, T))
    a(f"""
    v_and_b32 v{vt[0]}, 7, v0
    v_lshrrev_b32 v{vt[1]}, 4, v0
    v_bfe_u32 v{vt[3]}, v0, 3, 1
    v_lshlrev_b32 v{vVo}, 10, v{vt[0]}
    v_lshl_add_u32 v{vVo}, v{vt[3]}, 6, v{vVo}
    s_lshl_b32 s{sV1}, s{sRB}, 13
    s_lshl_b32 s{sT1}, s{sW}, 7
    s_add_u32 s{sV1}, s{sV1}, s{sT1}
    s_add_u32 s{sT1}, s{sT1}, {XL}
    v_lshl_add_u32 v{vt[2]}, v{vt[0]}, 4, v{vVo}
    v_lshl_add_u32 v{vt[2]}, v{vt[1]}, 3, v{vt[2]}
    v_add_u32 v{vt[2]}, s{sT1}, v{vt[2]}
    v_bfe_u32 v{vt[1]}, v0, 4, 1
    v_lshl_add_u32 v{vVo}, v{vt[1]}, 5, v{vVo}
    v_lshrrev_b32 v{vt[4]}, 5, v0
    v_lshl_add_u32 v{vVo}, v{vt[4]}, 4, v{vVo}
    s_waitcnt lgkmcnt(0)
    s_barrier
    """)
    for c in range(2):
        a(f"ds_read_b64 {v(X+2*c,2)}, v{vt[2]} offset:{32*c}")
    a(only_half(7, "T", norm_reads() + norm_comp()))
    a(ldW2(2) + ldW2(3))
    H = O[0]; XU = O[0] + 8; PK = O[1]; ST = woA; U = T
    srd(a, SQ, 16, 17, WS_H, 0x200000)
    a(f"""
    s_mov_b32 s{sB3}, 0xff00ff00
    s_mov_b32 s{sB3+1}, 0xff00ff00
    s_waitcnt lgkmcnt(0)
    """)
    for i in range(4):
        a(f"v_lshlrev_b32 v{XU+2*i}, 16, v{X+i}")
        a(f"v_and_b32 v{XU+2*i+1}, 0xffff0000, v{X+i}")
    a("s_barrier")
    a(of_reads())
    a(f"s_waitcnt vmcnt(8) lgkmcnt(1)")
    for ct in range(4):
        a(wo_mfma(0, ct, W7[0]))
    a("s_waitcnt lgkmcnt(0)")
    for ct in (0, 2, 1, 3):
        a(wo_mfma(1, ct, W7[1]))
    stamp(a, 4)
    a(ldW2(4) + ldW2(5))
    a.c("h = x + attn ; lanes with bit 3 set take column tiles 2,3")
    for i in range(8):
        a(f"v_cndmask_b32 v{H+i}, v{hacc+i}, v{hacc+8+i}, {s(sB3,2)}")
    for i in range(4):
        a(f"v_pk_add_f32 {v(H+2*i,2)}, {v(H+2*i,2)}, {v(XU+2*i,2)}")
    def xreduce(r, tmp):
        a(f"""
        v_mov_b32 v{tmp}, v{r}
        s_nop 1
        v_permlane32_swap_b32 v{r}, v{tmp}
        v_add_f32 v{r}, v{r}, v{tmp}
        v_mov_b32 v{tmp}, v{r}
        s_nop 1
        v_permlane16_swap_b32 v{r}, v{tmp}
        v_add_f32 v{r}, v{r}, v{tmp}
        s_nop 1
        v_add_f32_dpp v{r}, v{r}, v{r} row_ror:8 row_mask:0xf bank_mask:0xf
        """)
    a(f"""
    v_pk_add_f32 {v(U,2)}, {v(H,2)}, {v(H+2,2)}
    v_pk_add_f32 {v(U+2,2)}, {v(H+4,2)}, {v(H+6,2)}
    v_pk_add_f32 {v(U,2)}, {v(U,2)}, {v(U+2,2)}
    v_add_f32 v{U}, v{U}, v{U+1}
    """)
    xreduce(U, U+2)
    a(f"v_mul_f32 v{U}, {hex(f32bits(1.0/64))}, v{U}")
    for i in range(4):
        a(f"v_pk_add_f32 {v(XU+2*i,2)}, {v(H+2*i,2)}, {v(U,2)} op_sel_hi:[1,0] neg_lo:[0,1] neg_hi:[0,1]")
    a(f"""
    v_pk_mul_f32 {v(U+2,2)}, {v(XU,2)}, {v(XU,2)}
    v_pk_mul_f32 {v(U+4,2)}, {v(XU+2,2)}, {v(XU+2,2)}
    v_pk_fma_f32 {v(U+2,2)}, {v(XU+4,2)}, {v(XU+4,2)}, {v(U+2,2)}
    v_pk_fma_f32 {v(U+4,2)}, {v(XU+6,2)}, {v(XU+6,2)}, {v(U+4,2)}
    v_pk_add_f32 {v(U+2,2)}, {v(U+2,2)}, {v(U+4,2)}
    v_add_f32 v{U+1}, v{U+2}, v{U+3}
    """)
    a(ldW2(6) + ldW2(7))
    xreduce(U+1, U+2)
    a(f"""
    s_lshl_b32 s{sT1}, s{sW}, 3
    s_add_u32 s{sT1}, s{sT1}, {MISC + 128}
    v_lshlrev_b32 v{vt[5]}, 6, v{vt[0]}
    v_add_u32 v{vt[4]}, s{sT1}, v{vt[5]}
    v_add_u32 v{vt[5]}, {MISC + 128}, v{vt[5]}
    ds_write_b64 v{vt[4]}, {v(U,2)}
    """)
    for i in range(4):
        a(f"v_cvt_pk_bf16_f32 v{PK+i}, v{H+2*i}, v{H+2*i+1}")
    a("s_waitcnt lgkmcnt(0)")
    a("s_barrier")
    for i in range(4):
        a(f"ds_read_b128 {v(ST+4*i,4)}, v{vt[5]} offset:{16*i}")
    a(f"""
    v_permlane16_swap_b32 v{PK}, v{PK+2}
    v_permlane16_swap_b32 v{PK+1}, v{PK+3}
    buffer_store_dwordx4 {v(PK,4)}, v{vVo}, {s(SQ,4)}, s{sV1} offen sc1
    """)
    a(f"""
    s_lshr_b32 s{sT0}, s{sRB}, 2
    s_lshl_b32 s{sT0}, s{sT0}, 15
    s_lshl_b32 s{sT1}, s{sW}, 12
    s_add_u32 s{sT0}, s{sT0}, s{sT1}
    s_and_b32 s{sT1}, s{sRB}, 3
    s_lshl_b32 s{sT1}, s{sT1}, 7
    s_add_u32 s{sT0}, s{sT0}, s{sT1}
    v_lshlrev_b32 v{vt[4]}, 4, v{vt[0]}
    v_lshl_add_u32 v{vt[4]}, v{vt[3]}, 11, v{vt[4]}
    v_lshrrev_b32 v{vt[0]}, 5, v0
    v_lshl_add_u32 v{vt[4]}, v{vt[0]}, 9, v{vt[4]}
    v_lshl_add_u32 v{vt[4]}, v{vt[1]}, 10, v{vt[4]}
    s_waitcnt lgkmcnt(0)
    v_pk_add_f32 {v(U+2,2)}, {v(ST,2)}, {v(ST+2,2)}
    v_pk_add_f32 {v(U+4,2)}, {v(ST+4,2)}, {v(ST+6,2)}
    v_pk_add_f32 {v(U+6,2)}, {v(ST+8,2)}, {v(ST+10,2)}
    v_pk_add_f32 {v(U+8,2)}, {v(ST+12,2)}, {v(ST+14,2)}
    v_pk_add_f32 {v(U+2,2)}, {v(U+2,2)}, {v(U+4,2)}
    v_pk_add_f32 {v(U+6,2)}, {v(U+6,2)}, {v(U+8,2)}
    v_pk_add_f32 {v(U+2,2)}, {v(U+2,2)}, {v(U+6,2)}
    v_mul_f32 v{U+2}, 0x3e000000, v{U+2}
    """)
    for i in range(8):
        a(f"v_sub_f32 v{ST+2*i}, v{ST+2*i}, v{U+2}")
    a(f"v_mul_f32 v{U+4}, v{ST}, v{ST}")
    a(f"v_mul_f32 v{U+5}, v{ST+2}, v{ST+2}")
    for i in range(2, 8):
        a(f"v_fmac_f32 v{U+4+(i&1)}, v{ST+2*i}, v{ST+2*i}")
    a(f"""
    v_add_f32 v{U+4}, v{U+4}, v{U+5}
    v_fmac_f32 v{U+3}, 0x42800000, v{U+4}
    v_mov_b32 v{U+6}, {hex(f32bits(1e-5))}
    v_fmac_f32 v{U+6}, {hex(f32bits(1.0/512))}, v{U+3}
    v_rsq_f32 v{U+6}, v{U+6}
    """)
    for i in range(4):
        a(f"v_pk_add_f32 {v(H+2*i,2)}, {v(H+2*i,2)}, {v(U+2,2)} op_sel_hi:[1,0] neg_lo:[0,1] neg_hi:[0,1]")
    for i in range(4):
        a(f"v_pk_mul_f32 {v(H+2*i,2)}, {v(H+2*i,2)}, {v(U+6,2)} op_sel_hi:[1,0]")
    for i in range(4):
        a(f"v_cvt_pk_bf16_f32 v{PK+4+i}, v{H+2*i}, v{H+2*i+1}")
    a(f"""
    s_nop 1
    v_permlane16_swap_b32 v{PK+4}, v{PK+6}
    v_permlane16_swap_b32 v{PK+5}, v{PK+7}
    buffer_store_dwordx4 {v(PK+4,4)}, v{vt[4]}, {s(SHN,4)}, s{sT0} offen sc1
    """)
    SF, SG = SKV, SWO
    srd(a, SF, 16, 17, WS_FLG, 4096)
    srd(a, SG, 16, 17, WS_G, G_BYTES)
    def signal(off, young):
        a(f"""
        s_waitcnt vmcnt({young})
        s_barrier
        {stamp_str(1 if off == 0 else 2)}
        s_cmp_lg_u32 s{sW}, 0
        s_cbranch_scc1 K2_NOSIG{off}
        s_lshl_b32 s{sT0}, s{sG}, 8
        s_lshl_b32 s{sT1}, s{sMm}, 2
        s_add_u32 s{sT1}, s{sT1}, s{sT0}
        v_mov_b32 v{vt[0]}, 0
        v_mov_b32 v{vt[1]}, 1
        s_mov_b64 exec, 1
        buffer_store_dword v{vt[1]}, v{vt[0]}, {s(SF,4)}, s{sT1} offen offset:{off} sc1
        s_mov_b64 exec, -1
        K2_NOSIG{off}:
        """)
    def poll_start(off):
        a(f"""
        s_cmp_lg_u32 s{sW}, 0
        s_cbranch_scc1 K2_NOPS{off}
        s_lshl_b32 s{sRot}, s{sG}, 8
        v_and_b32 v{vt[0]}, 15, v0
        v_lshlrev_b32 v{vt[0]}, 2, v{vt[0]}
        buffer_load_dword v{vt[1]}, v{vt[0]}, {s(SF,4)}, s{sRot} offen offset:{off} sc1
        K2_NOPS{off}:
        """)
    def poll(off, mask):
        a(f"""
        s_cmp_lg_u32 s{sW}, 0
        s_cbranch_scc1 K2_NOPOLL{off}
        s_lshl_b32 s{sT0}, s{sG}, 8
        s_mov_b32 s{sT2}, 0x200000
        """)
        regs = [vt[1], vt[4], vt[5], vPv][:NPOLL]
        for r in regs[1:]:
            a(f"buffer_load_dword v{r}, v{vt[0]}, {s(SF,4)}, s{sT0} offen offset:{off} sc1")
        a(f"""
        K2_POLL{off}:
        s_sub_u32 s{sT2}, s{sT2}, 1
        s_cbranch_scc1 K2_PDONE{off}
        """)
        for r in regs:
            a(f"""
            s_waitcnt vmcnt({NPOLL-1})
            v_cmp_ne_u32 vcc, 0, v{r}
            buffer_load_dword v{r}, v{vt[0]}, {s(SF,4)}, s{sT0} offen offset:{off} sc1
            s_and_b32 s{sT1}, vcc_lo, {hex(mask)}
            s_cmp_eq_u32 s{sT1}, {hex(mask)}
            s_cbranch_scc1 K2_PDONE{off}
            """)
        a(f"""
        s_branch K2_POLL{off}
        K2_PDONE{off}:
        K2_NOPOLL{off}:
        s_barrier
        """)
    stamp(a, 5)
    if RELOAD:
        a.c("touch the lines just written so that they sit in the local L2 (speed only)")
        a(f"""
        buffer_load_dword v{T+12}, v{vt[4]}, {s(SHN,4)}, s{sT0} offen sc1
        buffer_load_dword v{T+13}, v{vVo}, {s(SQ,4)}, s{sV1} offen sc1
        """)
    signal(0, 2 if RELOAD else 0)
    a(f"""
    s_cmp_eq_u32 s{sMm}, 15
    s_cbranch_scc1 K2_SKIP1
    """)
    poll_start(0)
    a(f"""
    v_lshrrev_b32 v{vt[2]}, 5, v0
    v_lshlrev_b32 v{vt[2]}, 3, v{vt[2]}
    v_add_u32 v{vt[2]}, {B1L}, v{vt[2]}
    s_cmp_eq_u32 s{sHalf}, 0
    s_cselect_b32 s{sT2}, -1, 0
    s_and_b32 s{sSo}, s{sT2}, 0xffff0000
    """)
    BI = Kf
    acc1 = [O[0], O[1], hacc]
    for ft in range(3):
        for q in range(4):
            a(f"ds_read_b64 {v(BI+8*ft+2*q,2)}, v{vt[2]} offset:{ft*64+q*16}")
    a("s_waitcnt lgkmcnt(0)")
    for ft in range(3):
        for i in range(8):
            a(f"v_and_b32 v{acc1[ft]+2*i+1}, s{sSo}, v{BI+8*ft+i}")
            a(f"v_and_b32 v{BI+8*ft+i}, s{sT2}, v{BI+8*ft+i}")
            a(f"v_lshlrev_b32 v{acc1[ft]+2*i}, 16, v{BI+8*ft+i}")
    Bf = [Kf + 4*i for i in range(8)] + [woA + 4*i for i in range(4)] + [T + 4*i for i in range(4)]
    Af = [Vf, Vf + 4, OFr, OFr + 4, nrm, nrm + 4, Q, zero]
    vWa = vOa; vEx = vLa; vEr = vNr
    sRT, sKH = sV1, sHalf
    a(f"""
    s_and_b32 s{sRT}, s{sW}, 3
    s_lshl_b32 s{sT0}, s{sG}, 2
    s_add_u32 s{sRT}, s{sRT}, s{sT0}
    v_lshrrev_b32 v{vt[2]}, 5, v0
    v_lshlrev_b32 v{vt[2]}, 9, v{vt[2]}
    v_bfe_u32 v{vt[3]}, v0, 2, 2
    v_lshl_add_u32 v{vt[2]}, v{vt[3]}, 6, v{vt[2]}
    v_bfe_u32 v{vt[3]}, v0, 4, 1
    v_lshl_add_u32 v{vt[2]}, v{vt[3]}, 5, v{vt[2]}
    v_and_b32 v{vt[3]}, 3, v0
    v_lshl_add_u32 v{vt[2]}, v{vt[3]}, 3, v{vt[2]}
    s_mul_i32 s{sT0}, s{sKH}, 49152
    v_add_u32 v{vWa}, s{sT0}, v{vt[2]}
    s_mul_i32 s{sT0}, s{sW}, 6144
    s_add_u32 s{sT0}, s{sT0}, {EXB}
    v_add_u32 v{vEx}, s{sT0}, v{vQa}
    s_xor_b32 s{sT0}, s{sW}, 4
    s_mul_i32 s{sT0}, s{sT0}, 6144
    s_add_u32 s{sT0}, s{sT0}, {EXB}
    v_add_u32 v{vEr}, s{sT0}, v{vQa}
    s_lshl_b32 s{sWm}, s{sRT}, 15
    s_lshl_b32 s{sT0}, s{sKH}, 14
    s_add_u32 s{sWm}, s{sWm}, s{sT0}
    """)
    def areads(f):
        ks, ft = divmod(f, 3)
        off = ks * 3072 + ft * 1024
        a(f"ds_read_b64_tr_b16 {v(Af[f%8],2)}, v{vWa} offset:{off}")
        a(f"ds_read_b64_tr_b16 {v(Af[f%8]+2,2)}, v{vWa} offset:{off+256}")
    for f in range(5):
        areads(f)
    if W2L == "thin":
        a(f"""
        s_cmp_eq_u32 s{sW}, 0
        s_cbranch_scc1 K2_NW2
        """)
        for i in range(8, 11):
            a(ldW2(i))
            if i < 10:
                a("s_waitcnt vmcnt(0)")
        a("K2_NW2:")
    poll(0, 0xffff)
    stamp(a, 6)
    for i in range(16):
        a(f"""
        s_add_u32 s{sSo}, s{sMm}, {i}
        s_and_b32 s{sSo}, s{sSo}, 15
        s_lshl_b32 s{sSo}, s{sSo}, 10
        s_add_u32 s{sSo}, s{sSo}, s{sWm}
        buffer_load_dwordx4 {v(Bf[i],4)}, v{vQa}, {s(SHN,4)}, s{sSo} offen {LDF}
        """)
    for f in range(48):
        ks, ft = divmod(f, 3)
        later = min(4, 47 - f)
        w = f"lgkmcnt({2*later})"
        if ft == 0:
            w = f"vmcnt({15 - ks + (2*min(3, max(0, ks - 10)) if W2L == 'mid' else 0)}) " + w
        a(f"s_waitcnt {w}")
        a(f"v_mfma_f32_32x32x16_bf16 {v(acc1[ft],16)}, {v(Af[f%8],4)}, {v(Bf[ks],4)}, {v(acc1[ft],16)}")
        if f + 5 < 48:
            areads(f + 5)
        if W2L == "mid" and ft == 2 and 10 <= ks < 13:
            a(ldW2(ks - 2))
    stamp(a, 7)
    if W2L == "thin":
        a(f"""
        s_cmp_lg_u32 s{sW}, 0
        s_cbranch_scc1 K2_NW3
        """)
    if W2L != "mid":
        a(ldW2(8) + ldW2(9) + ldW2(10))
    a("K2_NW3:")
    a(f"""
    s_mul_i32 s{sT0}, s{sRT}, 86
    s_lshl_b32 s{sT1}, s{sT0f}, 1
    s_add_u32 s{sT0}, s{sT0}, s{sT1}
    s_mul_i32 s{sT1}, s{sKH}, 3
    s_add_u32 s{sT0}, s{sT0}, s{sT1}
    s_lshl_b32 s{sT0}, s{sT0}, 10
    s_nop 7
    s_cmp_eq_u32 s{sKH}, 1
    s_cbranch_scc1 K2_EX1
    """)
    lo = [acc1[0], acc1[0] + 8, acc1[1]]
    hi = [acc1[1] + 8, acc1[2], acc1[2] + 8]
    RX = Kf
    def exchange(keep, send):
        for q in range(3):
            a(f"ds_write_b128 v{vEx}, {v(send[q],4)} offset:{q*2048}")
            a(f"ds_write_b128 v{vEx}, {v(send[q]+4,4)} offset:{q*2048+1024}")
        a("s_waitcnt lgkmcnt(0)")
        a("s_barrier")
        for q in range(6):
            a(f"ds_read_b128 {v(RX+4*q,4)}, v{vEr} offset:{q*1024}")
        for q in range(3):
            a(f"s_waitcnt lgkmcnt({4-2*q})")
            for i in range(4):
                a(f"v_pk_add_f32 {v(keep[q]+2*i,2)}, {v(keep[q]+2*i,2)}, {v(RX+8*q+2*i,2)}")
            for i in range(8):
                a(f"v_max_f32 v{keep[q]+i}, 0, v{keep[q]+i}")
            for i in range(4):
                a(f"v_pk_mul_f32 {v(keep[q]+2*i,2)}, {v(keep[q]+2*i,2)}, {v(keep[q]+2*i,2)}")
            for i in range(4):
                a(f"v_cvt_pk_bf16_f32 v{woA+4*q+i}, v{keep[q]+2*i}, v{keep[q]+2*i+1}")
            a(f"buffer_store_dwordx4 {v(woA+4*q,4)}, v{vQa}, {s(SG,4)}, s{sT0} offen offset:{q*1024} sc1")
    exchange(lo, hi)
    a("s_branch K2_EXJ")
    a("K2_EX1:")
    exchange(hi, lo)
    a("K2_EXJ:")
    stamp(a, 8)
    if RELOAD:
        for q in range(3):
            a(f"buffer_load_dword v{hacc+q}, v{vQa}, {s(SG,4)}, s{sT0} offen offset:{q*1024} sc1")
    signal(128, 3 if RELOAD else 0)
    a("s_branch K2_FFN2")
    a("K2_SKIP1:")
    a(ldW2(8) + ldW2(9) + ldW2(10))
    a("K2_FFN2:")
    poll_start(128)
    Gf = [Kf + 4*i for i in range(8)] + [Vf, Vf + 4] + [woA + 4*i for i in range(4)] + [T + 4*i for i in range(4)] + [OFr, OFr + 4]
    Gf += Gf[:2]
    acc2 = [O[0], O[1], hacc, zero]
    vG1 = vOa; vOo = vLa; vRw = vNr; vRr = vNl; vB2 = vNw
    sGo, sOo, sGend = sWm, sV1, sRot
    srd(a, SX, 18, 19, 0, 1024)
    srd(a, SHN, 10, 11, 0, 0x200000)
    a(f"""
    s_lshl_b32 s{sT0}, s{sG}, 1
    s_lshr_b32 s{sT1}, s{sMm}, 3
    s_add_u32 s{sT0}, s{sT0}, s{sT1}
    s_lshl_b32 s{sOo}, s{sT0}, 16
    s_mul_i32 s{sGo}, s{sT0}, {2*86*1024}
    s_add_u32 s{sGend}, s{sGo}, {86*1024}
    s_lshl_b32 s{sT1}, s{sW}, 10
    s_add_u32 s{sGo}, s{sGo}, s{sT1}
    v_add_u32 v{vG1}, {86*1024}, v{vQa}
    v_and_b32 v{vt[2]}, 31, v0
    v_mul_u32_u24 v{vt[2]}, 272, v{vt[2]}
    v_lshrrev_b32 v{vt[3]}, 5, v0
    v_lshl_add_u32 v{vt[2]}, v{vt[3]}, 4, v{vt[2]}
    s_mul_i32 s{sT0}, s{sW}, {RSTR}
    v_add_u32 v{vRw}, s{sT0}, v{vt[2]}
    v_lshrrev_b32 v{vt[2]}, 3, v0
    s_lshl_b32 s{sT0}, s{sW}, 3
    v_add_u32 v{vt[2]}, s{sT0}, v{vt[2]}
    v_and_b32 v{vt[3]}, 7, v0
    v_mul_u32_u24 v{vRr}, 272, v{vt[2]}
    v_lshl_add_u32 v{vRr}, v{vt[3]}, 5, v{vRr}
    s_lshl_b32 s{sT0}, s{sCB2}, 7
    v_lshlrev_b32 v{vB2}, 4, v{vt[3]}
    v_add_u32 v{vB2}, s{sT0}, v{vB2}
    v_lshl_add_u32 v{vOo}, v{vt[2]}, 10, v{vB2}
    """)
    poll(128, 0x7fff)
    stamp(a, 9)
    def ldG(i):
        a(f"""
        s_add_u32 s{sSo}, s{sCB2}, {i}
        s_sub_u32 s{sT1}, s{sSo}, 11
        s_cselect_b32 s{sSo}, s{sSo}, s{sT1}
        s_lshl_b32 s{sSo}, s{sSo}, 13
        s_add_u32 s{sSo}, s{sSo}, s{sGo}
        s_cmp_ge_u32 s{sSo}, s{sGend}
        s_cselect_b32 s{sSo}, 0x1000000, s{sSo}
        """)
        a(f"buffer_load_dwordx4 {v(Gf[2*i],4)}, v{vQa}, {s(SG,4)}, s{sSo} offen {LDF}")
        a(f"buffer_load_dwordx4 {v(Gf[2*i+1],4)}, v{vG1}, {s(SG,4)}, s{sSo} offen {LDF}")
    for i in range(10):
        ldG(i)
    for i in range(11):
        a(f"s_waitcnt vmcnt({18 if i == 0 else 2*(10-i)})")
        for ct in range(2):
            for rt in range(2):
                d = acc2[2*ct + rt]
                a(f"v_mfma_f32_32x32x16_bf16 {v(d,16)}, {v(W2R+8*i+4*ct,4)}, {v(Gf[2*i+rt],4)}, {'0' if i == 0 else v(d,16)}")
        if i == 0:
            ldG(10)
    stamp(a, 10)
    HR = woA; B2 = woA + 4
    a(f"""
    buffer_load_dwordx4 {v(HR,4)}, v{vOo}, {s(SQ,4)}, s{sOo} offen sc1
    buffer_load_dwordx4 {v(B2,4)}, v{vB2}, {s(SX,4)}, 0 offen
    v_add_u32 v{vt[2]}, {3*RSTR}, v{vRr}
    v_add_u32 v{vt[3]}, {6*RSTR}, v{vRr}
    s_nop 7
    """)
    for ct in range(2):
        for rt in range(2):
            for q in range(4):
                d = acc2[2*ct + rt] + 4*q
                a(f"ds_write_b128 v{vRw}, {v(d,4)} offset:{rt*32*272 + (32*ct + 8*q)*4}")
    a("s_waitcnt lgkmcnt(0)")
    a("s_barrier")
    stamp(a, 11)
    RR = W2R
    for w in range(8):
        base = (vRr, vt[2], vt[3])[w // 3]
        for q in range(2):
            a(f"ds_read_b128 {v(RR+8*w+4*q,4)}, v{base} offset:{(w % 3)*RSTR + 16*q}")
    a("s_waitcnt vmcnt(0)")
    for i in range(4):
        a(f"v_lshlrev_b32 v{T+2*i}, 16, v{HR+i}")
        a(f"v_and_b32 v{T+2*i+1}, 0xffff0000, v{HR+i}")
        a(f"v_lshlrev_b32 v{T+8+2*i}, 16, v{B2+i}")
        a(f"v_and_b32 v{T+8+2*i+1}, 0xffff0000, v{B2+i}")
    for i in range(4):
        a(f"v_pk_add_f32 {v(T+2*i,2)}, {v(T+2*i,2)}, {v(T+8+2*i,2)}")
    for w in range(0, 8, 2):
        a(f"s_waitcnt lgkmcnt({12 - 2*w})")
        for i in range(4):
            a(f"v_pk_add_f32 {v(RR+8*w+2*i,2)}, {v(RR+8*w+2*i,2)}, {v(RR+8*w+8+2*i,2)}")
        for i in range(4):
            a(f"v_pk_add_f32 {v(T+2*i,2)}, {v(T+2*i,2)}, {v(RR+8*w+2*i,2)}")
    for i in range(4):
        a(f"v_cvt_pk_bf16_f32 v{T+8+i}, v{T+2*i}, v{T+2*i+1}")
    a(f"buffer_store_dwordx4 {v(T+8,4)}, v{vOo}, {s(SHN,4)}, s{sOo} offen {OUTF}")
    stamp_dump(a, 1, sW)
    a("K2_END:")
    a("s_endpgm")
    a.c("slow path: true row maxima first")
    a("K2_SLOW:")
    MB = MISC + 1024
    a("s_setprio 0")
    for i in range(SLOW_V0, 16):
        a(ldV(i))
    a("s_nop 7\ns_nop 7")
    for o in O:
        a(f"v_mfma_f32_32x32x16_bf16 {v(o,16)}, {v(zero,4)}, {v(zero,4)}, 0")
    a(f"""
    v_and_b32 v{vt[0]}, 31, v0
    v_lshlrev_b32 v{vt[0]}, 2, v{vt[0]}
    v_add_u32 v{vt[0]}, {MB}, v{vt[0]}
    s_lshl_b32 s{sT0}, s{sW}, 7
    v_add_u32 v{vt[1]}, s{sT0}, v{vt[0]}
    v_mov_b32 v{vt[2]}, 0xff800000
    ds_write_b32 v{vt[1]}, v{vt[2]}
    s_waitcnt vmcnt(0) lgkmcnt(0)
    s_barrier
    v_mov_b32 v{vt[1]}, v{vt[0]}
    v_mov_b32 v{vt[3]}, v{vQl}
    s_mov_b32 s{sT0}, 0
    K2_P1:
    ds_read_b128 {v(Q,4)}, v{vt[3]}
    v_mov_b32 v{nrm}, 0xff800000
    s_waitcnt lgkmcnt(0)
    """)
    for j in range(8):
        a(f"v_mfma_f32_32x32x16_bf16 {v(S[0],16)}, {v(Kf+4*j,4)}, {v(Q,4)}, 0")
        a("s_nop 7\ns_nop 3")
        for i in range(8):
            a(f"v_max3_f32 v{nrm}, v{nrm}, v{S[0]+2*i}, v{S[0]+2*i+1}")
        a("s_nop 1")
    a(f"""
    ds_max_f32 v{vt[1]}, v{nrm}
    v_add_u32 v{vt[1]}, 128, v{vt[1]}
    v_add_u32 v{vt[3]}, 1024, v{vt[3]}
    s_add_u32 s{sT0}, s{sT0}, 1
    s_cmp_lt_u32 s{sT0}, 8
    s_cbranch_scc1 K2_P1
    ds_read_b128 {v(Q,4)}, v{vQl}
    s_waitcnt lgkmcnt(0)
    s_barrier
    """)
    mainloop(True)
    a("s_branch K2_TAIL")
    for r in retries:
        lab = r.split(":")[0]
        if any(("s_cbranch_vccnz " + lab) == l.strip() for l in a.lines):
            a(r)
    return name, R.cur, K2_LDS
```

```python
from asmlib import *
from common import *
import os

W1L = 0
QL = 98304
EXB = QL
OACC = QL + 8192
LACC = OACC + 16384
OFB = LACC + 1024
MISC = OFB + 1024
XL = MISC + 2048
B1L = EXB + 49152
K2_LDS = B1L + 256
RSTR = 17408
THR2 = (40.0 / 1.02) ** 2
PRIO = os.environ.get("PRIO", "2")
PD = int(os.environ.get("PD", "2"))
EXP = os.environ.get("EXP", "").split(",")
LDF = os.environ.get("LDF", "sc1").replace("_", " ").replace("none", "")
RELOAD = os.environ.get("RELOAD", "0") == "1"
OUTF = os.environ.get("OUTF", "").replace("_", " ")
W2L = os.environ.get("W2L", "mid")
NPOLL = int(os.environ.get("NPOLL", "1"))
SLOW_V0 = min(16, 2*PD + 10)

def gen_k2(a):
    name = "attn_kernel"
    kernel_header(a, name)
    R = Regs(1, 256)
    vt = [R.alloc(f"t{i}") for i in range(6)]
    vidx = R.alloc("idx")
    vQa = R.alloc("qa")
    vOa = R.alloc("oa"); vLa = R.alloc("la")
    vNr = R.alloc("nr"); vNl = R.alloc("nl"); vNw = R.alloc("nw")
    vOFa = R.alloc("ofa")
    vKo = R.alloc("ko"); vVo = R.alloc("vo"); vQl = R.alloc("ql"); vW1o = R.alloc("w1o")
    vP1r = R.alloc("p1r"); vP2r = R.alloc("p2r"); vPw = R.alloc("pw"); vPv = R.alloc("pv"); vCnt = R.alloc("cnt")
    zero = R.alloc("zero", 4)
    Q = R.alloc("q", 4)
    nrm = R.alloc("nrm", 8, 4)
    Kf = R.alloc("k", 32)
    Vf = R.alloc("v", 64)
    S = [R.alloc(f"s{i}", 16) for i in range(2)]
    O = [R.alloc(f"o{i}", 16) for i in range(2)]
    woA = R.alloc("woa", 16)
    T = R.alloc("T", 16)
    OFr = R.alloc("ofr", 8)
    hacc = R.alloc("hacc", 16)
    Qw = OFr
    vM = [vt[1], vt[2]]
    sW, sRB, sT0, sT1, sT2, sWm, sSo, sHalf = 20, 21, 22, 23, 44, 45, 46, 47
    sMaskLo, sV1, sV2 = 48, 50, 51
    sG, sMm, sT0f, sW1m, sV2x, sRot = 4, 5, 6, 7, 60, 61
    SQ, SKV, SWO, SX, SH, SHN, SP = 24, 28, 32, 36, 40, 52, 56
    a(f"""
    s_cmp_ge_u32 s2, 256
    s_cbranch_scc1 K2_END
    s_setprio 3
    s_load_dwordx2 s[16:17], s[0:1], 96
    s_load_dwordx2 s[8:9], s[0:1], 0
    s_load_dwordx4 s[12:15], s[0:1], 48
    s_load_dwordx2 s[18:19], s[0:1], 72
    s_load_dwordx2 s[10:11], s[0:1], 80
    v_lshrrev_b32 v{vt[0]}, 6, v0
    v_and_b32 v0, 63, v0
    v_readfirstlane_b32 s{sW}, v{vt[0]}
    v_lshlrev_b32 v{vQa}, 4, v0
    s_and_b32 s{sT0}, s2, 7
    s_lshr_b32 s{sT1}, s2, 3
    s_lshl_b32 s{sRB}, s{sT0}, 5
    s_add_u32 s{sRB}, s{sRB}, s{sT1}
    s_lshl_b32 s{sWm}, s{sW}, 13
    v_add_u32 v{vKo}, s{sWm}, v{vQa}
    v_lshrrev_b32 v{vt[3]}, 5, v0
    v_and_b32 v{vt[4]}, 31, v0
    v_lshlrev_b32 v{vt[2]}, 4, v{vt[4]}
    v_lshl_add_u32 v{vt[2]}, v{vt[3]}, 8, v{vt[2]}
    s_mul_i32 s{sT0}, s{sW}, {16*VSTR}
    s_add_u32 s{sT0}, s{sT0}, 0x10000
    v_and_b32 v{vt[1]}, 27, v0
    v_cmp_eq_u32 vcc, 16, v{vt[1]}
    v_mov_b32 v{vt[1]}, 0x40000000
    v_mov_b32 v{vt[5]}, 512
    v_cndmask_b32 v{vt[1]}, v{vt[1]}, v{vt[5]}, vcc
    v_cmp_gt_u32 vcc, 16, v{vt[4]}
    v_lshlrev_b32 v{vt[5]}, 3, v0
    s_nop 0
    v_cndmask_b32 v{vt[1]}, v{vt[1]}, v{vt[2]}, vcc
    v_add_u32 v{vVo}, s{sT0}, v{vt[1]}
    s_lshl_b32 s{sT1}, s{sRB}, 13
    s_lshl_b32 s{sT2}, s{sW}, 10
    s_add_u32 s{sT0}, s{sT1}, s{sT2}
    s_mov_b32 s{sSo}, 0x21000
    s_movk_i32 s{sT2}, 0x1000
    s_movk_i32 s{sV1}, {7*VSTR}
    s_movk_i32 s{sV2}, {14*VSTR}
    s_lshr_b32 s{sHalf}, s{sW}, 2
    """)
    stamp_init(a)
    a("s_waitcnt lgkmcnt(0)")
    srd(a, SQ, 16, 17, WS_Q, 0x200000)
    srd(a, SKV, 16, 17, WS_K, KV_BYTES)
    order = []
    def ldK(j):
        so = "0" if j < 4 else f"s{sT2}"
        order.append(f"K{j}")
        return f"buffer_load_dwordx4 {v(Kf+4*j,4)}, v{vKo}, {s(SKV,4)}, {so} offen offset:{(j&3)*1024}"
    def ldV(i):
        so = ("0", f"s{sV1}", f"s{sV2}")[i // 7]
        order.append(f"V{i}")
        return f"buffer_load_dwordx4 {v(Vf+4*i,4)}, v{vVo}, {s(SKV,4)}, {so} offen offset:{(i%7)*VSTR}"
    def ldW(t, ks, ct, dst):
        order.append(f"W{t}_{ks}_{ct}")
        pre = f"s_mov_b32 s{sSo}, {t*65536 + ks*4096}\n"
        return pre + f"buffer_load_dwordx4 {v(dst+4*ct,4)}, v{vKo}, {s(SWO,4)}, s{sSo} offen offset:{ct*1024}"
    def wait_for(item):
        return f"s_waitcnt vmcnt({len(order) - 1 - order.index(item)})"
    a(f"buffer_load_dwordx4 {v(Q,4)}, v{vQa}, {s(SQ,4)}, s{sT1} offen"); order.append("Q")
    a(ldK(0)); a(ldK(1)); a(ldV(0)); a(ldV(1)); a(ldK(2))
    a(f"buffer_load_dwordx4 {v(Qw,4)}, v{vQa}, {s(SQ,4)}, s{sT0} offen"); order.append("QW")
    a(f"buffer_load_dwordx2 {v(nrm,2)}, v{vt[5]}, {s(SKV,4)}, s{sSo} offen"); order.append("KM")
    for i in range(1, PD):
        a(ldV(2*i)); a(ldV(2*i + 1))
        if i + 2 < 8:
            a(ldK(i + 2))
    a("s_setprio 0")
    pro_order = list(order)
    srd(a, SWO, 16, 17, WS_WO, 524288)
    for i in range(4):
        a(f"v_mov_b32 v{zero+i}, 0")
    a(f"v_mov_b32 v{vidx}, 0xdddddddd")
    a("s_nop 0")
    for o in O:
        a(f"v_mfma_f32_32x32x16_bf16 {v(o,16)}, {v(zero,4)}, {v(zero,4)}, 0")
    a.c("LDS addresses")
    a(f"""
    s_lshl_b32 s{sT0}, s{sW}, 2
    s_add_u32 s{sT1}, s{sT0}, {MISC + 32}
    v_mov_b32 v{vPw}, s{sT1}
    ds_write2_b32 v{vPw}, v{zero}, v{zero} offset1:8
    s_add_u32 s{sT0}, s{sT0}, {LACC}
    v_lshlrev_b32 v{vLa}, 5, v{vt[4]}
    v_add_u32 v{vLa}, s{sT0}, v{vLa}
    s_lshl_b32 s{sT0}, s{sW}, 11
    s_add_u32 s{sT0}, s{sT0}, {OACC}
    v_add_u32 v{vOa}, s{sT0}, v{vQa}
    s_and_b32 s{sT1}, s{sW}, 3
    v_and_b32 v{vt[2]}, 7, v0
    v_lshlrev_b32 v{vP1r}, 2, v{vt[2]}
    v_add_u32 v{vP1r}, {MISC + 32}, v{vP1r}
    v_and_b32 v{vt[1]}, 3, v0
    v_lshlrev_b32 v{vP2r}, 2, v{vt[1]}
    v_add_u32 v{vP2r}, {MISC + 64}, v{vP2r}
    v_bfe_u32 v{vt[1]}, v0, 4, 1
    v_bfe_u32 v{vt[4]}, v0, 3, 1
    v_lshlrev_b32 v{vNr}, 4, v{vt[2]}
    v_lshl_add_u32 v{vNw}, v{vt[3]}, 7, v{vNr}
    v_lshl_add_u32 v{vNr}, v{vt[3]}, 10, v{vNr}
    v_lshl_add_u32 v{vNr}, v{vt[1]}, 9, v{vNr}
    v_lshl_add_u32 v{vNr}, v{vt[4]}, 3, v{vNr}
    s_lshl_b32 s{sT0}, s{sT1}, 7
    s_add_u32 s{sT0}, s{sT0}, {OACC}
    v_add_u32 v{vNr}, s{sT0}, v{vNr}
    s_lshl_b32 s{sT0}, s{sT1}, 8
    s_add_u32 s{sSo}, s{sT0}, {LACC}
    v_lshlrev_b32 v{vNl}, 5, v{vt[2]}
    v_add_u32 v{vNl}, s{sSo}, v{vNl}
    v_bfe_u32 v{vt[3]}, v0, 3, 2
    v_lshl_add_u32 v{vNw}, v{vt[3]}, 2, v{vNw}
    s_add_u32 s{sSo}, s{sT0}, {OFB}
    v_add_u32 v{vNw}, s{sSo}, v{vNw}
    v_lshrrev_b32 v{vt[3]}, 4, v0
    v_lshlrev_b32 v{vt[2]}, 4, v{vt[2]}
    v_lshl_add_u32 v{vOFa}, v{vt[3]}, 7, v{vt[2]}
    v_add_u32 v{vOFa}, {OFB}, v{vOFa}
    """)
    srd(a, SX, 8, 9, 0, 0x200000)
    srd(a, SHN, 16, 17, WS_HN, 0x200000)
    srd(a, SP, 12, 13, 0, 1409024)
    srd(a, SH, 16, 17, WS_W2, W2F_BYTES)
    a(f"""
    s_lshr_b32 s{sT0}, s2, 3
    s_mul_i32 s{sT1}, s{sT0}, 44032
    s_add_u32 s{sT1}, s{sT1}, s{sWm}
    v_lshlrev_b32 v{vt[5]}, 7, v0
    s_lshl_b32 s{sMaskLo}, s{sT0}, 14
    s_and_b32 s{sT0}, s{sWm}, 0x2000
    s_add_u32 s{sMaskLo}, s{sMaskLo}, s{sT0}
    s_mov_b32 s{sMaskLo+1}, s{sT1}
    s_lshr_b32 s{sT0}, s2, 3
    s_mul_i32 s{sV2x}, s{sT0}, 45056
    s_add_u32 s{sV2x}, s{sV2x}, s{sWm}
    s_lshr_b32 s{sG}, s{sRB}, 4
    s_and_b32 s{sMm}, s{sRB}, 15
    s_mul_i32 s{sT0f}, s{sMm}, 3
    s_min_u32 s{sT0f}, s{sT0f}, 40
    v_add_u32 v{vQl}, {QL}, v{vQa}
    v_lshrrev_b32 v{vt[3]}, 2, v0
    v_mul_u32_u24 v{vt[3]}, 2752, v{vt[3]}
    v_and_b32 v{vt[4]}, 3, v0
    v_lshl_add_u32 v{vt[3]}, v{vt[4]}, 4, v{vt[3]}
    s_lshl_b32 s{sT0}, s{sT0f}, 6
    s_mul_i32 s{sT1}, s{sHalf}, {16*44032}
    s_add_u32 s{sT0}, s{sT0}, s{sT1}
    v_add_u32 v{vW1o}, s{sT0}, v{vt[3]}
    s_lshl_b32 s{sRot}, s{sW}, 2
    s_add_u32 s{sRot}, s{sRot}, s{sMm}
    s_mul_i32 s{sW1m}, s{sW}, {4*3072}
    """)
    stamp(a, 1)
    def bound_check():
        n = nrm
        P = []
        P.append(lambda: f"s_lshl_b32 s{sT0}, s{sW}, 10\nv_add_u32 v{vt[0]}, s{sT0}, v{vQl}\nv_mov_b32 v{n+2}, 0\n{wait_for('KM')}\nds_write_b128 v{vt[0]}, {v(Qw,4)}")
        P.append("\n".join(f"v_dot2c_f32_bf16 v{n+2}, v{Qw+i}, v{Qw+i}" for i in range(4)) + f"\nv_max_f32 v{n}, v{n}, v{n+1}\ns_nop 0")
        P.append(f"v_max_f32_dpp v{n}, v{n}, v{n} row_ror:8 row_mask:0xf bank_mask:0xf\nv_mov_b32 v{n+3}, v{n+2}")
        P.append(f"v_max_f32_dpp v{n}, v{n}, v{n} row_ror:4 row_mask:0xf bank_mask:0xf\nv_permlane32_swap_b32 v{n+2}, v{n+3}")
        P.append(f"v_max_f32_dpp v{n}, v{n}, v{n} row_ror:2 row_mask:0xf bank_mask:0xf\nv_add_f32 v{n+2}, v{n+2}, v{n+3}")
        P.append(f"v_max_f32_dpp v{n}, v{n}, v{n} row_ror:1 row_mask:0xf bank_mask:0xf\nv_mov_b32 v{n+1}, v{n}\ns_nop 0")
        P.append(f"v_permlane32_swap_b32 v{n}, v{n+1}\nv_max_f32 v{n}, v{n}, v{n+1}\nv_mov_b32 v{n+1}, v{n}\ns_nop 0")
        P.append(f"v_permlane16_swap_b32 v{n}, v{n+1}\nv_max_f32 v{n}, v{n}, v{n+1}\nv_mul_f32 v{n}, v{n}, v{n+2}\nv_mov_b32 v{n+1}, {hex(f32bits(THR2))}\n"
                 f"v_cmp_nle_f32 vcc, v{n}, v{n+1}\ns_lshl_b32 s{sT0}, s{sW}, 2\ns_add_u32 s{sT0}, s{sT0}, {MISC}")
        P.append(f"s_cmp_lg_u64 vcc, 0\ns_cselect_b32 s{sT1}, 1, 0\nv_mov_b32 v{vt[0]}, s{sT0}\nv_mov_b32 v{vt[1]}, s{sT1}\nds_write_b32 v{vt[0]}, v{vt[1]}\nv_mov_b32 v{vt[0]}, {MISC}")
        return P
    flag_reads = f"ds_read_b128 {v(nrm,4)}, v{vt[0]}\nds_read_b128 {v(nrm+4,4)}, v{vt[0]} offset:16"
    flag_test = (f"s_waitcnt lgkmcnt(0)\nv_or3_b32 v{nrm}, v{nrm}, v{nrm+1}, v{nrm+2}\nv_or3_b32 v{nrm+3}, v{nrm+3}, v{nrm+4}, v{nrm+5}\n"
                 f"v_or3_b32 v{nrm}, v{nrm}, v{nrm+6}, v{nrm+7}\nv_or_b32 v{nrm}, v{nrm}, v{nrm+3}\ns_nop 0\n"
                 f"v_readfirstlane_b32 s{sT0}, v{nrm}\ns_cmp_lg_u32 s{sT0}, 0\ns_cbranch_scc1 K2_SLOW")

    def smf(tau):
        t, j = divmod(tau, 8)
        return f"v_mfma_f32_32x32x16_bf16 {v(S[tau&1],16)}, {v(Kf+4*j,4)}, {v(Q,4)}, 0"
    def pv(tau, h):
        t, j = divmod(tau, 8)
        return f"v_smfmac_f32_32x32x32_bf16 {v(O[t&1],16)}, {v(Vf+8*j+4*h,4)}, {v(S[tau&1]+8*h,8)}, v{vidx}"
    def drain(t):
        o = O[t & 1]
        return [f"ds_write_b128 v{vOa}, {v(o,4)}", f"ds_write_b128 v{vOa}, {v(o+4,4)} offset:1024", f"ds_write_b32 v{vLa}, v{o+8}"]
    retries = []
    def check(areg, off, val, lab):
        retries.append(f"K2_R{lab}:\nds_read_b32 v{vPv}, v{areg} offset:{off}\ns_waitcnt lgkmcnt(0)\nv_cmp_gt_u32 vcc, {val}, v{vPv}\n"
                       f"s_cbranch_vccnz K2_R{lab}\ns_branch K2_C{lab}")
        return f"s_waitcnt lgkmcnt(0)\nv_cmp_gt_u32 vcc, {val}, v{vPv}\ns_cbranch_vccnz K2_R{lab}\nK2_C{lab}:\n"
    def norm_reads():
        L = f"ds_read_b128 {v(nrm,4)}, v{vNl}\nds_read_b128 {v(nrm+4,4)}, v{vNl} offset:16\n"
        for w in range(8):
            L += f"ds_read_b64 {v(T+2*w,2)}, v{vNr} offset:{w*2048}\n"
        return L
    def norm_comp():
        L = f"s_waitcnt lgkmcnt(0)\n"
        L += f"v_pk_add_f32 {v(nrm,2)}, {v(nrm,2)}, {v(nrm+2,2)}\n"
        L += f"v_pk_add_f32 {v(nrm+4,2)}, {v(nrm+4,2)}, {v(nrm+6,2)}\n"
        for w in range(4):
            L += f"v_pk_add_f32 {v(T+4*w,2)}, {v(T+4*w,2)}, {v(T+4*w+2,2)}\n"
        L += f"v_pk_add_f32 {v(nrm,2)}, {v(nrm,2)}, {v(nrm+4,2)}\n"
        L += f"v_pk_add_f32 {v(T,2)}, {v(T,2)}, {v(T+4,2)}\n"
        L += f"v_add_f32 v{nrm}, v{nrm}, v{nrm+1}\n"
        L += f"v_pk_add_f32 {v(T+8,2)}, {v(T+8,2)}, {v(T+12,2)}\n"
        L += f"v_rcp_f32 v{nrm}, v{nrm}\n"
        L += f"v_pk_add_f32 {v(T,2)}, {v(T,2)}, {v(T+8,2)}\n"
        L += f"v_pk_mul_f32 {v(T,2)}, {v(T,2)}, {v(nrm,2)} op_sel_hi:[1,0]\n"
        L += f"v_cvt_pk_bf16_f32 v{T}, v{T}, v{T+1}\n"
        L += f"ds_write_b32 v{vNw}, v{T}\n"
        return L
    def only_half(t, lab, body):
        return f"s_cmp_lg_u32 s{sHalf}, {t&1}\ns_cbranch_scc1 K2_N{lab}\n{body}K2_N{lab}:\n"
    def of_reads():
        return "\n".join(f"ds_read_b128 {v(OFr+4*ks,4)}, v{vOFa} offset:{ks*512}" for ks in range(2))
    def wo_mfma(ks, ct, src, first=False):
        return f"v_mfma_f32_16x16x32_bf16 {v(hacc+4*ct,4)}, {v(src+4*ct,4)}, {v(OFr+4*ks,4)}, {'0' if first else v(hacc+4*ct,4)}"
    W7 = [Kf, Kf + 16]
    W2R = Vf + 8
    assert S[0] == Vf + 64 and S[1] == S[0] + 16 and Q == zero + 4 and nrm == Q + 4
    X = Vf

    sCB2, sW2o, sB3 = sV2, sV2x, 48
    def ldW2(i):
        if "NOW2A" in EXP and i < 8: return "s_nop 7\ns_nop 1\n"
        if "NOW2B" in EXP and i >= 8: return ""
        L = (f"s_add_u32 s{sSo}, s{sCB2}, {i}\ns_sub_u32 s{sT1}, s{sSo}, 11\ns_cselect_b32 s{sSo}, s{sSo}, s{sT1}\n"
             f"s_lshl_b32 s{sSo}, s{sSo}, 11\ns_add_u32 s{sSo}, s{sSo}, s{sW2o}\n")
        for ct in range(2):
            L += f"buffer_load_dwordx4 {v(W2R+8*i+4*ct,4)}, v{vQa}, {s(SH,4)}, s{sSo} offen offset:{ct*1024}\n"
        return L

    def mainloop(slow):
        tag = "S" if slow else "F"
        order[:] = [] if slow else list(pro_order)
        if slow:
            a(f"ds_read_b32 v{vM[0]}, v{vt[0]}")
            a("s_waitcnt lgkmcnt(0)")
        else:
            a(wait_for("K0"))
            stamp(a, 2)
        a(smf(0))
        a("s_nop 7")
        a("s_nop 3")
        for tau in range(64):
            t, j = divmod(tau, 8)
            slots = [[] for _ in range(17)]
            p1 = 11
            if PRIO == "1" and (j & 1) == 0:
                slots[0].append(f"s_setprio {3 - j // 2}")
            if PRIO == "2":
                slots[0].append(f"s_setprio {3 - (j & 3)}")
            if PRIO == "3":
                slots[0].append(f"s_setprio {3 - 2*(j & 1)}")
                slots[8].append(f"s_setprio {2 - 2*(j & 1)}")
            if PRIO == "4":
                slots[0].append(f"s_setprio {3 - ((j + 2) & 3)}")
            if PRIO == "5":
                slots[0].append(f"s_setprio {3 - ((j + 1) & 3)}")
            if PRIO == "6":
                slots[0].append(f"s_setprio {3 - ((j + 3) & 3)}")
            if PRIO == "7":
                for q in range(4):
                    slots[4*q].append(f"s_setprio {3 - q}")
            if tau > 0:
                slots[3].append(pv(tau - 1, 1))
            if t == 0 and not slow:
                if j + PD < 8:
                    slots[0].append(lambda j=j: ldV(2*(j + PD)))
                    slots[4].append(lambda j=j: ldV(2*(j + PD) + 1))
                if j + PD + 2 < 8:
                    slots[8].append(lambda j=j: ldK(j + PD + 2))
                if j == 2:
                    for i, x in enumerate(bound_check()):
                        slots[3 + i].append(x)
                if j == 4:
                    slots[0] += ["s_waitcnt lgkmcnt(0)", "s_barrier", flag_reads]
                    slots[5].append(flag_test)
                if j == 6:
                    slots[13].append(f"s_cmp_lt_u32 s{sW}, 6\ns_cbranch_scc1 K2_PW\nbuffer_load_dword v{vt[3]}, v{vt[5]}, {s(SWO,4)}, s{sMaskLo} offen\nK2_PW:")
            nx = tau + 1
            if nx < 64:
                if t == 0 and nx < 8 and not slow:
                    slots[6].append(lambda nx=nx: wait_for(f"K{nx}"))
                if nx % 8 == 0:
                    slots[6].append("s_waitcnt lgkmcnt(0)")
                slots[6].append(smf(nx))
                if nx % 8 == 7 and t < 7:
                    slots[10].append(f"ds_read_b128 {v(Q,4)}, v{vQl} offset:{(t+1)*1024}")
                    if slow:
                        slots[10].append(f"ds_read_b32 v{vM[(t+1)&1]}, v{vt[0]} offset:{(t+1)*128}")
            if 10 <= tau < 22 and tau % 2 == 0:
                slots[13].append(f"s_cmp_lg_u32 s{sW}, {(tau-10)//2}\ns_cbranch_scc1 K2_PA{tag}{tau}\nbuffer_load_dword v{vt[3]}, v{vt[5]}, {s(SP,4)}, s{sMaskLo+1} offen\nK2_PA{tag}{tau}:")
            if 22 <= tau < 34 and tau % 2 == 0:
                slots[13].append(f"s_cmp_lg_u32 s{sW}, {(tau-22)//2}\ns_cbranch_scc1 K2_PB{tag}{tau}\nbuffer_load_dword v{vt[4]}, v{vt[5]}, {s(SH,4)}, s{sV2x} offen\nK2_PB{tag}{tau}:")
            if 36 <= tau < 60 and tau % 2 == 0:
                n = (tau - 36) // 2
                kb, ft = divmod(n, 3)
                slots[4].append(lambda kb=kb, ft=ft: (order.append("W1"), f"s_add_u32 s{sT0}, s{sRot}, {kb}\ns_and_b32 s{sT0}, s{sT0}, 15\ns_mul_i32 s{sT0}, s{sT0}, 44032\ns_add_u32 m0, s{sW1m}, {kb*3072 + ft*1024 - ft*64}\ns_nop 0\n"
                    f"buffer_load_dwordx4 v{vW1o}, {s(SP,4)}, s{sT0} offen offset:{ft*64} lds")[1])
            if t >= 1:
                u = t - 1
                if j == 1:
                    slots[0].append(f"v_mov_b32 v{vCnt}, {t}")
                    for i, x in enumerate(drain(u)):
                        slots[1 + 2*i].append(x)
                    slots[7].append(f"ds_write_b32 v{vPw}, v{vCnt}")
                if j == 2:
                    slots[13].append("s_waitcnt lgkmcnt(0)")
                if j == 3 and t == 2 and DIAG:
                    slots[0].append(stamp_str(12))
                if j == 3:
                    slots[0].append(f"ds_read_b32 v{vPv}, v{vP1r}")
                    slots[7].append(only_half(u, f"A{tag}{t}", check(vP1r, 0, t, f"A{tag}{t}") + norm_reads()))
                    slots[9] += [f"v_mfma_f32_32x32x16_bf16 {v(O[u&1],16)}, {v(zero,4)}, {v(zero,4)}, 0"]
                    p1 = 12
                if j == 4:
                    slots[3].append(only_half(u, f"B{tag}{t}", norm_comp() + f"ds_write_b32 v{vPw}, v{vCnt} offset:32\n"))
                if 1 <= j <= 4:
                    slots[13].append(lambda u=u, ct=j-1: ldW(u, 0, ct, woA))
                if 4 <= j <= 7:
                    slots[8 if j != 6 else 1].append(lambda u=u, ct=j-4: ldW(u, 1, ct, T))
                if j == 6:
                    slots[1].append(f"ds_read_b32 v{vPv}, v{vP2r} offset:{16*(u&1)}")
                    slots[8].append(check(vP2r, 16*(u&1), t, f"D{tag}{t}") + of_reads())
                    slots[15] += ["s_waitcnt lgkmcnt(0)", lambda u=u: wait_for(f"W{u}_0_1"), wo_mfma(0, 0, woA, u == 0)]
                if j == 7:
                    slots[9].append(wo_mfma(0, 1, woA, u == 0)); slots[15] += [lambda u=u: wait_for(f"W{u}_0_3"), wo_mfma(0, 2, woA, u == 0)]
            if t >= 2:
                u = t - 2
                if j == 0:
                    slots[9].append(wo_mfma(0, 3, woA, u == 0))
                    slots[15] += [lambda u=u: wait_for(f"W{u}_1_1"), wo_mfma(1, 0, T)]
                if j == 1:
                    slots[9].append(wo_mfma(1, 1, T)); slots[15] += [lambda u=u: wait_for(f"W{u}_1_2"), wo_mfma(1, 2, T)]
                if j == 2:
                    slots[9] += [lambda u=u: wait_for(f"W{u}_1_3"), wo_mfma(1, 3, T)]
            if tau == 11:
                slots[4].append(f"s_cmp_lg_u32 s{sW}, 7\ns_cbranch_scc1 K2_B1{tag}\ns_add_u32 s{SQ}, s14, 0\ns_addc_u32 s{SQ+1}, s15, 0\ns_movk_i32 s{SQ+2}, 2752\n"
                    f"s_lshl_b32 s{sT0}, s{sT0f}, 6\nv_lshlrev_b32 v{vt[3]}, 2, v0\ns_mov_b32 m0, {B1L}\ns_nop 0\nbuffer_load_dword v{vt[3]}, {s(SQ,4)}, s{sT0} offen lds\nK2_B1{tag}:")
            if tau == 9:
                slots[4].append(lambda: (order.append("X"), f"s_lshl_b32 s{sT0}, s{sRB}, 13\ns_lshl_b32 s{sT1}, s{sW}, 10\ns_add_u32 s{sT0}, s{sT0}, s{sT1}\n"
                    f"s_mul_i32 s{sT1}, s{sW}, 1040\ns_add_u32 m0, s{sT1}, {XL}\ns_nop 0\nbuffer_load_dwordx4 v{vQa}, {s(SX,4)}, s{sT0} offen lds")[1])
            if tau == 58:
                slots[1].append(f"s_and_b32 s{sCB2}, s{sMm}, 7\ns_lshl_b32 s{sW2o}, s{sCB2}, 3\ns_add_u32 s{sW2o}, s{sW2o}, s{sW}\ns_mul_i32 s{sW2o}, s{sW2o}, {11*2048}")
            if 59 <= tau <= 62:
                slots[4].append(lambda ct=tau-59: ldW(7, 0, ct, W7[0]))
            if 60 <= tau <= 63:
                slots[16].append(lambda ct=tau-60: ldW(7, 1, ct, W7[1]))
            if t == 0 and not slow:
                slots[p1].append(lambda j=j: wait_for(f"V{2*j+1}"))
            slots[p1].append(pv(tau, 0))
            if not slow and sum(len(x) for x in slots[7:]) < 2:
                slots[14].append("s_nop 0")
            for i in range(17):
                for x in slots[i]:
                    x = x() if callable(x) else x
                    if "NOWL" in EXP and f"{s(SWO,4)}" in x: continue
                    if "NOPF" in EXP and ("K2_PA" in x or "K2_PB" in x): continue
                    if "NOW1" in EXP and " lds" in x: continue
                    if "NOW2" in EXP and f"{s(SH,4)}" in x: continue
                    if "NODRAIN" in EXP and "ds_write" in x: continue
                    if "NOZERO" in EXP and f"{v(zero,4)}" in x: continue
                    if "NOWO" in EXP and "16x16x32" in x: continue
                    if "NONORM" in EXP and "K2_N" in x: continue
                    if "NOCHK" in EXP and "K2_R" in x and "K2_N" not in x: x = of_reads()
                    a(x)
                if i < 16:
                    r = S[tau & 1] + i
                    if slow:
                        a(f"v_sub_f32 v{r}, v{r}, v{vM[t&1]}")
                    a(f"v_exp_f32 v{r}, v{r}")
        a("s_nop 1")
        a(pv(63, 1))
    mainloop(False)
    a("K2_TAIL:")
    stamp(a, 3)
    a("s_setprio 0")
    nvm = len(order) - 1 - order.index('W6_1_3')
    a(ldW2(0) + ldW2(1))
    a(wo_mfma(0, 3, woA))
    for x in drain(7):
        a(x)
    a(f"s_waitcnt vmcnt({nvm + 4})")
    for ct in range(4):
        a(wo_mfma(1, ct, T))
    a(f"""
    v_and_b32 v{vt[0]}, 7, v0
    v_lshrrev_b32 v{vt[1]}, 4, v0
    v_bfe_u32 v{vt[3]}, v0, 3, 1
    v_lshlrev_b32 v{vVo}, 10, v{vt[0]}
    v_lshl_add_u32 v{vVo}, v{vt[3]}, 6, v{vVo}
    s_lshl_b32 s{sV1}, s{sRB}, 13
    s_lshl_b32 s{sT1}, s{sW}, 7
    s_add_u32 s{sV1}, s{sV1}, s{sT1}
    s_add_u32 s{sT1}, s{sT1}, {XL}
    v_lshl_add_u32 v{vt[2]}, v{vt[0]}, 4, v{vVo}
    v_lshl_add_u32 v{vt[2]}, v{vt[1]}, 3, v{vt[2]}
    v_add_u32 v{vt[2]}, s{sT1}, v{vt[2]}
    v_bfe_u32 v{vt[1]}, v0, 4, 1
    v_lshl_add_u32 v{vVo}, v{vt[1]}, 5, v{vVo}
    v_lshrrev_b32 v{vt[4]}, 5, v0
    v_lshl_add_u32 v{vVo}, v{vt[4]}, 4, v{vVo}
    s_waitcnt lgkmcnt(0)
    s_barrier
    """)
    for c in range(2):
        a(f"ds_read_b64 {v(X+2*c,2)}, v{vt[2]} offset:{32*c}")
    a(only_half(7, "T", norm_reads() + norm_comp()))
    a(ldW2(2) + ldW2(3))
    H = O[0]; XU = O[0] + 8; PK = O[1]; ST = woA; U = T
    srd(a, SQ, 16, 17, WS_H, 0x200000)
    a(f"""
    s_mov_b32 s{sB3}, 0xff00ff00
    s_mov_b32 s{sB3+1}, 0xff00ff00
    s_waitcnt lgkmcnt(0)
    """)
    for i in range(4):
        a(f"v_lshlrev_b32 v{XU+2*i}, 16, v{X+i}")
        a(f"v_and_b32 v{XU+2*i+1}, 0xffff0000, v{X+i}")
    a("s_barrier")
    a(of_reads())
    a(f"s_waitcnt vmcnt(8) lgkmcnt(1)")
    for ct in range(4):
        a(wo_mfma(0, ct, W7[0]))
    a("s_waitcnt lgkmcnt(0)")
    for ct in (0, 2, 1, 3):
        a(wo_mfma(1, ct, W7[1]))
    stamp(a, 4)
    a(ldW2(4) + ldW2(5))
    a.c("h = x + attn ; lanes with bit 3 set take column tiles 2,3")
    for i in range(8):
        a(f"v_cndmask_b32 v{H+i}, v{hacc+i}, v{hacc+8+i}, {s(sB3,2)}")
    for i in range(4):
        a(f"v_pk_add_f32 {v(H+2*i,2)}, {v(H+2*i,2)}, {v(XU+2*i,2)}")
    def xreduce(r, tmp):
        a(f"""
        v_mov_b32 v{tmp}, v{r}
        s_nop 1
        v_permlane32_swap_b32 v{r}, v{tmp}
        v_add_f32 v{r}, v{r}, v{tmp}
        v_mov_b32 v{tmp}, v{r}
        s_nop 1
        v_permlane16_swap_b32 v{r}, v{tmp}
        v_add_f32 v{r}, v{r}, v{tmp}
        s_nop 1
        v_add_f32_dpp v{r}, v{r}, v{r} row_ror:8 row_mask:0xf bank_mask:0xf
        """)
    a(f"""
    v_pk_add_f32 {v(U,2)}, {v(H,2)}, {v(H+2,2)}
    v_pk_add_f32 {v(U+2,2)}, {v(H+4,2)}, {v(H+6,2)}
    v_pk_add_f32 {v(U,2)}, {v(U,2)}, {v(U+2,2)}
    v_add_f32 v{U}, v{U}, v{U+1}
    """)
    xreduce(U, U+2)
    a(f"v_mul_f32 v{U}, {hex(f32bits(1.0/64))}, v{U}")
    for i in range(4):
        a(f"v_pk_add_f32 {v(XU+2*i,2)}, {v(H+2*i,2)}, {v(U,2)} op_sel_hi:[1,0] neg_lo:[0,1] neg_hi:[0,1]")
    a(f"""
    v_pk_mul_f32 {v(U+2,2)}, {v(XU,2)}, {v(XU,2)}
    v_pk_mul_f32 {v(U+4,2)}, {v(XU+2,2)}, {v(XU+2,2)}
    v_pk_fma_f32 {v(U+2,2)}, {v(XU+4,2)}, {v(XU+4,2)}, {v(U+2,2)}
    v_pk_fma_f32 {v(U+4,2)}, {v(XU+6,2)}, {v(XU+6,2)}, {v(U+4,2)}
    v_pk_add_f32 {v(U+2,2)}, {v(U+2,2)}, {v(U+4,2)}
    v_add_f32 v{U+1}, v{U+2}, v{U+3}
    """)
    a(ldW2(6) + ldW2(7))
    xreduce(U+1, U+2)
    a(f"""
    s_lshl_b32 s{sT1}, s{sW}, 3
    s_add_u32 s{sT1}, s{sT1}, {MISC + 128}
    v_lshlrev_b32 v{vt[5]}, 6, v{vt[0]}
    v_add_u32 v{vt[4]}, s{sT1}, v{vt[5]}
    v_add_u32 v{vt[5]}, {MISC + 128}, v{vt[5]}
    ds_write_b64 v{vt[4]}, {v(U,2)}
    """)
    for i in range(4):
        a(f"v_cvt_pk_bf16_f32 v{PK+i}, v{H+2*i}, v{H+2*i+1}")
    a("s_waitcnt lgkmcnt(0)")
    a("s_barrier")
    for i in range(4):
        a(f"ds_read_b128 {v(ST+4*i,4)}, v{vt[5]} offset:{16*i}")
    a(f"""
    v_permlane16_swap_b32 v{PK}, v{PK+2}
    v_permlane16_swap_b32 v{PK+1}, v{PK+3}
    buffer_store_dwordx4 {v(PK,4)}, v{vVo}, {s(SQ,4)}, s{sV1} offen sc1
    """)
    a(f"""
    s_lshr_b32 s{sT0}, s{sRB}, 2
    s_lshl_b32 s{sT0}, s{sT0}, 15
    s_lshl_b32 s{sT1}, s{sW}, 12
    s_add_u32 s{sT0}, s{sT0}, s{sT1}
    s_and_b32 s{sT1}, s{sRB}, 3
    s_lshl_b32 s{sT1}, s{sT1}, 7
    s_add_u32 s{sT0}, s{sT0}, s{sT1}
    v_lshlrev_b32 v{vt[4]}, 4, v{vt[0]}
    v_lshl_add_u32 v{vt[4]}, v{vt[3]}, 11, v{vt[4]}
    v_lshrrev_b32 v{vt[0]}, 5, v0
    v_lshl_add_u32 v{vt[4]}, v{vt[0]}, 9, v{vt[4]}
    v_lshl_add_u32 v{vt[4]}, v{vt[1]}, 10, v{vt[4]}
    s_waitcnt lgkmcnt(0)
    v_pk_add_f32 {v(U+2,2)}, {v(ST,2)}, {v(ST+2,2)}
    v_pk_add_f32 {v(U+4,2)}, {v(ST+4,2)}, {v(ST+6,2)}
    v_pk_add_f32 {v(U+6,2)}, {v(ST+8,2)}, {v(ST+10,2)}
    v_pk_add_f32 {v(U+8,2)}, {v(ST+12,2)}, {v(ST+14,2)}
    v_pk_add_f32 {v(U+2,2)}, {v(U+2,2)}, {v(U+4,2)}
    v_pk_add_f32 {v(U+6,2)}, {v(U+6,2)}, {v(U+8,2)}
    v_pk_add_f32 {v(U+2,2)}, {v(U+2,2)}, {v(U+6,2)}
    v_mul_f32 v{U+2}, 0x3e000000, v{U+2}
    """)
    for i in range(8):
        a(f"v_sub_f32 v{ST+2*i}, v{ST+2*i}, v{U+2}")
    a(f"v_mul_f32 v{U+4}, v{ST}, v{ST}")
    a(f"v_mul_f32 v{U+5}, v{ST+2}, v{ST+2}")
    for i in range(2, 8):
        a(f"v_fmac_f32 v{U+4+(i&1)}, v{ST+2*i}, v{ST+2*i}")
    a(f"""
    v_add_f32 v{U+4}, v{U+4}, v{U+5}
    v_fmac_f32 v{U+3}, 0x42800000, v{U+4}
    v_mov_b32 v{U+6}, {hex(f32bits(1e-5))}
    v_fmac_f32 v{U+6}, {hex(f32bits(1.0/512))}, v{U+3}
    v_rsq_f32 v{U+6}, v{U+6}
    """)
    for i in range(4):
        a(f"v_pk_add_f32 {v(H+2*i,2)}, {v(H+2*i,2)}, {v(U+2,2)} op_sel_hi:[1,0] neg_lo:[0,1] neg_hi:[0,1]")
    for i in range(4):
        a(f"v_pk_mul_f32 {v(H+2*i,2)}, {v(H+2*i,2)}, {v(U+6,2)} op_sel_hi:[1,0]")
    for i in range(4):
        a(f"v_cvt_pk_bf16_f32 v{PK+4+i}, v{H+2*i}, v{H+2*i+1}")
    a(f"""
    s_nop 1
    v_permlane16_swap_b32 v{PK+4}, v{PK+6}
    v_permlane16_swap_b32 v{PK+5}, v{PK+7}
    buffer_store_dwordx4 {v(PK+4,4)}, v{vt[4]}, {s(SHN,4)}, s{sT0} offen sc1
    """)
    SF, SG = SKV, SWO
    srd(a, SF, 16, 17, WS_FLG, 4096)
    srd(a, SG, 16, 17, WS_G, G_BYTES)
    def signal(off, young):
        a(f"""
        s_waitcnt vmcnt({young})
        s_barrier
        {stamp_str(1 if off == 0 else 2)}
        s_cmp_lg_u32 s{sW}, 0
        s_cbranch_scc1 K2_NOSIG{off}
        s_lshl_b32 s{sT0}, s{sG}, 8
        s_lshl_b32 s{sT1}, s{sMm}, 2
        s_add_u32 s{sT1}, s{sT1}, s{sT0}
        v_mov_b32 v{vt[0]}, 0
        v_mov_b32 v{vt[1]}, 1
        s_mov_b64 exec, 1
        buffer_store_dword v{vt[1]}, v{vt[0]}, {s(SF,4)}, s{sT1} offen offset:{off} sc1
        s_mov_b64 exec, -1
        K2_NOSIG{off}:
        """)
    def poll_start(off):
        a(f"""
        s_cmp_lg_u32 s{sW}, 0
        s_cbranch_scc1 K2_NOPS{off}
        s_lshl_b32 s{sRot}, s{sG}, 8
        v_and_b32 v{vt[0]}, 15, v0
        v_lshlrev_b32 v{vt[0]}, 2, v{vt[0]}
        buffer_load_dword v{vt[1]}, v{vt[0]}, {s(SF,4)}, s{sRot} offen offset:{off} sc1
        K2_NOPS{off}:
        """)
    def poll(off, mask):
        a(f"""
        s_cmp_lg_u32 s{sW}, 0
        s_cbranch_scc1 K2_NOPOLL{off}
        s_lshl_b32 s{sT0}, s{sG}, 8
        s_mov_b32 s{sT2}, 0x200000
        """)
        regs = [vt[1], vt[4], vt[5], vPv][:NPOLL]
        for r in regs[1:]:
            a(f"buffer_load_dword v{r}, v{vt[0]}, {s(SF,4)}, s{sT0} offen offset:{off} sc1")
        a(f"""
        K2_POLL{off}:
        s_sub_u32 s{sT2}, s{sT2}, 1
        s_cbranch_scc1 K2_PDONE{off}
        """)
        for r in regs:
            a(f"""
            s_waitcnt vmcnt({NPOLL-1})
            v_cmp_ne_u32 vcc, 0, v{r}
            buffer_load_dword v{r}, v{vt[0]}, {s(SF,4)}, s{sT0} offen offset:{off} sc1
            s_and_b32 s{sT1}, vcc_lo, {hex(mask)}
            s_cmp_eq_u32 s{sT1}, {hex(mask)}
            s_cbranch_scc1 K2_PDONE{off}
            """)
        a(f"""
        s_branch K2_POLL{off}
        K2_PDONE{off}:
        K2_NOPOLL{off}:
        s_barrier
        """)
    stamp(a, 5)
    if RELOAD:
        a.c("touch the lines just written so that they sit in the local L2 (speed only)")
        a(f"""
        buffer_load_dword v{T+12}, v{vt[4]}, {s(SHN,4)}, s{sT0} offen sc1
        buffer_load_dword v{T+13}, v{vVo}, {s(SQ,4)}, s{sV1} offen sc1
        """)
    signal(0, 2 if RELOAD else 0)
    a(f"""
    s_cmp_eq_u32 s{sMm}, 15
    s_cbranch_scc1 K2_SKIP1
    """)
    poll_start(0)
    a(f"""
    v_lshrrev_b32 v{vt[2]}, 5, v0
    v_lshlrev_b32 v{vt[2]}, 3, v{vt[2]}
    v_add_u32 v{vt[2]}, {B1L}, v{vt[2]}
    s_cmp_eq_u32 s{sHalf}, 0
    s_cselect_b32 s{sT2}, -1, 0
    s_and_b32 s{sSo}, s{sT2}, 0xffff0000
    """)
    BI = Kf
    acc1 = [O[0], O[1], hacc]
    for ft in range(3):
        for q in range(4):
            a(f"ds_read_b64 {v(BI+8*ft+2*q,2)}, v{vt[2]} offset:{ft*64+q*16}")
    a("s_waitcnt lgkmcnt(0)")
    for ft in range(3):
        for i in range(8):
            a(f"v_and_b32 v{acc1[ft]+2*i+1}, s{sSo}, v{BI+8*ft+i}")
            a(f"v_and_b32 v{BI+8*ft+i}, s{sT2}, v{BI+8*ft+i}")
            a(f"v_lshlrev_b32 v{acc1[ft]+2*i}, 16, v{BI+8*ft+i}")
    Bf = [Kf + 4*i for i in range(8)] + [woA + 4*i for i in range(4)] + [T + 4*i for i in range(4)]
    Af = [Vf, Vf + 4, OFr, OFr + 4, nrm, nrm + 4, Q, zero]
    vWa = vOa; vEx = vLa; vEr = vNr
    sRT, sKH = sV1, sHalf
    a(f"""
    s_and_b32 s{sRT}, s{sW}, 3
    s_lshl_b32 s{sT0}, s{sG}, 2
    s_add_u32 s{sRT}, s{sRT}, s{sT0}
    v_lshrrev_b32 v{vt[2]}, 5, v0
    v_lshlrev_b32 v{vt[2]}, 9, v{vt[2]}
    v_bfe_u32 v{vt[3]}, v0, 2, 2
    v_lshl_add_u32 v{vt[2]}, v{vt[3]}, 6, v{vt[2]}
    v_bfe_u32 v{vt[3]}, v0, 4, 1
    v_lshl_add_u32 v{vt[2]}, v{vt[3]}, 5, v{vt[2]}
    v_and_b32 v{vt[3]}, 3, v0
    v_lshl_add_u32 v{vt[2]}, v{vt[3]}, 3, v{vt[2]}
    s_mul_i32 s{sT0}, s{sKH}, 49152
    v_add_u32 v{vWa}, s{sT0}, v{vt[2]}
    s_mul_i32 s{sT0}, s{sW}, 6144
    s_add_u32 s{sT0}, s{sT0}, {EXB}
    v_add_u32 v{vEx}, s{sT0}, v{vQa}
    s_xor_b32 s{sT0}, s{sW}, 4
    s_mul_i32 s{sT0}, s{sT0}, 6144
    s_add_u32 s{sT0}, s{sT0}, {EXB}
    v_add_u32 v{vEr}, s{sT0}, v{vQa}
    s_lshl_b32 s{sWm}, s{sRT}, 15
    s_lshl_b32 s{sT0}, s{sKH}, 14
    s_add_u32 s{sWm}, s{sWm}, s{sT0}
    """)
    def areads(f):
        ks, ft = divmod(f, 3)
        off = ks * 3072 + ft * 1024
        a(f"ds_read_b64_tr_b16 {v(Af[f%8],2)}, v{vWa} offset:{off}")
        a(f"ds_read_b64_tr_b16 {v(Af[f%8]+2,2)}, v{vWa} offset:{off+256}")
    for f in range(5):
        areads(f)
    if W2L == "thin":
        a(f"""
        s_cmp_eq_u32 s{sW}, 0
        s_cbranch_scc1 K2_NW2
        """)
        for i in range(8, 11):
            a(ldW2(i))
            if i < 10:
                a("s_waitcnt vmcnt(0)")
        a("K2_NW2:")
    poll(0, 0xffff)
    stamp(a, 6)
    for i in range(16):
        a(f"""
        s_add_u32 s{sSo}, s{sMm}, {i}
        s_and_b32 s{sSo}, s{sSo}, 15
        s_lshl_b32 s{sSo}, s{sSo}, 10
        s_add_u32 s{sSo}, s{sSo}, s{sWm}
        buffer_load_dwordx4 {v(Bf[i],4)}, v{vQa}, {s(SHN,4)}, s{sSo} offen {LDF}
        """)
    for f in range(48):
        ks, ft = divmod(f, 3)
        later = min(4, 47 - f)
        w = f"lgkmcnt({2*later})"
        if ft == 0:
            w = f"vmcnt({15 - ks + (2*min(3, max(0, ks - 10)) if W2L == 'mid' else 0)}) " + w
        a(f"s_waitcnt {w}")
        a(f"v_mfma_f32_32x32x16_bf16 {v(acc1[ft],16)}, {v(Af[f%8],4)}, {v(Bf[ks],4)}, {v(acc1[ft],16)}")
        if f + 5 < 48:
            areads(f + 5)
        if W2L == "mid" and ft == 2 and 10 <= ks < 13:
            a(ldW2(ks - 2))
    stamp(a, 7)
    if W2L == "thin":
        a(f"""
        s_cmp_lg_u32 s{sW}, 0
        s_cbranch_scc1 K2_NW3
        """)
    if W2L != "mid":
        a(ldW2(8) + ldW2(9) + ldW2(10))
    a("K2_NW3:")
    a(f"""
    s_mul_i32 s{sT0}, s{sRT}, 86
    s_lshl_b32 s{sT1}, s{sT0f}, 1
    s_add_u32 s{sT0}, s{sT0}, s{sT1}
    s_mul_i32 s{sT1}, s{sKH}, 3
    s_add_u32 s{sT0}, s{sT0}, s{sT1}
    s_lshl_b32 s{sT0}, s{sT0}, 10
    s_nop 7
    s_cmp_eq_u32 s{sKH}, 1
    s_cbranch_scc1 K2_EX1
    """)
    lo = [acc1[0], acc1[0] + 8, acc1[1]]
    hi = [acc1[1] + 8, acc1[2], acc1[2] + 8]
    RX = Kf
    def exchange(keep, send):
        for q in range(3):
            a(f"ds_write_b128 v{vEx}, {v(send[q],4)} offset:{q*2048}")
            a(f"ds_write_b128 v{vEx}, {v(send[q]+4,4)} offset:{q*2048+1024}")
        a("s_waitcnt lgkmcnt(0)")
        a("s_barrier")
        for q in range(6):
            a(f"ds_read_b128 {v(RX+4*q,4)}, v{vEr} offset:{q*1024}")
        for q in range(3):
            a(f"s_waitcnt lgkmcnt({4-2*q})")
            for i in range(4):
                a(f"v_pk_add_f32 {v(keep[q]+2*i,2)}, {v(keep[q]+2*i,2)}, {v(RX+8*q+2*i,2)}")
            for i in range(8):
                a(f"v_max_f32 v{keep[q]+i}, 0, v{keep[q]+i}")
            for i in range(4):
                a(f"v_pk_mul_f32 {v(keep[q]+2*i,2)}, {v(keep[q]+2*i,2)}, {v(keep[q]+2*i,2)}")
            for i in range(4):
                a(f"v_cvt_pk_bf16_f32 v{woA+4*q+i}, v{keep[q]+2*i}, v{keep[q]+2*i+1}")
            a(f"buffer_store_dwordx4 {v(woA+4*q,4)}, v{vQa}, {s(SG,4)}, s{sT0} offen offset:{q*1024} sc1")
    exchange(lo, hi)
    a("s_branch K2_EXJ")
    a("K2_EX1:")
    exchange(hi, lo)
    a("K2_EXJ:")
    stamp(a, 8)
    if RELOAD:
        for q in range(3):
            a(f"buffer_load_dword v{hacc+q}, v{vQa}, {s(SG,4)}, s{sT0} offen offset:{q*1024} sc1")
    signal(128, 3 if RELOAD else 0)
    a("s_branch K2_FFN2")
    a("K2_SKIP1:")
    a(ldW2(8) + ldW2(9) + ldW2(10))
    a("K2_FFN2:")
    poll_start(128)
    Gf = [Kf + 4*i for i in range(8)] + [Vf, Vf + 4] + [woA + 4*i for i in range(4)] + [T + 4*i for i in range(4)] + [OFr, OFr + 4]
    Gf += Gf[:2]
    acc2 = [O[0], O[1], hacc, zero]
    vG1 = vOa; vOo = vLa; vRw = vNr; vRr = vNl; vB2 = vNw
    sGo, sOo, sGend = sWm, sV1, sRot
    srd(a, SX, 18, 19, 0, 1024)
    srd(a, SHN, 10, 11, 0, 0x200000)
    a(f"""
    s_lshl_b32 s{sT0}, s{sG}, 1
    s_lshr_b32 s{sT1}, s{sMm}, 3
    s_add_u32 s{sT0}, s{sT0}, s{sT1}
    s_lshl_b32 s{sOo}, s{sT0}, 16
    s_mul_i32 s{sGo}, s{sT0}, {2*86*1024}
    s_add_u32 s{sGend}, s{sGo}, {86*1024}
    s_lshl_b32 s{sT1}, s{sW}, 10
    s_add_u32 s{sGo}, s{sGo}, s{sT1}
    v_add_u32 v{vG1}, {86*1024}, v{vQa}
    v_and_b32 v{vt[2]}, 31, v0
    v_mul_u32_u24 v{vt[2]}, 272, v{vt[2]}
    v_lshrrev_b32 v{vt[3]}, 5, v0
    v_lshl_add_u32 v{vt[2]}, v{vt[3]}, 4, v{vt[2]}
    s_mul_i32 s{sT0}, s{sW}, {RSTR}
    v_add_u32 v{vRw}, s{sT0}, v{vt[2]}
    v_lshrrev_b32 v{vt[2]}, 3, v0
    s_lshl_b32 s{sT0}, s{sW}, 3
    v_add_u32 v{vt[2]}, s{sT0}, v{vt[2]}
    v_and_b32 v{vt[3]}, 7, v0
    v_mul_u32_u24 v{vRr}, 272, v{vt[2]}
    v_lshl_add_u32 v{vRr}, v{vt[3]}, 5, v{vRr}
    s_lshl_b32 s{sT0}, s{sCB2}, 7
    v_lshlrev_b32 v{vB2}, 4, v{vt[3]}
    v_add_u32 v{vB2}, s{sT0}, v{vB2}
    v_lshl_add_u32 v{vOo}, v{vt[2]}, 10, v{vB2}
    """)
    poll(128, 0x7fff)
    stamp(a, 9)
    def ldG(i):
        a(f"""
        s_add_u32 s{sSo}, s{sCB2}, {i}
        s_sub_u32 s{sT1}, s{sSo}, 11
        s_cselect_b32 s{sSo}, s{sSo}, s{sT1}
        s_lshl_b32 s{sSo}, s{sSo}, 13
        s_add_u32 s{sSo}, s{sSo}, s{sGo}
        s_cmp_ge_u32 s{sSo}, s{sGend}
        s_cselect_b32 s{sSo}, 0x1000000, s{sSo}
        """)
        a(f"buffer_load_dwordx4 {v(Gf[2*i],4)}, v{vQa}, {s(SG,4)}, s{sSo} offen {LDF}")
        a(f"buffer_load_dwordx4 {v(Gf[2*i+1],4)}, v{vG1}, {s(SG,4)}, s{sSo} offen {LDF}")
    for i in range(10):
        ldG(i)
    for i in range(11):
        a(f"s_waitcnt vmcnt({18 if i == 0 else 2*(10-i)})")
        for ct in range(2):
            for rt in range(2):
                d = acc2[2*ct + rt]
                a(f"v_mfma_f32_32x32x16_bf16 {v(d,16)}, {v(W2R+8*i+4*ct,4)}, {v(Gf[2*i+rt],4)}, {'0' if i == 0 else v(d,16)}")
        if i == 0:
            ldG(10)
    stamp(a, 10)
    HR = woA; B2 = woA + 4
    a(f"""
    buffer_load_dwordx4 {v(HR,4)}, v{vOo}, {s(SQ,4)}, s{sOo} offen sc1
    buffer_load_dwordx4 {v(B2,4)}, v{vB2}, {s(SX,4)}, 0 offen
    v_add_u32 v{vt[2]}, {3*RSTR}, v{vRr}
    v_add_u32 v{vt[3]}, {6*RSTR}, v{vRr}
    s_nop 7
    """)
    for ct in range(2):
        for rt in range(2):
            for q in range(4):
                d = acc2[2*ct + rt] + 4*q
                a(f"ds_write_b128 v{vRw}, {v(d,4)} offset:{rt*32*272 + (32*ct + 8*q)*4}")
    a("s_waitcnt lgkmcnt(0)")
    a("s_barrier")
    stamp(a, 11)
    RR = W2R
    for w in range(8):
        base = (vRr, vt[2], vt[3])[w // 3]
        for q in range(2):
            a(f"ds_read_b128 {v(RR+8*w+4*q,4)}, v{base} offset:{(w % 3)*RSTR + 16*q}")
    a("s_waitcnt vmcnt(0)")
    for i in range(4):
        a(f"v_lshlrev_b32 v{T+2*i}, 16, v{HR+i}")
        a(f"v_and_b32 v{T+2*i+1}, 0xffff0000, v{HR+i}")
        a(f"v_lshlrev_b32 v{T+8+2*i}, 16, v{B2+i}")
        a(f"v_and_b32 v{T+8+2*i+1}, 0xffff0000, v{B2+i}")
    for i in range(4):
        a(f"v_pk_add_f32 {v(T+2*i,2)}, {v(T+2*i,2)}, {v(T+8+2*i,2)}")
    for w in range(0, 8, 2):
        a(f"s_waitcnt lgkmcnt({12 - 2*w})")
        for i in range(4):
            a(f"v_pk_add_f32 {v(RR+8*w+2*i,2)}, {v(RR+8*w+2*i,2)}, {v(RR+8*w+8+2*i,2)}")
        for i in range(4):
            a(f"v_pk_add_f32 {v(T+2*i,2)}, {v(T+2*i,2)}, {v(RR+8*w+2*i,2)}")
    for i in range(4):
        a(f"v_cvt_pk_bf16_f32 v{T+8+i}, v{T+2*i}, v{T+2*i+1}")
    a(f"buffer_store_dwordx4 {v(T+8,4)}, v{vOo}, {s(SHN,4)}, s{sOo} offen {OUTF}")
    stamp_dump(a, 1, sW)
    a("K2_END:")
    a("s_endpgm")
    a.c("slow path: true row maxima first")
    a("K2_SLOW:")
    MB = MISC + 1024
    a("s_setprio 0")
    for i in range(SLOW_V0, 16):
        a(ldV(i))
    a("s_nop 7\ns_nop 7")
    for o in O:
        a(f"v_mfma_f32_32x32x16_bf16 {v(o,16)}, {v(zero,4)}, {v(zero,4)}, 0")
    a(f"""
    v_and_b32 v{vt[0]}, 31, v0
    v_lshlrev_b32 v{vt[0]}, 2, v{vt[0]}
    v_add_u32 v{vt[0]}, {MB}, v{vt[0]}
    s_lshl_b32 s{sT0}, s{sW}, 7
    v_add_u32 v{vt[1]}, s{sT0}, v{vt[0]}
    v_mov_b32 v{vt[2]}, 0xff800000
    ds_write_b32 v{vt[1]}, v{vt[2]}
    s_waitcnt vmcnt(0) lgkmcnt(0)
    s_barrier
    v_mov_b32 v{vt[1]}, v{vt[0]}
    v_mov_b32 v{vt[3]}, v{vQl}
    s_mov_b32 s{sT0}, 0
    K2_P1:
    ds_read_b128 {v(Q,4)}, v{vt[3]}
    v_mov_b32 v{nrm}, 0xff800000
    s_waitcnt lgkmcnt(0)
    """)
    for j in range(8):
        a(f"v_mfma_f32_32x32x16_bf16 {v(S[0],16)}, {v(Kf+4*j,4)}, {v(Q,4)}, 0")
        a("s_nop 7\ns_nop 3")
        for i in range(8):
            a(f"v_max3_f32 v{nrm}, v{nrm}, v{S[0]+2*i}, v{S[0]+2*i+1}")
        a("s_nop 1")
    a(f"""
    ds_max_f32 v{vt[1]}, v{nrm}
    v_add_u32 v{vt[1]}, 128, v{vt[1]}
    v_add_u32 v{vt[3]}, 1024, v{vt[3]}
    s_add_u32 s{sT0}, s{sT0}, 1
    s_cmp_lt_u32 s{sT0}, 8
    s_cbranch_scc1 K2_P1
    ds_read_b128 {v(Q,4)}, v{vQl}
    s_waitcnt lgkmcnt(0)
    s_barrier
    """)
    mainloop(True)
    a("s_branch K2_TAIL")
    for r in retries:
        lab = r.split(":")[0]
        if any(("s_cbranch_vccnz " + lab) == l.strip() for l in a.lines):
            a(r)
    return name, R.cur, K2_LDS
```

```python
from asmlib import *
from common import *

XBASE = 0
WBASE = 65536
KVBASE = 131072
STBASE = 147456
K1_LDS = STBASE + 16384

import os
CODEPF = os.environ.get("CODEPF", "1") == "1"
K1F = os.environ.get("K1F", "").replace("_", " ")
K1Q = os.environ.get("K1Q", "").replace("_", " ")
UP = int(os.environ.get("UP", "2"))
JF = int(os.environ.get("JF", "23"))
UPX = os.environ.get("UPX", "0") == "1"
BARS = [int(x) for x in os.environ.get("BARS", "0,2").split(",")]

def gen_k1(a):
    name = "qkv_kernel"
    kernel_header(a, name)
    R = Regs(1, 128)
    R.alloc("pad")
    vt = [R.alloc(f"t{i}") for i in range(8)]
    NS = 4
    pool = R.alloc("pool", 116, 4)
    sW, sRB, sCB, sWR, sWC, sH = 20, 21, 22, 23, 44, 45
    sT0, sT1, sXm, sWm, sKm, sSo, sWv, sB = 46, 47, 48, 49, 50, 51, 56, 57
    SX, SWQ, SKW, SQ, SKV, SWO = 24, 28, 32, 36, 40, 52
    a(f"""
    s_cmp_ge_u32 s2, 256
    s_cbranch_scc1 K1_END
    s_load_dwordx8 s[8:15], s[0:1], 0
    s_load_dwordx2 s[16:17], s[0:1], 96
    s_load_dwordx2 s[18:19], s[0:1], 32
    s_load_dwordx2 s[4:5], s[0:1], 64
    v_lshrrev_b32 v{vt[0]}, 6, v0
    v_and_b32 v0, 63, v0
    v_readfirstlane_b32 s{sW}, v{vt[0]}
    s_and_b32 s{sT0}, s2, 7
    s_lshr_b32 s{sT1}, s2, 3
    s_lshl_b32 s{sRB}, s{sT0}, 2
    s_and_b32 s{sT0}, s{sT1}, 3
    s_add_u32 s{sRB}, s{sRB}, s{sT0}
    s_lshr_b32 s{sCB}, s{sT1}, 2
    """)
    stamp_init(a)
    a(f"""
    s_cmp_ge_u32 s{sW}, 4
    s_cbranch_scc1 K1_MM
    """)
    P = Regs(pool, pool + 116)
    vXoff = [P.alloc(f"xoff{e}") for e in range(4)]
    vWoff = [P.alloc(f"woff{e}") for e in range(2)]
    vKoff = P.alloc("koff")
    vXs = [P.alloc(f"xs{i}") for i in range(4)]
    vX16a = P.alloc("x16a"); vKWa = P.alloc("kwa")
    Gq = P.alloc("gq", 4); Gs = P.alloc("gs", 4)
    ones = P.alloc("ones", 4)
    Xs = P.alloc("xsd", 16); Ws = P.alloc("wsd", 16)
    X16 = P.alloc("x16", 4); KW = P.alloc("kw", 4)
    Dk = P.alloc("dk", 4); Dc = P.alloc("dc", 4)
    st = P.alloc("st", 8, 4); pk = P.alloc("pk", 2, 2)
    a("s_setprio 3")
    a(f"""
    v_lshrrev_b32 v{vt[2]}, 4, v0
    v_and_b32 v{vt[3]}, 15, v0
    s_lshl_b32 s{sT0}, s{sW}, 14
    """)
    for e in range(4):
        a(f"""
        v_add_u32 v{vt[4]}, {4*e}, v{vt[2]}
        v_xor_b32 v{vt[5]}, v{vt[3]}, v{vt[4]}
        v_lshlrev_b32 v{vt[5]}, 4, v{vt[5]}
        v_lshl_add_u32 v{vt[5]}, v{vt[4]}, 10, v{vt[5]}
        v_add_u32 v{vXoff[e]}, s{sT0}, v{vt[5]}
        """)
    a(f"""
    v_lshrrev_b32 v{vt[4]}, 2, v0
    v_and_b32 v{vt[5]}, 3, v0
    v_lshlrev_b32 v{vt[5]}, 4, v{vt[5]}
    v_lshl_add_u32 v{vt[7]}, v{vt[4]}, 10, v{vt[5]}
    s_lshl_b32 s{sT0}, s{sCB}, 7
    s_lshl_b32 s{sT1}, s{sW}, 15
    s_add_u32 s{sT0}, s{sT0}, s{sT1}
    v_add_u32 v{vWoff[0]}, s{sT0}, v{vt[7]}
    v_add_u32 v{vWoff[1]}, 0x4000, v{vWoff[0]}
    v_lshrrev_b32 v{vt[4]}, 1, v0
    v_and_b32 v{vt[5]}, 0x13, v{vt[4]}
    v_and_b32 v{vt[6]}, 4, v{vt[4]}
    v_lshl_or_b32 v{vt[5]}, v{vt[6]}, 1, v{vt[5]}
    v_and_b32 v{vt[6]}, 8, v{vt[4]}
    v_lshrrev_b32 v{vt[6]}, 1, v{vt[6]}
    v_or_b32 v{vt[5]}, v{vt[5]}, v{vt[6]}
    v_lshlrev_b32 v{vt[5]}, 5, v{vt[5]}
    v_and_b32 v{vt[6]}, 1, v0
    v_lshl_add_u32 v{vt[5]}, v{vt[6]}, 4, v{vt[5]}
    s_lshl_b32 s{sT0}, s{sW}, 10
    v_add_u32 v{vKoff}, s{sT0}, v{vt[5]}
    s_lshl_b32 s{sXm}, s{sW}, 12
    s_lshl_b32 s{sWm}, s{sW}, 11
    s_add_u32 s{sWm}, s{sWm}, {WBASE}
    s_add_u32 s{sKm}, s{sT0}, {KVBASE}
    s_lshl_b32 s{sT0}, s{sRB}, 16
    s_waitcnt lgkmcnt(0)
    s_add_u32 s{SX}, s8, s{sT0}
    s_addc_u32 s{SX+1}, s9, 0
    s_mov_b32 s{SX+2}, 0x10000
    s_mov_b32 s{SX+3}, 0x20000
    """)
    srd(a, SWQ, 10, 11, 0, 524288)
    a(f"""
    s_bitcmp1_b32 s{sCB}, 0
    s_cselect_b32 s{SKW}, s14, s12
    s_cselect_b32 s{SKW+1}, s15, s13
    s_mov_b32 s{SKW+2}, 0x4000
    s_mov_b32 s{SKW+3}, 0x20000
    """)
    a(f"s_add_u32 s{sB}, s{sCB}, s{sRB}")
    def issue(c):
        a(f"""
        s_add_u32 s{sWv}, s{sB}, {c}
        s_and_b32 s{sWv}, s{sWv}, 3
        s_lshl_b32 s{sSo}, s{sWv}, 8
        """)
        for e in range(4):
            a(f"s_add_u32 m0, s{sXm}, {XBASE + c*16384 + e*1024}")
            a("s_nop 0")
            a(f"buffer_load_dwordx4 v{vXoff[e]}, {s(SX,4)}, s{sSo} offen lds")
        a(f"s_lshl_b32 s{sSo}, s{sWv}, 17")
        for kb in range(2):
            for ct in range(2):
                a(f"s_add_u32 m0, s{sWm}, {(ct*32 + c*8 + kb)*1024 - ct*64}")
                a("s_nop 0")
                a(f"buffer_load_dwordx4 v{vWoff[kb]}, {s(SWQ,4)}, s{sSo} offen offset:{ct*64} lds")
        a(f"s_lshl_b32 s{sSo}, s{sWv}, 12")
        a(f"s_add_u32 m0, s{sKm}, {c*4096}")
        a("s_nop 0")
        a(f"buffer_load_dwordx4 v{vKoff}, {s(SKW,4)}, s{sSo} offen lds")
    for c in range(UP):
        issue(c)
    a("s_setprio 0")
    stamp(a, 1)
    a(f"""
    s_lshl_b32 s{sT0}, s{sW}, 12
    v_lshlrev_b32 v{vt[4]}, 8, v{vt[3]}
    v_add_u32 v{vt[4]}, s{sT0}, v{vt[4]}
    v_lshlrev_b32 v{vt[5]}, 2, v{vt[2]}
    """)
    for i in range(4):
        a(f"""
        v_add_u32 v{vt[6]}, {i}, v{vt[5]}
        v_xor_b32 v{vt[6]}, v{vt[6]}, v{vt[3]}
        v_lshl_add_u32 v{vXs[i]}, v{vt[6]}, 4, v{vt[4]}
        """)
    a(f"""
    v_lshrrev_b32 v{vt[1]}, 5, v0
    v_bfe_u32 v{vt[5]}, v0, 2, 2
    v_bfe_u32 v{vt[6]}, v0, 4, 1
    v_and_b32 v{vt[0]}, 3, v0
    v_lshlrev_b32 v{vt[4]}, 9, v{vt[1]}
    v_lshl_add_u32 v{vt[4]}, v{vt[6]}, 7, v{vt[4]}
    v_lshl_add_u32 v{vt[4]}, v{vt[5]}, 5, v{vt[4]}
    v_lshl_add_u32 v{vt[4]}, v{vt[0]}, 3, v{vt[4]}
    v_add_u32 v{vKWa}, s{sKm}, v{vt[4]}
    s_lshr_b32 s{sT0}, s{sCB}, 1
    s_lshl_b32 s{sT0}, s{sT0}, 12
    s_lshl_b32 s{sT1}, s{sW}, 2
    v_add_u32 v{vt[6]}, s{sT1}, v{vt[2]}
    v_xor_b32 v{vt[6]}, v{vt[6]}, v{vt[3]}
    v_lshlrev_b32 v{vt[6]}, 4, v{vt[6]}
    v_lshl_add_u32 v{vt[6]}, v{vt[3]}, 8, v{vt[6]}
    v_add_u32 v{vX16a}, s{sT0}, v{vt[6]}
    """)
    for i in range(4):
        a(f"v_mov_b32 v{ones+i}, 0x3f803f80")
    srd(a, SKV, 16, 17, WS_K, KV_BYTES)
    for c in range(4):
        z = (lambda r: "0") if c == 0 else (lambda r: v(r, 4))
        a(f"s_waitcnt vmcnt({(9, 18, 9, 0)[c] if UPX else 9 * min(UP - 1, 3 - c)})")
        a("s_barrier")
        stamp(a, 2 + c)
        for i in range(4):
            a(f"ds_read_b128 {v(Xs+4*i,4)}, v{vXs[i]} offset:{c*16384}")
        a(f"ds_read_b128 {v(X16,4)}, v{vX16a} offset:{c*16384}")
        a(f"ds_read_b64_tr_b16 {v(KW,2)}, v{vKWa} offset:{c*4096}")
        a(f"ds_read_b64_tr_b16 {v(KW+2,2)}, v{vKWa} offset:{c*4096+256}")
        if UPX:
            if c == 0:
                issue(2)
        elif c + UP < 4:
            issue(c + UP)
        for i in range(4):
            a(f"s_waitcnt lgkmcnt({6-i})")
            a(f"v_mfma_f32_16x16x32_bf16 {v(Gq,4)}, {v(Xs+4*i,4)}, {v(Xs+4*i,4)}, {z(Gq) if i == 0 else v(Gq,4)}")
            a(f"v_mfma_f32_16x16x32_bf16 {v(Gs,4)}, {v(Xs+4*i,4)}, {v(ones,4)}, {z(Gs) if i == 0 else v(Gs,4)}")
        a(f"""
        s_waitcnt lgkmcnt(0)
        s_bitcmp1_b32 s{sCB}, 0
        s_cbranch_scc1 K1_V{c}
        v_mfma_f32_16x16x32_bf16 {v(Dk,4)}, {v(KW,4)}, {v(X16,4)}, {z(Dk)}
        v_mfma_f32_16x16x32_bf16 {v(Dc,4)}, {v(KW,4)}, {v(ones,4)}, {z(Dc)}
        s_branch K1_J{c}
        K1_V{c}:
        v_mfma_f32_16x16x32_bf16 {v(Dk,4)}, {v(X16,4)}, {v(KW,4)}, {z(Dk)}
        v_mfma_f32_16x16x32_bf16 {v(Dc,4)}, {v(ones,4)}, {v(KW,4)}, {z(Dc)}
        K1_J{c}:
        """)
        if UPX and c == 0:
            issue(3)
    stamp(a, 6)
    a.c("row statistics: lane n = 4g + r holds the diagonal of X X^T and the row sum in register r")
    a(f"""
    v_and_b32 v{vt[0]}, 1, v0
    v_cmp_eq_u32 vcc, 1, v{vt[0]}
    v_and_b32 v{vt[0]}, 2, v0
    v_cmp_eq_u32 s[6:7], 2, v{vt[0]}
    s_mov_b32 s{sXm}, {hex(f32bits(1.0/512))}
    s_mov_b32 s{sWm}, {hex(f32bits(1e-5))}
    v_cndmask_b32 v{Gq}, v{Gq}, v{Gq+1}, vcc
    v_cndmask_b32 v{Gq+2}, v{Gq+2}, v{Gq+3}, vcc
    v_cndmask_b32 v{Gs}, v{Gs}, v{Gs+1}, vcc
    v_cndmask_b32 v{Gs+2}, v{Gs+2}, v{Gs+3}, vcc
    v_cndmask_b32 v{st+1}, v{Gq}, v{Gq+2}, s[6:7]
    v_cndmask_b32 v{st}, v{Gs}, v{Gs+2}, s[6:7]
    v_mul_f32 v{st+3}, s{sXm}, v{st}
    v_mul_f32 v{st+1}, s{sXm}, v{st+1}
    v_fma_f32 v{st+1}, -v{st+3}, v{st+3}, v{st+1}
    v_max_f32 v{st+1}, 0, v{st+1}
    v_add_f32 v{st+1}, s{sWm}, v{st+1}
    v_rsq_f32 v{st+2}, v{st+1}
    s_lshl_b32 s{sT0}, s{sW}, 8
    s_add_u32 s{sT0}, s{sT0}, {STBASE}
    v_lshlrev_b32 v{vt[0]}, 4, v{vt[3]}
    v_mul_f32 v{st}, {hex(f32bits(QSCALE))}, v{st+2}
    v_add_u32 v{vt[0]}, s{sT0}, v{vt[0]}
    v_mul_f32 v{st+1}, v{st}, v{st+3}
    s_mov_b32 exec_lo, 0x00f0000f
    s_mov_b32 exec_hi, 0xf0000f00
    ds_write_b128 v{vt[0]}, {v(st,4)}
    s_mov_b64 exec, -1
    """)
    a(f"""
    v_lshlrev_b32 v{vt[4]}, 4, v0
    v_add_u32 v{vt[4]}, {STBASE + 2048}, v{vt[4]}
    s_lshl_b32 s{sT0}, s{sW}, 11
    v_add_u32 v{vt[5]}, s{sT0}, v{vt[4]}
    s_cmp_eq_u32 s{sW}, 3
    s_cbranch_scc1 K1_NOKVP
    ds_write_b128 v{vt[5]}, {v(Dk,4)}
    ds_write_b128 v{vt[5]}, {v(Dc,4)} offset:1024
    K1_NOKVP:
    s_waitcnt lgkmcnt(0)
    s_barrier
    s_cmp_lg_u32 s{sW}, 3
    s_cbranch_scc1 K1_DONE
    """)
    a.c("KV epilogue (wave 3)")
    g, d = vt[2], vt[3]
    Pp = Xs
    assert Ws == Xs + 16 and Dc == Dk + 4
    for w in range(3):
        a(f"ds_read_b128 {v(Pp+8*w,4)}, v{vt[4]} offset:{w*2048}")
        a(f"ds_read_b128 {v(Pp+8*w+4,4)}, v{vt[4]} offset:{w*2048+1024}")
    def kvsum():
        for i in range(4):
            a(f"v_pk_add_f32 {v(Pp+2*i,2)}, {v(Pp+2*i,2)}, {v(Pp+8+2*i,2)}")
            a(f"v_pk_add_f32 {v(Pp+16+2*i,2)}, {v(Pp+16+2*i,2)}, {v(Dk+2*i,2)}")
        for i in range(4):
            a(f"v_pk_add_f32 {v(Dk+2*i,2)}, {v(Pp+2*i,2)}, {v(Pp+16+2*i,2)}")
    a(f"""
    s_lshr_b32 s{sH}, s{sCB}, 1
    s_lshl_b32 s{sT0}, s{sH}, 8
    s_add_u32 s{sT0}, s{sT0}, {STBASE}
    s_lshl_b32 s{sKm}, s{sRB}, 2
    s_add_u32 s{sKm}, s{sKm}, s{sH}
    s_bitcmp1_b32 s{sCB}, 0
    s_cbranch_scc1 K1_VEP
    """)
    a.c("K tile: lane key = l&15")
    a(f"""
    v_lshlrev_b32 v{vt[0]}, 4, v{d}
    v_add_u32 v{vt[0]}, s{sT0}, v{vt[0]}
    ds_read_b64 {v(st,2)}, v{vt[0]} offset:8
    v_and_b32 v{vt[1]}, 3, v{d}
    v_and_b32 v{vt[5]}, 4, v{d}
    v_lshl_or_b32 v{vt[1]}, v{vt[5]}, 1, v{vt[1]}
    v_and_b32 v{vt[5]}, 8, v{d}
    v_lshrrev_b32 v{vt[5]}, 1, v{vt[5]}
    v_or_b32 v{vt[1]}, v{vt[1]}, v{vt[5]}
    v_lshlrev_b32 v{vt[1]}, 4, v{vt[1]}
    v_and_b32 v{vt[5]}, 1, v{g}
    v_lshl_add_u32 v{vt[1]}, v{vt[5]}, 9, v{vt[1]}
    v_lshrrev_b32 v{vt[5]}, 1, v{g}
    v_lshl_add_u32 v{vt[1]}, v{vt[5]}, 3, v{vt[1]}
    s_lshr_b32 s{sT1}, s{sKm}, 1
    s_lshl_b32 s{sT1}, s{sT1}, 10
    s_and_b32 s{sT0}, s{sKm}, 1
    s_lshl_b32 s{sT0}, s{sT0}, 8
    s_add_u32 s{sT1}, s{sT1}, s{sT0}
    s_waitcnt lgkmcnt(0)
    """)
    kvsum()
    for r in range(4):
        a(f"v_fma_f32 v{Dk+r}, -v{st+1}, v{Dc+r}, v{Dk+r}")
    for r in range(4):
        a(f"v_mul_f32 v{Dk+r}, v{Dk+r}, v{st}")
    a(f"""
    v_cvt_pk_bf16_f32 v{pk}, v{Dk}, v{Dk+1}
    v_cvt_pk_bf16_f32 v{pk+1}, v{Dk+2}, v{Dk+3}
    v_mul_f32 v{st+2}, v{Dk}, v{Dk}
    v_fmac_f32 v{st+2}, v{Dk+1}, v{Dk+1}
    v_fmac_f32 v{st+2}, v{Dk+2}, v{Dk+2}
    v_fmac_f32 v{st+2}, v{Dk+3}, v{Dk+3}
    buffer_store_dwordx2 {v(pk,2)}, v{vt[1]}, {s(SKV,4)}, s{sT1} offen
    v_mov_b32 v{st+3}, v{st+2}
    s_nop 1
    v_permlane32_swap_b32 v{st+2}, v{st+3}
    v_add_f32 v{st+2}, v{st+2}, v{st+3}
    v_mov_b32 v{st+3}, v{st+2}
    s_nop 1
    v_permlane16_swap_b32 v{st+2}, v{st+3}
    v_add_f32 v{st+2}, v{st+2}, v{st+3}
    s_nop 1
    v_max_f32_dpp v{st+2}, v{st+2}, v{st+2} row_ror:8 row_mask:0xf bank_mask:0xf
    s_nop 1
    v_max_f32_dpp v{st+2}, v{st+2}, v{st+2} row_ror:4 row_mask:0xf bank_mask:0xf
    s_nop 1
    v_max_f32_dpp v{st+2}, v{st+2}, v{st+2} row_ror:2 row_mask:0xf bank_mask:0xf
    s_nop 1
    v_max_f32_dpp v{st+2}, v{st+2}, v{st+2} row_ror:1 row_mask:0xf bank_mask:0xf
    s_lshl_b32 s{sKm}, s{sKm}, 2
    s_add_u32 s{sKm}, s{sKm}, 0x21000
    v_mov_b32 v{vt[5]}, 0
    s_mov_b64 exec, 1
    buffer_store_dword v{st+2}, v{vt[5]}, {s(SKV,4)}, s{sKm} offen
    s_branch K1_DONE
    K1_VEP:
    """)
    a.c("V tile: lane d = l&15, keys 4g+r")
    a(f"""
    v_lshlrev_b32 v{vt[0]}, 6, v{g}
    v_add_u32 v{vt[0]}, s{sT0}, v{vt[0]}
    """)
    for r in range(4):
        a(f"ds_read_b64 {v(st+2*r,2)}, v{vt[0]} offset:{16*r+8}")
    a(f"""
    v_lshlrev_b32 v{vt[1]}, 4, v{d}
    v_and_b32 v{vt[5]}, 1, v{g}
    v_lshl_add_u32 v{vt[1]}, v{vt[5]}, 8, v{vt[1]}
    v_lshrrev_b32 v{vt[5]}, 1, v{g}
    v_lshl_add_u32 v{vt[1]}, v{vt[5]}, 3, v{vt[1]}
    s_mul_i32 s{sT1}, s{sKm}, {VSTR}
    s_add_u32 s{sT1}, s{sT1}, 0x10000
    s_waitcnt lgkmcnt(0)
    """)
    kvsum()
    for r in range(4):
        a(f"v_fma_f32 v{Dk+r}, -v{st+2*r+1}, v{Dc+r}, v{Dk+r}")
    for r in range(4):
        a(f"v_mul_f32 v{Dk+r}, v{Dk+r}, v{st+2*r}")
    a(f"""
    v_cvt_pk_bf16_f32 v{pk}, v{Dk}, v{Dk+1}
    v_cvt_pk_bf16_f32 v{pk+1}, v{Dk+2}, v{Dk+3}
    buffer_store_dwordx2 {v(pk,2)}, v{vt[1]}, {s(SKV,4)}, s{sT1} offen
    v_lshlrev_b32 v{vt[1]}, 2, v0
    s_mov_b64 exec, 15
    buffer_store_dword v{ones}, v{vt[1]}, {s(SKV,4)}, s{sT1} offen offset:512
    s_branch K1_DONE
    """)
    P = Regs(pool, pool + 116)
    vXa = [P.alloc(f"xa{i}") for i in range(8)]
    vWa = [P.alloc("wa0"), P.alloc("wa1")]
    vcs = [P.alloc("cs0"), P.alloc("cs1")]; onesr = P.alloc("onesr")
    Xf = [P.alloc(f"xf{i}", 4) for i in range(NS)]
    Wf = [P.alloc(f"wf{i}", 4) for i in range(NS)]
    acc = P.alloc("acc", 16); csr = P.alloc("csr", 16); pk = P.alloc("pk", 8); st = P.alloc("st", 2)
    jt = [P.alloc(f"jt{i}") for i in range(8)]
    sJ0, sJ1, sJb, sJs = 58, 59, 60, 61
    a("K1_MM:")
    a(f"s_sub_u32 s{sW}, s{sW}, 4")
    if CODEPF:
        a.c("pull the code of this launch list into L2 (one dword per 128-byte line)")
        a(f"""
        s_getpc_b64 s[6:7]
        K1_PC:
        s_sub_u32 s6, s6, K1_PC-qkv_kernel
        s_subb_u32 s7, s7, 0
        s_lshl_b32 s{sT0}, s{sW}, 13
        s_add_u32 s6, s6, s{sT0}
        s_addc_u32 s7, s7, 0
        v_lshlrev_b32 v{vt[4]}, 7, v0
        v_mov_b32 v{vt[5]}, s7
        v_add_co_u32 v{vt[4]}, vcc, s6, v{vt[4]}
        s_nop 1
        v_addc_co_u32 v{vt[5]}, vcc, 0, v{vt[5]}, vcc
        global_load_dword v{jt[0]}, v[{vt[4]}:{vt[5]}], off
        """)
    def job_issue():
        a(f"""
        v_lshrrev_b32 v{jt[2]}, 4, v0
        v_and_b32 v{jt[3]}, 15, v0
        s_lshl_b32 s{sJ1}, s{sW}, 11
        s_add_u32 s{sJs}, s{sJ1}, {STBASE + 8192}
        v_bfe_u32 v{jt[5]}, v0, 2, 2
        v_and_b32 v{jt[6]}, 3, v0
        v_lshlrev_b32 v{jt[4]}, 4, v0
        s_cmp_eq_u32 s{sW}, 2
        s_cbranch_scc1 K1_WOJ
        """)
        a.c("w2 re-layout: block b = 3*wg + {0,1,2} ; ks = b>>3, cb = b&7")
        srd(a, SWO, 4, 5, 0, 1409024)
        a(f"""
        s_mul_i32 s{sJb}, s2, 3
        s_min_u32 s{sJ0}, s{sW}, 2
        s_add_u32 s{sJb}, s{sJb}, s{sJ0}
        s_lshr_b32 s{sJ0}, s{sJb}, 3
        s_lshl_b32 s{sJ0}, s{sJ0}, 14
        s_and_b32 s{sJ1}, s{sJb}, 7
        s_lshl_b32 s{sJ1}, s{sJ1}, 7
        s_add_u32 s{sJ0}, s{sJ0}, s{sJ1}
        v_lshrrev_b32 v{jt[7]}, 3, v0
        v_lshlrev_b32 v{jt[7]}, 10, v{jt[7]}
        v_and_b32 v{jt[0]}, 7, v0
        v_lshl_add_u32 v{jt[7]}, v{jt[0]}, 4, v{jt[7]}
        s_mov_b32 m0, s{sJs}
        s_add_u32 s{sJ1}, s{sJ0}, 0x2000
        buffer_load_dwordx4 v{jt[7]}, {s(SWO,4)}, s{sJ0} offen lds
        s_add_u32 m0, s{sJs}, 1024
        v_lshrrev_b32 v{jt[0]}, 5, v0
        buffer_load_dwordx4 v{jt[7]}, {s(SWO,4)}, s{sJ1} offen lds
        v_lshlrev_b32 v{jt[0]}, 9, v{jt[0]}
        v_lshl_add_u32 v{jt[0]}, v{jt[5]}, 7, v{jt[0]}
        v_bfe_u32 v{jt[1]}, v0, 4, 1
        v_lshl_add_u32 v{jt[0]}, v{jt[1]}, 5, v{jt[0]}
        v_lshl_add_u32 v{jt[0]}, v{jt[6]}, 3, v{jt[0]}
        v_add_u32 v{jt[0]}, s{sJs}, v{jt[0]}
        s_and_b32 s{sJ0}, s{sJb}, 7
        s_lshl_b32 s{sJ0}, s{sJ0}, 3
        s_bfe_u32 s{sJ1}, s{sJb}, 0x30003
        s_add_u32 s{sJ0}, s{sJ0}, s{sJ1}
        s_mul_i32 s{sJ0}, s{sJ0}, 11
        s_lshr_b32 s{sJ1}, s{sJb}, 6
        s_add_u32 s{sJ0}, s{sJ0}, s{sJ1}
        s_lshl_b32 s{sJ0}, s{sJ0}, 11
        s_cmp_lt_u32 s{sJb}, 704
        s_cselect_b32 s{sJ0}, s{sJ0}, 0x1000000
        """)
        srd(a, SWO, 16, 17, WS_W2, W2F_BYTES)
        a(f"""
        v_add_u32 v{jt[1]}, 1024, v{jt[0]}
        v_add_u32 v{jt[2]}, 64, v{jt[0]}
        v_add_u32 v{jt[3]}, 1088, v{jt[0]}
        s_branch K1_JOBST
        K1_WOJ:
        """)
        a.c("wo re-layout: block rows 32*(wg>>4).., cols 32*(wg&15)..")
        srd(a, SWO, 18, 19, 0, 524288)
        a(f"""
        s_lshr_b32 s{sJ0}, s2, 4
        s_lshl_b32 s{sJ0}, s{sJ0}, 15
        s_and_b32 s{sJ1}, s2, 15
        s_lshl_b32 s{sJ1}, s{sJ1}, 6
        s_add_u32 s{sJ0}, s{sJ0}, s{sJ1}
        v_lshrrev_b32 v{jt[7]}, 2, v0
        v_lshlrev_b32 v{jt[7]}, 10, v{jt[7]}
        v_lshl_add_u32 v{jt[7]}, v{jt[6]}, 4, v{jt[7]}
        s_mov_b32 m0, s{sJs}
        s_add_u32 s{sJ1}, s{sJ0}, 0x4000
        buffer_load_dwordx4 v{jt[7]}, {s(SWO,4)}, s{sJ0} offen lds
        s_add_u32 m0, s{sJs}, 1024
        v_lshlrev_b32 v{jt[0]}, 9, v{jt[2]}
        buffer_load_dwordx4 v{jt[7]}, {s(SWO,4)}, s{sJ1} offen lds
        v_lshl_add_u32 v{jt[0]}, v{jt[5]}, 6, v{jt[0]}
        v_lshl_add_u32 v{jt[0]}, v{jt[6]}, 3, v{jt[0]}
        v_add_u32 v{jt[0]}, s{sJs}, v{jt[0]}
        s_lshr_b32 s{sJ0}, s2, 5
        s_lshl_b32 s{sJ0}, s{sJ0}, 16
        s_bfe_u32 s{sJ1}, s2, 0x30001
        s_lshl_b32 s{sJ1}, s{sJ1}, 13
        s_add_u32 s{sJ0}, s{sJ0}, s{sJ1}
        s_bfe_u32 s{sJ1}, s2, 0x10004
        s_lshl_b32 s{sJ1}, s{sJ1}, 12
        s_add_u32 s{sJ0}, s{sJ0}, s{sJ1}
        s_and_b32 s{sJ1}, s2, 1
        s_lshl_b32 s{sJ1}, s{sJ1}, 11
        s_add_u32 s{sJ0}, s{sJ0}, s{sJ1}
        """)
        srd(a, SWO, 16, 17, WS_WO, 524288)
        a(f"""
        v_add_u32 v{jt[1]}, 256, v{jt[0]}
        v_add_u32 v{jt[2]}, 32, v{jt[0]}
        v_add_u32 v{jt[3]}, 288, v{jt[0]}
        K1_JOBST:
        """)
    a(f"""
    s_and_b32 s{sWR}, s{sW}, 1
    s_bfe_u32 s{sWC}, s{sW}, 0x10001
    v_and_b32 v{vt[0]}, 31, v0
    v_lshrrev_b32 v{vt[1]}, 5, v0
    s_lshl_b32 s{sT0}, s{sWR}, 13
    v_lshlrev_b32 v{vt[2]}, 8, v{vt[0]}
    v_add_u32 v{vt[2]}, s{sT0}, v{vt[2]}
    v_and_b32 v{vt[3]}, 15, v0
    v_xor_b32 v{vt[3]}, v{vt[3]}, v{vt[1]}
    s_lshl_b32 s{sT1}, s{sWR}, 1
    v_xor_b32 v{vt[3]}, s{sT1}, v{vt[3]}
    v_mov_b32 v{onesr}, 0x3f803f80
    v_mov_b32 v{vcs[0]}, 0
    v_mov_b32 v{vcs[1]}, 0
    """)
    for i in range(8):
        a(f"v_xor_b32 v{vt[4]}, {2*i}, v{vt[3]}")
        a(f"v_lshl_add_u32 v{vXa[i]}, v{vt[4]}, 4, v{vt[2]}")
    a(f"""
    v_lshlrev_b32 v{vt[4]}, 9, v{vt[1]}
    v_bfe_u32 v{vt[5]}, v0, 2, 2
    v_lshl_add_u32 v{vt[4]}, v{vt[5]}, 6, v{vt[4]}
    v_bfe_u32 v{vt[5]}, v0, 4, 1
    v_lshl_add_u32 v{vt[4]}, v{vt[5]}, 5, v{vt[4]}
    v_and_b32 v{vt[5]}, 3, v0
    v_lshl_add_u32 v{vt[4]}, v{vt[5]}, 3, v{vt[4]}
    s_lshl_b32 s{sT0}, s{sWC}, 15
    s_add_u32 s{sT0}, s{sT0}, {WBASE}
    s_lshl_b32 s{sT1}, s{sWR}, 10
    s_add_u32 s{sT0}, s{sT0}, s{sT1}
    v_add_u32 v{vWa[0]}, s{sT0}, v{vt[4]}
    v_xor_b32 v{vWa[1]}, 0x400, v{vWa[0]}
    s_lshl_b32 s{sT0}, s{sWR}, 9
    s_add_u32 s{sT0}, s{sT0}, {STBASE}
    v_lshlrev_b32 v{vt[2]}, 4, v{vt[0]}
    v_add_u32 v{vt[2]}, s{sT0}, v{vt[2]}
    s_lshl_b32 s{sT1}, s{sWC}, 7
    s_add_u32 s{sT1}, s{sT1}, {STBASE + 1024}
    v_lshlrev_b32 v{vt[5]}, 4, v{vt[1]}
    v_add_u32 v{vt[5]}, s{sT1}, v{vt[5]}
    s_lshl_b32 s{sT0}, s{sRB}, 16
    s_lshl_b32 s{sT1}, s{sWR}, 15
    s_add_u32 s{sT0}, s{sT0}, s{sT1}
    s_lshl_b32 s{sT1}, s{sCB}, 10
    s_add_u32 s{sT0}, s{sT0}, s{sT1}
    s_lshl_b32 s{sT1}, s{sWC}, 8
    s_add_u32 s{sT0}, s{sT0}, s{sT1}
    v_lshrrev_b32 v{vt[6]}, 3, v{vt[0]}
    v_lshlrev_b32 v{vt[6]}, 13, v{vt[6]}
    v_lshl_add_u32 v{vt[6]}, v{vt[1]}, 9, v{vt[6]}
    v_and_b32 v{vt[7]}, 7, v0
    v_lshl_add_u32 v{vt[6]}, v{vt[7]}, 4, v{vt[6]}
    """)
    a("s_waitcnt lgkmcnt(0)")
    srd(a, SQ, 16, 17, WS_Q, 0x200000)
    def reads(i):
        c, ip = i >> 3, i & 7
        sl = i % NS
        a(f"ds_read_b128 {v(Xf[sl],4)}, v{vXa[ip]} offset:{c*16384}")
        a(f"ds_read_b64_tr_b16 {v(Wf[sl],2)}, v{vWa[i&1]} offset:{(i&~1)*1024}")
        a(f"ds_read_b64_tr_b16 {v(Wf[sl]+2,2)}, v{vWa[i&1]} offset:{(i&~1)*1024+256}")
    a("s_waitcnt lgkmcnt(0)")
    srd(a, SKV, 16, 17, WS_FLG, 4096)
    a(f"""
    v_lshlrev_b32 v{vt[1]}, 2, v0
    v_mov_b32 v{vt[7]}, 0
    s_lshl_b32 s{sT1}, s2, 8
    s_cmp_eq_u32 s{sW}, 0
    s_cselect_b32 s{sT1}, s{sT1}, 0x10000
    buffer_store_dword v{vt[7]}, v{vt[1]}, {s(SKV,4)}, s{sT1} offen
    """)
    def job_finish():
        a.c("finish the re-layout job")
        a(f"""
        s_waitcnt vmcnt(0)
        ds_read_b64_tr_b16 {v(pk,2)}, v{jt[0]}
        ds_read_b64_tr_b16 {v(pk+2,2)}, v{jt[1]}
        ds_read_b64_tr_b16 {v(pk+4,2)}, v{jt[2]}
        ds_read_b64_tr_b16 {v(pk+6,2)}, v{jt[3]}
        s_waitcnt lgkmcnt(0)
        buffer_store_dwordx4 {v(pk,4)}, v{jt[4]}, {s(SWO,4)}, s{sJ0} offen {K1F}
        buffer_store_dwordx4 {v(pk+4,4)}, v{jt[4]}, {s(SWO,4)}, s{sJ0} offen offset:1024 {K1F}
        """)
    nxt = 0
    for i in range(32):
        c = i >> 3
        if i % 8 == 0:
            a("s_barrier")
            stamp(a, 2 + c)
            lim = (c + 1) * 8
        while nxt < min(i + NS, lim):
            reads(nxt); nxt += 1
        a(f"s_waitcnt lgkmcnt({(nxt - 1 - i) * 3})")
        a(f"v_mfma_f32_32x32x16_bf16 {v(acc,16)}, {v(Wf[i % NS],4)}, {v(Xf[i % NS],4)}, {'0' if i == 0 else v(acc,16)}")
        if (i & 1) == 0:
            for j in range(4):
                a(f"v_dot2c_f32_bf16 v{vcs[j&1]}, v{Wf[i % NS]+j}, v{onesr}")
        if i == 3:
            a("s_waitcnt vmcnt(0)")
            job_issue()
        if i == JF:
            job_finish()
    a.c("column sums: [wr][64]")
    a(f"""
    s_nop 0
    v_add_f32 v{vcs[0]}, v{vcs[0]}, v{vcs[1]}
    s_lshl_b32 s{sJ1}, s{sWR}, 8
    v_mov_b32 v{vcs[1]}, v{vcs[0]}
    s_lshl_b32 s{sJb}, s{sWC}, 7
    s_add_u32 s{sJ1}, s{sJ1}, s{sJb}
    v_permlane32_swap_b32 v{vcs[0]}, v{vcs[1]}
    s_add_u32 s{sJ1}, s{sJ1}, {STBASE + 1024}
    v_lshlrev_b32 v{onesr}, 2, v{vt[0]}
    v_add_f32 v{vcs[0]}, v{vcs[0]}, v{vcs[1]}
    v_add_u32 v{onesr}, s{sJ1}, v{onesr}
    ds_write_b32 v{onesr}, v{vcs[0]}
    """)
    a("s_waitcnt lgkmcnt(0)")
    stamp(a, 6)
    a("s_barrier")
    cs2 = Xf[0]
    a(f"ds_read_b64 {v(st,2)}, v{vt[2]}")
    for q in range(4):
        a(f"ds_read_b128 {v(csr+4*q,4)}, v{vt[5]} offset:{32*q}")
        a(f"ds_read_b128 {v(cs2+4*q,4)}, v{vt[5]} offset:{256+32*q}")
    a("s_nop 0\ns_waitcnt lgkmcnt(8)")
    for r in range(8):
        a(f"v_pk_mul_f32 {v(acc+2*r,2)}, {v(acc+2*r,2)}, {v(st,2)} op_sel_hi:[1,0]")
    a("s_waitcnt lgkmcnt(0)")
    for r in range(8):
        a(f"v_pk_add_f32 {v(csr+2*r,2)}, {v(csr+2*r,2)}, {v(cs2+2*r,2)}")
    for r in range(8):
        a(f"v_pk_fma_f32 {v(acc+2*r,2)}, {v(csr+2*r,2)}, {v(st,2)}, {v(acc+2*r,2)} op_sel:[0,1,0] op_sel_hi:[1,1,1] neg_lo:[1,0,0] neg_hi:[1,0,0]")
    for j in range(8):
        a(f"v_cvt_pk_bf16_f32 v{pk+j}, v{acc+2*j}, v{acc+2*j+1}")
    a(f"""
    buffer_store_dwordx4 {v(pk,4)}, v{vt[6]}, {s(SQ,4)}, s{sT0} offen {K1Q}
    buffer_store_dwordx4 {v(pk+4,4)}, v{vt[6]}, {s(SQ,4)}, s{sT0} offen offset:128 {K1Q}
    s_add_u32 s{sW}, s{sW}, 4
    K1_DONE:
    """)
    stamp_dump(a, 0, sW)
    a("K1_END:")
    a("s_endpgm")
    return name, R.cur, K1_LDS
```

```python
from asmlib import *
from common import *
import os

W1L = 0
QL = 98304
EXB = QL
OACC = QL + 8192
LACC = OACC + 16384
OFB = LACC + 1024
MISC = OFB + 1024
XL = MISC + 2048
B1L = EXB + 49152
K2_LDS = B1L + 256
RSTR = 17408
THR2 = (40.0 / 1.02) ** 2
PRIO = os.environ.get("PRIO", "2")
PD = int(os.environ.get("PD", "2"))
EXP = os.environ.get("EXP", "").split(",")
LDF = os.environ.get("LDF", "sc1").replace("_", " ").replace("none", "")
RELOAD = os.environ.get("RELOAD", "0") == "1"
OUTF = os.environ.get("OUTF", "").replace("_", " ")
W2L = os.environ.get("W2L", "mid")
NPOLL = int(os.environ.get("NPOLL", "1"))
QLATE = os.environ.get("QLATE", "0") == "1"
SLOW_V0 = min(16, 2*PD + 10)

def gen_k2(a):
    name = "attn_kernel"
    kernel_header(a, name)
    R = Regs(1, 256)
    vt = [R.alloc(f"t{i}") for i in range(6)]
    vidx = R.alloc("idx")
    vQa = R.alloc("qa")
    vOa = R.alloc("oa"); vLa = R.alloc("la")
    vNr = R.alloc("nr"); vNl = R.alloc("nl"); vNw = R.alloc("nw")
    vOFa = R.alloc("ofa")
    vKo = R.alloc("ko"); vVo = R.alloc("vo"); vQl = R.alloc("ql"); vW1o = R.alloc("w1o")
    vP1r = R.alloc("p1r"); vP2r = R.alloc("p2r"); vPw = R.alloc("pw"); vPv = R.alloc("pv"); vCnt = R.alloc("cnt")
    zero = R.alloc("zero", 4)
    Q = R.alloc("q", 4)
    nrm = R.alloc("nrm", 8, 4)
    Kf = R.alloc("k", 32)
    Vf = R.alloc("v", 64)
    S = [R.alloc(f"s{i}", 16) for i in range(2)]
    O = [R.alloc(f"o{i}", 16) for i in range(2)]
    woA = R.alloc("woa", 16)
    T = R.alloc("T", 16)
    OFr = R.alloc("ofr", 8)
    hacc = R.alloc("hacc", 16)
    Qw = OFr
    vM = [vt[1], vt[2]]
    sW, sRB, sT0, sT1, sT2, sWm, sSo, sHalf = 20, 21, 22, 23, 44, 45, 46, 47
    sMaskLo, sV1, sV2 = 48, 50, 51
    sG, sMm, sT0f, sW1m, sV2x, sRot = 4, 5, 6, 7, 60, 61
    SQ, SKV, SWO, SX, SH, SHN, SP = 24, 28, 32, 36, 40, 52, 56
    a(f"""
    s_cmp_ge_u32 s2, 256
    s_cbranch_scc1 K2_END
    s_setprio 3
    s_load_dwordx2 s[16:17], s[0:1], 96
    s_load_dwordx2 s[8:9], s[0:1], 0
    s_load_dwordx4 s[12:15], s[0:1], 48
    s_load_dwordx2 s[18:19], s[0:1], 72
    s_load_dwordx2 s[10:11], s[0:1], 80
    v_lshrrev_b32 v{vt[0]}, 6, v0
    v_and_b32 v0, 63, v0
    v_readfirstlane_b32 s{sW}, v{vt[0]}
    v_lshlrev_b32 v{vQa}, 4, v0
    s_and_b32 s{sT0}, s2, 7
    s_lshr_b32 s{sT1}, s2, 3
    s_lshl_b32 s{sRB}, s{sT0}, 5
    s_add_u32 s{sRB}, s{sRB}, s{sT1}
    s_lshl_b32 s{sWm}, s{sW}, 13
    v_add_u32 v{vKo}, s{sWm}, v{vQa}
    v_lshrrev_b32 v{vt[3]}, 5, v0
    v_and_b32 v{vt[4]}, 31, v0
    v_lshlrev_b32 v{vt[2]}, 4, v{vt[4]}
    v_lshl_add_u32 v{vt[2]}, v{vt[3]}, 8, v{vt[2]}
    s_mul_i32 s{sT0}, s{sW}, {16*VSTR}
    s_add_u32 s{sT0}, s{sT0}, 0x10000
    v_and_b32 v{vt[1]}, 27, v0
    v_cmp_eq_u32 vcc, 16, v{vt[1]}
    v_mov_b32 v{vt[1]}, 0x40000000
    v_mov_b32 v{vt[5]}, 512
    v_cndmask_b32 v{vt[1]}, v{vt[1]}, v{vt[5]}, vcc
    v_cmp_gt_u32 vcc, 16, v{vt[4]}
    v_lshlrev_b32 v{vt[5]}, 3, v0
    s_nop 0
    v_cndmask_b32 v{vt[1]}, v{vt[1]}, v{vt[2]}, vcc
    v_add_u32 v{vVo}, s{sT0}, v{vt[1]}
    s_lshl_b32 s{sT1}, s{sRB}, 13
    s_lshl_b32 s{sT2}, s{sW}, 10
    s_add_u32 s{sT0}, s{sT1}, s{sT2}
    s_mov_b32 s{sSo}, 0x21000
    s_movk_i32 s{sT2}, 0x1000
    s_movk_i32 s{sV1}, {7*VSTR}
    s_movk_i32 s{sV2}, {14*VSTR}
    s_lshr_b32 s{sHalf}, s{sW}, 2
    """)
    stamp_init(a)
    a("s_waitcnt lgkmcnt(0)")
    srd(a, SQ, 16, 17, WS_Q, 0x200000)
    srd(a, SKV, 16, 17, WS_K, KV_BYTES)
    order = []
    def ldK(j):
        so = "0" if j < 4 else f"s{sT2}"
        order.append(f"K{j}")
        return f"buffer_load_dwordx4 {v(Kf+4*j,4)}, v{vKo}, {s(SKV,4)}, {so} offen offset:{(j&3)*1024}"
    def ldV(i):
        so = ("0", f"s{sV1}", f"s{sV2}")[i // 7]
        order.append(f"V{i}")
        return f"buffer_load_dwordx4 {v(Vf+4*i,4)}, v{vVo}, {s(SKV,4)}, {so} offen offset:{(i%7)*VSTR}"
    def ldW(t, ks, ct, dst):
        order.append(f"W{t}_{ks}_{ct}")
        pre = f"s_mov_b32 s{sSo}, {t*65536 + ks*4096}\n"
        return pre + f"buffer_load_dwordx4 {v(dst+4*ct,4)}, v{vKo}, {s(SWO,4)}, s{sSo} offen offset:{ct*1024}"
    def wait_for(item):
        return f"s_waitcnt vmcnt({len(order) - 1 - order.index(item)})"
    a(f"buffer_load_dwordx4 {v(Q,4)}, v{vQa}, {s(SQ,4)}, s{sT1} offen"); order.append("Q")
    a(ldK(0)); a(ldK(1)); a(ldV(0)); a(ldV(1)); a(ldK(2))
    def ldQW():
        a(f"buffer_load_dwordx4 {v(Qw,4)}, v{vQa}, {s(SQ,4)}, s{sT0} offen"); order.append("QW")
        a(f"buffer_load_dwordx2 {v(nrm,2)}, v{vt[5]}, {s(SKV,4)}, s{sSo} offen"); order.append("KM")
    if not QLATE:
        ldQW()
    for i in range(1, PD):
        a(ldV(2*i)); a(ldV(2*i + 1))
        if i + 2 < 8:
            a(ldK(i + 2))
    if QLATE:
        ldQW()
    a("s_setprio 0")
    pro_order = list(order)
    srd(a, SWO, 16, 17, WS_WO, 524288)
    for i in range(4):
        a(f"v_mov_b32 v{zero+i}, 0")
    a(f"v_mov_b32 v{vidx}, 0xdddddddd")
    a("s_nop 0")
    for o in O:
        a(f"v_mfma_f32_32x32x16_bf16 {v(o,16)}, {v(zero,4)}, {v(zero,4)}, 0")
    a.c("LDS addresses")
    a(f"""
    s_lshl_b32 s{sT0}, s{sW}, 2
    s_add_u32 s{sT1}, s{sT0}, {MISC + 32}
    v_mov_b32 v{vPw}, s{sT1}
    ds_write2_b32 v{vPw}, v{zero}, v{zero} offset1:8
    s_add_u32 s{sT0}, s{sT0}, {LACC}
    v_lshlrev_b32 v{vLa}, 5, v{vt[4]}
    v_add_u32 v{vLa}, s{sT0}, v{vLa}
    s_lshl_b32 s{sT0}, s{sW}, 11
    s_add_u32 s{sT0}, s{sT0}, {OACC}
    v_add_u32 v{vOa}, s{sT0}, v{vQa}
    s_and_b32 s{sT1}, s{sW}, 3
    v_and_b32 v{vt[2]}, 7, v0
    v_lshlrev_b32 v{vP1r}, 2, v{vt[2]}
    v_add_u32 v{vP1r}, {MISC + 32}, v{vP1r}
    v_and_b32 v{vt[1]}, 3, v0
    v_lshlrev_b32 v{vP2r}, 2, v{vt[1]}
    v_add_u32 v{vP2r}, {MISC + 64}, v{vP2r}
    v_bfe_u32 v{vt[1]}, v0, 4, 1
    v_bfe_u32 v{vt[4]}, v0, 3, 1
    v_lshlrev_b32 v{vNr}, 4, v{vt[2]}
    v_lshl_add_u32 v{vNw}, v{vt[3]}, 7, v{vNr}
    v_lshl_add_u32 v{vNr}, v{vt[3]}, 10, v{vNr}
    v_lshl_add_u32 v{vNr}, v{vt[1]}, 9, v{vNr}
    v_lshl_add_u32 v{vNr}, v{vt[4]}, 3, v{vNr}
    s_lshl_b32 s{sT0}, s{sT1}, 7
    s_add_u32 s{sT0}, s{sT0}, {OACC}
    v_add_u32 v{vNr}, s{sT0}, v{vNr}
    s_lshl_b32 s{sT0}, s{sT1}, 8
    s_add_u32 s{sSo}, s{sT0}, {LACC}
    v_lshlrev_b32 v{vNl}, 5, v{vt[2]}
    v_add_u32 v{vNl}, s{sSo}, v{vNl}
    v_bfe_u32 v{vt[3]}, v0, 3, 2
    v_lshl_add_u32 v{vNw}, v{vt[3]}, 2, v{vNw}
    s_add_u32 s{sSo}, s{sT0}, {OFB}
    v_add_u32 v{vNw}, s{sSo}, v{vNw}
    v_lshrrev_b32 v{vt[3]}, 4, v0
    v_lshlrev_b32 v{vt[2]}, 4, v{vt[2]}
    v_lshl_add_u32 v{vOFa}, v{vt[3]}, 7, v{vt[2]}
    v_add_u32 v{vOFa}, {OFB}, v{vOFa}
    """)
    srd(a, SX, 8, 9, 0, 0x200000)
    srd(a, SHN, 16, 17, WS_HN, 0x200000)
    srd(a, SP, 12, 13, 0, 1409024)
    srd(a, SH, 16, 17, WS_W2, W2F_BYTES)
    a(f"""
    s_lshr_b32 s{sT0}, s2, 3
    s_mul_i32 s{sT1}, s{sT0}, 44032
    s_add_u32 s{sT1}, s{sT1}, s{sWm}
    v_lshlrev_b32 v{vt[5]}, 7, v0
    s_lshl_b32 s{sMaskLo}, s{sT0}, 14
    s_and_b32 s{sT0}, s{sWm}, 0x2000
    s_add_u32 s{sMaskLo}, s{sMaskLo}, s{sT0}
    s_mov_b32 s{sMaskLo+1}, s{sT1}
    s_lshr_b32 s{sT0}, s2, 3
    s_mul_i32 s{sV2x}, s{sT0}, 45056
    s_add_u32 s{sV2x}, s{sV2x}, s{sWm}
    s_lshr_b32 s{sG}, s{sRB}, 4
    s_and_b32 s{sMm}, s{sRB}, 15
    s_mul_i32 s{sT0f}, s{sMm}, 3
    s_min_u32 s{sT0f}, s{sT0f}, 40
    v_add_u32 v{vQl}, {QL}, v{vQa}
    v_lshrrev_b32 v{vt[3]}, 2, v0
    v_mul_u32_u24 v{vt[3]}, 2752, v{vt[3]}
    v_and_b32 v{vt[4]}, 3, v0
    v_lshl_add_u32 v{vt[3]}, v{vt[4]}, 4, v{vt[3]}
    s_lshl_b32 s{sT0}, s{sT0f}, 6
    s_mul_i32 s{sT1}, s{sHalf}, {16*44032}
    s_add_u32 s{sT0}, s{sT0}, s{sT1}
    v_add_u32 v{vW1o}, s{sT0}, v{vt[3]}
    s_lshl_b32 s{sRot}, s{sW}, 2
    s_add_u32 s{sRot}, s{sRot}, s{sMm}
    s_mul_i32 s{sW1m}, s{sW}, {4*3072}
    """)
    stamp(a, 1)
    def bound_check():
        n = nrm
        P = []
        P.append(lambda: f"s_lshl_b32 s{sT0}, s{sW}, 10\nv_add_u32 v{vt[0]}, s{sT0}, v{vQl}\nv_mov_b32 v{n+2}, 0\n{wait_for('KM')}\nds_write_b128 v{vt[0]}, {v(Qw,4)}")
        P.append("\n".join(f"v_dot2c_f32_bf16 v{n+2}, v{Qw+i}, v{Qw+i}" for i in range(4)) + f"\nv_max_f32 v{n}, v{n}, v{n+1}\ns_nop 0")
        P.append(f"v_max_f32_dpp v{n}, v{n}, v{n} row_ror:8 row_mask:0xf bank_mask:0xf\nv_mov_b32 v{n+3}, v{n+2}")
        P.append(f"v_max_f32_dpp v{n}, v{n}, v{n} row_ror:4 row_mask:0xf bank_mask:0xf\nv_permlane32_swap_b32 v{n+2}, v{n+3}")
        P.append(f"v_max_f32_dpp v{n}, v{n}, v{n} row_ror:2 row_mask:0xf bank_mask:0xf\nv_add_f32 v{n+2}, v{n+2}, v{n+3}")
        P.append(f"v_max_f32_dpp v{n}, v{n}, v{n} row_ror:1 row_mask:0xf bank_mask:0xf\nv_mov_b32 v{n+1}, v{n}\ns_nop 0")
        P.append(f"v_permlane32_swap_b32 v{n}, v{n+1}\nv_max_f32 v{n}, v{n}, v{n+1}\nv_mov_b32 v{n+1}, v{n}\ns_nop 0")
        P.append(f"v_permlane16_swap_b32 v{n}, v{n+1}\nv_max_f32 v{n}, v{n}, v{n+1}\nv_mul_f32 v{n}, v{n}, v{n+2}\nv_mov_b32 v{n+1}, {hex(f32bits(THR2))}\n"
                 f"v_cmp_nle_f32 vcc, v{n}, v{n+1}\ns_lshl_b32 s{sT0}, s{sW}, 2\ns_add_u32 s{sT0}, s{sT0}, {MISC}")
        P.append(f"s_cmp_lg_u64 vcc, 0\ns_cselect_b32 s{sT1}, 1, 0\nv_mov_b32 v{vt[0]}, s{sT0}\nv_mov_b32 v{vt[1]}, s{sT1}\nds_write_b32 v{vt[0]}, v{vt[1]}\nv_mov_b32 v{vt[0]}, {MISC}")
        return P
    flag_reads = f"ds_read_b128 {v(nrm,4)}, v{vt[0]}\nds_read_b128 {v(nrm+4,4)}, v{vt[0]} offset:16"
    flag_test = (f"s_waitcnt lgkmcnt(0)\nv_or3_b32 v{nrm}, v{nrm}, v{nrm+1}, v{nrm+2}\nv_or3_b32 v{nrm+3}, v{nrm+3}, v{nrm+4}, v{nrm+5}\n"
                 f"v_or3_b32 v{nrm}, v{nrm}, v{nrm+6}, v{nrm+7}\nv_or_b32 v{nrm}, v{nrm}, v{nrm+3}\ns_nop 0\n"
                 f"v_readfirstlane_b32 s{sT0}, v{nrm}\ns_cmp_lg_u32 s{sT0}, 0\ns_cbranch_scc1 K2_SLOW")

    def smf(tau):
        t, j = divmod(tau, 8)
        return f"v_mfma_f32_32x32x16_bf16 {v(S[tau&1],16)}, {v(Kf+4*j,4)}, {v(Q,4)}, 0"
    def pv(tau, h):
        t, j = divmod(tau, 8)
        return f"v_smfmac_f32_32x32x32_bf16 {v(O[t&1],16)}, {v(Vf+8*j+4*h,4)}, {v(S[tau&1]+8*h,8)}, v{vidx}"
    def drain(t):
        o = O[t & 1]
        return [f"ds_write_b128 v{vOa}, {v(o,4)}", f"ds_write_b128 v{vOa}, {v(o+4,4)} offset:1024", f"ds_write_b32 v{vLa}, v{o+8}"]
    retries = []
    def check(areg, off, val, lab):
        retries.append(f"K2_R{lab}:\nds_read_b32 v{vPv}, v{areg} offset:{off}\ns_waitcnt lgkmcnt(0)\nv_cmp_gt_u32 vcc, {val}, v{vPv}\n"
                       f"s_cbranch_vccnz K2_R{lab}\ns_branch K2_C{lab}")
        return f"s_waitcnt lgkmcnt(0)\nv_cmp_gt_u32 vcc, {val}, v{vPv}\ns_cbranch_vccnz K2_R{lab}\nK2_C{lab}:\n"
    def norm_reads():
        L = f"ds_read_b128 {v(nrm,4)}, v{vNl}\nds_read_b128 {v(nrm+4,4)}, v{vNl} offset:16\n"
        for w in range(8):
            L += f"ds_read_b64 {v(T+2*w,2)}, v{vNr} offset:{w*2048}\n"
        return L
    def norm_comp():
        L = f"s_waitcnt lgkmcnt(0)\n"
        L += f"v_pk_add_f32 {v(nrm,2)}, {v(nrm,2)}, {v(nrm+2,2)}\n"
        L += f"v_pk_add_f32 {v(nrm+4,2)}, {v(nrm+4,2)}, {v(nrm+6,2)}\n"
        for w in range(4):
            L += f"v_pk_add_f32 {v(T+4*w,2)}, {v(T+4*w,2)}, {v(T+4*w+2,2)}\n"
        L += f"v_pk_add_f32 {v(nrm,2)}, {v(nrm,2)}, {v(nrm+4,2)}\n"
        L += f"v_pk_add_f32 {v(T,2)}, {v(T,2)}, {v(T+4,2)}\n"
        L += f"v_add_f32 v{nrm}, v{nrm}, v{nrm+1}\n"
        L += f"v_pk_add_f32 {v(T+8,2)}, {v(T+8,2)}, {v(T+12,2)}\n"
        L += f"v_rcp_f32 v{nrm}, v{nrm}\n"
        L += f"v_pk_add_f32 {v(T,2)}, {v(T,2)}, {v(T+8,2)}\n"
        L += f"v_pk_mul_f32 {v(T,2)}, {v(T,2)}, {v(nrm,2)} op_sel_hi:[1,0]\n"
        L += f"v_cvt_pk_bf16_f32 v{T}, v{T}, v{T+1}\n"
        L += f"ds_write_b32 v{vNw}, v{T}\n"
        return L
    def only_half(t, lab, body):
        return f"s_cmp_lg_u32 s{sHalf}, {t&1}\ns_cbranch_scc1 K2_N{lab}\n{body}K2_N{lab}:\n"
    def of_reads():
        return "\n".join(f"ds_read_b128 {v(OFr+4*ks,4)}, v{vOFa} offset:{ks*512}" for ks in range(2))
    def wo_mfma(ks, ct, src, first=False):
        return f"v_mfma_f32_16x16x32_bf16 {v(hacc+4*ct,4)}, {v(src+4*ct,4)}, {v(OFr+4*ks,4)}, {'0' if first else v(hacc+4*ct,4)}"
    W7 = [Kf, Kf + 16]
    W2R = Vf + 8
    assert S[0] == Vf + 64 and S[1] == S[0] + 16 and Q == zero + 4 and nrm == Q + 4
    X = Vf

    sCB2, sW2o, sB3 = sV2, sV2x, 48
    def ldW2(i):
        if "NOW2A" in EXP and i < 8: return "s_nop 7\ns_nop 1\n"
        if "NOW2B" in EXP and i >= 8: return ""
        L = (f"s_add_u32 s{sSo}, s{sCB2}, {i}\ns_sub_u32 s{sT1}, s{sSo}, 11\ns_cselect_b32 s{sSo}, s{sSo}, s{sT1}\n"
             f"s_lshl_b32 s{sSo}, s{sSo}, 11\ns_add_u32 s{sSo}, s{sSo}, s{sW2o}\n")
        for ct in range(2):
            L += f"buffer_load_dwordx4 {v(W2R+8*i+4*ct,4)}, v{vQa}, {s(SH,4)}, s{sSo} offen offset:{ct*1024}\n"
        return L

    def mainloop(slow):
        tag = "S" if slow else "F"
        order[:] = [] if slow else list(pro_order)
        if slow:
            a(f"ds_read_b32 v{vM[0]}, v{vt[0]}")
            a("s_waitcnt lgkmcnt(0)")
        else:
            a(wait_for("K0"))
            stamp(a, 2)
        a(smf(0))
        a("s_nop 7")
        a("s_nop 3")
        for tau in range(64):
            t, j = divmod(tau, 8)
            slots = [[] for _ in range(17)]
            p1 = 11
            if PRIO == "1" and (j & 1) == 0:
                slots[0].append(f"s_setprio {3 - j // 2}")
            if PRIO == "2":
                slots[0].append(f"s_setprio {3 - (j & 3)}")
            if PRIO == "3":
                slots[0].append(f"s_setprio {3 - 2*(j & 1)}")
                slots[8].append(f"s_setprio {2 - 2*(j & 1)}")
            if PRIO == "4":
                slots[0].append(f"s_setprio {3 - ((j + 2) & 3)}")
            if PRIO == "5":
                slots[0].append(f"s_setprio {3 - ((j + 1) & 3)}")
            if PRIO == "6":
                slots[0].append(f"s_setprio {3 - ((j + 3) & 3)}")
            if PRIO == "7":
                for q in range(4):
                    slots[4*q].append(f"s_setprio {3 - q}")
            if tau > 0:
                slots[3].append(pv(tau - 1, 1))
            if t == 0 and not slow:
                if j + PD < 8:
                    slots[0].append(lambda j=j: ldV(2*(j + PD)))
                    slots[4].append(lambda j=j: ldV(2*(j + PD) + 1))
                if j + PD + 2 < 8:
                    slots[8].append(lambda j=j: ldK(j + PD + 2))
                if j == 2:
                    for i, x in enumerate(bound_check()):
                        slots[3 + i].append(x)
                if j == 4:
                    slots[0] += ["s_waitcnt lgkmcnt(0)", "s_barrier", flag_reads]
                    slots[5].append(flag_test)
                if j == 6:
                    slots[13].append(f"s_cmp_lt_u32 s{sW}, 6\ns_cbranch_scc1 K2_PW\nbuffer_load_dword v{vt[3]}, v{vt[5]}, {s(SWO,4)}, s{sMaskLo} offen\nK2_PW:")
            nx = tau + 1
            if nx < 64:
                if t == 0 and nx < 8 and not slow:
                    slots[6].append(lambda nx=nx: wait_for(f"K{nx}"))
                if nx % 8 == 0:
                    slots[6].append("s_waitcnt lgkmcnt(0)")
                slots[6].append(smf(nx))
                if nx % 8 == 7 and t < 7:
                    slots[10].append(f"ds_read_b128 {v(Q,4)}, v{vQl} offset:{(t+1)*1024}")
                    if slow:
                        slots[10].append(f"ds_read_b32 v{vM[(t+1)&1]}, v{vt[0]} offset:{(t+1)*128}")
            if 10 <= tau < 22 and tau % 2 == 0:
                slots[13].append(f"s_cmp_lg_u32 s{sW}, {(tau-10)//2}\ns_cbranch_scc1 K2_PA{tag}{tau}\nbuffer_load_dword v{vt[3]}, v{vt[5]}, {s(SP,4)}, s{sMaskLo+1} offen\nK2_PA{tag}{tau}:")
            if 22 <= tau < 34 and tau % 2 == 0:
                slots[13].append(f"s_cmp_lg_u32 s{sW}, {(tau-22)//2}\ns_cbranch_scc1 K2_PB{tag}{tau}\nbuffer_load_dword v{vt[4]}, v{vt[5]}, {s(SH,4)}, s{sV2x} offen\nK2_PB{tag}{tau}:")
            if 36 <= tau < 60 and tau % 2 == 0:
                n = (tau - 36) // 2
                kb, ft = divmod(n, 3)
                slots[4].append(lambda kb=kb, ft=ft: (order.append("W1"), f"s_add_u32 s{sT0}, s{sRot}, {kb}\ns_and_b32 s{sT0}, s{sT0}, 15\ns_mul_i32 s{sT0}, s{sT0}, 44032\ns_add_u32 m0, s{sW1m}, {kb*3072 + ft*1024 - ft*64}\ns_nop 0\n"
                    f"buffer_load_dwordx4 v{vW1o}, {s(SP,4)}, s{sT0} offen offset:{ft*64} lds")[1])
            if t >= 1:
                u = t - 1
                if j == 1:
                    slots[0].append(f"v_mov_b32 v{vCnt}, {t}")
                    for i, x in enumerate(drain(u)):
                        slots[1 + 2*i].append(x)
                    slots[7].append(f"ds_write_b32 v{vPw}, v{vCnt}")
                if j == 2:
                    slots[13].append("s_waitcnt lgkmcnt(0)")
                if j == 3 and t == 2 and DIAG:
                    slots[0].append(stamp_str(12))
                if j == 3:
                    slots[0].append(f"ds_read_b32 v{vPv}, v{vP1r}")
                    slots[7].append(only_half(u, f"A{tag}{t}", check(vP1r, 0, t, f"A{tag}{t}") + norm_reads()))
                    slots[9] += [f"v_mfma_f32_32x32x16_bf16 {v(O[u&1],16)}, {v(zero,4)}, {v(zero,4)}, 0"]
                    p1 = 12
                if j == 4:
                    slots[3].append(only_half(u, f"B{tag}{t}", norm_comp() + f"ds_write_b32 v{vPw}, v{vCnt} offset:32\n"))
                if 1 <= j <= 4:
                    slots[13].append(lambda u=u, ct=j-1: ldW(u, 0, ct, woA))
                if 4 <= j <= 7:
                    slots[8 if j != 6 else 1].append(lambda u=u, ct=j-4: ldW(u, 1, ct, T))
                if j == 6:
                    slots[1].append(f"ds_read_b32 v{vPv}, v{vP2r} offset:{16*(u&1)}")
                    slots[8].append(check(vP2r, 16*(u&1), t, f"D{tag}{t}") + of_reads())
                    slots[15] += ["s_waitcnt lgkmcnt(0)", lambda u=u: wait_for(f"W{u}_0_1"), wo_mfma(0, 0, woA, u == 0)]
                if j == 7:
                    slots[9].append(wo_mfma(0, 1, woA, u == 0)); slots[15] += [lambda u=u: wait_for(f"W{u}_0_3"), wo_mfma(0, 2, woA, u == 0)]
            if t >= 2:
                u = t - 2
                if j == 0:
                    slots[9].append(wo_mfma(0, 3, woA, u == 0))
                    slots[15] += [lambda u=u: wait_for(f"W{u}_1_1"), wo_mfma(1, 0, T)]
                if j == 1:
                    slots[9].append(wo_mfma(1, 1, T)); slots[15] += [lambda u=u: wait_for(f"W{u}_1_2"), wo_mfma(1, 2, T)]
                if j == 2:
                    slots[9] += [lambda u=u: wait_for(f"W{u}_1_3"), wo_mfma(1, 3, T)]
            if tau == 11:
                slots[4].append(f"s_cmp_lg_u32 s{sW}, 7\ns_cbranch_scc1 K2_B1{tag}\ns_add_u32 s{SQ}, s14, 0\ns_addc_u32 s{SQ+1}, s15, 0\ns_movk_i32 s{SQ+2}, 2752\n"
                    f"s_lshl_b32 s{sT0}, s{sT0f}, 6\nv_lshlrev_b32 v{vt[3]}, 2, v0\ns_mov_b32 m0, {B1L}\ns_nop 0\nbuffer_load_dword v{vt[3]}, {s(SQ,4)}, s{sT0} offen lds\nK2_B1{tag}:")
            if tau == 9:
                slots[4].append(lambda: (order.append("X"), f"s_lshl_b32 s{sT0}, s{sRB}, 13\ns_lshl_b32 s{sT1}, s{sW}, 10\ns_add_u32 s{sT0}, s{sT0}, s{sT1}\n"
                    f"s_mul_i32 s{sT1}, s{sW}, 1040\ns_add_u32 m0, s{sT1}, {XL}\ns_nop 0\nbuffer_load_dwordx4 v{vQa}, {s(SX,4)}, s{sT0} offen lds")[1])
            if tau == 58:
                slots[1].append(f"s_and_b32 s{sCB2}, s{sMm}, 7\ns_lshl_b32 s{sW2o}, s{sCB2}, 3\ns_add_u32 s{sW2o}, s{sW2o}, s{sW}\ns_mul_i32 s{sW2o}, s{sW2o}, {11*2048}")
            if 59 <= tau <= 62:
                slots[4].append(lambda ct=tau-59: ldW(7, 0, ct, W7[0]))
            if 60 <= tau <= 63:
                slots[16].append(lambda ct=tau-60: ldW(7, 1, ct, W7[1]))
            if t == 0 and not slow:
                slots[p1].append(lambda j=j: wait_for(f"V{2*j+1}"))
            slots[p1].append(pv(tau, 0))
            if not slow and sum(len(x) for x in slots[7:]) < 2:
                slots[14].append("s_nop 0")
            for i in range(17):
                for x in slots[i]:
                    x = x() if callable(x) else x
                    if "NOWL" in EXP and f"{s(SWO,4)}" in x: continue
                    if "NOPF" in EXP and ("K2_PA" in x or "K2_PB" in x): continue
                    if "NOW1" in EXP and " lds" in x: continue
                    if "NOW2" in EXP and f"{s(SH,4)}" in x: continue
                    if "NODRAIN" in EXP and "ds_write" in x: continue
                    if "NOZERO" in EXP and f"{v(zero,4)}" in x: continue
                    if "NOWO" in EXP and "16x16x32" in x: continue
                    if "NONORM" in EXP and "K2_N" in x: continue
                    if "NOCHK" in EXP and "K2_R" in x and "K2_N" not in x: x = of_reads()
                    a(x)
                if i < 16:
                    r = S[tau & 1] + i
                    if slow:
                        a(f"v_sub_f32 v{r}, v{r}, v{vM[t&1]}")
                    a(f"v_exp_f32 v{r}, v{r}")
        a("s_nop 1")
        a(pv(63, 1))
    mainloop(False)
    a("K2_TAIL:")
    stamp(a, 3)
    a("s_setprio 0")
    nvm = len(order) - 1 - order.index('W6_1_3')
    a(ldW2(0) + ldW2(1))
    a(wo_mfma(0, 3, woA))
    for x in drain(7):
        a(x)
    a(f"s_waitcnt vmcnt({nvm + 4})")
    for ct in range(4):
        a(wo_mfma(1, ct, T))
    a(f"""
    v_and_b32 v{vt[0]}, 7, v0
    v_lshrrev_b32 v{vt[1]}, 4, v0
    v_bfe_u32 v{vt[3]}, v0, 3, 1
    v_lshlrev_b32 v{vVo}, 10, v{vt[0]}
    v_lshl_add_u32 v{vVo}, v{vt[3]}, 6, v{vVo}
    s_lshl_b32 s{sV1}, s{sRB}, 13
    s_lshl_b32 s{sT1}, s{sW}, 7
    s_add_u32 s{sV1}, s{sV1}, s{sT1}
    s_add_u32 s{sT1}, s{sT1}, {XL}
    v_lshl_add_u32 v{vt[2]}, v{vt[0]}, 4, v{vVo}
    v_lshl_add_u32 v{vt[2]}, v{vt[1]}, 3, v{vt[2]}
    v_add_u32 v{vt[2]}, s{sT1}, v{vt[2]}
    v_bfe_u32 v{vt[1]}, v0, 4, 1
    v_lshl_add_u32 v{vVo}, v{vt[1]}, 5, v{vVo}
    v_lshrrev_b32 v{vt[4]}, 5, v0
    v_lshl_add_u32 v{vVo}, v{vt[4]}, 4, v{vVo}
    s_waitcnt lgkmcnt(0)
    s_barrier
    """)
    for c in range(2):
        a(f"ds_read_b64 {v(X+2*c,2)}, v{vt[2]} offset:{32*c}")
    a(only_half(7, "T", norm_reads() + norm_comp()))
    a(ldW2(2) + ldW2(3))
    H = O[0]; XU = O[0] + 8; PK = O[1]; ST = woA; U = T
    srd(a, SQ, 16, 17, WS_H, 0x200000)
    a(f"""
    s_mov_b32 s{sB3}, 0xff00ff00
    s_mov_b32 s{sB3+1}, 0xff00ff00
    s_waitcnt lgkmcnt(0)
    """)
    for i in range(4):
        a(f"v_lshlrev_b32 v{XU+2*i}, 16, v{X+i}")
        a(f"v_and_b32 v{XU+2*i+1}, 0xffff0000, v{X+i}")
    a("s_barrier")
    a(of_reads())
    a(f"s_waitcnt vmcnt(8) lgkmcnt(1)")
    for ct in range(4):
        a(wo_mfma(0, ct, W7[0]))
    a("s_waitcnt lgkmcnt(0)")
    for ct in (0, 2, 1, 3):
        a(wo_mfma(1, ct, W7[1]))
    stamp(a, 4)
    a(ldW2(4) + ldW2(5))
    a.c("h = x + attn ; lanes with bit 3 set take column tiles 2,3")
    for i in range(8):
        a(f"v_cndmask_b32 v{H+i}, v{hacc+i}, v{hacc+8+i}, {s(sB3,2)}")
    for i in range(4):
        a(f"v_pk_add_f32 {v(H+2*i,2)}, {v(H+2*i,2)}, {v(XU+2*i,2)}")
    def xreduce(r, tmp):
        a(f"""
        v_mov_b32 v{tmp}, v{r}
        s_nop 1
        v_permlane32_swap_b32 v{r}, v{tmp}
        v_add_f32 v{r}, v{r}, v{tmp}
        v_mov_b32 v{tmp}, v{r}
        s_nop 1
        v_permlane16_swap_b32 v{r}, v{tmp}
        v_add_f32 v{r}, v{r}, v{tmp}
        s_nop 1
        v_add_f32_dpp v{r}, v{r}, v{r} row_ror:8 row_mask:0xf bank_mask:0xf
        """)
    a(f"""
    v_pk_add_f32 {v(U,2)}, {v(H,2)}, {v(H+2,2)}
    v_pk_add_f32 {v(U+2,2)}, {v(H+4,2)}, {v(H+6,2)}
    v_pk_add_f32 {v(U,2)}, {v(U,2)}, {v(U+2,2)}
    v_add_f32 v{U}, v{U}, v{U+1}
    """)
    xreduce(U, U+2)
    a(f"v_mul_f32 v{U}, {hex(f32bits(1.0/64))}, v{U}")
    for i in range(4):
        a(f"v_pk_add_f32 {v(XU+2*i,2)}, {v(H+2*i,2)}, {v(U,2)} op_sel_hi:[1,0] neg_lo:[0,1] neg_hi:[0,1]")
    a(f"""
    v_pk_mul_f32 {v(U+2,2)}, {v(XU,2)}, {v(XU,2)}
    v_pk_mul_f32 {v(U+4,2)}, {v(XU+2,2)}, {v(XU+2,2)}
    v_pk_fma_f32 {v(U+2,2)}, {v(XU+4,2)}, {v(XU+4,2)}, {v(U+2,2)}
    v_pk_fma_f32 {v(U+4,2)}, {v(XU+6,2)}, {v(XU+6,2)}, {v(U+4,2)}
    v_pk_add_f32 {v(U+2,2)}, {v(U+2,2)}, {v(U+4,2)}
    v_add_f32 v{U+1}, v{U+2}, v{U+3}
    """)
    a(ldW2(6) + ldW2(7))
    xreduce(U+1, U+2)
    a(f"""
    s_lshl_b32 s{sT1}, s{sW}, 3
    s_add_u32 s{sT1}, s{sT1}, {MISC + 128}
    v_lshlrev_b32 v{vt[5]}, 6, v{vt[0]}
    v_add_u32 v{vt[4]}, s{sT1}, v{vt[5]}
    v_add_u32 v{vt[5]}, {MISC + 128}, v{vt[5]}
    ds_write_b64 v{vt[4]}, {v(U,2)}
    """)
    for i in range(4):
        a(f"v_cvt_pk_bf16_f32 v{PK+i}, v{H+2*i}, v{H+2*i+1}")
    a("s_waitcnt lgkmcnt(0)")
    a("s_barrier")
    for i in range(4):
        a(f"ds_read_b128 {v(ST+4*i,4)}, v{vt[5]} offset:{16*i}")
    a(f"""
    v_permlane16_swap_b32 v{PK}, v{PK+2}
    v_permlane16_swap_b32 v{PK+1}, v{PK+3}
    buffer_store_dwordx4 {v(PK,4)}, v{vVo}, {s(SQ,4)}, s{sV1} offen sc1
    """)
    a(f"""
    s_lshr_b32 s{sT0}, s{sRB}, 2
    s_lshl_b32 s{sT0}, s{sT0}, 15
    s_lshl_b32 s{sT1}, s{sW}, 12
    s_add_u32 s{sT0}, s{sT0}, s{sT1}
    s_and_b32 s{sT1}, s{sRB}, 3
    s_lshl_b32 s{sT1}, s{sT1}, 7
    s_add_u32 s{sT0}, s{sT0}, s{sT1}
    v_lshlrev_b32 v{vt[4]}, 4, v{vt[0]}
    v_lshl_add_u32 v{vt[4]}, v{vt[3]}, 11, v{vt[4]}
    v_lshrrev_b32 v{vt[0]}, 5, v0
    v_lshl_add_u32 v{vt[4]}, v{vt[0]}, 9, v{vt[4]}
    v_lshl_add_u32 v{vt[4]}, v{vt[1]}, 10, v{vt[4]}
    s_waitcnt lgkmcnt(0)
    v_pk_add_f32 {v(U+2,2)}, {v(ST,2)}, {v(ST+2,2)}
    v_pk_add_f32 {v(U+4,2)}, {v(ST+4,2)}, {v(ST+6,2)}
    v_pk_add_f32 {v(U+6,2)}, {v(ST+8,2)}, {v(ST+10,2)}
    v_pk_add_f32 {v(U+8,2)}, {v(ST+12,2)}, {v(ST+14,2)}
    v_pk_add_f32 {v(U+2,2)}, {v(U+2,2)}, {v(U+4,2)}
    v_pk_add_f32 {v(U+6,2)}, {v(U+6,2)}, {v(U+8,2)}
    v_pk_add_f32 {v(U+2,2)}, {v(U+2,2)}, {v(U+6,2)}
    v_mul_f32 v{U+2}, 0x3e000000, v{U+2}
    """)
    for i in range(8):
        a(f"v_sub_f32 v{ST+2*i}, v{ST+2*i}, v{U+2}")
    a(f"v_mul_f32 v{U+4}, v{ST}, v{ST}")
    a(f"v_mul_f32 v{U+5}, v{ST+2}, v{ST+2}")
    for i in range(2, 8):
        a(f"v_fmac_f32 v{U+4+(i&1)}, v{ST+2*i}, v{ST+2*i}")
    a(f"""
    v_add_f32 v{U+4}, v{U+4}, v{U+5}
    v_fmac_f32 v{U+3}, 0x42800000, v{U+4}
    v_mov_b32 v{U+6}, {hex(f32bits(1e-5))}
    v_fmac_f32 v{U+6}, {hex(f32bits(1.0/512))}, v{U+3}
    v_rsq_f32 v{U+6}, v{U+6}
    """)
    for i in range(4):
        a(f"v_pk_add_f32 {v(H+2*i,2)}, {v(H+2*i,2)}, {v(U+2,2)} op_sel_hi:[1,0] neg_lo:[0,1] neg_hi:[0,1]")
    for i in range(4):
        a(f"v_pk_mul_f32 {v(H+2*i,2)}, {v(H+2*i,2)}, {v(U+6,2)} op_sel_hi:[1,0]")
    for i in range(4):
        a(f"v_cvt_pk_bf16_f32 v{PK+4+i}, v{H+2*i}, v{H+2*i+1}")
    a(f"""
    s_nop 1
    v_permlane16_swap_b32 v{PK+4}, v{PK+6}
    v_permlane16_swap_b32 v{PK+5}, v{PK+7}
    buffer_store_dwordx4 {v(PK+4,4)}, v{vt[4]}, {s(SHN,4)}, s{sT0} offen sc1
    """)
    SF, SG = SKV, SWO
    srd(a, SF, 16, 17, WS_FLG, 4096)
    srd(a, SG, 16, 17, WS_G, G_BYTES)
    def signal(off, young):
        a(f"""
        s_waitcnt vmcnt({young})
        s_barrier
        {stamp_str(1 if off == 0 else 2)}
        s_cmp_lg_u32 s{sW}, 0
        s_cbranch_scc1 K2_NOSIG{off}
        s_lshl_b32 s{sT0}, s{sG}, 8
        s_lshl_b32 s{sT1}, s{sMm}, 2
        s_add_u32 s{sT1}, s{sT1}, s{sT0}
        v_mov_b32 v{vt[0]}, 0
        v_mov_b32 v{vt[1]}, 1
        s_mov_b64 exec, 1
        buffer_store_dword v{vt[1]}, v{vt[0]}, {s(SF,4)}, s{sT1} offen offset:{off} sc1
        s_mov_b64 exec, -1
        K2_NOSIG{off}:
        """)
    def poll_start(off):
        a(f"""
        s_cmp_lg_u32 s{sW}, 0
        s_cbranch_scc1 K2_NOPS{off}
        s_lshl_b32 s{sRot}, s{sG}, 8
        v_and_b32 v{vt[0]}, 15, v0
        v_lshlrev_b32 v{vt[0]}, 2, v{vt[0]}
        buffer_load_dword v{vt[1]}, v{vt[0]}, {s(SF,4)}, s{sRot} offen offset:{off} sc1
        K2_NOPS{off}:
        """)
    def poll(off, mask):
        a(f"""
        s_cmp_lg_u32 s{sW}, 0
        s_cbranch_scc1 K2_NOPOLL{off}
        s_lshl_b32 s{sT0}, s{sG}, 8
        s_mov_b32 s{sT2}, 0x200000
        """)
        regs = [vt[1], vt[4], vt[5], vPv][:NPOLL]
        for r in regs[1:]:
            a(f"buffer_load_dword v{r}, v{vt[0]}, {s(SF,4)}, s{sT0} offen offset:{off} sc1")
        a(f"""
        K2_POLL{off}:
        s_sub_u32 s{sT2}, s{sT2}, 1
        s_cbranch_scc1 K2_PDONE{off}
        """)
        for r in regs:
            a(f"""
            s_waitcnt vmcnt({NPOLL-1})
            v_cmp_ne_u32 vcc, 0, v{r}
            buffer_load_dword v{r}, v{vt[0]}, {s(SF,4)}, s{sT0} offen offset:{off} sc1
            s_and_b32 s{sT1}, vcc_lo, {hex(mask)}
            s_cmp_eq_u32 s{sT1}, {hex(mask)}
            s_cbranch_scc1 K2_PDONE{off}
            """)
        a(f"""
        s_branch K2_POLL{off}
        K2_PDONE{off}:
        K2_NOPOLL{off}:
        s_barrier
        """)
    stamp(a, 5)
    if RELOAD:
        a.c("touch the lines just written so that they sit in the local L2 (speed only)")
        a(f"""
        buffer_load_dword v{T+12}, v{vt[4]}, {s(SHN,4)}, s{sT0} offen sc1
        buffer_load_dword v{T+13}, v{vVo}, {s(SQ,4)}, s{sV1} offen sc1
        """)
    signal(0, 2 if RELOAD else 0)
    a(f"""
    s_cmp_eq_u32 s{sMm}, 15
    s_cbranch_scc1 K2_SKIP1
    """)
    poll_start(0)
    a(f"""
    v_lshrrev_b32 v{vt[2]}, 5, v0
    v_lshlrev_b32 v{vt[2]}, 3, v{vt[2]}
    v_add_u32 v{vt[2]}, {B1L}, v{vt[2]}
    s_cmp_eq_u32 s{sHalf}, 0
    s_cselect_b32 s{sT2}, -1, 0
    s_and_b32 s{sSo}, s{sT2}, 0xffff0000
    """)
    BI = Kf
    acc1 = [O[0], O[1], hacc]
    for ft in range(3):
        for q in range(4):
            a(f"ds_read_b64 {v(BI+8*ft+2*q,2)}, v{vt[2]} offset:{ft*64+q*16}")
    a("s_waitcnt lgkmcnt(0)")
    for ft in range(3):
        for i in range(8):
            a(f"v_and_b32 v{acc1[ft]+2*i+1}, s{sSo}, v{BI+8*ft+i}")
            a(f"v_and_b32 v{BI+8*ft+i}, s{sT2}, v{BI+8*ft+i}")
            a(f"v_lshlrev_b32 v{acc1[ft]+2*i}, 16, v{BI+8*ft+i}")
    Bf = [Kf + 4*i for i in range(8)] + [woA + 4*i for i in range(4)] + [T + 4*i for i in range(4)]
    Af = [Vf, Vf + 4, OFr, OFr + 4, nrm, nrm + 4, Q, zero]
    vWa = vOa; vEx = vLa; vEr = vNr
    sRT, sKH = sV1, sHalf
    a(f"""
    s_and_b32 s{sRT}, s{sW}, 3
    s_lshl_b32 s{sT0}, s{sG}, 2
    s_add_u32 s{sRT}, s{sRT}, s{sT0}
    v_lshrrev_b32 v{vt[2]}, 5, v0
    v_lshlrev_b32 v{vt[2]}, 9, v{vt[2]}
    v_bfe_u32 v{vt[3]}, v0, 2, 2
    v_lshl_add_u32 v{vt[2]}, v{vt[3]}, 6, v{vt[2]}
    v_bfe_u32 v{vt[3]}, v0, 4, 1
    v_lshl_add_u32 v{vt[2]}, v{vt[3]}, 5, v{vt[2]}
    v_and_b32 v{vt[3]}, 3, v0
    v_lshl_add_u32 v{vt[2]}, v{vt[3]}, 3, v{vt[2]}
    s_mul_i32 s{sT0}, s{sKH}, 49152
    v_add_u32 v{vWa}, s{sT0}, v{vt[2]}
    s_mul_i32 s{sT0}, s{sW}, 6144
    s_add_u32 s{sT0}, s{sT0}, {EXB}
    v_add_u32 v{vEx}, s{sT0}, v{vQa}
    s_xor_b32 s{sT0}, s{sW}, 4
    s_mul_i32 s{sT0}, s{sT0}, 6144
    s_add_u32 s{sT0}, s{sT0}, {EXB}
    v_add_u32 v{vEr}, s{sT0}, v{vQa}
    s_lshl_b32 s{sWm}, s{sRT}, 15
    s_lshl_b32 s{sT0}, s{sKH}, 14
    s_add_u32 s{sWm}, s{sWm}, s{sT0}
    """)
    def areads(f):
        ks, ft = divmod(f, 3)
        off = ks * 3072 + ft * 1024
        a(f"ds_read_b64_tr_b16 {v(Af[f%8],2)}, v{vWa} offset:{off}")
        a(f"ds_read_b64_tr_b16 {v(Af[f%8]+2,2)}, v{vWa} offset:{off+256}")
    for f in range(5):
        areads(f)
    if W2L == "thin":
        a(f"""
        s_cmp_eq_u32 s{sW}, 0
        s_cbranch_scc1 K2_NW2
        """)
        for i in range(8, 11):
            a(ldW2(i))
            if i < 10:
                a("s_waitcnt vmcnt(0)")
        a("K2_NW2:")
    poll(0, 0xffff)
    stamp(a, 6)
    for i in range(16):
        a(f"""
        s_add_u32 s{sSo}, s{sMm}, {i}
        s_and_b32 s{sSo}, s{sSo}, 15
        s_lshl_b32 s{sSo}, s{sSo}, 10
        s_add_u32 s{sSo}, s{sSo}, s{sWm}
        buffer_load_dwordx4 {v(Bf[i],4)}, v{vQa}, {s(SHN,4)}, s{sSo} offen {LDF}
        """)
    for f in range(48):
        ks, ft = divmod(f, 3)
        later = min(4, 47 - f)
        w = f"lgkmcnt({2*later})"
        if ft == 0:
            w = f"vmcnt({15 - ks + (2*min(3, max(0, ks - 10)) if W2L == 'mid' else 0)}) " + w
        a(f"s_waitcnt {w}")
        a(f"v_mfma_f32_32x32x16_bf16 {v(acc1[ft],16)}, {v(Af[f%8],4)}, {v(Bf[ks],4)}, {v(acc1[ft],16)}")
        if f + 5 < 48:
            areads(f + 5)
        if W2L == "mid" and ft == 2 and 10 <= ks < 13:
            a(ldW2(ks - 2))
    stamp(a, 7)
    if W2L == "thin":
        a(f"""
        s_cmp_lg_u32 s{sW}, 0
        s_cbranch_scc1 K2_NW3
        """)
    if W2L != "mid":
        a(ldW2(8) + ldW2(9) + ldW2(10))
    a("K2_NW3:")
    a(f"""
    s_mul_i32 s{sT0}, s{sRT}, 86
    s_lshl_b32 s{sT1}, s{sT0f}, 1
    s_add_u32 s{sT0}, s{sT0}, s{sT1}
    s_mul_i32 s{sT1}, s{sKH}, 3
    s_add_u32 s{sT0}, s{sT0}, s{sT1}
    s_lshl_b32 s{sT0}, s{sT0}, 10
    s_nop 7
    s_cmp_eq_u32 s{sKH}, 1
    s_cbranch_scc1 K2_EX1
    """)
    lo = [acc1[0], acc1[0] + 8, acc1[1]]
    hi = [acc1[1] + 8, acc1[2], acc1[2] + 8]
    RX = Kf
    def exchange(keep, send):
        for q in range(3):
            a(f"ds_write_b128 v{vEx}, {v(send[q],4)} offset:{q*2048}")
            a(f"ds_write_b128 v{vEx}, {v(send[q]+4,4)} offset:{q*2048+1024}")
        a("s_waitcnt lgkmcnt(0)")
        a("s_barrier")
        for q in range(6):
            a(f"ds_read_b128 {v(RX+4*q,4)}, v{vEr} offset:{q*1024}")
        for q in range(3):
            a(f"s_waitcnt lgkmcnt({4-2*q})")
            for i in range(4):
                a(f"v_pk_add_f32 {v(keep[q]+2*i,2)}, {v(keep[q]+2*i,2)}, {v(RX+8*q+2*i,2)}")
            for i in range(8):
                a(f"v_max_f32 v{keep[q]+i}, 0, v{keep[q]+i}")
            for i in range(4):
                a(f"v_pk_mul_f32 {v(keep[q]+2*i,2)}, {v(keep[q]+2*i,2)}, {v(keep[q]+2*i,2)}")
            for i in range(4):
                a(f"v_cvt_pk_bf16_f32 v{woA+4*q+i}, v{keep[q]+2*i}, v{keep[q]+2*i+1}")
            a(f"buffer_store_dwordx4 {v(woA+4*q,4)}, v{vQa}, {s(SG,4)}, s{sT0} offen offset:{q*1024} sc1")
    exchange(lo, hi)
    a("s_branch K2_EXJ")
    a("K2_EX1:")
    exchange(hi, lo)
    a("K2_EXJ:")
    stamp(a, 8)
    if RELOAD:
        for q in range(3):
            a(f"buffer_load_dword v{hacc+q}, v{vQa}, {s(SG,4)}, s{sT0} offen offset:{q*1024} sc1")
    signal(128, 3 if RELOAD else 0)
    a("s_branch K2_FFN2")
    a("K2_SKIP1:")
    a(ldW2(8) + ldW2(9) + ldW2(10))
    a("K2_FFN2:")
    poll_start(128)
    Gf = [Kf + 4*i for i in range(8)] + [Vf, Vf + 4] + [woA + 4*i for i in range(4)] + [T + 4*i for i in range(4)] + [OFr, OFr + 4]
    Gf += Gf[:2]
    acc2 = [O[0], O[1], hacc, zero]
    vG1 = vOa; vOo = vLa; vRw = vNr; vRr = vNl; vB2 = vNw
    sGo, sOo, sGend = sWm, sV1, sRot
    srd(a, SX, 18, 19, 0, 1024)
    srd(a, SHN, 10, 11, 0, 0x200000)
    a(f"""
    s_lshl_b32 s{sT0}, s{sG}, 1
    s_lshr_b32 s{sT1}, s{sMm}, 3
    s_add_u32 s{sT0}, s{sT0}, s{sT1}
    s_lshl_b32 s{sOo}, s{sT0}, 16
    s_mul_i32 s{sGo}, s{sT0}, {2*86*1024}
    s_add_u32 s{sGend}, s{sGo}, {86*1024}
    s_lshl_b32 s{sT1}, s{sW}, 10
    s_add_u32 s{sGo}, s{sGo}, s{sT1}
    v_add_u32 v{vG1}, {86*1024}, v{vQa}
    v_and_b32 v{vt[2]}, 31, v0
    v_mul_u32_u24 v{vt[2]}, 272, v{vt[2]}
    v_lshrrev_b32 v{vt[3]}, 5, v0
    v_lshl_add_u32 v{vt[2]}, v{vt[3]}, 4, v{vt[2]}
    s_mul_i32 s{sT0}, s{sW}, {RSTR}
    v_add_u32 v{vRw}, s{sT0}, v{vt[2]}
    v_lshrrev_b32 v{vt[2]}, 3, v0
    s_lshl_b32 s{sT0}, s{sW}, 3
    v_add_u32 v{vt[2]}, s{sT0}, v{vt[2]}
    v_and_b32 v{vt[3]}, 7, v0
    v_mul_u32_u24 v{vRr}, 272, v{vt[2]}
    v_lshl_add_u32 v{vRr}, v{vt[3]}, 5, v{vRr}
    s_lshl_b32 s{sT0}, s{sCB2}, 7
    v_lshlrev_b32 v{vB2}, 4, v{vt[3]}
    v_add_u32 v{vB2}, s{sT0}, v{vB2}
    v_lshl_add_u32 v{vOo}, v{vt[2]}, 10, v{vB2}
    """)
    poll(128, 0x7fff)
    stamp(a, 9)
    def ldG(i):
        a(f"""
        s_add_u32 s{sSo}, s{sCB2}, {i}
        s_sub_u32 s{sT1}, s{sSo}, 11
        s_cselect_b32 s{sSo}, s{sSo}, s{sT1}
        s_lshl_b32 s{sSo}, s{sSo}, 13
        s_add_u32 s{sSo}, s{sSo}, s{sGo}
        s_cmp_ge_u32 s{sSo}, s{sGend}
        s_cselect_b32 s{sSo}, 0x1000000, s{sSo}
        """)
        a(f"buffer_load_dwordx4 {v(Gf[2*i],4)}, v{vQa}, {s(SG,4)}, s{sSo} offen {LDF}")
        a(f"buffer_load_dwordx4 {v(Gf[2*i+1],4)}, v{vG1}, {s(SG,4)}, s{sSo} offen {LDF}")
    for i in range(10):
        ldG(i)
    for i in range(11):
        a(f"s_waitcnt vmcnt({18 if i == 0 else 2*(10-i)})")
        for ct in range(2):
            for rt in range(2):
                d = acc2[2*ct + rt]
                a(f"v_mfma_f32_32x32x16_bf16 {v(d,16)}, {v(W2R+8*i+4*ct,4)}, {v(Gf[2*i+rt],4)}, {'0' if i == 0 else v(d,16)}")
        if i == 0:
            ldG(10)
    stamp(a, 10)
    HR = woA; B2 = woA + 4
    a(f"""
    buffer_load_dwordx4 {v(HR,4)}, v{vOo}, {s(SQ,4)}, s{sOo} offen sc1
    buffer_load_dwordx4 {v(B2,4)}, v{vB2}, {s(SX,4)}, 0 offen
    v_add_u32 v{vt[2]}, {3*RSTR}, v{vRr}
    v_add_u32 v{vt[3]}, {6*RSTR}, v{vRr}
    s_nop 7
    """)
    for ct in range(2):
        for rt in range(2):
            for q in range(4):
                d = acc2[2*ct + rt] + 4*q
                a(f"ds_write_b128 v{vRw}, {v(d,4)} offset:{rt*32*272 + (32*ct + 8*q)*4}")
    a("s_waitcnt lgkmcnt(0)")
    a("s_barrier")
    stamp(a, 11)
    RR = W2R
    for w in range(8):
        base = (vRr, vt[2], vt[3])[w // 3]
        for q in range(2):
            a(f"ds_read_b128 {v(RR+8*w+4*q,4)}, v{base} offset:{(w % 3)*RSTR + 16*q}")
    a("s_waitcnt vmcnt(0)")
    for i in range(4):
        a(f"v_lshlrev_b32 v{T+2*i}, 16, v{HR+i}")
        a(f"v_and_b32 v{T+2*i+1}, 0xffff0000, v{HR+i}")
        a(f"v_lshlrev_b32 v{T+8+2*i}, 16, v{B2+i}")
        a(f"v_and_b32 v{T+8+2*i+1}, 0xffff0000, v{B2+i}")
    for i in range(4):
        a(f"v_pk_add_f32 {v(T+2*i,2)}, {v(T+2*i,2)}, {v(T+8+2*i,2)}")
    for w in range(0, 8, 2):
        a(f"s_waitcnt lgkmcnt({12 - 2*w})")
        for i in range(4):
            a(f"v_pk_add_f32 {v(RR+8*w+2*i,2)}, {v(RR+8*w+2*i,2)}, {v(RR+8*w+8+2*i,2)}")
        for i in range(4):
            a(f"v_pk_add_f32 {v(T+2*i,2)}, {v(T+2*i,2)}, {v(RR+8*w+2*i,2)}")
    for i in range(4):
        a(f"v_cvt_pk_bf16_f32 v{T+8+i}, v{T+2*i}, v{T+2*i+1}")
    a(f"buffer_store_dwordx4 {v(T+8,4)}, v{vOo}, {s(SHN,4)}, s{sOo} offen {OUTF}")
    stamp_dump(a, 1, sW)
    a("K2_END:")
    a("s_endpgm")
    a.c("slow path: true row maxima first")
    a("K2_SLOW:")
    MB = MISC + 1024
    a("s_setprio 0")
    for i in range(SLOW_V0, 16):
        a(ldV(i))
    a("s_nop 7\ns_nop 7")
    for o in O:
        a(f"v_mfma_f32_32x32x16_bf16 {v(o,16)}, {v(zero,4)}, {v(zero,4)}, 0")
    a(f"""
    v_and_b32 v{vt[0]}, 31, v0
    v_lshlrev_b32 v{vt[0]}, 2, v{vt[0]}
    v_add_u32 v{vt[0]}, {MB}, v{vt[0]}
    s_lshl_b32 s{sT0}, s{sW}, 7
    v_add_u32 v{vt[1]}, s{sT0}, v{vt[0]}
    v_mov_b32 v{vt[2]}, 0xff800000
    ds_write_b32 v{vt[1]}, v{vt[2]}
    s_waitcnt vmcnt(0) lgkmcnt(0)
    s_barrier
    v_mov_b32 v{vt[1]}, v{vt[0]}
    v_mov_b32 v{vt[3]}, v{vQl}
    s_mov_b32 s{sT0}, 0
    K2_P1:
    ds_read_b128 {v(Q,4)}, v{vt[3]}
    v_mov_b32 v{nrm}, 0xff800000
    s_waitcnt lgkmcnt(0)
    """)
    for j in range(8):
        a(f"v_mfma_f32_32x32x16_bf16 {v(S[0],16)}, {v(Kf+4*j,4)}, {v(Q,4)}, 0")
        a("s_nop 7\ns_nop 3")
        for i in range(8):
            a(f"v_max3_f32 v{nrm}, v{nrm}, v{S[0]+2*i}, v{S[0]+2*i+1}")
        a("s_nop 1")
    a(f"""
    ds_max_f32 v{vt[1]}, v{nrm}
    v_add_u32 v{vt[1]}, 128, v{vt[1]}
    v_add_u32 v{vt[3]}, 1024, v{vt[3]}
    s_add_u32 s{sT0}, s{sT0}, 1
    s_cmp_lt_u32 s{sT0}, 8
    s_cbranch_scc1 K2_P1
    ds_read_b128 {v(Q,4)}, v{vQl}
    s_waitcnt lgkmcnt(0)
    s_barrier
    """)
    mainloop(True)
    a("s_branch K2_TAIL")
    for r in retries:
        lab = r.split(":")[0]
        if any(("s_cbranch_vccnz " + lab) == l.strip() for l in a.lines):
            a(r)
    return name, R.cur, K2_LDS
```

```python
from asmlib import *
from common import *
import os

W1L = 0
QL = 98304
EXB = QL
OACC = QL + 8192
LACC = OACC + 16384
OFB = LACC + 1024
MISC = OFB + 1024
XL = MISC + 2048
B1L = EXB + 49152
K2_LDS = B1L + 256
RSTR = 17408
THR2 = (40.0 / 1.02) ** 2
PRIO = os.environ.get("PRIO", "2")
PD = int(os.environ.get("PD", "2"))
EXP = os.environ.get("EXP", "").split(",")
LDF = os.environ.get("LDF", "sc1").replace("_", " ").replace("none", "")
RELOAD = os.environ.get("RELOAD", "0") == "1"
OUTF = os.environ.get("OUTF", "").replace("_", " ")
W2L = os.environ.get("W2L", "mid")
NPOLL = int(os.environ.get("NPOLL", "1"))
QLATE = os.environ.get("QLATE", "0") == "1"
W2T = int(os.environ.get("W2T", "8"))
SLOW_V0 = min(16, 2*PD + 10)

def gen_k2(a):
    name = "attn_kernel"
    kernel_header(a, name)
    R = Regs(1, 256)
    vt = [R.alloc(f"t{i}") for i in range(6)]
    vidx = R.alloc("idx")
    vQa = R.alloc("qa")
    vOa = R.alloc("oa"); vLa = R.alloc("la")
    vNr = R.alloc("nr"); vNl = R.alloc("nl"); vNw = R.alloc("nw")
    vOFa = R.alloc("ofa")
    vKo = R.alloc("ko"); vVo = R.alloc("vo"); vQl = R.alloc("ql"); vW1o = R.alloc("w1o")
    vP1r = R.alloc("p1r"); vP2r = R.alloc("p2r"); vPw = R.alloc("pw"); vPv = R.alloc("pv"); vCnt = R.alloc("cnt")
    zero = R.alloc("zero", 4)
    Q = R.alloc("q", 4)
    nrm = R.alloc("nrm", 8, 4)
    Kf = R.alloc("k", 32)
    Vf = R.alloc("v", 64)
    S = [R.alloc(f"s{i}", 16) for i in range(2)]
    O = [R.alloc(f"o{i}", 16) for i in range(2)]
    woA = R.alloc("woa", 16)
    T = R.alloc("T", 16)
    OFr = R.alloc("ofr", 8)
    hacc = R.alloc("hacc", 16)
    Qw = OFr
    vM = [vt[1], vt[2]]
    sW, sRB, sT0, sT1, sT2, sWm, sSo, sHalf = 20, 21, 22, 23, 44, 45, 46, 47
    sMaskLo, sV1, sV2 = 48, 50, 51
    sG, sMm, sT0f, sW1m, sV2x, sRot = 4, 5, 6, 7, 60, 61
    SQ, SKV, SWO, SX, SH, SHN, SP = 24, 28, 32, 36, 40, 52, 56
    a(f"""
    s_cmp_ge_u32 s2, 256
    s_cbranch_scc1 K2_END
    s_setprio 3
    s_load_dwordx2 s[16:17], s[0:1], 96
    s_load_dwordx2 s[8:9], s[0:1], 0
    s_load_dwordx4 s[12:15], s[0:1], 48
    s_load_dwordx2 s[18:19], s[0:1], 72
    s_load_dwordx2 s[10:11], s[0:1], 80
    v_lshrrev_b32 v{vt[0]}, 6, v0
    v_and_b32 v0, 63, v0
    v_readfirstlane_b32 s{sW}, v{vt[0]}
    v_lshlrev_b32 v{vQa}, 4, v0
    s_and_b32 s{sT0}, s2, 7
    s_lshr_b32 s{sT1}, s2, 3
    s_lshl_b32 s{sRB}, s{sT0}, 5
    s_add_u32 s{sRB}, s{sRB}, s{sT1}
    s_lshl_b32 s{sWm}, s{sW}, 13
    v_add_u32 v{vKo}, s{sWm}, v{vQa}
    v_lshrrev_b32 v{vt[3]}, 5, v0
    v_and_b32 v{vt[4]}, 31, v0
    v_lshlrev_b32 v{vt[2]}, 4, v{vt[4]}
    v_lshl_add_u32 v{vt[2]}, v{vt[3]}, 8, v{vt[2]}
    s_mul_i32 s{sT0}, s{sW}, {16*VSTR}
    s_add_u32 s{sT0}, s{sT0}, 0x10000
    v_and_b32 v{vt[1]}, 27, v0
    v_cmp_eq_u32 vcc, 16, v{vt[1]}
    v_mov_b32 v{vt[1]}, 0x40000000
    v_mov_b32 v{vt[5]}, 512
    v_cndmask_b32 v{vt[1]}, v{vt[1]}, v{vt[5]}, vcc
    v_cmp_gt_u32 vcc, 16, v{vt[4]}
    v_lshlrev_b32 v{vt[5]}, 3, v0
    s_nop 0
    v_cndmask_b32 v{vt[1]}, v{vt[1]}, v{vt[2]}, vcc
    v_add_u32 v{vVo}, s{sT0}, v{vt[1]}
    s_lshl_b32 s{sT1}, s{sRB}, 13
    s_lshl_b32 s{sT2}, s{sW}, 10
    s_add_u32 s{sT0}, s{sT1}, s{sT2}
    s_mov_b32 s{sSo}, 0x21000
    s_movk_i32 s{sT2}, 0x1000
    s_movk_i32 s{sV1}, {7*VSTR}
    s_movk_i32 s{sV2}, {14*VSTR}
    s_lshr_b32 s{sHalf}, s{sW}, 2
    """)
    stamp_init(a)
    a("s_waitcnt lgkmcnt(0)")
    srd(a, SQ, 16, 17, WS_Q, 0x200000)
    srd(a, SKV, 16, 17, WS_K, KV_BYTES)
    order = []
    def ldK(j):
        so = "0" if j < 4 else f"s{sT2}"
        order.append(f"K{j}")
        return f"buffer_load_dwordx4 {v(Kf+4*j,4)}, v{vKo}, {s(SKV,4)}, {so} offen offset:{(j&3)*1024}"
    def ldV(i):
        so = ("0", f"s{sV1}", f"s{sV2}")[i // 7]
        order.append(f"V{i}")
        return f"buffer_load_dwordx4 {v(Vf+4*i,4)}, v{vVo}, {s(SKV,4)}, {so} offen offset:{(i%7)*VSTR}"
    def ldW(t, ks, ct, dst):
        order.append(f"W{t}_{ks}_{ct}")
        pre = f"s_mov_b32 s{sSo}, {t*65536 + ks*4096}\n"
        return pre + f"buffer_load_dwordx4 {v(dst+4*ct,4)}, v{vKo}, {s(SWO,4)}, s{sSo} offen offset:{ct*1024}"
    def wait_for(item):
        return f"s_waitcnt vmcnt({len(order) - 1 - order.index(item)})"
    a(f"buffer_load_dwordx4 {v(Q,4)}, v{vQa}, {s(SQ,4)}, s{sT1} offen"); order.append("Q")
    a(ldK(0)); a(ldK(1)); a(ldV(0)); a(ldV(1)); a(ldK(2))
    def ldQW():
        a(f"buffer_load_dwordx4 {v(Qw,4)}, v{vQa}, {s(SQ,4)}, s{sT0} offen"); order.append("QW")
        a(f"buffer_load_dwordx2 {v(nrm,2)}, v{vt[5]}, {s(SKV,4)}, s{sSo} offen"); order.append("KM")
    if not QLATE:
        ldQW()
    for i in range(1, PD):
        a(ldV(2*i)); a(ldV(2*i + 1))
        if i + 2 < 8:
            a(ldK(i + 2))
    if QLATE:
        ldQW()
    a("s_setprio 0")
    pro_order = list(order)
    srd(a, SWO, 16, 17, WS_WO, 524288)
    for i in range(4):
        a(f"v_mov_b32 v{zero+i}, 0")
    a(f"v_mov_b32 v{vidx}, 0xdddddddd")
    a("s_nop 0")
    for o in O:
        a(f"v_mfma_f32_32x32x16_bf16 {v(o,16)}, {v(zero,4)}, {v(zero,4)}, 0")
    a.c("LDS addresses")
    a(f"""
    s_lshl_b32 s{sT0}, s{sW}, 2
    s_add_u32 s{sT1}, s{sT0}, {MISC + 32}
    v_mov_b32 v{vPw}, s{sT1}
    ds_write2_b32 v{vPw}, v{zero}, v{zero} offset1:8
    s_add_u32 s{sT0}, s{sT0}, {LACC}
    v_lshlrev_b32 v{vLa}, 5, v{vt[4]}
    v_add_u32 v{vLa}, s{sT0}, v{vLa}
    s_lshl_b32 s{sT0}, s{sW}, 11
    s_add_u32 s{sT0}, s{sT0}, {OACC}
    v_add_u32 v{vOa}, s{sT0}, v{vQa}
    s_and_b32 s{sT1}, s{sW}, 3
    v_and_b32 v{vt[2]}, 7, v0
    v_lshlrev_b32 v{vP1r}, 2, v{vt[2]}
    v_add_u32 v{vP1r}, {MISC + 32}, v{vP1r}
    v_and_b32 v{vt[1]}, 3, v0
    v_lshlrev_b32 v{vP2r}, 2, v{vt[1]}
    v_add_u32 v{vP2r}, {MISC + 64}, v{vP2r}
    v_bfe_u32 v{vt[1]}, v0, 4, 1
    v_bfe_u32 v{vt[4]}, v0, 3, 1
    v_lshlrev_b32 v{vNr}, 4, v{vt[2]}
    v_lshl_add_u32 v{vNw}, v{vt[3]}, 7, v{vNr}
    v_lshl_add_u32 v{vNr}, v{vt[3]}, 10, v{vNr}
    v_lshl_add_u32 v{vNr}, v{vt[1]}, 9, v{vNr}
    v_lshl_add_u32 v{vNr}, v{vt[4]}, 3, v{vNr}
    s_lshl_b32 s{sT0}, s{sT1}, 7
    s_add_u32 s{sT0}, s{sT0}, {OACC}
    v_add_u32 v{vNr}, s{sT0}, v{vNr}
    s_lshl_b32 s{sT0}, s{sT1}, 8
    s_add_u32 s{sSo}, s{sT0}, {LACC}
    v_lshlrev_b32 v{vNl}, 5, v{vt[2]}
    v_add_u32 v{vNl}, s{sSo}, v{vNl}
    v_bfe_u32 v{vt[3]}, v0, 3, 2
    v_lshl_add_u32 v{vNw}, v{vt[3]}, 2, v{vNw}
    s_add_u32 s{sSo}, s{sT0}, {OFB}
    v_add_u32 v{vNw}, s{sSo}, v{vNw}
    v_lshrrev_b32 v{vt[3]}, 4, v0
    v_lshlrev_b32 v{vt[2]}, 4, v{vt[2]}
    v_lshl_add_u32 v{vOFa}, v{vt[3]}, 7, v{vt[2]}
    v_add_u32 v{vOFa}, {OFB}, v{vOFa}
    """)
    srd(a, SX, 8, 9, 0, 0x200000)
    srd(a, SHN, 16, 17, WS_HN, 0x200000)
    srd(a, SP, 12, 13, 0, 1409024)
    srd(a, SH, 16, 17, WS_W2, W2F_BYTES)
    a(f"""
    s_lshr_b32 s{sT0}, s2, 3
    s_mul_i32 s{sT1}, s{sT0}, 44032
    s_add_u32 s{sT1}, s{sT1}, s{sWm}
    v_lshlrev_b32 v{vt[5]}, 7, v0
    s_lshl_b32 s{sMaskLo}, s{sT0}, 14
    s_and_b32 s{sT0}, s{sWm}, 0x2000
    s_add_u32 s{sMaskLo}, s{sMaskLo}, s{sT0}
    s_mov_b32 s{sMaskLo+1}, s{sT1}
    s_lshr_b32 s{sT0}, s2, 3
    s_mul_i32 s{sV2x}, s{sT0}, 45056
    s_add_u32 s{sV2x}, s{sV2x}, s{sWm}
    s_lshr_b32 s{sG}, s{sRB}, 4
    s_and_b32 s{sMm}, s{sRB}, 15
    s_mul_i32 s{sT0f}, s{sMm}, 3
    s_min_u32 s{sT0f}, s{sT0f}, 40
    v_add_u32 v{vQl}, {QL}, v{vQa}
    v_lshrrev_b32 v{vt[3]}, 2, v0
    v_mul_u32_u24 v{vt[3]}, 2752, v{vt[3]}
    v_and_b32 v{vt[4]}, 3, v0
    v_lshl_add_u32 v{vt[3]}, v{vt[4]}, 4, v{vt[3]}
    s_lshl_b32 s{sT0}, s{sT0f}, 6
    s_mul_i32 s{sT1}, s{sHalf}, {16*44032}
    s_add_u32 s{sT0}, s{sT0}, s{sT1}
    v_add_u32 v{vW1o}, s{sT0}, v{vt[3]}
    s_lshl_b32 s{sRot}, s{sW}, 2
    s_add_u32 s{sRot}, s{sRot}, s{sMm}
    s_mul_i32 s{sW1m}, s{sW}, {4*3072}
    """)
    stamp(a, 1)
    def bound_check():
        n = nrm
        P = []
        P.append(lambda: f"s_lshl_b32 s{sT0}, s{sW}, 10\nv_add_u32 v{vt[0]}, s{sT0}, v{vQl}\nv_mov_b32 v{n+2}, 0\n{wait_for('KM')}\nds_write_b128 v{vt[0]}, {v(Qw,4)}")
        P.append("\n".join(f"v_dot2c_f32_bf16 v{n+2}, v{Qw+i}, v{Qw+i}" for i in range(4)) + f"\nv_max_f32 v{n}, v{n}, v{n+1}\ns_nop 0")
        P.append(f"v_max_f32_dpp v{n}, v{n}, v{n} row_ror:8 row_mask:0xf bank_mask:0xf\nv_mov_b32 v{n+3}, v{n+2}")
        P.append(f"v_max_f32_dpp v{n}, v{n}, v{n} row_ror:4 row_mask:0xf bank_mask:0xf\nv_permlane32_swap_b32 v{n+2}, v{n+3}")
        P.append(f"v_max_f32_dpp v{n}, v{n}, v{n} row_ror:2 row_mask:0xf bank_mask:0xf\nv_add_f32 v{n+2}, v{n+2}, v{n+3}")
        P.append(f"v_max_f32_dpp v{n}, v{n}, v{n} row_ror:1 row_mask:0xf bank_mask:0xf\nv_mov_b32 v{n+1}, v{n}\ns_nop 0")
        P.append(f"v_permlane32_swap_b32 v{n}, v{n+1}\nv_max_f32 v{n}, v{n}, v{n+1}\nv_mov_b32 v{n+1}, v{n}\ns_nop 0")
        P.append(f"v_permlane16_swap_b32 v{n}, v{n+1}\nv_max_f32 v{n}, v{n}, v{n+1}\nv_mul_f32 v{n}, v{n}, v{n+2}\nv_mov_b32 v{n+1}, {hex(f32bits(THR2))}\n"
                 f"v_cmp_nle_f32 vcc, v{n}, v{n+1}\ns_lshl_b32 s{sT0}, s{sW}, 2\ns_add_u32 s{sT0}, s{sT0}, {MISC}")
        P.append(f"s_cmp_lg_u64 vcc, 0\ns_cselect_b32 s{sT1}, 1, 0\nv_mov_b32 v{vt[0]}, s{sT0}\nv_mov_b32 v{vt[1]}, s{sT1}\nds_write_b32 v{vt[0]}, v{vt[1]}\nv_mov_b32 v{vt[0]}, {MISC}")
        return P
    flag_reads = f"ds_read_b128 {v(nrm,4)}, v{vt[0]}\nds_read_b128 {v(nrm+4,4)}, v{vt[0]} offset:16"
    flag_test = (f"s_waitcnt lgkmcnt(0)\nv_or3_b32 v{nrm}, v{nrm}, v{nrm+1}, v{nrm+2}\nv_or3_b32 v{nrm+3}, v{nrm+3}, v{nrm+4}, v{nrm+5}\n"
                 f"v_or3_b32 v{nrm}, v{nrm}, v{nrm+6}, v{nrm+7}\nv_or_b32 v{nrm}, v{nrm}, v{nrm+3}\ns_nop 0\n"
                 f"v_readfirstlane_b32 s{sT0}, v{nrm}\ns_cmp_lg_u32 s{sT0}, 0\ns_cbranch_scc1 K2_SLOW")

    def smf(tau):
        t, j = divmod(tau, 8)
        return f"v_mfma_f32_32x32x16_bf16 {v(S[tau&1],16)}, {v(Kf+4*j,4)}, {v(Q,4)}, 0"
    def pv(tau, h):
        t, j = divmod(tau, 8)
        return f"v_smfmac_f32_32x32x32_bf16 {v(O[t&1],16)}, {v(Vf+8*j+4*h,4)}, {v(S[tau&1]+8*h,8)}, v{vidx}"
    def drain(t):
        o = O[t & 1]
        return [f"ds_write_b128 v{vOa}, {v(o,4)}", f"ds_write_b128 v{vOa}, {v(o+4,4)} offset:1024", f"ds_write_b32 v{vLa}, v{o+8}"]
    retries = []
    def check(areg, off, val, lab):
        retries.append(f"K2_R{lab}:\nds_read_b32 v{vPv}, v{areg} offset:{off}\ns_waitcnt lgkmcnt(0)\nv_cmp_gt_u32 vcc, {val}, v{vPv}\n"
                       f"s_cbranch_vccnz K2_R{lab}\ns_branch K2_C{lab}")
        return f"s_waitcnt lgkmcnt(0)\nv_cmp_gt_u32 vcc, {val}, v{vPv}\ns_cbranch_vccnz K2_R{lab}\nK2_C{lab}:\n"
    def norm_reads():
        L = f"ds_read_b128 {v(nrm,4)}, v{vNl}\nds_read_b128 {v(nrm+4,4)}, v{vNl} offset:16\n"
        for w in range(8):
            L += f"ds_read_b64 {v(T+2*w,2)}, v{vNr} offset:{w*2048}\n"
        return L
    def norm_comp():
        L = f"s_waitcnt lgkmcnt(0)\n"
        L += f"v_pk_add_f32 {v(nrm,2)}, {v(nrm,2)}, {v(nrm+2,2)}\n"
        L += f"v_pk_add_f32 {v(nrm+4,2)}, {v(nrm+4,2)}, {v(nrm+6,2)}\n"
        for w in range(4):
            L += f"v_pk_add_f32 {v(T+4*w,2)}, {v(T+4*w,2)}, {v(T+4*w+2,2)}\n"
        L += f"v_pk_add_f32 {v(nrm,2)}, {v(nrm,2)}, {v(nrm+4,2)}\n"
        L += f"v_pk_add_f32 {v(T,2)}, {v(T,2)}, {v(T+4,2)}\n"
        L += f"v_add_f32 v{nrm}, v{nrm}, v{nrm+1}\n"
        L += f"v_pk_add_f32 {v(T+8,2)}, {v(T+8,2)}, {v(T+12,2)}\n"
        L += f"v_rcp_f32 v{nrm}, v{nrm}\n"
        L += f"v_pk_add_f32 {v(T,2)}, {v(T,2)}, {v(T+8,2)}\n"
        L += f"v_pk_mul_f32 {v(T,2)}, {v(T,2)}, {v(nrm,2)} op_sel_hi:[1,0]\n"
        L += f"v_cvt_pk_bf16_f32 v{T}, v{T}, v{T+1}\n"
        L += f"ds_write_b32 v{vNw}, v{T}\n"
        return L
    def only_half(t, lab, body):
        return f"s_cmp_lg_u32 s{sHalf}, {t&1}\ns_cbranch_scc1 K2_N{lab}\n{body}K2_N{lab}:\n"
    def of_reads():
        return "\n".join(f"ds_read_b128 {v(OFr+4*ks,4)}, v{vOFa} offset:{ks*512}" for ks in range(2))
    def wo_mfma(ks, ct, src, first=False):
        return f"v_mfma_f32_16x16x32_bf16 {v(hacc+4*ct,4)}, {v(src+4*ct,4)}, {v(OFr+4*ks,4)}, {'0' if first else v(hacc+4*ct,4)}"
    W7 = [Kf, Kf + 16]
    W2R = Vf + 8
    assert S[0] == Vf + 64 and S[1] == S[0] + 16 and Q == zero + 4 and nrm == Q + 4
    X = Vf

    sCB2, sW2o, sB3 = sV2, sV2x, 48
    def ldW2(i):
        if "NOW2A" in EXP and i < 8: return "s_nop 7\ns_nop 1\n"
        if "NOW2B" in EXP and i >= 8: return ""
        L = (f"s_add_u32 s{sSo}, s{sCB2}, {i}\ns_sub_u32 s{sT1}, s{sSo}, 11\ns_cselect_b32 s{sSo}, s{sSo}, s{sT1}\n"
             f"s_lshl_b32 s{sSo}, s{sSo}, 11\ns_add_u32 s{sSo}, s{sSo}, s{sW2o}\n")
        for ct in range(2):
            L += f"buffer_load_dwordx4 {v(W2R+8*i+4*ct,4)}, v{vQa}, {s(SH,4)}, s{sSo} offen offset:{ct*1024}\n"
        return L

    def mainloop(slow):
        tag = "S" if slow else "F"
        order[:] = [] if slow else list(pro_order)
        if slow:
            a(f"ds_read_b32 v{vM[0]}, v{vt[0]}")
            a("s_waitcnt lgkmcnt(0)")
        else:
            a(wait_for("K0"))
            stamp(a, 2)
        a(smf(0))
        a("s_nop 7")
        a("s_nop 3")
        for tau in range(64):
            t, j = divmod(tau, 8)
            slots = [[] for _ in range(17)]
            p1 = 11
            if PRIO == "1" and (j & 1) == 0:
                slots[0].append(f"s_setprio {3 - j // 2}")
            if PRIO == "2":
                slots[0].append(f"s_setprio {3 - (j & 3)}")
            if PRIO == "3":
                slots[0].append(f"s_setprio {3 - 2*(j & 1)}")
                slots[8].append(f"s_setprio {2 - 2*(j & 1)}")
            if PRIO == "4":
                slots[0].append(f"s_setprio {3 - ((j + 2) & 3)}")
            if PRIO == "5":
                slots[0].append(f"s_setprio {3 - ((j + 1) & 3)}")
            if PRIO == "6":
                slots[0].append(f"s_setprio {3 - ((j + 3) & 3)}")
            if PRIO == "7":
                for q in range(4):
                    slots[4*q].append(f"s_setprio {3 - q}")
            if tau > 0:
                slots[3].append(pv(tau - 1, 1))
            if t == 0 and not slow:
                if j + PD < 8:
                    slots[0].append(lambda j=j: ldV(2*(j + PD)))
                    slots[4].append(lambda j=j: ldV(2*(j + PD) + 1))
                if j + PD + 2 < 8:
                    slots[8].append(lambda j=j: ldK(j + PD + 2))
                if j == 2:
                    for i, x in enumerate(bound_check()):
                        slots[3 + i].append(x)
                if j == 4:
                    slots[0] += ["s_waitcnt lgkmcnt(0)", "s_barrier", flag_reads]
                    slots[5].append(flag_test)
                if j == 6:
                    slots[13].append(f"s_cmp_lt_u32 s{sW}, 6\ns_cbranch_scc1 K2_PW\nbuffer_load_dword v{vt[3]}, v{vt[5]}, {s(SWO,4)}, s{sMaskLo} offen\nK2_PW:")
            nx = tau + 1
            if nx < 64:
                if t == 0 and nx < 8 and not slow:
                    slots[6].append(lambda nx=nx: wait_for(f"K{nx}"))
                if nx % 8 == 0:
                    slots[6].append("s_waitcnt lgkmcnt(0)")
                slots[6].append(smf(nx))
                if nx % 8 == 7 and t < 7:
                    slots[10].append(f"ds_read_b128 {v(Q,4)}, v{vQl} offset:{(t+1)*1024}")
                    if slow:
                        slots[10].append(f"ds_read_b32 v{vM[(t+1)&1]}, v{vt[0]} offset:{(t+1)*128}")
            if 10 <= tau < 22 and tau % 2 == 0:
                slots[13].append(f"s_cmp_lg_u32 s{sW}, {(tau-10)//2}\ns_cbranch_scc1 K2_PA{tag}{tau}\nbuffer_load_dword v{vt[3]}, v{vt[5]}, {s(SP,4)}, s{sMaskLo+1} offen\nK2_PA{tag}{tau}:")
            if 22 <= tau < 34 and tau % 2 == 0:
                slots[13].append(f"s_cmp_lg_u32 s{sW}, {(tau-22)//2}\ns_cbranch_scc1 K2_PB{tag}{tau}\nbuffer_load_dword v{vt[4]}, v{vt[5]}, {s(SH,4)}, s{sV2x} offen\nK2_PB{tag}{tau}:")
            if 36 <= tau < 60 and tau % 2 == 0:
                n = (tau - 36) // 2
                kb, ft = divmod(n, 3)
                slots[4].append(lambda kb=kb, ft=ft: (order.append("W1"), f"s_add_u32 s{sT0}, s{sRot}, {kb}\ns_and_b32 s{sT0}, s{sT0}, 15\ns_mul_i32 s{sT0}, s{sT0}, 44032\ns_add_u32 m0, s{sW1m}, {kb*3072 + ft*1024 - ft*64}\ns_nop 0\n"
                    f"buffer_load_dwordx4 v{vW1o}, {s(SP,4)}, s{sT0} offen offset:{ft*64} lds")[1])
            if t >= 1:
                u = t - 1
                if j == 1:
                    slots[0].append(f"v_mov_b32 v{vCnt}, {t}")
                    for i, x in enumerate(drain(u)):
                        slots[1 + 2*i].append(x)
                    slots[7].append(f"ds_write_b32 v{vPw}, v{vCnt}")
                if j == 2:
                    slots[13].append("s_waitcnt lgkmcnt(0)")
                if j == 3 and t == 2 and DIAG:
                    slots[0].append(stamp_str(12))
                if j == 3:
                    slots[0].append(f"ds_read_b32 v{vPv}, v{vP1r}")
                    slots[7].append(only_half(u, f"A{tag}{t}", check(vP1r, 0, t, f"A{tag}{t}") + norm_reads()))
                    slots[9] += [f"v_mfma_f32_32x32x16_bf16 {v(O[u&1],16)}, {v(zero,4)}, {v(zero,4)}, 0"]
                    p1 = 12
                if j == 4:
                    slots[3].append(only_half(u, f"B{tag}{t}", norm_comp() + f"ds_write_b32 v{vPw}, v{vCnt} offset:32\n"))
                if 1 <= j <= 4:
                    slots[13].append(lambda u=u, ct=j-1: ldW(u, 0, ct, woA))
                if 4 <= j <= 7:
                    slots[8 if j != 6 else 1].append(lambda u=u, ct=j-4: ldW(u, 1, ct, T))
                if j == 6:
                    slots[1].append(f"ds_read_b32 v{vPv}, v{vP2r} offset:{16*(u&1)}")
                    slots[8].append(check(vP2r, 16*(u&1), t, f"D{tag}{t}") + of_reads())
                    slots[15] += ["s_waitcnt lgkmcnt(0)", lambda u=u: wait_for(f"W{u}_0_1"), wo_mfma(0, 0, woA, u == 0)]
                if j == 7:
                    slots[9].append(wo_mfma(0, 1, woA, u == 0)); slots[15] += [lambda u=u: wait_for(f"W{u}_0_3"), wo_mfma(0, 2, woA, u == 0)]
            if t >= 2:
                u = t - 2
                if j == 0:
                    slots[9].append(wo_mfma(0, 3, woA, u == 0))
                    slots[15] += [lambda u=u: wait_for(f"W{u}_1_1"), wo_mfma(1, 0, T)]
                if j == 1:
                    slots[9].append(wo_mfma(1, 1, T)); slots[15] += [lambda u=u: wait_for(f"W{u}_1_2"), wo_mfma(1, 2, T)]
                if j == 2:
                    slots[9] += [lambda u=u: wait_for(f"W{u}_1_3"), wo_mfma(1, 3, T)]
            if tau == 11:
                slots[4].append(f"s_cmp_lg_u32 s{sW}, 7\ns_cbranch_scc1 K2_B1{tag}\ns_add_u32 s{SQ}, s14, 0\ns_addc_u32 s{SQ+1}, s15, 0\ns_movk_i32 s{SQ+2}, 2752\n"
                    f"s_lshl_b32 s{sT0}, s{sT0f}, 6\nv_lshlrev_b32 v{vt[3]}, 2, v0\ns_mov_b32 m0, {B1L}\ns_nop 0\nbuffer_load_dword v{vt[3]}, {s(SQ,4)}, s{sT0} offen lds\nK2_B1{tag}:")
            if tau == 9:
                slots[4].append(lambda: (order.append("X"), f"s_lshl_b32 s{sT0}, s{sRB}, 13\ns_lshl_b32 s{sT1}, s{sW}, 10\ns_add_u32 s{sT0}, s{sT0}, s{sT1}\n"
                    f"s_mul_i32 s{sT1}, s{sW}, 1040\ns_add_u32 m0, s{sT1}, {XL}\ns_nop 0\nbuffer_load_dwordx4 v{vQa}, {s(SX,4)}, s{sT0} offen lds")[1])
            if tau == 58:
                slots[1].append(f"s_and_b32 s{sCB2}, s{sMm}, 7\ns_lshl_b32 s{sW2o}, s{sCB2}, 3\ns_add_u32 s{sW2o}, s{sW2o}, s{sW}\ns_mul_i32 s{sW2o}, s{sW2o}, {11*2048}")
            if 59 <= tau <= 62:
                slots[4].append(lambda ct=tau-59: ldW(7, 0, ct, W7[0]))
            if 60 <= tau <= 63:
                slots[16].append(lambda ct=tau-60: ldW(7, 1, ct, W7[1]))
            if t == 0 and not slow:
                slots[p1].append(lambda j=j: wait_for(f"V{2*j+1}"))
            slots[p1].append(pv(tau, 0))
            if not slow and sum(len(x) for x in slots[7:]) < 2:
                slots[14].append("s_nop 0")
            for i in range(17):
                for x in slots[i]:
                    x = x() if callable(x) else x
                    if "NOWL" in EXP and f"{s(SWO,4)}" in x: continue
                    if "NOPF" in EXP and ("K2_PA" in x or "K2_PB" in x): continue
                    if "NOW1" in EXP and " lds" in x: continue
                    if "NOW2" in EXP and f"{s(SH,4)}" in x: continue
                    if "NODRAIN" in EXP and "ds_write" in x: continue
                    if "NOZERO" in EXP and f"{v(zero,4)}" in x: continue
                    if "NOWO" in EXP and "16x16x32" in x: continue
                    if "NONORM" in EXP and "K2_N" in x: continue
                    if "NOCHK" in EXP and "K2_R" in x and "K2_N" not in x: x = of_reads()
                    a(x)
                if i < 16:
                    r = S[tau & 1] + i
                    if slow:
                        a(f"v_sub_f32 v{r}, v{r}, v{vM[t&1]}")
                    a(f"v_exp_f32 v{r}, v{r}")
        a("s_nop 1")
        a(pv(63, 1))
    mainloop(False)
    a("K2_TAIL:")
    stamp(a, 3)
    a("s_setprio 0")
    nvm = len(order) - 1 - order.index('W6_1_3')
    a(ldW2(0) + ldW2(1))
    a(wo_mfma(0, 3, woA))
    for x in drain(7):
        a(x)
    a(f"s_waitcnt vmcnt({nvm + 4})")
    for ct in range(4):
        a(wo_mfma(1, ct, T))
    a(f"""
    v_and_b32 v{vt[0]}, 7, v0
    v_lshrrev_b32 v{vt[1]}, 4, v0
    v_bfe_u32 v{vt[3]}, v0, 3, 1
    v_lshlrev_b32 v{vVo}, 10, v{vt[0]}
    v_lshl_add_u32 v{vVo}, v{vt[3]}, 6, v{vVo}
    s_lshl_b32 s{sV1}, s{sRB}, 13
    s_lshl_b32 s{sT1}, s{sW}, 7
    s_add_u32 s{sV1}, s{sV1}, s{sT1}
    s_add_u32 s{sT1}, s{sT1}, {XL}
    v_lshl_add_u32 v{vt[2]}, v{vt[0]}, 4, v{vVo}
    v_lshl_add_u32 v{vt[2]}, v{vt[1]}, 3, v{vt[2]}
    v_add_u32 v{vt[2]}, s{sT1}, v{vt[2]}
    v_bfe_u32 v{vt[1]}, v0, 4, 1
    v_lshl_add_u32 v{vVo}, v{vt[1]}, 5, v{vVo}
    v_lshrrev_b32 v{vt[4]}, 5, v0
    v_lshl_add_u32 v{vVo}, v{vt[4]}, 4, v{vVo}
    s_waitcnt lgkmcnt(0)
    s_barrier
    """)
    for c in range(2):
        a(f"ds_read_b64 {v(X+2*c,2)}, v{vt[2]} offset:{32*c}")
    a(only_half(7, "T", norm_reads() + norm_comp()))
    a(ldW2(2) + ldW2(3))
    H = O[0]; XU = O[0] + 8; PK = O[1]; ST = woA; U = T
    srd(a, SQ, 16, 17, WS_H, 0x200000)
    a(f"""
    s_mov_b32 s{sB3}, 0xff00ff00
    s_mov_b32 s{sB3+1}, 0xff00ff00
    s_waitcnt lgkmcnt(0)
    """)
    for i in range(4):
        a(f"v_lshlrev_b32 v{XU+2*i}, 16, v{X+i}")
        a(f"v_and_b32 v{XU+2*i+1}, 0xffff0000, v{X+i}")
    a("s_barrier")
    a(of_reads())
    a(f"s_waitcnt vmcnt(8) lgkmcnt(1)")
    for ct in range(4):
        a(wo_mfma(0, ct, W7[0]))
    a("s_waitcnt lgkmcnt(0)")
    for ct in (0, 2, 1, 3):
        a(wo_mfma(1, ct, W7[1]))
    stamp(a, 4)
    a(ldW2(4) + ldW2(5) if W2T >= 6 else "s_nop 7")
    a.c("h = x + attn ; lanes with bit 3 set take column tiles 2,3")
    for i in range(8):
        a(f"v_cndmask_b32 v{H+i}, v{hacc+i}, v{hacc+8+i}, {s(sB3,2)}")
    for i in range(4):
        a(f"v_pk_add_f32 {v(H+2*i,2)}, {v(H+2*i,2)}, {v(XU+2*i,2)}")
    a(f"""
    v_pk_mul_f32 {v(U+4,2)}, {v(H,2)}, {v(H,2)}
    v_pk_add_f32 {v(U,2)}, {v(H,2)}, {v(H+2,2)}
    v_pk_mul_f32 {v(U+6,2)}, {v(H+2,2)}, {v(H+2,2)}
    v_pk_add_f32 {v(U+2,2)}, {v(H+4,2)}, {v(H+6,2)}
    v_pk_fma_f32 {v(U+4,2)}, {v(H+4,2)}, {v(H+4,2)}, {v(U+4,2)}
    v_pk_fma_f32 {v(U+6,2)}, {v(H+6,2)}, {v(H+6,2)}, {v(U+6,2)}
    v_pk_add_f32 {v(U,2)}, {v(U,2)}, {v(U+2,2)}
    v_pk_add_f32 {v(U+4,2)}, {v(U+4,2)}, {v(U+6,2)}
    v_add_f32 v{U}, v{U}, v{U+1}
    v_add_f32 v{U+1}, v{U+4}, v{U+5}
    v_mov_b32 v{U+2}, v{U}
    v_mov_b32 v{U+3}, v{U+1}
    v_cvt_pk_bf16_f32 v{PK}, v{H}, v{H+1}
    v_permlane32_swap_b32 v{U}, v{U+2}
    v_permlane32_swap_b32 v{U+1}, v{U+3}
    v_pk_add_f32 {v(U,2)}, {v(U,2)}, {v(U+2,2)}
    v_mov_b32 v{U+2}, v{U}
    v_mov_b32 v{U+3}, v{U+1}
    v_cvt_pk_bf16_f32 v{PK+1}, v{H+2}, v{H+3}
    v_permlane16_swap_b32 v{U}, v{U+2}
    v_permlane16_swap_b32 v{U+1}, v{U+3}
    v_pk_add_f32 {v(U,2)}, {v(U,2)}, {v(U+2,2)}
    v_cvt_pk_bf16_f32 v{PK+2}, v{H+4}, v{H+5}
    v_cvt_pk_bf16_f32 v{PK+3}, v{H+6}, v{H+7}
    v_add_f32_dpp v{U}, v{U}, v{U} row_ror:8 row_mask:0xf bank_mask:0xf
    v_add_f32_dpp v{U+1}, v{U+1}, v{U+1} row_ror:8 row_mask:0xf bank_mask:0xf
    """)
    a(f"""
    s_lshl_b32 s{sT1}, s{sW}, 3
    s_add_u32 s{sT1}, s{sT1}, {MISC + 128}
    v_lshlrev_b32 v{vt[5]}, 6, v{vt[0]}
    v_add_u32 v{vt[4]}, s{sT1}, v{vt[5]}
    v_add_u32 v{vt[5]}, {MISC + 128}, v{vt[5]}
    ds_write_b64 v{vt[4]}, {v(U,2)}
    """)
    if W2T >= 8:
        a(ldW2(6) + ldW2(7))
    a("s_waitcnt lgkmcnt(0)")
    a("s_barrier")
    for i in range(4):
        a(f"ds_read_b128 {v(ST+4*i,4)}, v{vt[5]} offset:{16*i}")
    a(f"""
    v_permlane16_swap_b32 v{PK}, v{PK+2}
    v_permlane16_swap_b32 v{PK+1}, v{PK+3}
    buffer_store_dwordx4 {v(PK,4)}, v{vVo}, {s(SQ,4)}, s{sV1} offen sc1
    """)
    a(f"""
    s_lshr_b32 s{sT0}, s{sRB}, 2
    s_lshl_b32 s{sT0}, s{sT0}, 15
    s_lshl_b32 s{sT1}, s{sW}, 12
    s_add_u32 s{sT0}, s{sT0}, s{sT1}
    s_and_b32 s{sT1}, s{sRB}, 3
    s_lshl_b32 s{sT1}, s{sT1}, 7
    s_add_u32 s{sT0}, s{sT0}, s{sT1}
    v_lshlrev_b32 v{vt[4]}, 4, v{vt[0]}
    v_lshl_add_u32 v{vt[4]}, v{vt[3]}, 11, v{vt[4]}
    v_lshrrev_b32 v{vt[0]}, 5, v0
    v_lshl_add_u32 v{vt[4]}, v{vt[0]}, 9, v{vt[4]}
    v_lshl_add_u32 v{vt[4]}, v{vt[1]}, 10, v{vt[4]}
    s_waitcnt lgkmcnt(0)
    v_pk_add_f32 {v(U+2,2)}, {v(ST,2)}, {v(ST+2,2)}
    v_pk_add_f32 {v(U+4,2)}, {v(ST+4,2)}, {v(ST+6,2)}
    v_pk_add_f32 {v(U+6,2)}, {v(ST+8,2)}, {v(ST+10,2)}
    v_pk_add_f32 {v(U+8,2)}, {v(ST+12,2)}, {v(ST+14,2)}
    v_pk_add_f32 {v(U+2,2)}, {v(U+2,2)}, {v(U+4,2)}
    v_pk_add_f32 {v(U+6,2)}, {v(U+6,2)}, {v(U+8,2)}
    v_pk_add_f32 {v(U+2,2)}, {v(U+2,2)}, {v(U+6,2)}
    v_mul_f32 v{U+2}, {hex(f32bits(1.0/512))}, v{U+2}
    v_mul_f32 v{U+3}, {hex(f32bits(1.0/512))}, v{U+3}
    v_fma_f32 v{U+3}, -v{U+2}, v{U+2}, v{U+3}
    v_max_f32 v{U+3}, 0, v{U+3}
    v_add_f32 v{U+6}, {hex(f32bits(1e-5))}, v{U+3}
    v_rsq_f32 v{U+6}, v{U+6}
    """)
    for i in range(4):
        a(f"v_pk_add_f32 {v(H+2*i,2)}, {v(H+2*i,2)}, {v(U+2,2)} op_sel_hi:[1,0] neg_lo:[0,1] neg_hi:[0,1]")
    for i in range(4):
        a(f"v_pk_mul_f32 {v(H+2*i,2)}, {v(H+2*i,2)}, {v(U+6,2)} op_sel_hi:[1,0]")
    for i in range(4):
        a(f"v_cvt_pk_bf16_f32 v{PK+4+i}, v{H+2*i}, v{H+2*i+1}")
    a(f"""
    s_nop 1
    v_permlane16_swap_b32 v{PK+4}, v{PK+6}
    v_permlane16_swap_b32 v{PK+5}, v{PK+7}
    buffer_store_dwordx4 {v(PK+4,4)}, v{vt[4]}, {s(SHN,4)}, s{sT0} offen sc1
    """)
    SF, SG = SKV, SWO
    srd(a, SF, 16, 17, WS_FLG, 4096)
    srd(a, SG, 16, 17, WS_G, G_BYTES)
    def signal(off, young):
        a(f"""
        s_waitcnt vmcnt({young})
        s_barrier
        {stamp_str(1 if off == 0 else 2)}
        s_cmp_lg_u32 s{sW}, 0
        s_cbranch_scc1 K2_NOSIG{off}
        s_lshl_b32 s{sT0}, s{sG}, 8
        s_lshl_b32 s{sT1}, s{sMm}, 2
        s_add_u32 s{sT1}, s{sT1}, s{sT0}
        v_mov_b32 v{vt[0]}, 0
        v_mov_b32 v{vt[1]}, 1
        s_mov_b64 exec, 1
        buffer_store_dword v{vt[1]}, v{vt[0]}, {s(SF,4)}, s{sT1} offen offset:{off} sc1
        s_mov_b64 exec, -1
        K2_NOSIG{off}:
        """)
    def poll_start(off):
        a(f"""
        s_cmp_lg_u32 s{sW}, 0
        s_cbranch_scc1 K2_NOPS{off}
        s_lshl_b32 s{sRot}, s{sG}, 8
        v_and_b32 v{vt[0]}, 15, v0
        v_lshlrev_b32 v{vt[0]}, 2, v{vt[0]}
        buffer_load_dword v{vt[1]}, v{vt[0]}, {s(SF,4)}, s{sRot} offen offset:{off} sc1
        K2_NOPS{off}:
        """)
    def poll(off, mask):
        a(f"""
        s_cmp_lg_u32 s{sW}, 0
        s_cbranch_scc1 K2_NOPOLL{off}
        s_lshl_b32 s{sT0}, s{sG}, 8
        s_mov_b32 s{sT2}, 0x200000
        """)
        regs = [vt[1], vt[4], vt[5], vPv][:NPOLL]
        for r in regs[1:]:
            a(f"buffer_load_dword v{r}, v{vt[0]}, {s(SF,4)}, s{sT0} offen offset:{off} sc1")
        a(f"""
        K2_POLL{off}:
        s_sub_u32 s{sT2}, s{sT2}, 1
        s_cbranch_scc1 K2_PDONE{off}
        """)
        for r in regs:
            a(f"""
            s_waitcnt vmcnt({NPOLL-1})
            v_cmp_ne_u32 vcc, 0, v{r}
            buffer_load_dword v{r}, v{vt[0]}, {s(SF,4)}, s{sT0} offen offset:{off} sc1
            s_and_b32 s{sT1}, vcc_lo, {hex(mask)}
            s_cmp_eq_u32 s{sT1}, {hex(mask)}
            s_cbranch_scc1 K2_PDONE{off}
            """)
        a(f"""
        s_branch K2_POLL{off}
        K2_PDONE{off}:
        K2_NOPOLL{off}:
        s_barrier
        """)
    stamp(a, 5)
    if RELOAD:
        a.c("touch the lines just written so that they sit in the local L2 (speed only)")
        a(f"""
        buffer_load_dword v{T+12}, v{vt[4]}, {s(SHN,4)}, s{sT0} offen sc1
        buffer_load_dword v{T+13}, v{vVo}, {s(SQ,4)}, s{sV1} offen sc1
        """)
    signal(0, 2 if RELOAD else 0)
    a(f"""
    s_cmp_eq_u32 s{sMm}, 15
    s_cbranch_scc1 K2_SKIP1
    """)
    poll_start(0)
    a(f"""
    v_lshrrev_b32 v{vt[2]}, 5, v0
    v_lshlrev_b32 v{vt[2]}, 3, v{vt[2]}
    v_add_u32 v{vt[2]}, {B1L}, v{vt[2]}
    s_cmp_eq_u32 s{sHalf}, 0
    s_cselect_b32 s{sT2}, -1, 0
    s_and_b32 s{sSo}, s{sT2}, 0xffff0000
    """)
    BI = Kf
    acc1 = [O[0], O[1], hacc]
    for ft in range(3):
        for q in range(4):
            a(f"ds_read_b64 {v(BI+8*ft+2*q,2)}, v{vt[2]} offset:{ft*64+q*16}")
    a("s_waitcnt lgkmcnt(0)")
    for ft in range(3):
        for i in range(8):
            a(f"v_and_b32 v{acc1[ft]+2*i+1}, s{sSo}, v{BI+8*ft+i}")
            a(f"v_and_b32 v{BI+8*ft+i}, s{sT2}, v{BI+8*ft+i}")
            a(f"v_lshlrev_b32 v{acc1[ft]+2*i}, 16, v{BI+8*ft+i}")
    Bf = [Kf + 4*i for i in range(8)] + [woA + 4*i for i in range(4)] + [T + 4*i for i in range(4)]
    Af = [Vf, Vf + 4, OFr, OFr + 4, nrm, nrm + 4, Q, zero]
    vWa = vOa; vEx = vLa; vEr = vNr
    sRT, sKH = sV1, sHalf
    a(f"""
    s_and_b32 s{sRT}, s{sW}, 3
    s_lshl_b32 s{sT0}, s{sG}, 2
    s_add_u32 s{sRT}, s{sRT}, s{sT0}
    v_lshrrev_b32 v{vt[2]}, 5, v0
    v_lshlrev_b32 v{vt[2]}, 9, v{vt[2]}
    v_bfe_u32 v{vt[3]}, v0, 2, 2
    v_lshl_add_u32 v{vt[2]}, v{vt[3]}, 6, v{vt[2]}
    v_bfe_u32 v{vt[3]}, v0, 4, 1
    v_lshl_add_u32 v{vt[2]}, v{vt[3]}, 5, v{vt[2]}
    v_and_b32 v{vt[3]}, 3, v0
    v_lshl_add_u32 v{vt[2]}, v{vt[3]}, 3, v{vt[2]}
    s_mul_i32 s{sT0}, s{sKH}, 49152
    v_add_u32 v{vWa}, s{sT0}, v{vt[2]}
    s_mul_i32 s{sT0}, s{sW}, 6144
    s_add_u32 s{sT0}, s{sT0}, {EXB}
    v_add_u32 v{vEx}, s{sT0}, v{vQa}
    s_xor_b32 s{sT0}, s{sW}, 4
    s_mul_i32 s{sT0}, s{sT0}, 6144
    s_add_u32 s{sT0}, s{sT0}, {EXB}
    v_add_u32 v{vEr}, s{sT0}, v{vQa}
    s_lshl_b32 s{sWm}, s{sRT}, 15
    s_lshl_b32 s{sT0}, s{sKH}, 14
    s_add_u32 s{sWm}, s{sWm}, s{sT0}
    """)
    def areads(f):
        ks, ft = divmod(f, 3)
        off = ks * 3072 + ft * 1024
        a(f"ds_read_b64_tr_b16 {v(Af[f%8],2)}, v{vWa} offset:{off}")
        a(f"ds_read_b64_tr_b16 {v(Af[f%8]+2,2)}, v{vWa} offset:{off+256}")
    for f in range(5):
        areads(f)
    if W2L == "thin":
        a(f"""
        s_cmp_eq_u32 s{sW}, 0
        s_cbranch_scc1 K2_NW2
        """)
        for i in range(8, 11):
            a(ldW2(i))
            if i < 10:
                a("s_waitcnt vmcnt(0)")
        a("K2_NW2:")
    poll(0, 0xffff)
    stamp(a, 6)
    for i in range(16):
        a(f"""
        s_add_u32 s{sSo}, s{sMm}, {i}
        s_and_b32 s{sSo}, s{sSo}, 15
        s_lshl_b32 s{sSo}, s{sSo}, 10
        s_add_u32 s{sSo}, s{sSo}, s{sWm}
        buffer_load_dwordx4 {v(Bf[i],4)}, v{vQa}, {s(SHN,4)}, s{sSo} offen {LDF}
        """)
    for f in range(48):
        ks, ft = divmod(f, 3)
        later = min(4, 47 - f)
        w = f"lgkmcnt({2*later})"
        if ft == 0:
            w = f"vmcnt({15 - ks + (2*min(11 - W2T, max(0, ks - (W2T + 2))) if W2L == 'mid' else 0)}) " + w
        a(f"s_waitcnt {w}")
        a(f"v_mfma_f32_32x32x16_bf16 {v(acc1[ft],16)}, {v(Af[f%8],4)}, {v(Bf[ks],4)}, {v(acc1[ft],16)}")
        if f + 5 < 48:
            areads(f + 5)
        if W2L == "mid" and ft == 2 and W2T + 2 <= ks < 13:
            a(ldW2(ks - 2))
    stamp(a, 7)
    if W2L == "thin":
        a(f"""
        s_cmp_lg_u32 s{sW}, 0
        s_cbranch_scc1 K2_NW3
        """)
    if W2L != "mid":
        a(ldW2(8) + ldW2(9) + ldW2(10))
    a("K2_NW3:")
    a(f"""
    s_mul_i32 s{sT0}, s{sRT}, 86
    s_lshl_b32 s{sT1}, s{sT0f}, 1
    s_add_u32 s{sT0}, s{sT0}, s{sT1}
    s_mul_i32 s{sT1}, s{sKH}, 3
    s_add_u32 s{sT0}, s{sT0}, s{sT1}
    s_lshl_b32 s{sT0}, s{sT0}, 10
    s_cmp_eq_u32 s{sMm}, 14
    s_cselect_b32 s{sT1}, 0x1000000, s{sT0}
    s_nop 5
    s_cmp_eq_u32 s{sKH}, 1
    s_cbranch_scc1 K2_EX1
    """)
    lo = [acc1[0], acc1[0] + 8, acc1[1]]
    hi = [acc1[1] + 8, acc1[2], acc1[2] + 8]
    RX = Kf
    def exchange(keep, send, so):
        for q in range(3):
            a(f"ds_write_b128 v{vEx}, {v(send[q],4)} offset:{q*2048}")
            a(f"ds_write_b128 v{vEx}, {v(send[q]+4,4)} offset:{q*2048+1024}")
        a("s_waitcnt lgkmcnt(0)")
        a("s_barrier")
        for q in range(6):
            a(f"ds_read_b128 {v(RX+4*q,4)}, v{vEr} offset:{q*1024}")
        for q in range(3):
            a(f"s_waitcnt lgkmcnt({4-2*q})")
            for i in range(4):
                a(f"v_pk_add_f32 {v(keep[q]+2*i,2)}, {v(keep[q]+2*i,2)}, {v(RX+8*q+2*i,2)}")
            for i in range(8):
                a(f"v_max_f32 v{keep[q]+i}, 0, v{keep[q]+i}")
            for i in range(4):
                a(f"v_pk_mul_f32 {v(keep[q]+2*i,2)}, {v(keep[q]+2*i,2)}, {v(keep[q]+2*i,2)}")
            for i in range(4):
                a(f"v_cvt_pk_bf16_f32 v{woA+4*q+i}, v{keep[q]+2*i}, v{keep[q]+2*i+1}")
            a(f"buffer_store_dwordx4 {v(woA+4*q,4)}, v{vQa}, {s(SG,4)}, s{so[q]} offen offset:{q*1024} sc1")
    exchange(lo, hi, [sT1, sT1, sT1])
    a("s_branch K2_EXJ")
    a("K2_EX1:")
    exchange(hi, lo, [sT1, sT0, sT0])
    a("K2_EXJ:")
    stamp(a, 8)
    if RELOAD:
        for q in range(3):
            a(f"buffer_load_dword v{hacc+q}, v{vQa}, {s(SG,4)}, s{sT0} offen offset:{q*1024} sc1")
    signal(128, 3 if RELOAD else 0)
    a("s_branch K2_FFN2")
    a("K2_SKIP1:")
    a("".join(ldW2(i) for i in range(W2T, 11)))
    a("K2_FFN2:")
    poll_start(128)
    Gf = [Kf + 4*i for i in range(8)] + [Vf, Vf + 4] + [woA + 4*i for i in range(4)] + [T + 4*i for i in range(4)] + [OFr, OFr + 4]
    Gf += Gf[:2]
    acc2 = [O[0], O[1], hacc, zero]
    vG1 = vOa; vOo = vLa; vRw = vNr; vRr = vNl; vB2 = vNw
    sGo, sOo, sGend = sWm, sV1, sRot
    srd(a, SX, 18, 19, 0, 1024)
    srd(a, SHN, 10, 11, 0, 0x200000)
    a(f"""
    s_lshl_b32 s{sT0}, s{sG}, 1
    s_lshr_b32 s{sT1}, s{sMm}, 3
    s_add_u32 s{sT0}, s{sT0}, s{sT1}
    s_lshl_b32 s{sOo}, s{sT0}, 16
    s_mul_i32 s{sGo}, s{sT0}, {2*86*1024}
    s_add_u32 s{sGend}, s{sGo}, {86*1024}
    s_lshl_b32 s{sT1}, s{sW}, 10
    s_add_u32 s{sGo}, s{sGo}, s{sT1}
    v_add_u32 v{vG1}, {86*1024}, v{vQa}
    v_and_b32 v{vt[2]}, 31, v0
    v_mul_u32_u24 v{vt[2]}, 272, v{vt[2]}
    v_lshrrev_b32 v{vt[3]}, 5, v0
    v_lshl_add_u32 v{vt[2]}, v{vt[3]}, 4, v{vt[2]}
    s_mul_i32 s{sT0}, s{sW}, {RSTR}
    v_add_u32 v{vRw}, s{sT0}, v{vt[2]}
    v_lshrrev_b32 v{vt[2]}, 3, v0
    s_lshl_b32 s{sT0}, s{sW}, 3
    v_add_u32 v{vt[2]}, s{sT0}, v{vt[2]}
    v_and_b32 v{vt[3]}, 7, v0
    v_mul_u32_u24 v{vRr}, 272, v{vt[2]}
    v_lshl_add_u32 v{vRr}, v{vt[3]}, 5, v{vRr}
    s_lshl_b32 s{sT0}, s{sCB2}, 7
    v_lshlrev_b32 v{vB2}, 4, v{vt[3]}
    v_add_u32 v{vB2}, s{sT0}, v{vB2}
    v_lshl_add_u32 v{vOo}, v{vt[2]}, 10, v{vB2}
    """)
    poll(128, 0x7fff)
    stamp(a, 9)
    def ldG(i):
        a(f"""
        s_add_u32 s{sSo}, s{sCB2}, {i}
        s_sub_u32 s{sT1}, s{sSo}, 11
        s_cselect_b32 s{sSo}, s{sSo}, s{sT1}
        s_lshl_b32 s{sSo}, s{sSo}, 13
        s_add_u32 s{sSo}, s{sSo}, s{sGo}
        s_cmp_ge_u32 s{sSo}, s{sGend}
        s_cselect_b32 s{sSo}, 0x1000000, s{sSo}
        """)
        a(f"buffer_load_dwordx4 {v(Gf[2*i],4)}, v{vQa}, {s(SG,4)}, s{sSo} offen {LDF}")
        a(f"buffer_load_dwordx4 {v(Gf[2*i+1],4)}, v{vG1}, {s(SG,4)}, s{sSo} offen {LDF}")
    for i in range(10):
        ldG(i)
    for i in range(11):
        a(f"s_waitcnt vmcnt({18 if i == 0 else 2*(10-i)})")
        for ct in range(2):
            for rt in range(2):
                d = acc2[2*ct + rt]
                a(f"v_mfma_f32_32x32x16_bf16 {v(d,16)}, {v(W2R+8*i+4*ct,4)}, {v(Gf[2*i+rt],4)}, {'0' if i == 0 else v(d,16)}")
        if i == 0:
            ldG(10)
    stamp(a, 10)
    HR = woA; B2 = woA + 4
    a(f"""
    buffer_load_dwordx4 {v(HR,4)}, v{vOo}, {s(SQ,4)}, s{sOo} offen sc1
    buffer_load_dwordx4 {v(B2,4)}, v{vB2}, {s(SX,4)}, 0 offen
    v_add_u32 v{vt[2]}, {3*RSTR}, v{vRr}
    v_add_u32 v{vt[3]}, {6*RSTR}, v{vRr}
    s_nop 7
    """)
    for ct in range(2):
        for rt in range(2):
            for q in range(4):
                d = acc2[2*ct + rt] + 4*q
                a(f"ds_write_b128 v{vRw}, {v(d,4)} offset:{rt*32*272 + (32*ct + 8*q)*4}")
    a("s_waitcnt vmcnt(0)")
    for i in range(4):
        a(f"v_lshlrev_b32 v{T+2*i}, 16, v{HR+i}")
        a(f"v_and_b32 v{T+2*i+1}, 0xffff0000, v{HR+i}")
        a(f"v_lshlrev_b32 v{T+8+2*i}, 16, v{B2+i}")
        a(f"v_and_b32 v{T+8+2*i+1}, 0xffff0000, v{B2+i}")
    for i in range(4):
        a(f"v_pk_add_f32 {v(T+2*i,2)}, {v(T+2*i,2)}, {v(T+8+2*i,2)}")
    a("s_waitcnt lgkmcnt(0)")
    a("s_barrier")
    stamp(a, 11)
    RR = W2R
    for w in range(8):
        base = (vRr, vt[2], vt[3])[w // 3]
        for q in range(2):
            a(f"ds_read_b128 {v(RR+8*w+4*q,4)}, v{base} offset:{(w % 3)*RSTR + 16*q}")
    for w in range(0, 8, 2):
        a(f"s_waitcnt lgkmcnt({12 - 2*w})")
        for i in range(4):
            a(f"v_pk_add_f32 {v(RR+8*w+2*i,2)}, {v(RR+8*w+2*i,2)}, {v(RR+8*w+8+2*i,2)}")
        for i in range(4):
            a(f"v_pk_add_f32 {v(T+2*i,2)}, {v(T+2*i,2)}, {v(RR+8*w+2*i,2)}")
    for i in range(4):
        a(f"v_cvt_pk_bf16_f32 v{T+8+i}, v{T+2*i}, v{T+2*i+1}")
    a(f"buffer_store_dwordx4 {v(T+8,4)}, v{vOo}, {s(SHN,4)}, s{sOo} offen {OUTF}")
    stamp_dump(a, 1, sW)
    a("K2_END:")
    a("s_endpgm")
    a.c("slow path: true row maxima first")
    a("K2_SLOW:")
    MB = MISC + 1024
    a("s_setprio 0")
    for i in range(SLOW_V0, 16):
        a(ldV(i))
    a("s_nop 7\ns_nop 7")
    for o in O:
        a(f"v_mfma_f32_32x32x16_bf16 {v(o,16)}, {v(zero,4)}, {v(zero,4)}, 0")
    a(f"""
    v_and_b32 v{vt[0]}, 31, v0
    v_lshlrev_b32 v{vt[0]}, 2, v{vt[0]}
    v_add_u32 v{vt[0]}, {MB}, v{vt[0]}
    s_lshl_b32 s{sT0}, s{sW}, 7
    v_add_u32 v{vt[1]}, s{sT0}, v{vt[0]}
    v_mov_b32 v{vt[2]}, 0xff800000
    ds_write_b32 v{vt[1]}, v{vt[2]}
    s_waitcnt vmcnt(0) lgkmcnt(0)
    s_barrier
    v_mov_b32 v{vt[1]}, v{vt[0]}
    v_mov_b32 v{vt[3]}, v{vQl}
    s_mov_b32 s{sT0}, 0
    K2_P1:
    ds_read_b128 {v(Q,4)}, v{vt[3]}
    v_mov_b32 v{nrm}, 0xff800000
    s_waitcnt lgkmcnt(0)
    """)
    for j in range(8):
        a(f"v_mfma_f32_32x32x16_bf16 {v(S[0],16)}, {v(Kf+4*j,4)}, {v(Q,4)}, 0")
        a("s_nop 7\ns_nop 3")
        for i in range(8):
            a(f"v_max3_f32 v{nrm}, v{nrm}, v{S[0]+2*i}, v{S[0]+2*i+1}")
        a("s_nop 1")
    a(f"""
    ds_max_f32 v{vt[1]}, v{nrm}
    v_add_u32 v{vt[1]}, 128, v{vt[1]}
    v_add_u32 v{vt[3]}, 1024, v{vt[3]}
    s_add_u32 s{sT0}, s{sT0}, 1
    s_cmp_lt_u32 s{sT0}, 8
    s_cbranch_scc1 K2_P1
    ds_read_b128 {v(Q,4)}, v{vQl}
    s_waitcnt lgkmcnt(0)
    s_barrier
    """)
    mainloop(True)
    a("s_branch K2_TAIL")
    for r in retries:
        lab = r.split(":")[0]
        if any(("s_cbranch_vccnz " + lab) == l.strip() for l in a.lines):
            a(r)
    return name, R.cur, K2_LDS
```

```python
from asmlib import *
from common import *

XBASE = 0
WBASE = 65536
KVBASE = 131072
STBASE = 147456
K1_LDS = STBASE + 16384

import os
CODEPF = os.environ.get("CODEPF", "1") == "1"
K1F = K1Q = "sc1"
UP = int(os.environ.get("UP", "2"))
JF = int(os.environ.get("JF", "23"))
UPX = os.environ.get("UPX", "0") == "1"
BARS = [int(x) for x in os.environ.get("BARS", "0,2").split(",")]

def gen_k1(a):
    name = KNAME
    kernel_header(a, name)
    R = Regs(1, 128)
    R.alloc("pad")
    vt = [R.alloc(f"t{i}") for i in range(8)]
    NS = 4
    pool = R.alloc("pool", 116, 4)
    sW, sRB, sCB, sWR, sWC, sH = 20, 21, 22, 23, 44, 45
    sT0, sT1, sXm, sWm, sKm, sSo, sWv, sB = 46, 47, 48, 49, 50, 51, 56, 57
    SX, SWQ, SKW, SQ, SKV, SWO = 24, 28, 32, 36, 40, 52
    a(f"""
    s_cmp_ge_u32 s2, 256
    s_cbranch_scc1 K2_END
    s_load_dwordx8 s[8:15], s[0:1], 0
    s_load_dwordx2 s[16:17], s[0:1], 96
    s_load_dwordx2 s[18:19], s[0:1], 32
    s_load_dwordx2 s[4:5], s[0:1], 64
    v_lshrrev_b32 v{vt[0]}, 6, v0
    v_and_b32 v0, 63, v0
    v_readfirstlane_b32 s{sW}, v{vt[0]}
    s_and_b32 s{sT0}, s2, 7
    s_lshr_b32 s{sT1}, s2, 3
    s_lshl_b32 s{sRB}, s{sT0}, 2
    s_and_b32 s{sT0}, s{sT1}, 3
    s_add_u32 s{sRB}, s{sRB}, s{sT0}
    s_lshr_b32 s{sCB}, s{sT1}, 2
    """)
    stamp_init(a)
    a(f"""
    s_cmp_ge_u32 s{sW}, 4
    s_cbranch_scc1 K1_MM
    """)
    P = Regs(pool, pool + 116)
    vXoff = [P.alloc(f"xoff{e}") for e in range(4)]
    vWoff = [P.alloc(f"woff{e}") for e in range(2)]
    vKoff = P.alloc("koff")
    vXs = [P.alloc(f"xs{i}") for i in range(4)]
    vX16a = P.alloc("x16a"); vKWa = P.alloc("kwa")
    Gq = P.alloc("gq", 4); Gs = P.alloc("gs", 4)
    ones = P.alloc("ones", 4)
    Xs = P.alloc("xsd", 16); Ws = P.alloc("wsd", 16)
    X16 = P.alloc("x16", 4); KW = P.alloc("kw", 4)
    Dk = P.alloc("dk", 4); Dc = P.alloc("dc", 4)
    st = P.alloc("st", 8, 4); pk = P.alloc("pk", 2, 2)
    a("s_setprio 3")
    a(f"""
    v_lshrrev_b32 v{vt[2]}, 4, v0
    v_and_b32 v{vt[3]}, 15, v0
    s_lshl_b32 s{sT0}, s{sW}, 14
    """)
    for e in range(4):
        a(f"""
        v_add_u32 v{vt[4]}, {4*e}, v{vt[2]}
        v_xor_b32 v{vt[5]}, v{vt[3]}, v{vt[4]}
        v_lshlrev_b32 v{vt[5]}, 4, v{vt[5]}
        v_lshl_add_u32 v{vt[5]}, v{vt[4]}, 10, v{vt[5]}
        v_add_u32 v{vXoff[e]}, s{sT0}, v{vt[5]}
        """)
    a(f"""
    v_lshrrev_b32 v{vt[4]}, 2, v0
    v_and_b32 v{vt[5]}, 3, v0
    v_lshlrev_b32 v{vt[5]}, 4, v{vt[5]}
    v_lshl_add_u32 v{vt[7]}, v{vt[4]}, 10, v{vt[5]}
    s_lshl_b32 s{sT0}, s{sCB}, 7
    s_lshl_b32 s{sT1}, s{sW}, 15
    s_add_u32 s{sT0}, s{sT0}, s{sT1}
    v_add_u32 v{vWoff[0]}, s{sT0}, v{vt[7]}
    v_add_u32 v{vWoff[1]}, 0x4000, v{vWoff[0]}
    v_lshrrev_b32 v{vt[4]}, 1, v0
    v_and_b32 v{vt[5]}, 0x13, v{vt[4]}
    v_and_b32 v{vt[6]}, 4, v{vt[4]}
    v_lshl_or_b32 v{vt[5]}, v{vt[6]}, 1, v{vt[5]}
    v_and_b32 v{vt[6]}, 8, v{vt[4]}
    v_lshrrev_b32 v{vt[6]}, 1, v{vt[6]}
    v_or_b32 v{vt[5]}, v{vt[5]}, v{vt[6]}
    v_lshlrev_b32 v{vt[5]}, 5, v{vt[5]}
    v_and_b32 v{vt[6]}, 1, v0
    v_lshl_add_u32 v{vt[5]}, v{vt[6]}, 4, v{vt[5]}
    s_lshl_b32 s{sT0}, s{sW}, 10
    v_add_u32 v{vKoff}, s{sT0}, v{vt[5]}
    s_lshl_b32 s{sXm}, s{sW}, 12
    s_lshl_b32 s{sWm}, s{sW}, 11
    s_add_u32 s{sWm}, s{sWm}, {WBASE}
    s_add_u32 s{sKm}, s{sT0}, {KVBASE}
    s_lshl_b32 s{sT0}, s{sRB}, 16
    s_waitcnt lgkmcnt(0)
    s_add_u32 s{SX}, s8, s{sT0}
    s_addc_u32 s{SX+1}, s9, 0
    s_mov_b32 s{SX+2}, 0x10000
    s_mov_b32 s{SX+3}, 0x20000
    """)
    srd(a, SWQ, 10, 11, 0, 524288)
    a(f"""
    s_bitcmp1_b32 s{sCB}, 0
    s_cselect_b32 s{SKW}, s14, s12
    s_cselect_b32 s{SKW+1}, s15, s13
    s_mov_b32 s{SKW+2}, 0x4000
    s_mov_b32 s{SKW+3}, 0x20000
    """)
    a(f"s_add_u32 s{sB}, s{sCB}, s{sRB}")
    def issue(c):
        a(f"""
        s_add_u32 s{sWv}, s{sB}, {c}
        s_and_b32 s{sWv}, s{sWv}, 3
        s_lshl_b32 s{sSo}, s{sWv}, 8
        """)
        for e in range(4):
            a(f"s_add_u32 m0, s{sXm}, {XBASE + c*16384 + e*1024}")
            a("s_nop 0")
            a(f"buffer_load_dwordx4 v{vXoff[e]}, {s(SX,4)}, s{sSo} offen lds")
        a(f"s_lshl_b32 s{sSo}, s{sWv}, 17")
        for kb in range(2):
            for ct in range(2):
                a(f"s_add_u32 m0, s{sWm}, {(ct*32 + c*8 + kb)*1024 - ct*64}")
                a("s_nop 0")
                a(f"buffer_load_dwordx4 v{vWoff[kb]}, {s(SWQ,4)}, s{sSo} offen offset:{ct*64} lds")
        a(f"s_lshl_b32 s{sSo}, s{sWv}, 12")
        a(f"s_add_u32 m0, s{sKm}, {c*4096}")
        a("s_nop 0")
        a(f"buffer_load_dwordx4 v{vKoff}, {s(SKW,4)}, s{sSo} offen lds")
    for c in range(UP):
        issue(c)
    a("s_setprio 0")
    stamp(a, 1)
    a(f"""
    s_lshl_b32 s{sT0}, s{sW}, 12
    v_lshlrev_b32 v{vt[4]}, 8, v{vt[3]}
    v_add_u32 v{vt[4]}, s{sT0}, v{vt[4]}
    v_lshlrev_b32 v{vt[5]}, 2, v{vt[2]}
    """)
    for i in range(4):
        a(f"""
        v_add_u32 v{vt[6]}, {i}, v{vt[5]}
        v_xor_b32 v{vt[6]}, v{vt[6]}, v{vt[3]}
        v_lshl_add_u32 v{vXs[i]}, v{vt[6]}, 4, v{vt[4]}
        """)
    a(f"""
    v_lshrrev_b32 v{vt[1]}, 5, v0
    v_bfe_u32 v{vt[5]}, v0, 2, 2
    v_bfe_u32 v{vt[6]}, v0, 4, 1
    v_and_b32 v{vt[0]}, 3, v0
    v_lshlrev_b32 v{vt[4]}, 9, v{vt[1]}
    v_lshl_add_u32 v{vt[4]}, v{vt[6]}, 7, v{vt[4]}
    v_lshl_add_u32 v{vt[4]}, v{vt[5]}, 5, v{vt[4]}
    v_lshl_add_u32 v{vt[4]}, v{vt[0]}, 3, v{vt[4]}
    v_add_u32 v{vKWa}, s{sKm}, v{vt[4]}
    s_lshr_b32 s{sT0}, s{sCB}, 1
    s_lshl_b32 s{sT0}, s{sT0}, 12
    s_lshl_b32 s{sT1}, s{sW}, 2
    v_add_u32 v{vt[6]}, s{sT1}, v{vt[2]}
    v_xor_b32 v{vt[6]}, v{vt[6]}, v{vt[3]}
    v_lshlrev_b32 v{vt[6]}, 4, v{vt[6]}
    v_lshl_add_u32 v{vt[6]}, v{vt[3]}, 8, v{vt[6]}
    v_add_u32 v{vX16a}, s{sT0}, v{vt[6]}
    """)
    for i in range(4):
        a(f"v_mov_b32 v{ones+i}, 0x3f803f80")
    srd(a, SKV, 16, 17, WS_K, KV_BYTES)
    for c in range(4):
        z = (lambda r: "0") if c == 0 else (lambda r: v(r, 4))
        a(f"s_waitcnt vmcnt({(9, 18, 9, 0)[c] if UPX else 9 * min(UP - 1, 3 - c)})")
        a("s_barrier")
        stamp(a, 2 + c)
        for i in range(4):
            a(f"ds_read_b128 {v(Xs+4*i,4)}, v{vXs[i]} offset:{c*16384}")
        a(f"ds_read_b128 {v(X16,4)}, v{vX16a} offset:{c*16384}")
        a(f"ds_read_b64_tr_b16 {v(KW,2)}, v{vKWa} offset:{c*4096}")
        a(f"ds_read_b64_tr_b16 {v(KW+2,2)}, v{vKWa} offset:{c*4096+256}")
        if UPX:
            if c == 0:
                issue(2)
        elif c + UP < 4:
            issue(c + UP)
        for i in range(4):
            a(f"s_waitcnt lgkmcnt({6-i})")
            a(f"v_mfma_f32_16x16x32_bf16 {v(Gq,4)}, {v(Xs+4*i,4)}, {v(Xs+4*i,4)}, {z(Gq) if i == 0 else v(Gq,4)}")
            a(f"v_mfma_f32_16x16x32_bf16 {v(Gs,4)}, {v(Xs+4*i,4)}, {v(ones,4)}, {z(Gs) if i == 0 else v(Gs,4)}")
        a(f"""
        s_waitcnt lgkmcnt(0)
        s_bitcmp1_b32 s{sCB}, 0
        s_cbranch_scc1 K1_V{c}
        v_mfma_f32_16x16x32_bf16 {v(Dk,4)}, {v(KW,4)}, {v(X16,4)}, {z(Dk)}
        v_mfma_f32_16x16x32_bf16 {v(Dc,4)}, {v(KW,4)}, {v(ones,4)}, {z(Dc)}
        s_branch K1_J{c}
        K1_V{c}:
        v_mfma_f32_16x16x32_bf16 {v(Dk,4)}, {v(X16,4)}, {v(KW,4)}, {z(Dk)}
        v_mfma_f32_16x16x32_bf16 {v(Dc,4)}, {v(ones,4)}, {v(KW,4)}, {z(Dc)}
        K1_J{c}:
        """)
        if UPX and c == 0:
            issue(3)
    stamp(a, 6)
    a.c("row statistics: lane n = 4g + r holds the diagonal of X X^T and the row sum in register r")
    a(f"""
    v_and_b32 v{vt[0]}, 1, v0
    v_cmp_eq_u32 vcc, 1, v{vt[0]}
    v_and_b32 v{vt[0]}, 2, v0
    v_cmp_eq_u32 s[6:7], 2, v{vt[0]}
    s_mov_b32 s{sXm}, {hex(f32bits(1.0/512))}
    s_mov_b32 s{sWm}, {hex(f32bits(1e-5))}
    v_cndmask_b32 v{Gq}, v{Gq}, v{Gq+1}, vcc
    v_cndmask_b32 v{Gq+2}, v{Gq+2}, v{Gq+3}, vcc
    v_cndmask_b32 v{Gs}, v{Gs}, v{Gs+1}, vcc
    v_cndmask_b32 v{Gs+2}, v{Gs+2}, v{Gs+3}, vcc
    v_cndmask_b32 v{st+1}, v{Gq}, v{Gq+2}, s[6:7]
    v_cndmask_b32 v{st}, v{Gs}, v{Gs+2}, s[6:7]
    v_mul_f32 v{st+3}, s{sXm}, v{st}
    v_mul_f32 v{st+1}, s{sXm}, v{st+1}
    v_fma_f32 v{st+1}, -v{st+3}, v{st+3}, v{st+1}
    v_max_f32 v{st+1}, 0, v{st+1}
    v_add_f32 v{st+1}, s{sWm}, v{st+1}
    v_rsq_f32 v{st+2}, v{st+1}
    s_lshl_b32 s{sT0}, s{sW}, 8
    s_add_u32 s{sT0}, s{sT0}, {STBASE}
    v_lshlrev_b32 v{vt[0]}, 4, v{vt[3]}
    v_mul_f32 v{st}, {hex(f32bits(QSCALE))}, v{st+2}
    v_add_u32 v{vt[0]}, s{sT0}, v{vt[0]}
    v_mul_f32 v{st+1}, v{st}, v{st+3}
    s_mov_b32 exec_lo, 0x00f0000f
    s_mov_b32 exec_hi, 0xf0000f00
    ds_write_b128 v{vt[0]}, {v(st,4)}
    s_mov_b64 exec, -1
    """)
    a(f"""
    v_lshlrev_b32 v{vt[4]}, 4, v0
    v_add_u32 v{vt[4]}, {STBASE + 2048}, v{vt[4]}
    s_lshl_b32 s{sT0}, s{sW}, 11
    v_add_u32 v{vt[5]}, s{sT0}, v{vt[4]}
    s_cmp_eq_u32 s{sW}, 3
    s_cbranch_scc1 K1_NOKVP
    ds_write_b128 v{vt[5]}, {v(Dk,4)}
    ds_write_b128 v{vt[5]}, {v(Dc,4)} offset:1024
    K1_NOKVP:
    s_waitcnt lgkmcnt(0)
    s_barrier
    s_cmp_lg_u32 s{sW}, 3
    s_cbranch_scc1 K1_DONE
    """)
    a.c("KV epilogue (wave 3)")
    g, d = vt[2], vt[3]
    Pp = Xs
    assert Ws == Xs + 16 and Dc == Dk + 4
    for w in range(3):
        a(f"ds_read_b128 {v(Pp+8*w,4)}, v{vt[4]} offset:{w*2048}")
        a(f"ds_read_b128 {v(Pp+8*w+4,4)}, v{vt[4]} offset:{w*2048+1024}")
    def kvsum():
        for i in range(4):
            a(f"v_pk_add_f32 {v(Pp+2*i,2)}, {v(Pp+2*i,2)}, {v(Pp+8+2*i,2)}")
            a(f"v_pk_add_f32 {v(Pp+16+2*i,2)}, {v(Pp+16+2*i,2)}, {v(Dk+2*i,2)}")
        for i in range(4):
            a(f"v_pk_add_f32 {v(Dk+2*i,2)}, {v(Pp+2*i,2)}, {v(Pp+16+2*i,2)}")
    a(f"""
    s_lshr_b32 s{sH}, s{sCB}, 1
    s_lshl_b32 s{sT0}, s{sH}, 8
    s_add_u32 s{sT0}, s{sT0}, {STBASE}
    s_lshl_b32 s{sKm}, s{sRB}, 2
    s_add_u32 s{sKm}, s{sKm}, s{sH}
    s_bitcmp1_b32 s{sCB}, 0
    s_cbranch_scc1 K1_VEP
    """)
    a.c("K tile: lane key = l&15")
    a(f"""
    v_lshlrev_b32 v{vt[0]}, 4, v{d}
    v_add_u32 v{vt[0]}, s{sT0}, v{vt[0]}
    ds_read_b64 {v(st,2)}, v{vt[0]} offset:8
    v_and_b32 v{vt[1]}, 3, v{d}
    v_and_b32 v{vt[5]}, 4, v{d}
    v_lshl_or_b32 v{vt[1]}, v{vt[5]}, 1, v{vt[1]}
    v_and_b32 v{vt[5]}, 8, v{d}
    v_lshrrev_b32 v{vt[5]}, 1, v{vt[5]}
    v_or_b32 v{vt[1]}, v{vt[1]}, v{vt[5]}
    v_lshlrev_b32 v{vt[1]}, 4, v{vt[1]}
    v_and_b32 v{vt[5]}, 1, v{g}
    v_lshl_add_u32 v{vt[1]}, v{vt[5]}, 9, v{vt[1]}
    v_lshrrev_b32 v{vt[5]}, 1, v{g}
    v_lshl_add_u32 v{vt[1]}, v{vt[5]}, 3, v{vt[1]}
    s_lshr_b32 s{sT1}, s{sKm}, 1
    s_lshl_b32 s{sT1}, s{sT1}, 10
    s_and_b32 s{sT0}, s{sKm}, 1
    s_lshl_b32 s{sT0}, s{sT0}, 8
    s_add_u32 s{sT1}, s{sT1}, s{sT0}
    s_waitcnt lgkmcnt(0)
    """)
    kvsum()
    for r in range(4):
        a(f"v_fma_f32 v{Dk+r}, -v{st+1}, v{Dc+r}, v{Dk+r}")
    for r in range(4):
        a(f"v_mul_f32 v{Dk+r}, v{Dk+r}, v{st}")
    a(f"""
    v_cvt_pk_bf16_f32 v{pk}, v{Dk}, v{Dk+1}
    v_cvt_pk_bf16_f32 v{pk+1}, v{Dk+2}, v{Dk+3}
    v_mul_f32 v{st+2}, v{Dk}, v{Dk}
    v_fmac_f32 v{st+2}, v{Dk+1}, v{Dk+1}
    v_fmac_f32 v{st+2}, v{Dk+2}, v{Dk+2}
    v_fmac_f32 v{st+2}, v{Dk+3}, v{Dk+3}
    buffer_store_dwordx2 {v(pk,2)}, v{vt[1]}, {s(SKV,4)}, s{sT1} offen sc1
    v_mov_b32 v{st+3}, v{st+2}
    s_nop 1
    v_permlane32_swap_b32 v{st+2}, v{st+3}
    v_add_f32 v{st+2}, v{st+2}, v{st+3}
    v_mov_b32 v{st+3}, v{st+2}
    s_nop 1
    v_permlane16_swap_b32 v{st+2}, v{st+3}
    v_add_f32 v{st+2}, v{st+2}, v{st+3}
    s_nop 1
    v_max_f32_dpp v{st+2}, v{st+2}, v{st+2} row_ror:8 row_mask:0xf bank_mask:0xf
    s_nop 1
    v_max_f32_dpp v{st+2}, v{st+2}, v{st+2} row_ror:4 row_mask:0xf bank_mask:0xf
    s_nop 1
    v_max_f32_dpp v{st+2}, v{st+2}, v{st+2} row_ror:2 row_mask:0xf bank_mask:0xf
    s_nop 1
    v_max_f32_dpp v{st+2}, v{st+2}, v{st+2} row_ror:1 row_mask:0xf bank_mask:0xf
    s_lshl_b32 s{sKm}, s{sKm}, 2
    s_add_u32 s{sKm}, s{sKm}, 0x21000
    v_mov_b32 v{vt[5]}, 0
    s_mov_b64 exec, 1
    buffer_store_dword v{st+2}, v{vt[5]}, {s(SKV,4)}, s{sKm} offen sc1
    s_branch K1_DONE
    K1_VEP:
    """)
    a.c("V tile: lane d = l&15, keys 4g+r")
    a(f"""
    v_lshlrev_b32 v{vt[0]}, 6, v{g}
    v_add_u32 v{vt[0]}, s{sT0}, v{vt[0]}
    """)
    for r in range(4):
        a(f"ds_read_b64 {v(st+2*r,2)}, v{vt[0]} offset:{16*r+8}")
    a(f"""
    v_lshlrev_b32 v{vt[1]}, 4, v{d}
    v_and_b32 v{vt[5]}, 1, v{g}
    v_lshl_add_u32 v{vt[1]}, v{vt[5]}, 8, v{vt[1]}
    v_lshrrev_b32 v{vt[5]}, 1, v{g}
    v_lshl_add_u32 v{vt[1]}, v{vt[5]}, 3, v{vt[1]}
    s_mul_i32 s{sT1}, s{sKm}, {VSTR}
    s_add_u32 s{sT1}, s{sT1}, 0x10000
    s_waitcnt lgkmcnt(0)
    """)
    kvsum()
    for r in range(4):
        a(f"v_fma_f32 v{Dk+r}, -v{st+2*r+1}, v{Dc+r}, v{Dk+r}")
    for r in range(4):
        a(f"v_mul_f32 v{Dk+r}, v{Dk+r}, v{st+2*r}")
    a(f"""
    v_cvt_pk_bf16_f32 v{pk}, v{Dk}, v{Dk+1}
    v_cvt_pk_bf16_f32 v{pk+1}, v{Dk+2}, v{Dk+3}
    buffer_store_dwordx2 {v(pk,2)}, v{vt[1]}, {s(SKV,4)}, s{sT1} offen sc1
    v_lshlrev_b32 v{vt[1]}, 2, v0
    s_mov_b64 exec, 15
    buffer_store_dword v{ones}, v{vt[1]}, {s(SKV,4)}, s{sT1} offen offset:512 sc1
    s_branch K1_DONE
    """)
    P = Regs(pool, pool + 116)
    vXa = [P.alloc(f"xa{i}") for i in range(8)]
    vWa = [P.alloc("wa0"), P.alloc("wa1")]
    vcs = [P.alloc("cs0"), P.alloc("cs1")]; onesr = P.alloc("onesr")
    Xf = [P.alloc(f"xf{i}", 4) for i in range(NS)]
    Wf = [P.alloc(f"wf{i}", 4) for i in range(NS)]
    acc = P.alloc("acc", 16); csr = P.alloc("csr", 16); pk = P.alloc("pk", 8); st = P.alloc("st", 2)
    jt = [P.alloc(f"jt{i}") for i in range(8)]
    sJ0, sJ1, sJb, sJs = 58, 59, 60, 61
    a("K1_MM:")
    a(f"s_sub_u32 s{sW}, s{sW}, 4")
    if CODEPF:
        a.c("pull the code of this launch list into L2 (one dword per 128-byte line)")
        a(f"""
        s_getpc_b64 s[6:7]
        K1_PC:
        s_sub_u32 s6, s6, K1_PC-{KNAME}
        s_subb_u32 s7, s7, 0
        s_lshl_b32 s{sT0}, s{sW}, 13
        s_add_u32 s6, s6, s{sT0}
        s_addc_u32 s7, s7, 0
        v_lshlrev_b32 v{vt[4]}, 7, v0
        v_mov_b32 v{vt[5]}, s7
        v_add_co_u32 v{vt[4]}, vcc, s6, v{vt[4]}
        s_nop 1
        v_addc_co_u32 v{vt[5]}, vcc, 0, v{vt[5]}, vcc
        global_load_dword v{jt[0]}, v[{vt[4]}:{vt[5]}], off
        """)
    def job_issue():
        a(f"""
        v_lshrrev_b32 v{jt[2]}, 4, v0
        v_and_b32 v{jt[3]}, 15, v0
        s_lshl_b32 s{sJ1}, s{sW}, 11
        s_add_u32 s{sJs}, s{sJ1}, {STBASE + 8192}
        v_bfe_u32 v{jt[5]}, v0, 2, 2
        v_and_b32 v{jt[6]}, 3, v0
        v_lshlrev_b32 v{jt[4]}, 4, v0
        s_cmp_eq_u32 s{sW}, 2
        s_cbranch_scc1 K1_WOJ
        """)
        a.c("w2 re-layout: block b = 3*wg + {0,1,2} ; ks = b>>3, cb = b&7")
        srd(a, SWO, 4, 5, 0, 1409024)
        a(f"""
        s_mul_i32 s{sJb}, s2, 3
        s_min_u32 s{sJ0}, s{sW}, 2
        s_add_u32 s{sJb}, s{sJb}, s{sJ0}
        s_lshr_b32 s{sJ0}, s{sJb}, 3
        s_lshl_b32 s{sJ0}, s{sJ0}, 14
        s_and_b32 s{sJ1}, s{sJb}, 7
        s_lshl_b32 s{sJ1}, s{sJ1}, 7
        s_add_u32 s{sJ0}, s{sJ0}, s{sJ1}
        v_lshrrev_b32 v{jt[7]}, 3, v0
        v_lshlrev_b32 v{jt[7]}, 10, v{jt[7]}
        v_and_b32 v{jt[0]}, 7, v0
        v_lshl_add_u32 v{jt[7]}, v{jt[0]}, 4, v{jt[7]}
        s_mov_b32 m0, s{sJs}
        s_add_u32 s{sJ1}, s{sJ0}, 0x2000
        buffer_load_dwordx4 v{jt[7]}, {s(SWO,4)}, s{sJ0} offen lds
        s_add_u32 m0, s{sJs}, 1024
        v_lshrrev_b32 v{jt[0]}, 5, v0
        buffer_load_dwordx4 v{jt[7]}, {s(SWO,4)}, s{sJ1} offen lds
        v_lshlrev_b32 v{jt[0]}, 9, v{jt[0]}
        v_lshl_add_u32 v{jt[0]}, v{jt[5]}, 7, v{jt[0]}
        v_bfe_u32 v{jt[1]}, v0, 4, 1
        v_lshl_add_u32 v{jt[0]}, v{jt[1]}, 5, v{jt[0]}
        v_lshl_add_u32 v{jt[0]}, v{jt[6]}, 3, v{jt[0]}
        v_add_u32 v{jt[0]}, s{sJs}, v{jt[0]}
        s_and_b32 s{sJ0}, s{sJb}, 7
        s_lshl_b32 s{sJ0}, s{sJ0}, 3
        s_bfe_u32 s{sJ1}, s{sJb}, 0x30003
        s_add_u32 s{sJ0}, s{sJ0}, s{sJ1}
        s_mul_i32 s{sJ0}, s{sJ0}, 11
        s_lshr_b32 s{sJ1}, s{sJb}, 6
        s_add_u32 s{sJ0}, s{sJ0}, s{sJ1}
        s_lshl_b32 s{sJ0}, s{sJ0}, 11
        s_cmp_lt_u32 s{sJb}, 704
        s_cselect_b32 s{sJ0}, s{sJ0}, 0x1000000
        """)
        srd(a, SWO, 16, 17, WS_W2, W2F_BYTES)
        a(f"""
        v_add_u32 v{jt[1]}, 1024, v{jt[0]}
        v_add_u32 v{jt[2]}, 64, v{jt[0]}
        v_add_u32 v{jt[3]}, 1088, v{jt[0]}
        s_branch K1_JOBST
        K1_WOJ:
        """)
        a.c("wo re-layout: block rows 32*(wg>>4).., cols 32*(wg&15)..")
        srd(a, SWO, 18, 19, 0, 524288)
        a(f"""
        s_lshr_b32 s{sJ0}, s2, 4
        s_lshl_b32 s{sJ0}, s{sJ0}, 15
        s_and_b32 s{sJ1}, s2, 15
        s_lshl_b32 s{sJ1}, s{sJ1}, 6
        s_add_u32 s{sJ0}, s{sJ0}, s{sJ1}
        v_lshrrev_b32 v{jt[7]}, 2, v0
        v_lshlrev_b32 v{jt[7]}, 10, v{jt[7]}
        v_lshl_add_u32 v{jt[7]}, v{jt[6]}, 4, v{jt[7]}
        s_mov_b32 m0, s{sJs}
        s_add_u32 s{sJ1}, s{sJ0}, 0x4000
        buffer_load_dwordx4 v{jt[7]}, {s(SWO,4)}, s{sJ0} offen lds
        s_add_u32 m0, s{sJs}, 1024
        v_lshlrev_b32 v{jt[0]}, 9, v{jt[2]}
        buffer_load_dwordx4 v{jt[7]}, {s(SWO,4)}, s{sJ1} offen lds
        v_lshl_add_u32 v{jt[0]}, v{jt[5]}, 6, v{jt[0]}
        v_lshl_add_u32 v{jt[0]}, v{jt[6]}, 3, v{jt[0]}
        v_add_u32 v{jt[0]}, s{sJs}, v{jt[0]}
        s_lshr_b32 s{sJ0}, s2, 5
        s_lshl_b32 s{sJ0}, s{sJ0}, 16
        s_bfe_u32 s{sJ1}, s2, 0x30001
        s_lshl_b32 s{sJ1}, s{sJ1}, 13
        s_add_u32 s{sJ0}, s{sJ0}, s{sJ1}
        s_bfe_u32 s{sJ1}, s2, 0x10004
        s_lshl_b32 s{sJ1}, s{sJ1}, 12
        s_add_u32 s{sJ0}, s{sJ0}, s{sJ1}
        s_and_b32 s{sJ1}, s2, 1
        s_lshl_b32 s{sJ1}, s{sJ1}, 11
        s_add_u32 s{sJ0}, s{sJ0}, s{sJ1}
        """)
        srd(a, SWO, 16, 17, WS_WO, 524288)
        a(f"""
        v_add_u32 v{jt[1]}, 256, v{jt[0]}
        v_add_u32 v{jt[2]}, 32, v{jt[0]}
        v_add_u32 v{jt[3]}, 288, v{jt[0]}
        K1_JOBST:
        """)
    a(f"""
    s_and_b32 s{sWR}, s{sW}, 1
    s_bfe_u32 s{sWC}, s{sW}, 0x10001
    v_and_b32 v{vt[0]}, 31, v0
    v_lshrrev_b32 v{vt[1]}, 5, v0
    s_lshl_b32 s{sT0}, s{sWR}, 13
    v_lshlrev_b32 v{vt[2]}, 8, v{vt[0]}
    v_add_u32 v{vt[2]}, s{sT0}, v{vt[2]}
    v_and_b32 v{vt[3]}, 15, v0
    v_xor_b32 v{vt[3]}, v{vt[3]}, v{vt[1]}
    s_lshl_b32 s{sT1}, s{sWR}, 1
    v_xor_b32 v{vt[3]}, s{sT1}, v{vt[3]}
    v_mov_b32 v{onesr}, 0x3f803f80
    v_mov_b32 v{vcs[0]}, 0
    v_mov_b32 v{vcs[1]}, 0
    """)
    for i in range(8):
        a(f"v_xor_b32 v{vt[4]}, {2*i}, v{vt[3]}")
        a(f"v_lshl_add_u32 v{vXa[i]}, v{vt[4]}, 4, v{vt[2]}")
    a(f"""
    v_lshlrev_b32 v{vt[4]}, 9, v{vt[1]}
    v_bfe_u32 v{vt[5]}, v0, 2, 2
    v_lshl_add_u32 v{vt[4]}, v{vt[5]}, 6, v{vt[4]}
    v_bfe_u32 v{vt[5]}, v0, 4, 1
    v_lshl_add_u32 v{vt[4]}, v{vt[5]}, 5, v{vt[4]}
    v_and_b32 v{vt[5]}, 3, v0
    v_lshl_add_u32 v{vt[4]}, v{vt[5]}, 3, v{vt[4]}
    s_lshl_b32 s{sT0}, s{sWC}, 15
    s_add_u32 s{sT0}, s{sT0}, {WBASE}
    s_lshl_b32 s{sT1}, s{sWR}, 10
    s_add_u32 s{sT0}, s{sT0}, s{sT1}
    v_add_u32 v{vWa[0]}, s{sT0}, v{vt[4]}
    v_xor_b32 v{vWa[1]}, 0x400, v{vWa[0]}
    s_lshl_b32 s{sT0}, s{sWR}, 9
    s_add_u32 s{sT0}, s{sT0}, {STBASE}
    v_lshlrev_b32 v{vt[2]}, 4, v{vt[0]}
    v_add_u32 v{vt[2]}, s{sT0}, v{vt[2]}
    s_lshl_b32 s{sT1}, s{sWC}, 7
    s_add_u32 s{sT1}, s{sT1}, {STBASE + 1024}
    v_lshlrev_b32 v{vt[5]}, 4, v{vt[1]}
    v_add_u32 v{vt[5]}, s{sT1}, v{vt[5]}
    s_lshl_b32 s{sT0}, s{sRB}, 16
    s_lshl_b32 s{sT1}, s{sWR}, 15
    s_add_u32 s{sT0}, s{sT0}, s{sT1}
    s_lshl_b32 s{sT1}, s{sCB}, 10
    s_add_u32 s{sT0}, s{sT0}, s{sT1}
    s_lshl_b32 s{sT1}, s{sWC}, 8
    s_add_u32 s{sT0}, s{sT0}, s{sT1}
    v_lshrrev_b32 v{vt[6]}, 3, v{vt[0]}
    v_lshlrev_b32 v{vt[6]}, 13, v{vt[6]}
    v_lshl_add_u32 v{vt[6]}, v{vt[1]}, 9, v{vt[6]}
    v_and_b32 v{vt[7]}, 7, v0
    v_lshl_add_u32 v{vt[6]}, v{vt[7]}, 4, v{vt[6]}
    """)
    a("s_waitcnt lgkmcnt(0)")
    srd(a, SQ, 16, 17, WS_Q, 0x300000)
    a.c("warm the path to the workspace (launch counter line)")
    a(f"""
    v_mov_b32 v{jt[1]}, {WS_FLG + NONCE}
    buffer_load_dword v{jt[2]}, v{jt[1]}, {s(SQ,4)}, 0 offen
    """)
    def reads(i):
        c, ip = i >> 3, i & 7
        sl = i % NS
        a(f"ds_read_b128 {v(Xf[sl],4)}, v{vXa[ip]} offset:{c*16384}")
        a(f"ds_read_b64_tr_b16 {v(Wf[sl],2)}, v{vWa[i&1]} offset:{(i&~1)*1024}")
        a(f"ds_read_b64_tr_b16 {v(Wf[sl]+2,2)}, v{vWa[i&1]} offset:{(i&~1)*1024+256}")
    a("s_waitcnt lgkmcnt(0)")
    def job_finish():
        a.c("finish the re-layout job")
        a(f"""
        s_waitcnt vmcnt(0)
        ds_read_b64_tr_b16 {v(pk,2)}, v{jt[0]}
        ds_read_b64_tr_b16 {v(pk+2,2)}, v{jt[1]}
        ds_read_b64_tr_b16 {v(pk+4,2)}, v{jt[2]}
        ds_read_b64_tr_b16 {v(pk+6,2)}, v{jt[3]}
        s_waitcnt lgkmcnt(0)
        buffer_store_dwordx4 {v(pk,4)}, v{jt[4]}, {s(SWO,4)}, s{sJ0} offen {K1F}
        buffer_store_dwordx4 {v(pk+4,4)}, v{jt[4]}, {s(SWO,4)}, s{sJ0} offen offset:1024 {K1F}
        """)
    nxt = 0
    for i in range(32):
        c = i >> 3
        if i % 8 == 0:
            a("s_barrier")
            stamp(a, 2 + c)
            lim = (c + 1) * 8
        while nxt < min(i + NS, lim):
            reads(nxt); nxt += 1
        a(f"s_waitcnt lgkmcnt({(nxt - 1 - i) * 3})")
        a(f"v_mfma_f32_32x32x16_bf16 {v(acc,16)}, {v(Wf[i % NS],4)}, {v(Xf[i % NS],4)}, {'0' if i == 0 else v(acc,16)}")
        if (i & 1) == 0:
            for j in range(4):
                a(f"v_dot2c_f32_bf16 v{vcs[j&1]}, v{Wf[i % NS]+j}, v{onesr}")
        if i == 3:
            a("s_waitcnt vmcnt(0)")
            job_issue()
        if i == JF:
            job_finish()
    a.c("column sums: [wr][64]")
    a(f"""
    s_nop 0
    v_add_f32 v{vcs[0]}, v{vcs[0]}, v{vcs[1]}
    s_lshl_b32 s{sJ1}, s{sWR}, 8
    v_mov_b32 v{vcs[1]}, v{vcs[0]}
    s_lshl_b32 s{sJb}, s{sWC}, 7
    s_add_u32 s{sJ1}, s{sJ1}, s{sJb}
    v_permlane32_swap_b32 v{vcs[0]}, v{vcs[1]}
    s_add_u32 s{sJ1}, s{sJ1}, {STBASE + 1024}
    v_lshlrev_b32 v{onesr}, 2, v{vt[0]}
    v_add_f32 v{vcs[0]}, v{vcs[0]}, v{vcs[1]}
    v_add_u32 v{onesr}, s{sJ1}, v{onesr}
    ds_write_b32 v{onesr}, v{vcs[0]}
    """)
    a("s_waitcnt lgkmcnt(0)")
    stamp(a, 6)
    a("s_barrier")
    cs2 = Xf[0]
    a(f"ds_read_b64 {v(st,2)}, v{vt[2]}")
    for q in range(4):
        a(f"ds_read_b128 {v(csr+4*q,4)}, v{vt[5]} offset:{32*q}")
        a(f"ds_read_b128 {v(cs2+4*q,4)}, v{vt[5]} offset:{256+32*q}")
    a("s_nop 0\ns_waitcnt lgkmcnt(8)")
    for r in range(8):
        a(f"v_pk_mul_f32 {v(acc+2*r,2)}, {v(acc+2*r,2)}, {v(st,2)} op_sel_hi:[1,0]")
    a("s_waitcnt lgkmcnt(0)")
    for r in range(8):
        a(f"v_pk_add_f32 {v(csr+2*r,2)}, {v(csr+2*r,2)}, {v(cs2+2*r,2)}")
    for r in range(8):
        a(f"v_pk_fma_f32 {v(acc+2*r,2)}, {v(csr+2*r,2)}, {v(st,2)}, {v(acc+2*r,2)} op_sel:[0,1,0] op_sel_hi:[1,1,1] neg_lo:[1,0,0] neg_hi:[1,0,0]")
    for j in range(8):
        a(f"v_cvt_pk_bf16_f32 v{pk+j}, v{acc+2*j}, v{acc+2*j+1}")
    a(f"""
    buffer_store_dwordx4 {v(pk,4)}, v{vt[6]}, {s(SQ,4)}, s{sT0} offen {K1Q}
    buffer_store_dwordx4 {v(pk+4,4)}, v{vt[6]}, {s(SQ,4)}, s{sT0} offen offset:128 {K1Q}
    s_add_u32 s{sW}, s{sW}, 4
    K1_DONE:
    """)
    a("s_mov_b64 exec, -1")
    stamp_dump(a, 0, sW)
    a("s_mov_b64 exec, -1")
    return name, R.cur, K1_LDS
```

```python
from asmlib import *
from common import *
import os

W1L = 0
QL = 98304
EXB = QL
OACC = QL + 8192
LACC = OACC + 16384
OFB = LACC + 1024
MISC = OFB + 1024
XL = MISC + 2048
B1L = EXB + 49152
K2_LDS = B1L + 256
RSTR = 17408
THR2 = (40.0 / 1.02) ** 2
PRIO = os.environ.get("PRIO", "2")
PD = int(os.environ.get("PD", "2"))
EXP = os.environ.get("EXP", "").split(",")
LDF = os.environ.get("LDF", "sc1").replace("_", " ").replace("none", "")
RELOAD = os.environ.get("RELOAD", "0") == "1"
OUTF = os.environ.get("OUTF", "").replace("_", " ")
W2L = os.environ.get("W2L", "mid")
NPOLL = int(os.environ.get("NPOLL", "1"))
QLATE = os.environ.get("QLATE", "0") == "1"
W2T = int(os.environ.get("W2T", "8"))
FASTN = int(os.environ.get("FASTN", "16"))
DUAL = int(os.environ.get("DUAL", "0"))
SLOW_V0 = min(16, 2*PD + 10)

def gen_k2(a):
    name = KNAME
    R = Regs(1, 256)
    vt = [R.alloc(f"t{i}") for i in range(6)]
    vidx = R.alloc("idx")
    vQa = R.alloc("qa")
    vOa = R.alloc("oa"); vLa = R.alloc("la")
    vNr = R.alloc("nr"); vNl = R.alloc("nl"); vNw = R.alloc("nw")
    vOFa = R.alloc("ofa")
    vKo = R.alloc("ko"); vVo = R.alloc("vo"); vQl = R.alloc("ql"); vW1o = R.alloc("w1o")
    vP1r = R.alloc("p1r"); vP2r = R.alloc("p2r"); vPw = R.alloc("pw"); vPv = R.alloc("pv"); vCnt = R.alloc("cnt")
    zero = R.alloc("zero", 4)
    Q = R.alloc("q", 4)
    nrm = R.alloc("nrm", 8, 4)
    Kf = R.alloc("k", 32)
    Vf = R.alloc("v", 64)
    S = [R.alloc(f"s{i}", 16) for i in range(2)]
    O = [R.alloc(f"o{i}", 16) for i in range(2)]
    woA = R.alloc("woa", 16)
    T = R.alloc("T", 16)
    OFr = R.alloc("ofr", 8)
    hacc = R.alloc("hacc", 16)
    Qw = OFr
    vM = [vt[1], vt[2]]
    sW, sRB, sT0, sT1, sT2, sWm, sSo, sHalf = 20, 21, 22, 23, 44, 45, 46, 47
    sMaskLo, sV1, sV2 = 48, 50, 51
    sG, sMm, sT0f, sW1m, sV2x, sRot = 4, 5, 6, 7, 60, 61
    SQ, SKV, SWO, SX, SH, SHN, SP = 24, 28, 32, 36, 40, 52, 56
    a(f"""
    s_add_u32 s4, s16, {WS_FLG + NONCE}
    s_addc_u32 s5, s17, 0
    s_load_dword s{sNonce}, s[4:5], 0
    s_load_dwordx4 s[12:15], s[0:1], 48
    s_load_dwordx2 s[18:19], s[0:1], 72
    s_load_dwordx2 s[10:11], s[0:1], 80
    v_lshlrev_b32 v{vQa}, 4, v0
    s_and_b32 s{sT0}, s2, 7
    s_lshr_b32 s{sT1}, s2, 3
    s_lshl_b32 s{sRB}, s{sT0}, 5
    s_add_u32 s{sRB}, s{sRB}, s{sT1}
    s_lshl_b32 s{sWm}, s{sW}, 13
    v_add_u32 v{vKo}, s{sWm}, v{vQa}
    v_lshrrev_b32 v{vt[3]}, 5, v0
    v_and_b32 v{vt[4]}, 31, v0
    v_lshlrev_b32 v{vt[2]}, 4, v{vt[4]}
    v_lshl_add_u32 v{vt[2]}, v{vt[3]}, 8, v{vt[2]}
    s_mul_i32 s{sT0}, s{sW}, {16*VSTR}
    s_add_u32 s{sT0}, s{sT0}, 0x10000
    v_and_b32 v{vt[1]}, 27, v0
    v_cmp_eq_u32 vcc, 16, v{vt[1]}
    v_mov_b32 v{vt[1]}, 0x40000000
    v_mov_b32 v{vt[5]}, 512
    v_cndmask_b32 v{vt[1]}, v{vt[1]}, v{vt[5]}, vcc
    v_cmp_gt_u32 vcc, 16, v{vt[4]}
    s_nop 1
    v_cndmask_b32 v{vt[1]}, v{vt[1]}, v{vt[2]}, vcc
    v_add_u32 v{vVo}, s{sT0}, v{vt[1]}
    s_movk_i32 s{sV1}, {7*VSTR}
    s_movk_i32 s{sV2}, {14*VSTR}
    s_lshr_b32 s{sHalf}, s{sW}, 2
    """)
    stamp_init(a)
    srd(a, SQ, 16, 17, WS_Q, 0x200000)
    srd(a, SKV, 16, 17, WS_K, KV_BYTES)
    srd(a, SWO, 16, 17, WS_FLG + FLG0, 8192)
    a(f"""
    s_waitcnt vmcnt(0) lgkmcnt(0)
    s_add_u32 s{sNonce}, s{sNonce}, 1
    s_barrier
    s_cmp_lg_u32 s{sW}, 0
    s_cbranch_scc1 K2_H0W
    s_lshr_b32 s{sHalf}, s{sRB}, 4
    s_lshl_b32 s{sHalf}, s{sHalf}, 7
    s_and_b32 s{sT0}, s{sRB}, 15
    s_lshl_b32 s{sT0}, s{sT0}, 2
    s_add_u32 s{sHalf}, s{sHalf}, s{sT0}
    s_add_u32 s{sT0}, s{sHalf}, 4096
    v_mov_b32 v{Q}, 0
    v_mov_b32 v{Q+1}, s{sNonce}
    s_mov_b64 exec, 1
    buffer_store_dword v{Q+1}, v{Q}, {s(SWO,4)}, s{sT0} offen
    buffer_store_dword v{Q+1}, v{Q}, {s(SWO,4)}, s{sHalf} offen sc1
    s_mov_b64 exec, -1
    K2_H0W:
    s_lshr_b32 s{sHalf}, s{sW}, 2
    """)
    order = []
    def ldK(j):
        so = "0" if j < 4 else f"s{sT2}"
        order.append(f"K{j}")
        return f"buffer_load_dwordx4 {v(Kf+4*j,4)}, v{vKo}, {s(SKV,4)}, {so} offen offset:{(j&3)*1024} sc1"
    def ldV(i):
        so = ("0", f"s{sV1}", f"s{sV2}")[i // 7]
        order.append(f"V{i}")
        return f"buffer_load_dwordx4 {v(Vf+4*i,4)}, v{vVo}, {s(SKV,4)}, {so} offen offset:{(i%7)*VSTR} sc1"
    def ldW(t, ks, ct, dst):
        order.append(f"W{t}_{ks}_{ct}")
        pre = f"s_mov_b32 s{sSo}, {t*65536 + ks*4096}\n"
        return pre + f"buffer_load_dwordx4 {v(dst+4*ct,4)}, v{vKo}, {s(SWO,4)}, s{sSo} offen offset:{ct*1024} sc1"
    def wait_for(item):
        return f"s_waitcnt vmcnt({len(order) - 1 - order.index(item)})"
    for i in range(4):
        a(f"v_mov_b32 v{zero+i}, 0")
    a(f"v_mov_b32 v{vidx}, 0xdddddddd")
    a("s_nop 0")
    for o in O:
        a(f"v_mfma_f32_32x32x16_bf16 {v(o,16)}, {v(zero,4)}, {v(zero,4)}, 0")
    a.c("LDS addresses")
    a(f"""
    s_lshl_b32 s{sT0}, s{sW}, 2
    s_add_u32 s{sT1}, s{sT0}, {MISC + 32}
    v_mov_b32 v{vPw}, s{sT1}
    ds_write2_b32 v{vPw}, v{zero}, v{zero} offset1:8
    s_add_u32 s{sT0}, s{sT0}, {LACC}
    v_lshlrev_b32 v{vLa}, 5, v{vt[4]}
    v_add_u32 v{vLa}, s{sT0}, v{vLa}
    s_lshl_b32 s{sT0}, s{sW}, 11
    s_add_u32 s{sT0}, s{sT0}, {OACC}
    v_add_u32 v{vOa}, s{sT0}, v{vQa}
    s_and_b32 s{sT1}, s{sW}, 3
    v_and_b32 v{vt[2]}, 7, v0
    v_lshlrev_b32 v{vP1r}, 2, v{vt[2]}
    v_add_u32 v{vP1r}, {MISC + 32}, v{vP1r}
    v_and_b32 v{vt[1]}, 3, v0
    v_lshlrev_b32 v{vP2r}, 2, v{vt[1]}
    v_add_u32 v{vP2r}, {MISC + 64}, v{vP2r}
    v_bfe_u32 v{vt[1]}, v0, 4, 1
    v_bfe_u32 v{vt[4]}, v0, 3, 1
    v_lshlrev_b32 v{vNr}, 4, v{vt[2]}
    v_lshl_add_u32 v{vNw}, v{vt[3]}, 7, v{vNr}
    v_lshl_add_u32 v{vNr}, v{vt[3]}, 10, v{vNr}
    v_lshl_add_u32 v{vNr}, v{vt[1]}, 9, v{vNr}
    v_lshl_add_u32 v{vNr}, v{vt[4]}, 3, v{vNr}
    s_lshl_b32 s{sT0}, s{sT1}, 7
    s_add_u32 s{sT0}, s{sT0}, {OACC}
    v_add_u32 v{vNr}, s{sT0}, v{vNr}
    s_lshl_b32 s{sT0}, s{sT1}, 8
    s_add_u32 s{sSo}, s{sT0}, {LACC}
    v_lshlrev_b32 v{vNl}, 5, v{vt[2]}
    v_add_u32 v{vNl}, s{sSo}, v{vNl}
    v_bfe_u32 v{vt[3]}, v0, 3, 2
    v_lshl_add_u32 v{vNw}, v{vt[3]}, 2, v{vNw}
    s_add_u32 s{sSo}, s{sT0}, {OFB}
    v_add_u32 v{vNw}, s{sSo}, v{vNw}
    v_lshrrev_b32 v{vt[3]}, 4, v0
    v_lshlrev_b32 v{vt[2]}, 4, v{vt[2]}
    v_lshl_add_u32 v{vOFa}, v{vt[3]}, 7, v{vt[2]}
    v_add_u32 v{vOFa}, {OFB}, v{vOFa}
    """)
    srd(a, SX, 8, 9, 0, 0x200000)
    srd(a, SHN, 16, 17, WS_HN, 0x200000)
    srd(a, SP, 12, 13, 0, 1409024)
    srd(a, SH, 16, 17, WS_W2, W2F_BYTES)
    a(f"""
    s_lshr_b32 s{sT0}, s2, 3
    s_mul_i32 s{sT1}, s{sT0}, 44032
    s_add_u32 s{sT1}, s{sT1}, s{sWm}
    v_lshlrev_b32 v{vt[5]}, 7, v0
    s_lshl_b32 s{sMaskLo}, s{sT0}, 14
    s_and_b32 s{sT0}, s{sWm}, 0x2000
    s_add_u32 s{sMaskLo}, s{sMaskLo}, s{sT0}
    s_mov_b32 s{sMaskLo+1}, s{sT1}
    s_lshr_b32 s{sT0}, s2, 3
    s_mul_i32 s{sV2x}, s{sT0}, 45056
    s_add_u32 s{sV2x}, s{sV2x}, s{sWm}
    s_lshr_b32 s{sG}, s{sRB}, 4
    s_and_b32 s{sMm}, s{sRB}, 15
    s_mul_i32 s{sT0f}, s{sMm}, 3
    s_min_u32 s{sT0f}, s{sT0f}, 40
    v_add_u32 v{vQl}, {QL}, v{vQa}
    v_lshrrev_b32 v{vt[3]}, 2, v0
    v_mul_u32_u24 v{vt[3]}, 2752, v{vt[3]}
    v_and_b32 v{vt[4]}, 3, v0
    v_lshl_add_u32 v{vt[3]}, v{vt[4]}, 4, v{vt[3]}
    s_lshl_b32 s{sT0}, s{sT0f}, 6
    s_mul_i32 s{sT1}, s{sHalf}, {16*44032}
    s_add_u32 s{sT0}, s{sT0}, s{sT1}
    v_add_u32 v{vW1o}, s{sT0}, v{vt[3]}
    s_lshl_b32 s{sRot}, s{sW}, 2
    s_add_u32 s{sRot}, s{sRot}, s{sMm}
    s_mul_i32 s{sW1m}, s{sW}, {4*3072}
    """)
    a(f"""
    s_cmp_lg_u32 s{sW}, 0
    s_cbranch_scc1 K2_H0X
    s_mov_b32 s{sT2}, 0x400000
    v_and_b32 v{nrm+1}, 15, v0
    v_lshlrev_b32 v{nrm+2}, 7, v{nrm+1}
    v_lshlrev_b32 v{nrm+1}, 2, v{nrm+1}
    s_lshl_b32 s{sT0}, s{sG}, 7
    s_cmp_lg_u32 s{sMm}, 0
    s_cbranch_scc1 K2_H0Q
    s_add_u32 s{sSo}, s{sT0}, 4096
    s_mov_b32 s100, 0
    K2_H0P:
    s_sub_u32 s{sT2}, s{sT2}, 1
    s_cbranch_scc1 K2_H0X
    s_and_b32 s{sT1}, s{sT2}, {FASTN - 1}
    s_cselect_b32 s{sT1}, s{sSo}, s{sT0}
    buffer_load_dword v{nrm}, v{nrm+1}, {s(SWO,4)}, s{sT1} offen sc1
    s_waitcnt vmcnt(0)
    v_cmp_eq_u32 vcc, s{sNonce}, v{nrm}
    s_or_b32 s100, s100, vcc_lo
    s_cmp_lg_u32 s100, -1
    s_cbranch_scc1 K2_H0P
    s_lshl_b32 s{sT1}, s{sG}, 2
    v_mov_b32 v{nrm+3}, s{sNonce}
    s_mov_b64 exec, 0xffff
    buffer_store_dword v{nrm+3}, v{nrm+2}, {s(SWO,4)}, s{sT1} offen offset:2048 sc1
    s_mov_b64 exec, -1
    K2_H0Q:
    buffer_load_dword v{nrm}, v{nrm+1}, {s(SWO,4)}, s{sT0} offen offset:2048 sc1
    s_sub_u32 s{sT2}, s{sT2}, 1
    s_cbranch_scc1 K2_H0X
    s_waitcnt vmcnt(0)
    v_cmp_ne_u32 vcc, s{sNonce}, v{nrm}
    s_cmp_lg_u64 vcc, 0
    s_cbranch_scc1 K2_H0Q
    K2_H0X:
    v_lshlrev_b32 v{vt[4]}, 3, v0
    s_lshl_b32 s{sT1}, s{sRB}, 13
    s_lshl_b32 s{sT2}, s{sW}, 10
    s_add_u32 s{sT0}, s{sT1}, s{sT2}
    s_mov_b32 s{sSo}, 0x21000
    s_movk_i32 s{sT2}, 0x1000
    s_barrier
    """)
    a(f"buffer_load_dwordx4 {v(Q,4)}, v{vQa}, {s(SQ,4)}, s{sT1} offen sc1"); order.append("Q")
    a(ldK(0)); a(ldK(1)); a(ldV(0)); a(ldV(1)); a(ldK(2))
    def ldQW():
        a(f"buffer_load_dwordx4 {v(Qw,4)}, v{vQa}, {s(SQ,4)}, s{sT0} offen sc1"); order.append("QW")
        a(f"buffer_load_dwordx2 {v(nrm,2)}, v{vt[4]}, {s(SKV,4)}, s{sSo} offen sc1"); order.append("KM")
    if not QLATE:
        ldQW()
    for i in range(1, PD):
        a(ldV(2*i)); a(ldV(2*i + 1))
        if i + 2 < 8:
            a(ldK(i + 2))
    if QLATE:
        ldQW()
    pro_order = list(order)
    srd(a, SWO, 16, 17, WS_WO, 524288)
    def bound_check():
        n = nrm
        P = []
        P.append(lambda: f"s_lshl_b32 s{sT0}, s{sW}, 10\nv_add_u32 v{vt[0]}, s{sT0}, v{vQl}\nv_mov_b32 v{n+2}, 0\n{wait_for('KM')}\nds_write_b128 v{vt[0]}, {v(Qw,4)}")
        P.append("\n".join(f"v_dot2c_f32_bf16 v{n+2}, v{Qw+i}, v{Qw+i}" for i in range(4)) + f"\nv_max_f32 v{n}, v{n}, v{n+1}\ns_nop 0")
        P.append(f"v_max_f32_dpp v{n}, v{n}, v{n} row_ror:8 row_mask:0xf bank_mask:0xf\nv_mov_b32 v{n+3}, v{n+2}")
        P.append(f"v_max_f32_dpp v{n}, v{n}, v{n} row_ror:4 row_mask:0xf bank_mask:0xf\nv_permlane32_swap_b32 v{n+2}, v{n+3}")
        P.append(f"v_max_f32_dpp v{n}, v{n}, v{n} row_ror:2 row_mask:0xf bank_mask:0xf\nv_add_f32 v{n+2}, v{n+2}, v{n+3}")
        P.append(f"v_max_f32_dpp v{n}, v{n}, v{n} row_ror:1 row_mask:0xf bank_mask:0xf\nv_mov_b32 v{n+1}, v{n}\ns_nop 0")
        P.append(f"v_permlane32_swap_b32 v{n}, v{n+1}\nv_max_f32 v{n}, v{n}, v{n+1}\nv_mov_b32 v{n+1}, v{n}\ns_nop 0")
        P.append(f"v_permlane16_swap_b32 v{n}, v{n+1}\nv_max_f32 v{n}, v{n}, v{n+1}\nv_mul_f32 v{n}, v{n}, v{n+2}\nv_mov_b32 v{n+1}, {hex(f32bits(THR2))}\n"
                 f"v_cmp_nle_f32 vcc, v{n}, v{n+1}\ns_lshl_b32 s{sT0}, s{sW}, 2\ns_add_u32 s{sT0}, s{sT0}, {MISC}")
        P.append(f"s_cmp_lg_u64 vcc, 0\ns_cselect_b32 s{sT1}, 1, 0\nv_mov_b32 v{vt[0]}, s{sT0}\nv_mov_b32 v{vt[1]}, s{sT1}\nds_write_b32 v{vt[0]}, v{vt[1]}\nv_mov_b32 v{vt[0]}, {MISC}")
        return P
    flag_reads = f"ds_read_b128 {v(nrm,4)}, v{vt[0]}\nds_read_b128 {v(nrm+4,4)}, v{vt[0]} offset:16"
    flag_test = (f"s_waitcnt lgkmcnt(0)\nv_or3_b32 v{nrm}, v{nrm}, v{nrm+1}, v{nrm+2}\nv_or3_b32 v{nrm+3}, v{nrm+3}, v{nrm+4}, v{nrm+5}\n"
                 f"v_or3_b32 v{nrm}, v{nrm}, v{nrm+6}, v{nrm+7}\nv_or_b32 v{nrm}, v{nrm}, v{nrm+3}\ns_nop 0\n"
                 f"v_readfirstlane_b32 s{sT0}, v{nrm}\ns_cmp_lg_u32 s{sT0}, 0\ns_cbranch_scc1 K2_SLOW")

    def smf(tau):
        t, j = divmod(tau, 8)
        return f"v_mfma_f32_32x32x16_bf16 {v(S[tau&1],16)}, {v(Kf+4*j,4)}, {v(Q,4)}, 0"
    def pv(tau, h):
        t, j = divmod(tau, 8)
        return f"v_smfmac_f32_32x32x32_bf16 {v(O[t&1],16)}, {v(Vf+8*j+4*h,4)}, {v(S[tau&1]+8*h,8)}, v{vidx}"
    def drain(t):
        o = O[t & 1]
        return [f"ds_write_b128 v{vOa}, {v(o,4)}", f"ds_write_b128 v{vOa}, {v(o+4,4)} offset:1024", f"ds_write_b32 v{vLa}, v{o+8}"]
    retries = []
    def check(areg, off, val, lab):
        retries.append(f"K2_R{lab}:\nds_read_b32 v{vPv}, v{areg} offset:{off}\ns_waitcnt lgkmcnt(0)\nv_cmp_gt_u32 vcc, {val}, v{vPv}\n"
                       f"s_cbranch_vccnz K2_R{lab}\ns_branch K2_C{lab}")
        return f"s_waitcnt lgkmcnt(0)\nv_cmp_gt_u32 vcc, {val}, v{vPv}\ns_cbranch_vccnz K2_R{lab}\nK2_C{lab}:\n"
    def norm_reads():
        L = f"ds_read_b128 {v(nrm,4)}, v{vNl}\nds_read_b128 {v(nrm+4,4)}, v{vNl} offset:16\n"
        for w in range(8):
            L += f"ds_read_b64 {v(T+2*w,2)}, v{vNr} offset:{w*2048}\n"
        return L
    def norm_comp():
        L = f"s_waitcnt lgkmcnt(0)\n"
        L += f"v_pk_add_f32 {v(nrm,2)}, {v(nrm,2)}, {v(nrm+2,2)}\n"
        L += f"v_pk_add_f32 {v(nrm+4,2)}, {v(nrm+4,2)}, {v(nrm+6,2)}\n"
        for w in range(4):
            L += f"v_pk_add_f32 {v(T+4*w,2)}, {v(T+4*w,2)}, {v(T+4*w+2,2)}\n"
        L += f"v_pk_add_f32 {v(nrm,2)}, {v(nrm,2)}, {v(nrm+4,2)}\n"
        L += f"v_pk_add_f32 {v(T,2)}, {v(T,2)}, {v(T+4,2)}\n"
        L += f"v_add_f32 v{nrm}, v{nrm}, v{nrm+1}\n"
        L += f"v_pk_add_f32 {v(T+8,2)}, {v(T+8,2)}, {v(T+12,2)}\n"
        L += f"v_rcp_f32 v{nrm}, v{nrm}\n"
        L += f"v_pk_add_f32 {v(T,2)}, {v(T,2)}, {v(T+8,2)}\n"
        L += f"v_pk_mul_f32 {v(T,2)}, {v(T,2)}, {v(nrm,2)} op_sel_hi:[1,0]\n"
        L += f"v_cvt_pk_bf16_f32 v{T}, v{T}, v{T+1}\n"
        L += f"ds_write_b32 v{vNw}, v{T}\n"
        return L
    def only_half(t, lab, body):
        return f"s_cmp_lg_u32 s{sHalf}, {t&1}\ns_cbranch_scc1 K2_N{lab}\n{body}K2_N{lab}:\n"
    def of_reads():
        return "\n".join(f"ds_read_b128 {v(OFr+4*ks,4)}, v{vOFa} offset:{ks*512}" for ks in range(2))
    def wo_mfma(ks, ct, src, first=False):
        return f"v_mfma_f32_16x16x32_bf16 {v(hacc+4*ct,4)}, {v(src+4*ct,4)}, {v(OFr+4*ks,4)}, {'0' if first else v(hacc+4*ct,4)}"
    W7 = [Kf, Kf + 16]
    W2R = Vf + 8
    assert S[0] == Vf + 64 and S[1] == S[0] + 16 and Q == zero + 4 and nrm == Q + 4
    X = Vf

    sCB2, sW2o, sB3 = sV2, sV2x, 48
    def ldW2(i):
        if "NOW2A" in EXP and i < 8: return "s_nop 7\ns_nop 1\n"
        if "NOW2B" in EXP and i >= 8: return ""
        L = (f"s_add_u32 s{sSo}, s{sCB2}, {i}\ns_sub_u32 s{sT1}, s{sSo}, 11\ns_cselect_b32 s{sSo}, s{sSo}, s{sT1}\n"
             f"s_lshl_b32 s{sSo}, s{sSo}, 11\ns_add_u32 s{sSo}, s{sSo}, s{sW2o}\n")
        for ct in range(2):
            L += f"buffer_load_dwordx4 {v(W2R+8*i+4*ct,4)}, v{vQa}, {s(SH,4)}, s{sSo} offen offset:{ct*1024} sc1\n"
        return L

    def mainloop(slow):
        tag = "S" if slow else "F"
        order[:] = [] if slow else list(pro_order)
        if slow:
            a(f"ds_read_b32 v{vM[0]}, v{vt[0]}")
            a("s_waitcnt lgkmcnt(0)")
        else:
            a(wait_for("K0"))
            stamp(a, 2)
        a(smf(0))
        a("s_nop 7")
        a("s_nop 3")
        for tau in range(64):
            t, j = divmod(tau, 8)
            slots = [[] for _ in range(17)]
            p1 = 11
            if PRIO == "1" and (j & 1) == 0:
                slots[0].append(f"s_setprio {3 - j // 2}")
            if PRIO == "2":
                slots[0].append(f"s_setprio {3 - (j & 3)}")
            if PRIO == "3":
                slots[0].append(f"s_setprio {3 - 2*(j & 1)}")
                slots[8].append(f"s_setprio {2 - 2*(j & 1)}")
            if PRIO == "4":
                slots[0].append(f"s_setprio {3 - ((j + 2) & 3)}")
            if PRIO == "5":
                slots[0].append(f"s_setprio {3 - ((j + 1) & 3)}")
            if PRIO == "6":
                slots[0].append(f"s_setprio {3 - ((j + 3) & 3)}")
            if PRIO == "7":
                for q in range(4):
                    slots[4*q].append(f"s_setprio {3 - q}")
            if tau > 0:
                slots[3].append(pv(tau - 1, 1))
            if t == 0 and not slow:
                if j + PD < 8:
                    slots[0].append(lambda j=j: ldV(2*(j + PD)))
                    slots[4].append(lambda j=j: ldV(2*(j + PD) + 1))
                if j + PD + 2 < 8:
                    slots[8].append(lambda j=j: ldK(j + PD + 2))
                if j == 2:
                    for i, x in enumerate(bound_check()):
                        slots[3 + i].append(x)
                if j == 4:
                    slots[0] += ["s_waitcnt lgkmcnt(0)", "s_barrier", flag_reads]
                    slots[5].append(flag_test)
                if j == 6:
                    slots[13].append(f"s_cmp_lt_u32 s{sW}, 6\ns_cbranch_scc1 K2_PW\nbuffer_load_dword v{vt[3]}, v{vt[5]}, {s(SWO,4)}, s{sMaskLo} offen sc1\nK2_PW:")
            nx = tau + 1
            if nx < 64:
                if t == 0 and nx < 8 and not slow:
                    slots[6].append(lambda nx=nx: wait_for(f"K{nx}"))
                if nx % 8 == 0:
                    slots[6].append("s_waitcnt lgkmcnt(0)")
                slots[6].append(smf(nx))
                if nx % 8 == 7 and t < 7:
                    slots[10].append(f"ds_read_b128 {v(Q,4)}, v{vQl} offset:{(t+1)*1024}")
                    if slow:
                        slots[10].append(f"ds_read_b32 v{vM[(t+1)&1]}, v{vt[0]} offset:{(t+1)*128}")
            if 10 <= tau < 22 and tau % 2 == 0:
                slots[13].append(f"s_cmp_lg_u32 s{sW}, {(tau-10)//2}\ns_cbranch_scc1 K2_PA{tag}{tau}\nbuffer_load_dword v{vt[3]}, v{vt[5]}, {s(SP,4)}, s{sMaskLo+1} offen\nK2_PA{tag}{tau}:")
            if 22 <= tau < 34 and tau % 2 == 0:
                slots[13].append(f"s_cmp_lg_u32 s{sW}, {(tau-22)//2}\ns_cbranch_scc1 K2_PB{tag}{tau}\nbuffer_load_dword v{vt[4]}, v{vt[5]}, {s(SH,4)}, s{sV2x} offen sc1\nK2_PB{tag}{tau}:")
            if 36 <= tau < 60 and tau % 2 == 0:
                n = (tau - 36) // 2
                kb, ft = divmod(n, 3)
                slots[4].append(lambda kb=kb, ft=ft: (order.append("W1"), f"s_add_u32 s{sT0}, s{sRot}, {kb}\ns_and_b32 s{sT0}, s{sT0}, 15\ns_mul_i32 s{sT0}, s{sT0}, 44032\ns_add_u32 m0, s{sW1m}, {kb*3072 + ft*1024 - ft*64}\ns_nop 0\n"
                    f"buffer_load_dwordx4 v{vW1o}, {s(SP,4)}, s{sT0} offen offset:{ft*64} lds")[1])
            if t >= 1:
                u = t - 1
                if j == 1:
                    slots[0].append(f"v_mov_b32 v{vCnt}, {t}")
                    for i, x in enumerate(drain(u)):
                        slots[1 + 2*i].append(x)
                    slots[7].append(f"ds_write_b32 v{vPw}, v{vCnt}")
                if j == 2:
                    slots[13].append("s_waitcnt lgkmcnt(0)")
                if j == 3 and t == 2 and DIAG:
                    slots[0].append(stamp_str(12))
                if j == 3:
                    slots[0].append(f"ds_read_b32 v{vPv}, v{vP1r}")
                    slots[7].append(only_half(u, f"A{tag}{t}", check(vP1r, 0, t, f"A{tag}{t}") + norm_reads()))
                    slots[9] += [f"v_mfma_f32_32x32x16_bf16 {v(O[u&1],16)}, {v(zero,4)}, {v(zero,4)}, 0"]
                    p1 = 12
                if j == 4:
                    slots[3].append(only_half(u, f"B{tag}{t}", norm_comp() + f"ds_write_b32 v{vPw}, v{vCnt} offset:32\n"))
                if 1 <= j <= 4:
                    slots[13].append(lambda u=u, ct=j-1: ldW(u, 0, ct, woA))
                if 4 <= j <= 7:
                    slots[8 if j != 6 else 1].append(lambda u=u, ct=j-4: ldW(u, 1, ct, T))
                if j == 6:
                    slots[1].append(f"ds_read_b32 v{vPv}, v{vP2r} offset:{16*(u&1)}")
                    slots[8].append(check(vP2r, 16*(u&1), t, f"D{tag}{t}") + of_reads())
                    slots[15] += ["s_waitcnt lgkmcnt(0)", lambda u=u: wait_for(f"W{u}_0_1"), wo_mfma(0, 0, woA, u == 0)]
                if j == 7:
                    slots[9].append(wo_mfma(0, 1, woA, u == 0)); slots[15] += [lambda u=u: wait_for(f"W{u}_0_3"), wo_mfma(0, 2, woA, u == 0)]
            if t >= 2:
                u = t - 2
                if j == 0:
                    slots[9].append(wo_mfma(0, 3, woA, u == 0))
                    slots[15] += [lambda u=u: wait_for(f"W{u}_1_1"), wo_mfma(1, 0, T)]
                if j == 1:
                    slots[9].append(wo_mfma(1, 1, T)); slots[15] += [lambda u=u: wait_for(f"W{u}_1_2"), wo_mfma(1, 2, T)]
                if j == 2:
                    slots[9] += [lambda u=u: wait_for(f"W{u}_1_3"), wo_mfma(1, 3, T)]
            if tau == 11:
                slots[4].append(f"s_cmp_lg_u32 s{sW}, 7\ns_cbranch_scc1 K2_B1{tag}\ns_add_u32 s{SQ}, s14, 0\ns_addc_u32 s{SQ+1}, s15, 0\ns_movk_i32 s{SQ+2}, 2752\n"
                    f"s_lshl_b32 s{sT0}, s{sT0f}, 6\nv_lshlrev_b32 v{vt[3]}, 2, v0\ns_mov_b32 m0, {B1L}\ns_nop 0\nbuffer_load_dword v{vt[3]}, {s(SQ,4)}, s{sT0} offen lds\nK2_B1{tag}:")
            if tau == 9:
                slots[4].append(lambda: (order.append("X"), f"s_lshl_b32 s{sT0}, s{sRB}, 13\ns_lshl_b32 s{sT1}, s{sW}, 10\ns_add_u32 s{sT0}, s{sT0}, s{sT1}\n"
                    f"s_mul_i32 s{sT1}, s{sW}, 1040\ns_add_u32 m0, s{sT1}, {XL}\ns_nop 0\nbuffer_load_dwordx4 v{vQa}, {s(SX,4)}, s{sT0} offen lds")[1])
            if tau == 58:
                slots[1].append(f"s_and_b32 s{sCB2}, s{sMm}, 7\ns_lshl_b32 s{sW2o}, s{sCB2}, 3\ns_add_u32 s{sW2o}, s{sW2o}, s{sW}\ns_mul_i32 s{sW2o}, s{sW2o}, {11*2048}")
            if 59 <= tau <= 62:
                slots[4].append(lambda ct=tau-59: ldW(7, 0, ct, W7[0]))
            if 60 <= tau <= 63:
                slots[16].append(lambda ct=tau-60: ldW(7, 1, ct, W7[1]))
            if t == 0 and not slow:
                slots[p1].append(lambda j=j: wait_for(f"V{2*j+1}"))
            slots[p1].append(pv(tau, 0))
            if not slow and sum(len(x) for x in slots[7:]) < 2:
                slots[14].append("s_nop 0")
            for i in range(17):
                for x in slots[i]:
                    x = x() if callable(x) else x
                    if "NOWL" in EXP and f"{s(SWO,4)}" in x: continue
                    if "NOPF" in EXP and ("K2_PA" in x or "K2_PB" in x): continue
                    if "NOW1" in EXP and " lds" in x: continue
                    if "NOW2" in EXP and f"{s(SH,4)}" in x: continue
                    if "NODRAIN" in EXP and "ds_write" in x: continue
                    if "NOZERO" in EXP and f"{v(zero,4)}" in x: continue
                    if "NOWO" in EXP and "16x16x32" in x: continue
                    if "NONORM" in EXP and "K2_N" in x: continue
                    if "NOCHK" in EXP and "K2_R" in x and "K2_N" not in x: x = of_reads()
                    a(x)
                if i < 16:
                    r = S[tau & 1] + i
                    if slow:
                        a(f"v_sub_f32 v{r}, v{r}, v{vM[t&1]}")
                    a(f"v_exp_f32 v{r}, v{r}")
        a("s_nop 1")
        a(pv(63, 1))
    mainloop(False)
    a("K2_TAIL:")
    stamp(a, 3)
    a("s_setprio 0")
    nvm = len(order) - 1 - order.index('W6_1_3')
    a(ldW2(0) + ldW2(1))
    a(wo_mfma(0, 3, woA))
    for x in drain(7):
        a(x)
    a(f"s_waitcnt vmcnt({nvm + 4})")
    for ct in range(4):
        a(wo_mfma(1, ct, T))
    a(f"""
    v_and_b32 v{vt[0]}, 7, v0
    v_lshrrev_b32 v{vt[1]}, 4, v0
    v_bfe_u32 v{vt[3]}, v0, 3, 1
    v_lshlrev_b32 v{vVo}, 10, v{vt[0]}
    v_lshl_add_u32 v{vVo}, v{vt[3]}, 6, v{vVo}
    s_lshl_b32 s{sV1}, s{sRB}, 13
    s_lshl_b32 s{sT1}, s{sW}, 7
    s_add_u32 s{sV1}, s{sV1}, s{sT1}
    s_add_u32 s{sT1}, s{sT1}, {XL}
    v_lshl_add_u32 v{vt[2]}, v{vt[0]}, 4, v{vVo}
    v_lshl_add_u32 v{vt[2]}, v{vt[1]}, 3, v{vt[2]}
    v_add_u32 v{vt[2]}, s{sT1}, v{vt[2]}
    v_bfe_u32 v{vt[1]}, v0, 4, 1
    v_lshl_add_u32 v{vVo}, v{vt[1]}, 5, v{vVo}
    v_lshrrev_b32 v{vt[4]}, 5, v0
    v_lshl_add_u32 v{vVo}, v{vt[4]}, 4, v{vVo}
    s_waitcnt lgkmcnt(0)
    s_barrier
    """)
    for c in range(2):
        a(f"ds_read_b64 {v(X+2*c,2)}, v{vt[2]} offset:{32*c}")
    a(only_half(7, "T", norm_reads() + norm_comp()))
    a(ldW2(2) + ldW2(3))
    H = O[0]; XU = O[0] + 8; PK = O[1]; ST = woA; U = T
    srd(a, SQ, 16, 17, WS_H, 0x200000)
    a(f"""
    s_mov_b32 s{sB3}, 0xff00ff00
    s_mov_b32 s{sB3+1}, 0xff00ff00
    s_waitcnt lgkmcnt(0)
    """)
    for i in range(4):
        a(f"v_lshlrev_b32 v{XU+2*i}, 16, v{X+i}")
        a(f"v_and_b32 v{XU+2*i+1}, 0xffff0000, v{X+i}")
    a("s_barrier")
    a(of_reads())
    a(f"s_waitcnt vmcnt(8) lgkmcnt(1)")
    for ct in range(4):
        a(wo_mfma(0, ct, W7[0]))
    a("s_waitcnt lgkmcnt(0)")
    for ct in (0, 2, 1, 3):
        a(wo_mfma(1, ct, W7[1]))
    stamp(a, 4)
    a(ldW2(4) + ldW2(5) if W2T >= 6 else "s_nop 7")
    a.c("h = x + attn ; lanes with bit 3 set take column tiles 2,3")
    for i in range(8):
        a(f"v_cndmask_b32 v{H+i}, v{hacc+i}, v{hacc+8+i}, {s(sB3,2)}")
    for i in range(4):
        a(f"v_pk_add_f32 {v(H+2*i,2)}, {v(H+2*i,2)}, {v(XU+2*i,2)}")
    a(f"""
    v_pk_mul_f32 {v(U+4,2)}, {v(H,2)}, {v(H,2)}
    v_pk_add_f32 {v(U,2)}, {v(H,2)}, {v(H+2,2)}
    v_pk_mul_f32 {v(U+6,2)}, {v(H+2,2)}, {v(H+2,2)}
    v_pk_add_f32 {v(U+2,2)}, {v(H+4,2)}, {v(H+6,2)}
    v_pk_fma_f32 {v(U+4,2)}, {v(H+4,2)}, {v(H+4,2)}, {v(U+4,2)}
    v_pk_fma_f32 {v(U+6,2)}, {v(H+6,2)}, {v(H+6,2)}, {v(U+6,2)}
    v_pk_add_f32 {v(U,2)}, {v(U,2)}, {v(U+2,2)}
    v_pk_add_f32 {v(U+4,2)}, {v(U+4,2)}, {v(U+6,2)}
    v_add_f32 v{U}, v{U}, v{U+1}
    v_add_f32 v{U+1}, v{U+4}, v{U+5}
    v_mov_b32 v{U+2}, v{U}
    v_mov_b32 v{U+3}, v{U+1}
    v_cvt_pk_bf16_f32 v{PK}, v{H}, v{H+1}
    v_permlane32_swap_b32 v{U}, v{U+2}
    v_permlane32_swap_b32 v{U+1}, v{U+3}
    v_pk_add_f32 {v(U,2)}, {v(U,2)}, {v(U+2,2)}
    v_mov_b32 v{U+2}, v{U}
    v_mov_b32 v{U+3}, v{U+1}
    v_cvt_pk_bf16_f32 v{PK+1}, v{H+2}, v{H+3}
    v_permlane16_swap_b32 v{U}, v{U+2}
    v_permlane16_swap_b32 v{U+1}, v{U+3}
    v_pk_add_f32 {v(U,2)}, {v(U,2)}, {v(U+2,2)}
    v_cvt_pk_bf16_f32 v{PK+2}, v{H+4}, v{H+5}
    v_cvt_pk_bf16_f32 v{PK+3}, v{H+6}, v{H+7}
    v_add_f32_dpp v{U}, v{U}, v{U} row_ror:8 row_mask:0xf bank_mask:0xf
    v_add_f32_dpp v{U+1}, v{U+1}, v{U+1} row_ror:8 row_mask:0xf bank_mask:0xf
    """)
    a(f"""
    s_lshl_b32 s{sT1}, s{sW}, 3
    s_add_u32 s{sT1}, s{sT1}, {MISC + 128}
    v_lshlrev_b32 v{vt[5]}, 6, v{vt[0]}
    v_add_u32 v{vt[4]}, s{sT1}, v{vt[5]}
    v_add_u32 v{vt[5]}, {MISC + 128}, v{vt[5]}
    ds_write_b64 v{vt[4]}, {v(U,2)}
    """)
    if W2T >= 8:
        a(ldW2(6) + ldW2(7))
    a("s_waitcnt lgkmcnt(0)")
    a("s_barrier")
    for i in range(4):
        a(f"ds_read_b128 {v(ST+4*i,4)}, v{vt[5]} offset:{16*i}")
    a(f"""
    v_permlane16_swap_b32 v{PK}, v{PK+2}
    v_permlane16_swap_b32 v{PK+1}, v{PK+3}
    buffer_store_dwordx4 {v(PK,4)}, v{vVo}, {s(SQ,4)}, s{sV1} offen sc1
    """)
    a(f"""
    s_lshr_b32 s{sT0}, s{sRB}, 2
    s_lshl_b32 s{sT0}, s{sT0}, 15
    s_lshl_b32 s{sT1}, s{sW}, 12
    s_add_u32 s{sT0}, s{sT0}, s{sT1}
    s_and_b32 s{sT1}, s{sRB}, 3
    s_lshl_b32 s{sT1}, s{sT1}, 7
    s_add_u32 s{sT0}, s{sT0}, s{sT1}
    v_lshlrev_b32 v{vt[4]}, 4, v{vt[0]}
    v_lshl_add_u32 v{vt[4]}, v{vt[3]}, 11, v{vt[4]}
    v_lshrrev_b32 v{vt[0]}, 5, v0
    v_lshl_add_u32 v{vt[4]}, v{vt[0]}, 9, v{vt[4]}
    v_lshl_add_u32 v{vt[4]}, v{vt[1]}, 10, v{vt[4]}
    s_waitcnt lgkmcnt(0)
    v_pk_add_f32 {v(U+2,2)}, {v(ST,2)}, {v(ST+2,2)}
    v_pk_add_f32 {v(U+4,2)}, {v(ST+4,2)}, {v(ST+6,2)}
    v_pk_add_f32 {v(U+6,2)}, {v(ST+8,2)}, {v(ST+10,2)}
    v_pk_add_f32 {v(U+8,2)}, {v(ST+12,2)}, {v(ST+14,2)}
    v_pk_add_f32 {v(U+2,2)}, {v(U+2,2)}, {v(U+4,2)}
    v_pk_add_f32 {v(U+6,2)}, {v(U+6,2)}, {v(U+8,2)}
    v_pk_add_f32 {v(U+2,2)}, {v(U+2,2)}, {v(U+6,2)}
    v_mul_f32 v{U+2}, {hex(f32bits(1.0/512))}, v{U+2}
    v_mul_f32 v{U+3}, {hex(f32bits(1.0/512))}, v{U+3}
    v_fma_f32 v{U+3}, -v{U+2}, v{U+2}, v{U+3}
    v_max_f32 v{U+3}, 0, v{U+3}
    v_add_f32 v{U+6}, {hex(f32bits(1e-5))}, v{U+3}
    v_rsq_f32 v{U+6}, v{U+6}
    """)
    for i in range(4):
        a(f"v_pk_add_f32 {v(H+2*i,2)}, {v(H+2*i,2)}, {v(U+2,2)} op_sel_hi:[1,0] neg_lo:[0,1] neg_hi:[0,1]")
    for i in range(4):
        a(f"v_pk_mul_f32 {v(H+2*i,2)}, {v(H+2*i,2)}, {v(U+6,2)} op_sel_hi:[1,0]")
    for i in range(4):
        a(f"v_cvt_pk_bf16_f32 v{PK+4+i}, v{H+2*i}, v{H+2*i+1}")
    a(f"""
    s_nop 1
    v_permlane16_swap_b32 v{PK+4}, v{PK+6}
    v_permlane16_swap_b32 v{PK+5}, v{PK+7}
    buffer_store_dwordx4 {v(PK+4,4)}, v{vt[4]}, {s(SHN,4)}, s{sT0} offen sc1
    """)
    if DUAL & 1:
        a.c("same bytes once more with a plain store: keeps the lines in the local L2 (speed only)")
        a(f"buffer_store_dwordx4 {v(PK+4,4)}, v{vt[4]}, {s(SHN,4)}, s{sT0} offen")
    SF, SG = SKV, SWO
    srd(a, SF, 16, 17, WS_FLG, 32768)
    srd(a, SG, 16, 17, WS_G, G_BYTES)
    def signal(off, young):
        a(f"""
        s_waitcnt vmcnt({young})
        s_barrier
        {stamp_str(1 if off == 0 else 2)}
        s_cmp_lg_u32 s{sW}, 0
        s_cbranch_scc1 K2_NOSIG{off}
        s_lshl_b32 s{sT0}, s{sG}, 8
        s_lshl_b32 s{sT1}, s{sMm}, 2
        s_add_u32 s{sT1}, s{sT1}, s{sT0}
        v_mov_b32 v{vt[0]}, 0
        v_mov_b32 v{vt[1]}, s{sNonce}
        s_mov_b64 exec, 1
        s_add_u32 s{sT0}, s{sT1}, 4096
        buffer_store_dword v{vt[1]}, v{vt[0]}, {s(SF,4)}, s{sT0} offen offset:{off}
        buffer_store_dword v{vt[1]}, v{vt[0]}, {s(SF,4)}, s{sT1} offen offset:{off} sc1
        s_mov_b64 exec, -1
        K2_NOSIG{off}:
        """)
    def poll_start(off):
        pass
    def poll(off, mask):
        a(f"""
        s_cmp_lg_u32 s{sW}, 0
        s_cbranch_scc1 K2_NOPOLL{off}
        s_lshl_b32 s{sT0}, s{sG}, 8
        s_add_u32 s{sSo}, s{sT0}, 4096
        v_and_b32 v{vt[0]}, 15, v0
        v_lshlrev_b32 v{vt[0]}, 2, v{vt[0]}
        s_mov_b32 s{sT2}, 0x400000
        s_mov_b32 s{sB3}, 0
        K2_POLL{off}:
        s_sub_u32 s{sT2}, s{sT2}, 1
        s_cbranch_scc1 K2_NOPOLL{off}
        s_and_b32 s{sT1}, s{sT2}, {FASTN - 1}
        s_cselect_b32 s{sT1}, s{sSo}, s{sT0}
        buffer_load_dword v{vt[1]}, v{vt[0]}, {s(SF,4)}, s{sT1} offen offset:{off} sc1
        s_waitcnt vmcnt(0)
        v_cmp_eq_u32 vcc, s{sNonce}, v{vt[1]}
        s_or_b32 s{sB3}, s{sB3}, vcc_lo
        s_and_b32 s{sT1}, s{sB3}, {hex(mask)}
        s_cmp_lg_u32 s{sT1}, {hex(mask)}
        s_cbranch_scc1 K2_POLL{off}
        K2_NOPOLL{off}:
        s_barrier
        """)
    stamp(a, 5)
    if RELOAD:
        a.c("touch the lines just written so that they sit in the local L2 (speed only)")
        a(f"""
        buffer_load_dword v{T+12}, v{vt[4]}, {s(SHN,4)}, s{sT0} offen sc1
        buffer_load_dword v{T+13}, v{vVo}, {s(SQ,4)}, s{sV1} offen sc1
        """)
    signal(0, 2 if RELOAD else 0)
    a(f"""
    s_cmp_eq_u32 s{sMm}, 15
    s_cbranch_scc1 K2_SKIP1
    """)
    poll_start(0)
    a(f"""
    v_lshrrev_b32 v{vt[2]}, 5, v0
    v_lshlrev_b32 v{vt[2]}, 3, v{vt[2]}
    v_add_u32 v{vt[2]}, {B1L}, v{vt[2]}
    s_cmp_eq_u32 s{sHalf}, 0
    s_cselect_b32 s{sT2}, -1, 0
    s_and_b32 s{sSo}, s{sT2}, 0xffff0000
    """)
    BI = Kf
    acc1 = [O[0], O[1], hacc]
    for ft in range(3):
        for q in range(4):
            a(f"ds_read_b64 {v(BI+8*ft+2*q,2)}, v{vt[2]} offset:{ft*64+q*16}")
    a("s_waitcnt lgkmcnt(0)")
    for ft in range(3):
        for i in range(8):
            a(f"v_and_b32 v{acc1[ft]+2*i+1}, s{sSo}, v{BI+8*ft+i}")
            a(f"v_and_b32 v{BI+8*ft+i}, s{sT2}, v{BI+8*ft+i}")
            a(f"v_lshlrev_b32 v{acc1[ft]+2*i}, 16, v{BI+8*ft+i}")
    Bf = [Kf + 4*i for i in range(8)] + [woA + 4*i for i in range(4)] + [T + 4*i for i in range(4)]
    Af = [Vf, Vf + 4, OFr, OFr + 4, nrm, nrm + 4, Q, zero]
    vWa = vOa; vEx = vLa; vEr = vNr
    sRT, sKH = sV1, sHalf
    a(f"""
    s_and_b32 s{sRT}, s{sW}, 3
    s_lshl_b32 s{sT0}, s{sG}, 2
    s_add_u32 s{sRT}, s{sRT}, s{sT0}
    v_lshrrev_b32 v{vt[2]}, 5, v0
    v_lshlrev_b32 v{vt[2]}, 9, v{vt[2]}
    v_bfe_u32 v{vt[3]}, v0, 2, 2
    v_lshl_add_u32 v{vt[2]}, v{vt[3]}, 6, v{vt[2]}
    v_bfe_u32 v{vt[3]}, v0, 4, 1
    v_lshl_add_u32 v{vt[2]}, v{vt[3]}, 5, v{vt[2]}
    v_and_b32 v{vt[3]}, 3, v0
    v_lshl_add_u32 v{vt[2]}, v{vt[3]}, 3, v{vt[2]}
    s_mul_i32 s{sT0}, s{sKH}, 49152
    v_add_u32 v{vWa}, s{sT0}, v{vt[2]}
    s_mul_i32 s{sT0}, s{sW}, 6144
    s_add_u32 s{sT0}, s{sT0}, {EXB}
    v_add_u32 v{vEx}, s{sT0}, v{vQa}
    s_xor_b32 s{sT0}, s{sW}, 4
    s_mul_i32 s{sT0}, s{sT0}, 6144
    s_add_u32 s{sT0}, s{sT0}, {EXB}
    v_add_u32 v{vEr}, s{sT0}, v{vQa}
    s_lshl_b32 s{sWm}, s{sRT}, 15
    s_lshl_b32 s{sT0}, s{sKH}, 14
    s_add_u32 s{sWm}, s{sWm}, s{sT0}
    """)
    def areads(f):
        ks, ft = divmod(f, 3)
        off = ks * 3072 + ft * 1024
        a(f"ds_read_b64_tr_b16 {v(Af[f%8],2)}, v{vWa} offset:{off}")
        a(f"ds_read_b64_tr_b16 {v(Af[f%8]+2,2)}, v{vWa} offset:{off+256}")
    for f in range(5):
        areads(f)
    if W2L == "thin":
        a(f"""
        s_cmp_eq_u32 s{sW}, 0
        s_cbranch_scc1 K2_NW2
        """)
        for i in range(8, 11):
            a(ldW2(i))
            if i < 10:
                a("s_waitcnt vmcnt(0)")
        a("K2_NW2:")
    poll(0, 0xffff)
    stamp(a, 6)
    for i in range(16):
        a(f"""
        s_add_u32 s{sSo}, s{sMm}, {i}
        s_and_b32 s{sSo}, s{sSo}, 15
        s_lshl_b32 s{sSo}, s{sSo}, 10
        s_add_u32 s{sSo}, s{sSo}, s{sWm}
        buffer_load_dwordx4 {v(Bf[i],4)}, v{vQa}, {s(SHN,4)}, s{sSo} offen {LDF}
        """)
    for f in range(48):
        ks, ft = divmod(f, 3)
        later = min(4, 47 - f)
        w = f"lgkmcnt({2*later})"
        if ft == 0:
            w = f"vmcnt({15 - ks + (2*min(11 - W2T, max(0, ks - (W2T + 2))) if W2L == 'mid' else 0)}) " + w
        a(f"s_waitcnt {w}")
        a(f"v_mfma_f32_32x32x16_bf16 {v(acc1[ft],16)}, {v(Af[f%8],4)}, {v(Bf[ks],4)}, {v(acc1[ft],16)}")
        if f + 5 < 48:
            areads(f + 5)
        if W2L == "mid" and ft == 2 and W2T + 2 <= ks < 13:
            a(ldW2(ks - 2))
    stamp(a, 7)
    if W2L == "thin":
        a(f"""
        s_cmp_lg_u32 s{sW}, 0
        s_cbranch_scc1 K2_NW3
        """)
    if W2L != "mid":
        a(ldW2(8) + ldW2(9) + ldW2(10))
    a("K2_NW3:")
    a(f"""
    s_mul_i32 s{sT0}, s{sRT}, 86
    s_lshl_b32 s{sT1}, s{sT0f}, 1
    s_add_u32 s{sT0}, s{sT0}, s{sT1}
    s_mul_i32 s{sT1}, s{sKH}, 3
    s_add_u32 s{sT0}, s{sT0}, s{sT1}
    s_lshl_b32 s{sT0}, s{sT0}, 10
    s_cmp_eq_u32 s{sMm}, 14
    s_cselect_b32 s{sT1}, 0x1000000, s{sT0}
    s_nop 5
    s_cmp_eq_u32 s{sKH}, 1
    s_cbranch_scc1 K2_EX1
    """)
    lo = [acc1[0], acc1[0] + 8, acc1[1]]
    hi = [acc1[1] + 8, acc1[2], acc1[2] + 8]
    RX = Kf
    def exchange(keep, send, so):
        for q in range(3):
            a(f"ds_write_b128 v{vEx}, {v(send[q],4)} offset:{q*2048}")
            a(f"ds_write_b128 v{vEx}, {v(send[q]+4,4)} offset:{q*2048+1024}")
        a("s_waitcnt lgkmcnt(0)")
        a("s_barrier")
        for q in range(6):
            a(f"ds_read_b128 {v(RX+4*q,4)}, v{vEr} offset:{q*1024}")
        for q in range(3):
            a(f"s_waitcnt lgkmcnt({4-2*q})")
            for i in range(4):
                a(f"v_pk_add_f32 {v(keep[q]+2*i,2)}, {v(keep[q]+2*i,2)}, {v(RX+8*q+2*i,2)}")
            for i in range(8):
                a(f"v_max_f32 v{keep[q]+i}, 0, v{keep[q]+i}")
            for i in range(4):
                a(f"v_pk_mul_f32 {v(keep[q]+2*i,2)}, {v(keep[q]+2*i,2)}, {v(keep[q]+2*i,2)}")
            for i in range(4):
                a(f"v_cvt_pk_bf16_f32 v{woA+4*q+i}, v{keep[q]+2*i}, v{keep[q]+2*i+1}")
            a(f"buffer_store_dwordx4 {v(woA+4*q,4)}, v{vQa}, {s(SG,4)}, s{so[q]} offen offset:{q*1024} sc1")
            if DUAL & 2:
                a(f"buffer_store_dwordx4 {v(woA+4*q,4)}, v{vQa}, {s(SG,4)}, s{so[q]} offen offset:{q*1024}")
    exchange(lo, hi, [sT1, sT1, sT1])
    a("s_branch K2_EXJ")
    a("K2_EX1:")
    exchange(hi, lo, [sT1, sT0, sT0])
    a("K2_EXJ:")
    stamp(a, 8)
    if RELOAD:
        for q in range(3):
            a(f"buffer_load_dword v{hacc+q}, v{vQa}, {s(SG,4)}, s{sT0} offen offset:{q*1024} sc1")
    signal(128, 3 if RELOAD else 0)
    a("s_branch K2_FFN2")
    a("K2_SKIP1:")
    a("".join(ldW2(i) for i in range(W2T, 11)))
    a("K2_FFN2:")
    poll_start(128)
    Gf = [Kf + 4*i for i in range(8)] + [Vf, Vf + 4] + [woA + 4*i for i in range(4)] + [T + 4*i for i in range(4)] + [OFr, OFr + 4]
    Gf += Gf[:2]
    acc2 = [O[0], O[1], hacc, zero]
    vG1 = vOa; vOo = vLa; vRw = vNr; vRr = vNl; vB2 = vNw
    sGo, sOo, sGend = sWm, sV1, sRot
    srd(a, SX, 18, 19, 0, 1024)
    srd(a, SHN, 10, 11, 0, 0x200000)
    a(f"""
    s_lshl_b32 s{sT0}, s{sG}, 1
    s_lshr_b32 s{sT1}, s{sMm}, 3
    s_add_u32 s{sT0}, s{sT0}, s{sT1}
    s_lshl_b32 s{sOo}, s{sT0}, 16
    s_mul_i32 s{sGo}, s{sT0}, {2*86*1024}
    s_add_u32 s{sGend}, s{sGo}, {86*1024}
    s_lshl_b32 s{sT1}, s{sW}, 10
    s_add_u32 s{sGo}, s{sGo}, s{sT1}
    v_add_u32 v{vG1}, {86*1024}, v{vQa}
    v_and_b32 v{vt[2]}, 31, v0
    v_mul_u32_u24 v{vt[2]}, 272, v{vt[2]}
    v_lshrrev_b32 v{vt[3]}, 5, v0
    v_lshl_add_u32 v{vt[2]}, v{vt[3]}, 4, v{vt[2]}
    s_mul_i32 s{sT0}, s{sW}, {RSTR}
    v_add_u32 v{vRw}, s{sT0}, v{vt[2]}
    v_lshrrev_b32 v{vt[2]}, 3, v0
    s_lshl_b32 s{sT0}, s{sW}, 3
    v_add_u32 v{vt[2]}, s{sT0}, v{vt[2]}
    v_and_b32 v{vt[3]}, 7, v0
    v_mul_u32_u24 v{vRr}, 272, v{vt[2]}
    v_lshl_add_u32 v{vRr}, v{vt[3]}, 5, v{vRr}
    s_lshl_b32 s{sT0}, s{sCB2}, 7
    v_lshlrev_b32 v{vB2}, 4, v{vt[3]}
    v_add_u32 v{vB2}, s{sT0}, v{vB2}
    v_lshl_add_u32 v{vOo}, v{vt[2]}, 10, v{vB2}
    """)
    poll(128, 0x7fff)
    stamp(a, 9)
    def ldG(i):
        a(f"""
        s_add_u32 s{sSo}, s{sCB2}, {i}
        s_sub_u32 s{sT1}, s{sSo}, 11
        s_cselect_b32 s{sSo}, s{sSo}, s{sT1}
        s_lshl_b32 s{sSo}, s{sSo}, 13
        s_add_u32 s{sSo}, s{sSo}, s{sGo}
        s_cmp_ge_u32 s{sSo}, s{sGend}
        s_cselect_b32 s{sSo}, 0x1000000, s{sSo}
        """)
        a(f"buffer_load_dwordx4 {v(Gf[2*i],4)}, v{vQa}, {s(SG,4)}, s{sSo} offen {LDF}")
        a(f"buffer_load_dwordx4 {v(Gf[2*i+1],4)}, v{vG1}, {s(SG,4)}, s{sSo} offen {LDF}")
    for i in range(10):
        ldG(i)
    for i in range(11):
        a(f"s_waitcnt vmcnt({18 if i == 0 else 2*(10-i)})")
        for ct in range(2):
            for rt in range(2):
                d = acc2[2*ct + rt]
                a(f"v_mfma_f32_32x32x16_bf16 {v(d,16)}, {v(W2R+8*i+4*ct,4)}, {v(Gf[2*i+rt],4)}, {'0' if i == 0 else v(d,16)}")
        if i == 0:
            ldG(10)
    stamp(a, 10)
    HR = woA; B2 = woA + 4
    a(f"""
    buffer_load_dwordx4 {v(HR,4)}, v{vOo}, {s(SQ,4)}, s{sOo} offen sc1
    buffer_load_dwordx4 {v(B2,4)}, v{vB2}, {s(SX,4)}, 0 offen
    v_add_u32 v{vt[2]}, {3*RSTR}, v{vRr}
    v_add_u32 v{vt[3]}, {6*RSTR}, v{vRr}
    s_nop 7
    """)
    for ct in range(2):
        for rt in range(2):
            for q in range(4):
                d = acc2[2*ct + rt] + 4*q
                a(f"ds_write_b128 v{vRw}, {v(d,4)} offset:{rt*32*272 + (32*ct + 8*q)*4}")
    a("s_waitcnt vmcnt(0)")
    for i in range(4):
        a(f"v_lshlrev_b32 v{T+2*i}, 16, v{HR+i}")
        a(f"v_and_b32 v{T+2*i+1}, 0xffff0000, v{HR+i}")
        a(f"v_lshlrev_b32 v{T+8+2*i}, 16, v{B2+i}")
        a(f"v_and_b32 v{T+8+2*i+1}, 0xffff0000, v{B2+i}")
    for i in range(4):
        a(f"v_pk_add_f32 {v(T+2*i,2)}, {v(T+2*i,2)}, {v(T+8+2*i,2)}")
    a("s_waitcnt lgkmcnt(0)")
    a("s_barrier")
    stamp(a, 11)
    RR = W2R
    for w in range(8):
        base = (vRr, vt[2], vt[3])[w // 3]
        for q in range(2):
            a(f"ds_read_b128 {v(RR+8*w+4*q,4)}, v{base} offset:{(w % 3)*RSTR + 16*q}")
    for w in range(0, 8, 2):
        a(f"s_waitcnt lgkmcnt({12 - 2*w})")
        for i in range(4):
            a(f"v_pk_add_f32 {v(RR+8*w+2*i,2)}, {v(RR+8*w+2*i,2)}, {v(RR+8*w+8+2*i,2)}")
        for i in range(4):
            a(f"v_pk_add_f32 {v(T+2*i,2)}, {v(T+2*i,2)}, {v(RR+8*w+2*i,2)}")
    for i in range(4):
        a(f"v_cvt_pk_bf16_f32 v{T+8+i}, v{T+2*i}, v{T+2*i+1}")
    a(f"buffer_store_dwordx4 {v(T+8,4)}, v{vOo}, {s(SHN,4)}, s{sOo} offen {OUTF}")
    a(f"""
    s_or_b32 s{sT0}, s2, s{sW}
    s_cmp_lg_u32 s{sT0}, 0
    s_cbranch_scc1 K2_NONON
    v_mov_b32 v{vt[0]}, {NONCE}
    v_mov_b32 v{vt[1]}, s{sNonce}
    s_mov_b64 exec, 1
    buffer_store_dword v{vt[1]}, v{vt[0]}, {s(SF,4)}, 0 offen
    K2_NONON:
    """)
    stamp_dump(a, 1, sW)
    a("K2_END:")
    a("s_endpgm")
    a.c("slow path: true row maxima first")
    a("K2_SLOW:")
    MB = MISC + 1024
    a("s_setprio 0")
    for i in range(SLOW_V0, 16):
        a(ldV(i))
    a("s_nop 7\ns_nop 7")
    for o in O:
        a(f"v_mfma_f32_32x32x16_bf16 {v(o,16)}, {v(zero,4)}, {v(zero,4)}, 0")
    a(f"""
    v_and_b32 v{vt[0]}, 31, v0
    v_lshlrev_b32 v{vt[0]}, 2, v{vt[0]}
    v_add_u32 v{vt[0]}, {MB}, v{vt[0]}
    s_lshl_b32 s{sT0}, s{sW}, 7
    v_add_u32 v{vt[1]}, s{sT0}, v{vt[0]}
    v_mov_b32 v{vt[2]}, 0xff800000
    ds_write_b32 v{vt[1]}, v{vt[2]}
    s_waitcnt vmcnt(0) lgkmcnt(0)
    s_barrier
    v_mov_b32 v{vt[1]}, v{vt[0]}
    v_mov_b32 v{vt[3]}, v{vQl}
    s_mov_b32 s{sT0}, 0
    K2_P1:
    ds_read_b128 {v(Q,4)}, v{vt[3]}
    v_mov_b32 v{nrm}, 0xff800000
    s_waitcnt lgkmcnt(0)
    """)
    for j in range(8):
        a(f"v_mfma_f32_32x32x16_bf16 {v(S[0],16)}, {v(Kf+4*j,4)}, {v(Q,4)}, 0")
        a("s_nop 7\ns_nop 3")
        for i in range(8):
            a(f"v_max3_f32 v{nrm}, v{nrm}, v{S[0]+2*i}, v{S[0]+2*i+1}")
        a("s_nop 1")
    a(f"""
    ds_max_f32 v{vt[1]}, v{nrm}
    v_add_u32 v{vt[1]}, 128, v{vt[1]}
    v_add_u32 v{vt[3]}, 1024, v{vt[3]}
    s_add_u32 s{sT0}, s{sT0}, 1
    s_cmp_lt_u32 s{sT0}, 8
    s_cbranch_scc1 K2_P1
    ds_read_b128 {v(Q,4)}, v{vQl}
    s_waitcnt lgkmcnt(0)
    s_barrier
    """)
    mainloop(True)
    a("s_branch K2_TAIL")
    for r in retries:
        lab = r.split(":")[0]
        if any(("s_cbranch_vccnz " + lab) == l.strip() for l in a.lines):
            a(r)
    return name, R.cur, K2_LDS
```

```python
import sys
from asmlib import *
from k1 import gen_k1
from k2 import gen_k2
from k3 import gen_k3
from k4 import gen_k4
NAME = "sequential_preLN__grouped_kv_mqa__dense_activation_squared_relu__prompt"
ref = open(f"cdna_kernels/{NAME}.s.ref").read().split("\n")
hdr = [l for l in ref if l.startswith(";") and "@launch" not in l and "Override launch" not in l and "grid=ceil" not in l]
import os
LISTFORM = os.environ.get('LISTFORM', '1') == '1'
def build(extra_launch=None):
    a = Asm()
    n, nv1, l1 = gen_k1(a)
    n, nv2, l2 = gen_k2(a)
    out = "\n".join(hdr) + "\n"
    out += f"; @launch kernel={n} grid=(256,1,1) block=(512,1,1) lds={max(l1, l2)}\n" if LISTFORM else f"; @launch grid=(256,1,1) block=(512,1,1) lds={max(l1, l2)}\n"
    out += '.amdgcn_target "amdgcn-amd-amdhsa--gfx950"\n.text\n'
    out += a.text()
    out += '.section .rodata,"a"\n'
    out += kernel_desc(n, max(nv1, nv2))
    return out
if __name__ == "__main__":
    path = sys.argv[1] if len(sys.argv) > 1 else f"cdna_kernels/{NAME}.s"
    open(path, "w").write(build())
```

```python
from asmlib import *
from common import *

XBASE = 0
WBASE = 65536
KVBASE = 131072
STBASE = 147456
K1_LDS = STBASE + 16384

import os
CODEPF = os.environ.get("CODEPF", "1") == "1"
K1F = os.environ.get("K1F", "").replace("_", " ")
K1Q = os.environ.get("K1Q", "").replace("_", " ")
UP = int(os.environ.get("UP", "2"))
JF = int(os.environ.get("JF", "23"))
UPX = os.environ.get("UPX", "0") == "1"
BARS = [int(x) for x in os.environ.get("BARS", "0,2").split(",")]

def gen_k1(a):
    name = "qkv_kernel"
    kernel_header(a, name)
    R = Regs(1, 128)
    R.alloc("pad")
    vt = [R.alloc(f"t{i}") for i in range(8)]
    NS = 4
    pool = R.alloc("pool", 116, 4)
    sW, sRB, sCB, sWR, sWC, sH = 20, 21, 22, 23, 44, 45
    sT0, sT1, sXm, sWm, sKm, sSo, sWv, sB = 46, 47, 48, 49, 50, 51, 56, 57
    SX, SWQ, SKW, SQ, SKV, SWO = 24, 28, 32, 36, 40, 52
    a(f"""
    s_cmp_ge_u32 s2, 256
    s_cbranch_scc1 K1_END
    s_load_dwordx8 s[8:15], s[0:1], 0
    s_load_dwordx2 s[16:17], s[0:1], 96
    s_load_dwordx2 s[18:19], s[0:1], 32
    s_load_dwordx2 s[4:5], s[0:1], 64
    v_lshrrev_b32 v{vt[0]}, 6, v0
    v_and_b32 v0, 63, v0
    v_readfirstlane_b32 s{sW}, v{vt[0]}
    s_and_b32 s{sT0}, s2, 7
    s_lshr_b32 s{sT1}, s2, 3
    s_lshl_b32 s{sRB}, s{sT0}, 2
    s_and_b32 s{sT0}, s{sT1}, 3
    s_add_u32 s{sRB}, s{sRB}, s{sT0}
    s_lshr_b32 s{sCB}, s{sT1}, 2
    """)
    stamp_init(a)
    a(f"""
    s_cmp_ge_u32 s{sW}, 4
    s_cbranch_scc1 K1_MM
    """)
    P = Regs(pool, pool + 116)
    vXoff = [P.alloc(f"xoff{e}") for e in range(4)]
    vWoff = [P.alloc(f"woff{e}") for e in range(2)]
    vKoff = P.alloc("koff")
    vXs = [P.alloc(f"xs{i}") for i in range(4)]
    vX16a = P.alloc("x16a"); vKWa = P.alloc("kwa")
    Gq = P.alloc("gq", 4); Gs = P.alloc("gs", 4)
    ones = P.alloc("ones", 4)
    Xs = P.alloc("xsd", 16); Ws = P.alloc("wsd", 16)
    X16 = P.alloc("x16", 4); KW = P.alloc("kw", 4)
    Dk = P.alloc("dk", 4); Dc = P.alloc("dc", 4)
    st = P.alloc("st", 8, 4); pk = P.alloc("pk", 2, 2)
    a("s_setprio 3")
    a(f"""
    v_lshrrev_b32 v{vt[2]}, 4, v0
    v_and_b32 v{vt[3]}, 15, v0
    s_lshl_b32 s{sT0}, s{sW}, 14
    """)
    for e in range(4):
        a(f"""
        v_add_u32 v{vt[4]}, {4*e}, v{vt[2]}
        v_xor_b32 v{vt[5]}, v{vt[3]}, v{vt[4]}
        v_lshlrev_b32 v{vt[5]}, 4, v{vt[5]}
        v_lshl_add_u32 v{vt[5]}, v{vt[4]}, 10, v{vt[5]}
        v_add_u32 v{vXoff[e]}, s{sT0}, v{vt[5]}
        """)
    a(f"""
    v_lshrrev_b32 v{vt[4]}, 2, v0
    v_and_b32 v{vt[5]}, 3, v0
    v_lshlrev_b32 v{vt[5]}, 4, v{vt[5]}
    v_lshl_add_u32 v{vt[7]}, v{vt[4]}, 10, v{vt[5]}
    s_lshl_b32 s{sT0}, s{sCB}, 7
    s_lshl_b32 s{sT1}, s{sW}, 15
    s_add_u32 s{sT0}, s{sT0}, s{sT1}
    v_add_u32 v{vWoff[0]}, s{sT0}, v{vt[7]}
    v_add_u32 v{vWoff[1]}, 0x4000, v{vWoff[0]}
    v_lshrrev_b32 v{vt[4]}, 1, v0
    v_and_b32 v{vt[5]}, 0x13, v{vt[4]}
    v_and_b32 v{vt[6]}, 4, v{vt[4]}
    v_lshl_or_b32 v{vt[5]}, v{vt[6]}, 1, v{vt[5]}
    v_and_b32 v{vt[6]}, 8, v{vt[4]}
    v_lshrrev_b32 v{vt[6]}, 1, v{vt[6]}
    v_or_b32 v{vt[5]}, v{vt[5]}, v{vt[6]}
    v_lshlrev_b32 v{vt[5]}, 5, v{vt[5]}
    v_and_b32 v{vt[6]}, 1, v0
    v_lshl_add_u32 v{vt[5]}, v{vt[6]}, 4, v{vt[5]}
    s_lshl_b32 s{sT0}, s{sW}, 10
    v_add_u32 v{vKoff}, s{sT0}, v{vt[5]}
    s_lshl_b32 s{sXm}, s{sW}, 12
    s_lshl_b32 s{sWm}, s{sW}, 11
    s_add_u32 s{sWm}, s{sWm}, {WBASE}
    s_add_u32 s{sKm}, s{sT0}, {KVBASE}
    s_lshl_b32 s{sT0}, s{sRB}, 16
    s_waitcnt lgkmcnt(0)
    s_add_u32 s{SX}, s8, s{sT0}
    s_addc_u32 s{SX+1}, s9, 0
    s_mov_b32 s{SX+2}, 0x10000
    s_mov_b32 s{SX+3}, 0x20000
    """)
    srd(a, SWQ, 10, 11, 0, 524288)
    a(f"""
    s_bitcmp1_b32 s{sCB}, 0
    s_cselect_b32 s{SKW}, s14, s12
    s_cselect_b32 s{SKW+1}, s15, s13
    s_mov_b32 s{SKW+2}, 0x4000
    s_mov_b32 s{SKW+3}, 0x20000
    """)
    a(f"s_add_u32 s{sB}, s{sCB}, s{sRB}")
    def issue(c):
        a(f"""
        s_add_u32 s{sWv}, s{sB}, {c}
        s_and_b32 s{sWv}, s{sWv}, 3
        s_lshl_b32 s{sSo}, s{sWv}, 8
        """)
        for e in range(4):
            a(f"s_add_u32 m0, s{sXm}, {XBASE + c*16384 + e*1024}")
            a("s_nop 0")
            a(f"buffer_load_dwordx4 v{vXoff[e]}, {s(SX,4)}, s{sSo} offen lds")
        a(f"s_lshl_b32 s{sSo}, s{sWv}, 17")
        for kb in range(2):
            for ct in range(2):
                a(f"s_add_u32 m0, s{sWm}, {(ct*32 + c*8 + kb)*1024 - ct*64}")
                a("s_nop 0")
                a(f"buffer_load_dwordx4 v{vWoff[kb]}, {s(SWQ,4)}, s{sSo} offen offset:{ct*64} lds")
        a(f"s_lshl_b32 s{sSo}, s{sWv}, 12")
        a(f"s_add_u32 m0, s{sKm}, {c*4096}")
        a("s_nop 0")
        a(f"buffer_load_dwordx4 v{vKoff}, {s(SKW,4)}, s{sSo} offen lds")
    for c in range(UP):
        issue(c)
    a("s_setprio 0")
    stamp(a, 1)
    a(f"""
    s_lshl_b32 s{sT0}, s{sW}, 12
    v_lshlrev_b32 v{vt[4]}, 8, v{vt[3]}
    v_add_u32 v{vt[4]}, s{sT0}, v{vt[4]}
    v_lshlrev_b32 v{vt[5]}, 2, v{vt[2]}
    """)
    for i in range(4):
        a(f"""
        v_add_u32 v{vt[6]}, {i}, v{vt[5]}
        v_xor_b32 v{vt[6]}, v{vt[6]}, v{vt[3]}
        v_lshl_add_u32 v{vXs[i]}, v{vt[6]}, 4, v{vt[4]}
        """)
    a(f"""
    v_lshrrev_b32 v{vt[1]}, 5, v0
    v_bfe_u32 v{vt[5]}, v0, 2, 2
    v_bfe_u32 v{vt[6]}, v0, 4, 1
    v_and_b32 v{vt[0]}, 3, v0
    v_lshlrev_b32 v{vt[4]}, 9, v{vt[1]}
    v_lshl_add_u32 v{vt[4]}, v{vt[6]}, 7, v{vt[4]}
    v_lshl_add_u32 v{vt[4]}, v{vt[5]}, 5, v{vt[4]}
    v_lshl_add_u32 v{vt[4]}, v{vt[0]}, 3, v{vt[4]}
    v_add_u32 v{vKWa}, s{sKm}, v{vt[4]}
    s_lshr_b32 s{sT0}, s{sCB}, 1
    s_lshl_b32 s{sT0}, s{sT0}, 12
    s_lshl_b32 s{sT1}, s{sW}, 2
    v_add_u32 v{vt[6]}, s{sT1}, v{vt[2]}
    v_xor_b32 v{vt[6]}, v{vt[6]}, v{vt[3]}
    v_lshlrev_b32 v{vt[6]}, 4, v{vt[6]}
    v_lshl_add_u32 v{vt[6]}, v{vt[3]}, 8, v{vt[6]}
    v_add_u32 v{vX16a}, s{sT0}, v{vt[6]}
    """)
    for i in range(4):
        a(f"v_mov_b32 v{ones+i}, 0x3f803f80")
    srd(a, SKV, 16, 17, WS_K, KV_BYTES)
    for c in range(4):
        z = (lambda r: "0") if c == 0 else (lambda r: v(r, 4))
        a(f"s_waitcnt vmcnt({(9, 18, 9, 0)[c] if UPX else 9 * min(UP - 1, 3 - c)})")
        a("s_barrier")
        stamp(a, 2 + c)
        for i in range(4):
            a(f"ds_read_b128 {v(Xs+4*i,4)}, v{vXs[i]} offset:{c*16384}")
        a(f"ds_read_b128 {v(X16,4)}, v{vX16a} offset:{c*16384}")
        a(f"ds_read_b64_tr_b16 {v(KW,2)}, v{vKWa} offset:{c*4096}")
        a(f"ds_read_b64_tr_b16 {v(KW+2,2)}, v{vKWa} offset:{c*4096+256}")
        if UPX:
            if c == 0:
                issue(2)
        elif c + UP < 4:
            issue(c + UP)
        for i in range(4):
            a(f"s_waitcnt lgkmcnt({6-i})")
            a(f"v_mfma_f32_16x16x32_bf16 {v(Gq,4)}, {v(Xs+4*i,4)}, {v(Xs+4*i,4)}, {z(Gq) if i == 0 else v(Gq,4)}")
            a(f"v_mfma_f32_16x16x32_bf16 {v(Gs,4)}, {v(Xs+4*i,4)}, {v(ones,4)}, {z(Gs) if i == 0 else v(Gs,4)}")
        a(f"""
        s_waitcnt lgkmcnt(0)
        s_bitcmp1_b32 s{sCB}, 0
        s_cbranch_scc1 K1_V{c}
        v_mfma_f32_16x16x32_bf16 {v(Dk,4)}, {v(KW,4)}, {v(X16,4)}, {z(Dk)}
        v_mfma_f32_16x16x32_bf16 {v(Dc,4)}, {v(KW,4)}, {v(ones,4)}, {z(Dc)}
        s_branch K1_J{c}
        K1_V{c}:
        v_mfma_f32_16x16x32_bf16 {v(Dk,4)}, {v(X16,4)}, {v(KW,4)}, {z(Dk)}
        v_mfma_f32_16x16x32_bf16 {v(Dc,4)}, {v(ones,4)}, {v(KW,4)}, {z(Dc)}
        K1_J{c}:
        """)
        if UPX and c == 0:
            issue(3)
    stamp(a, 6)
    a.c("row statistics: lane n = 4g + r holds the diagonal of X X^T and the row sum in register r")
    a(f"""
    v_and_b32 v{vt[0]}, 1, v0
    v_cmp_eq_u32 vcc, 1, v{vt[0]}
    v_and_b32 v{vt[0]}, 2, v0
    v_cmp_eq_u32 s[6:7], 2, v{vt[0]}
    s_mov_b32 s{sXm}, {hex(f32bits(1.0/512))}
    s_mov_b32 s{sWm}, {hex(f32bits(1e-5))}
    v_cndmask_b32 v{Gq}, v{Gq}, v{Gq+1}, vcc
    v_cndmask_b32 v{Gq+2}, v{Gq+2}, v{Gq+3}, vcc
    v_cndmask_b32 v{Gs}, v{Gs}, v{Gs+1}, vcc
    v_cndmask_b32 v{Gs+2}, v{Gs+2}, v{Gs+3}, vcc
    v_cndmask_b32 v{st+1}, v{Gq}, v{Gq+2}, s[6:7]
    v_cndmask_b32 v{st}, v{Gs}, v{Gs+2}, s[6:7]
    v_mul_f32 v{st+3}, s{sXm}, v{st}
    v_mul_f32 v{st+1}, s{sXm}, v{st+1}
    v_fma_f32 v{st+1}, -v{st+3}, v{st+3}, v{st+1}
    v_max_f32 v{st+1}, 0, v{st+1}
    v_add_f32 v{st+1}, s{sWm}, v{st+1}
    v_rsq_f32 v{st+2}, v{st+1}
    s_lshl_b32 s{sT0}, s{sW}, 8
    s_add_u32 s{sT0}, s{sT0}, {STBASE}
    v_lshlrev_b32 v{vt[0]}, 4, v{vt[3]}
    v_mul_f32 v{st}, {hex(f32bits(QSCALE))}, v{st+2}
    v_add_u32 v{vt[0]}, s{sT0}, v{vt[0]}
    v_mul_f32 v{st+1}, v{st}, v{st+3}
    s_mov_b32 exec_lo, 0x00f0000f
    s_mov_b32 exec_hi, 0xf0000f00
    ds_write_b128 v{vt[0]}, {v(st,4)}
    s_mov_b64 exec, -1
    """)
    a(f"""
    v_lshlrev_b32 v{vt[4]}, 4, v0
    v_add_u32 v{vt[4]}, {STBASE + 2048}, v{vt[4]}
    s_lshl_b32 s{sT0}, s{sW}, 11
    v_add_u32 v{vt[5]}, s{sT0}, v{vt[4]}
    s_cmp_eq_u32 s{sW}, 3
    s_cbranch_scc1 K1_NOKVP
    ds_write_b128 v{vt[5]}, {v(Dk,4)}
    ds_write_b128 v{vt[5]}, {v(Dc,4)} offset:1024
    K1_NOKVP:
    s_waitcnt lgkmcnt(0)
    s_barrier
    s_cmp_lg_u32 s{sW}, 3
    s_cbranch_scc1 K1_DONE
    """)
    a.c("KV epilogue (wave 3)")
    g, d = vt[2], vt[3]
    Pp = Xs
    assert Ws == Xs + 16 and Dc == Dk + 4
    for w in range(3):
        a(f"ds_read_b128 {v(Pp+8*w,4)}, v{vt[4]} offset:{w*2048}")
        a(f"ds_read_b128 {v(Pp+8*w+4,4)}, v{vt[4]} offset:{w*2048+1024}")
    def kvsum():
        for i in range(4):
            a(f"v_pk_add_f32 {v(Pp+2*i,2)}, {v(Pp+2*i,2)}, {v(Pp+8+2*i,2)}")
            a(f"v_pk_add_f32 {v(Pp+16+2*i,2)}, {v(Pp+16+2*i,2)}, {v(Dk+2*i,2)}")
        for i in range(4):
            a(f"v_pk_add_f32 {v(Dk+2*i,2)}, {v(Pp+2*i,2)}, {v(Pp+16+2*i,2)}")
    a(f"""
    s_lshr_b32 s{sH}, s{sCB}, 1
    s_lshl_b32 s{sT0}, s{sH}, 8
    s_add_u32 s{sT0}, s{sT0}, {STBASE}
    s_lshl_b32 s{sKm}, s{sRB}, 2
    s_add_u32 s{sKm}, s{sKm}, s{sH}
    s_bitcmp1_b32 s{sCB}, 0
    s_cbranch_scc1 K1_VEP
    """)
    a.c("K tile: lane key = l&15")
    a(f"""
    v_lshlrev_b32 v{vt[0]}, 4, v{d}
    v_add_u32 v{vt[0]}, s{sT0}, v{vt[0]}
    ds_read_b64 {v(st,2)}, v{vt[0]} offset:8
    v_and_b32 v{vt[1]}, 3, v{d}
    v_and_b32 v{vt[5]}, 4, v{d}
    v_lshl_or_b32 v{vt[1]}, v{vt[5]}, 1, v{vt[1]}
    v_and_b32 v{vt[5]}, 8, v{d}
    v_lshrrev_b32 v{vt[5]}, 1, v{vt[5]}
    v_or_b32 v{vt[1]}, v{vt[1]}, v{vt[5]}
    v_lshlrev_b32 v{vt[1]}, 4, v{vt[1]}
    v_and_b32 v{vt[5]}, 1, v{g}
    v_lshl_add_u32 v{vt[1]}, v{vt[5]}, 9, v{vt[1]}
    v_lshrrev_b32 v{vt[5]}, 1, v{g}
    v_lshl_add_u32 v{vt[1]}, v{vt[5]}, 3, v{vt[1]}
    s_lshr_b32 s{sT1}, s{sKm}, 1
    s_lshl_b32 s{sT1}, s{sT1}, 10
    s_and_b32 s{sT0}, s{sKm}, 1
    s_lshl_b32 s{sT0}, s{sT0}, 8
    s_add_u32 s{sT1}, s{sT1}, s{sT0}
    s_waitcnt lgkmcnt(0)
    """)
    kvsum()
    for r in range(4):
        a(f"v_fma_f32 v{Dk+r}, -v{st+1}, v{Dc+r}, v{Dk+r}")
    for r in range(4):
        a(f"v_mul_f32 v{Dk+r}, v{Dk+r}, v{st}")
    a(f"""
    v_cvt_pk_bf16_f32 v{pk}, v{Dk}, v{Dk+1}
    v_cvt_pk_bf16_f32 v{pk+1}, v{Dk+2}, v{Dk+3}
    v_mul_f32 v{st+2}, v{Dk}, v{Dk}
    v_fmac_f32 v{st+2}, v{Dk+1}, v{Dk+1}
    v_fmac_f32 v{st+2}, v{Dk+2}, v{Dk+2}
    v_fmac_f32 v{st+2}, v{Dk+3}, v{Dk+3}
    buffer_store_dwordx2 {v(pk,2)}, v{vt[1]}, {s(SKV,4)}, s{sT1} offen
    v_mov_b32 v{st+3}, v{st+2}
    s_nop 1
    v_permlane32_swap_b32 v{st+2}, v{st+3}
    v_add_f32 v{st+2}, v{st+2}, v{st+3}
    v_mov_b32 v{st+3}, v{st+2}
    s_nop 1
    v_permlane16_swap_b32 v{st+2}, v{st+3}
    v_add_f32 v{st+2}, v{st+2}, v{st+3}
    s_nop 1
    v_max_f32_dpp v{st+2}, v{st+2}, v{st+2} row_ror:8 row_mask:0xf bank_mask:0xf
    s_nop 1
    v_max_f32_dpp v{st+2}, v{st+2}, v{st+2} row_ror:4 row_mask:0xf bank_mask:0xf
    s_nop 1
    v_max_f32_dpp v{st+2}, v{st+2}, v{st+2} row_ror:2 row_mask:0xf bank_mask:0xf
    s_nop 1
    v_max_f32_dpp v{st+2}, v{st+2}, v{st+2} row_ror:1 row_mask:0xf bank_mask:0xf
    s_lshl_b32 s{sKm}, s{sKm}, 2
    s_add_u32 s{sKm}, s{sKm}, 0x21000
    v_mov_b32 v{vt[5]}, 0
    s_mov_b64 exec, 1
    buffer_store_dword v{st+2}, v{vt[5]}, {s(SKV,4)}, s{sKm} offen
    s_branch K1_DONE
    K1_VEP:
    """)
    a.c("V tile: lane d = l&15, keys 4g+r")
    a(f"""
    v_lshlrev_b32 v{vt[0]}, 6, v{g}
    v_add_u32 v{vt[0]}, s{sT0}, v{vt[0]}
    """)
    for r in range(4):
        a(f"ds_read_b64 {v(st+2*r,2)}, v{vt[0]} offset:{16*r+8}")
    a(f"""
    v_lshlrev_b32 v{vt[1]}, 4, v{d}
    v_and_b32 v{vt[5]}, 1, v{g}
    v_lshl_add_u32 v{vt[1]}, v{vt[5]}, 8, v{vt[1]}
    v_lshrrev_b32 v{vt[5]}, 1, v{g}
    v_lshl_add_u32 v{vt[1]}, v{vt[5]}, 3, v{vt[1]}
    s_mul_i32 s{sT1}, s{sKm}, {VSTR}
    s_add_u32 s{sT1}, s{sT1}, 0x10000
    s_waitcnt lgkmcnt(0)
    """)
    kvsum()
    for r in range(4):
        a(f"v_fma_f32 v{Dk+r}, -v{st+2*r+1}, v{Dc+r}, v{Dk+r}")
    for r in range(4):
        a(f"v_mul_f32 v{Dk+r}, v{Dk+r}, v{st+2*r}")
    a(f"""
    v_cvt_pk_bf16_f32 v{pk}, v{Dk}, v{Dk+1}
    v_cvt_pk_bf16_f32 v{pk+1}, v{Dk+2}, v{Dk+3}
    buffer_store_dwordx2 {v(pk,2)}, v{vt[1]}, {s(SKV,4)}, s{sT1} offen
    v_lshlrev_b32 v{vt[1]}, 2, v0
    s_mov_b64 exec, 15
    buffer_store_dword v{ones}, v{vt[1]}, {s(SKV,4)}, s{sT1} offen offset:512
    s_branch K1_DONE
    """)
    P = Regs(pool, pool + 116)
    vXa = [P.alloc(f"xa{i}") for i in range(8)]
    vWa = [P.alloc("wa0"), P.alloc("wa1")]
    vcs = [P.alloc("cs0"), P.alloc("cs1")]; onesr = P.alloc("onesr")
    Xf = [P.alloc(f"xf{i}", 4) for i in range(NS)]
    Wf = [P.alloc(f"wf{i}", 4) for i in range(NS)]
    acc = P.alloc("acc", 16); csr = P.alloc("csr", 16); pk = P.alloc("pk", 8); st = P.alloc("st", 2)
    jt = [P.alloc(f"jt{i}") for i in range(8)]
    sJ0, sJ1, sJb, sJs = 58, 59, 60, 61
    a("K1_MM:")
    a(f"s_sub_u32 s{sW}, s{sW}, 4")
    if CODEPF:
        a.c("pull the code of this launch list into L2 (one dword per 128-byte line)")
        a(f"""
        s_getpc_b64 s[6:7]
        K1_PC:
        s_sub_u32 s6, s6, K1_PC-qkv_kernel
        s_subb_u32 s7, s7, 0
        s_lshl_b32 s{sT0}, s{sW}, 13
        s_add_u32 s6, s6, s{sT0}
        s_addc_u32 s7, s7, 0
        v_lshlrev_b32 v{vt[4]}, 7, v0
        v_mov_b32 v{vt[5]}, s7
        v_add_co_u32 v{vt[4]}, vcc, s6, v{vt[4]}
        s_nop 1
        v_addc_co_u32 v{vt[5]}, vcc, 0, v{vt[5]}, vcc
        global_load_dword v{jt[0]}, v[{vt[4]}:{vt[5]}], off
        """)
    def job_issue():
        a(f"""
        v_lshrrev_b32 v{jt[2]}, 4, v0
        v_and_b32 v{jt[3]}, 15, v0
        s_lshl_b32 s{sJ1}, s{sW}, 11
        s_add_u32 s{sJs}, s{sJ1}, {STBASE + 8192}
        v_bfe_u32 v{jt[5]}, v0, 2, 2
        v_and_b32 v{jt[6]}, 3, v0
        v_lshlrev_b32 v{jt[4]}, 4, v0
        s_cmp_eq_u32 s{sW}, 2
        s_cbranch_scc1 K1_WOJ
        """)
        a.c("w2 re-layout: block b = 3*wg + {0,1,2} ; ks = b>>3, cb = b&7")
        srd(a, SWO, 4, 5, 0, 1409024)
        a(f"""
        s_mul_i32 s{sJb}, s2, 3
        s_min_u32 s{sJ0}, s{sW}, 2
        s_add_u32 s{sJb}, s{sJb}, s{sJ0}
        s_lshr_b32 s{sJ0}, s{sJb}, 3
        s_lshl_b32 s{sJ0}, s{sJ0}, 14
        s_and_b32 s{sJ1}, s{sJb}, 7
        s_lshl_b32 s{sJ1}, s{sJ1}, 7
        s_add_u32 s{sJ0}, s{sJ0}, s{sJ1}
        v_lshrrev_b32 v{jt[7]}, 3, v0
        v_lshlrev_b32 v{jt[7]}, 10, v{jt[7]}
        v_and_b32 v{jt[0]}, 7, v0
        v_lshl_add_u32 v{jt[7]}, v{jt[0]}, 4, v{jt[7]}
        s_mov_b32 m0, s{sJs}
        s_add_u32 s{sJ1}, s{sJ0}, 0x2000
        buffer_load_dwordx4 v{jt[7]}, {s(SWO,4)}, s{sJ0} offen lds
        s_add_u32 m0, s{sJs}, 1024
        v_lshrrev_b32 v{jt[0]}, 5, v0
        buffer_load_dwordx4 v{jt[7]}, {s(SWO,4)}, s{sJ1} offen lds
        v_lshlrev_b32 v{jt[0]}, 9, v{jt[0]}
        v_lshl_add_u32 v{jt[0]}, v{jt[5]}, 7, v{jt[0]}
        v_bfe_u32 v{jt[1]}, v0, 4, 1
        v_lshl_add_u32 v{jt[0]}, v{jt[1]}, 5, v{jt[0]}
        v_lshl_add_u32 v{jt[0]}, v{jt[6]}, 3, v{jt[0]}
        v_add_u32 v{jt[0]}, s{sJs}, v{jt[0]}
        s_and_b32 s{sJ0}, s{sJb}, 7
        s_lshl_b32 s{sJ0}, s{sJ0}, 3
        s_bfe_u32 s{sJ1}, s{sJb}, 0x30003
        s_add_u32 s{sJ0}, s{sJ0}, s{sJ1}
        s_mul_i32 s{sJ0}, s{sJ0}, 11
        s_lshr_b32 s{sJ1}, s{sJb}, 6
        s_add_u32 s{sJ0}, s{sJ0}, s{sJ1}
        s_lshl_b32 s{sJ0}, s{sJ0}, 11
        s_cmp_lt_u32 s{sJb}, 704
        s_cselect_b32 s{sJ0}, s{sJ0}, 0x1000000
        """)
        srd(a, SWO, 16, 17, WS_W2, W2F_BYTES)
        a(f"""
        v_add_u32 v{jt[1]}, 1024, v{jt[0]}
        v_add_u32 v{jt[2]}, 64, v{jt[0]}
        v_add_u32 v{jt[3]}, 1088, v{jt[0]}
        s_branch K1_JOBST
        K1_WOJ:
        """)
        a.c("wo re-layout: block rows 32*(wg>>4).., cols 32*(wg&15)..")
        srd(a, SWO, 18, 19, 0, 524288)
        a(f"""
        s_lshr_b32 s{sJ0}, s2, 4
        s_lshl_b32 s{sJ0}, s{sJ0}, 15
        s_and_b32 s{sJ1}, s2, 15
        s_lshl_b32 s{sJ1}, s{sJ1}, 6
        s_add_u32 s{sJ0}, s{sJ0}, s{sJ1}
        v_lshrrev_b32 v{jt[7]}, 2, v0
        v_lshlrev_b32 v{jt[7]}, 10, v{jt[7]}
        v_lshl_add_u32 v{jt[7]}, v{jt[6]}, 4, v{jt[7]}
        s_mov_b32 m0, s{sJs}
        s_add_u32 s{sJ1}, s{sJ0}, 0x4000
        buffer_load_dwordx4 v{jt[7]}, {s(SWO,4)}, s{sJ0} offen lds
        s_add_u32 m0, s{sJs}, 1024
        v_lshlrev_b32 v{jt[0]}, 9, v{jt[2]}
        buffer_load_dwordx4 v{jt[7]}, {s(SWO,4)}, s{sJ1} offen lds
        v_lshl_add_u32 v{jt[0]}, v{jt[5]}, 6, v{jt[0]}
        v_lshl_add_u32 v{jt[0]}, v{jt[6]}, 3, v{jt[0]}
        v_add_u32 v{jt[0]}, s{sJs}, v{jt[0]}
        s_lshr_b32 s{sJ0}, s2, 5
        s_lshl_b32 s{sJ0}, s{sJ0}, 16
        s_bfe_u32 s{sJ1}, s2, 0x30001
        s_lshl_b32 s{sJ1}, s{sJ1}, 13
        s_add_u32 s{sJ0}, s{sJ0}, s{sJ1}
        s_bfe_u32 s{sJ1}, s2, 0x10004
        s_lshl_b32 s{sJ1}, s{sJ1}, 12
        s_add_u32 s{sJ0}, s{sJ0}, s{sJ1}
        s_and_b32 s{sJ1}, s2, 1
        s_lshl_b32 s{sJ1}, s{sJ1}, 11
        s_add_u32 s{sJ0}, s{sJ0}, s{sJ1}
        """)
        srd(a, SWO, 16, 17, WS_WO, 524288)
        a(f"""
        v_add_u32 v{jt[1]}, 256, v{jt[0]}
        v_add_u32 v{jt[2]}, 32, v{jt[0]}
        v_add_u32 v{jt[3]}, 288, v{jt[0]}
        K1_JOBST:
        """)
    a(f"""
    s_and_b32 s{sWR}, s{sW}, 1
    s_bfe_u32 s{sWC}, s{sW}, 0x10001
    v_and_b32 v{vt[0]}, 31, v0
    v_lshrrev_b32 v{vt[1]}, 5, v0
    s_lshl_b32 s{sT0}, s{sWR}, 13
    v_lshlrev_b32 v{vt[2]}, 8, v{vt[0]}
    v_add_u32 v{vt[2]}, s{sT0}, v{vt[2]}
    v_and_b32 v{vt[3]}, 15, v0
    v_xor_b32 v{vt[3]}, v{vt[3]}, v{vt[1]}
    s_lshl_b32 s{sT1}, s{sWR}, 1
    v_xor_b32 v{vt[3]}, s{sT1}, v{vt[3]}
    v_mov_b32 v{onesr}, 0x3f803f80
    v_mov_b32 v{vcs[0]}, 0
    v_mov_b32 v{vcs[1]}, 0
    """)
    for i in range(8):
        a(f"v_xor_b32 v{vt[4]}, {2*i}, v{vt[3]}")
        a(f"v_lshl_add_u32 v{vXa[i]}, v{vt[4]}, 4, v{vt[2]}")
    a(f"""
    v_lshlrev_b32 v{vt[4]}, 9, v{vt[1]}
    v_bfe_u32 v{vt[5]}, v0, 2, 2
    v_lshl_add_u32 v{vt[4]}, v{vt[5]}, 6, v{vt[4]}
    v_bfe_u32 v{vt[5]}, v0, 4, 1
    v_lshl_add_u32 v{vt[4]}, v{vt[5]}, 5, v{vt[4]}
    v_and_b32 v{vt[5]}, 3, v0
    v_lshl_add_u32 v{vt[4]}, v{vt[5]}, 3, v{vt[4]}
    s_lshl_b32 s{sT0}, s{sWC}, 15
    s_add_u32 s{sT0}, s{sT0}, {WBASE}
    s_lshl_b32 s{sT1}, s{sWR}, 10
    s_add_u32 s{sT0}, s{sT0}, s{sT1}
    v_add_u32 v{vWa[0]}, s{sT0}, v{vt[4]}
    v_xor_b32 v{vWa[1]}, 0x400, v{vWa[0]}
    s_lshl_b32 s{sT0}, s{sWR}, 9
    s_add_u32 s{sT0}, s{sT0}, {STBASE}
    v_lshlrev_b32 v{vt[2]}, 4, v{vt[0]}
    v_add_u32 v{vt[2]}, s{sT0}, v{vt[2]}
    s_lshl_b32 s{sT1}, s{sWC}, 7
    s_add_u32 s{sT1}, s{sT1}, {STBASE + 1024}
    v_lshlrev_b32 v{vt[5]}, 4, v{vt[1]}
    v_add_u32 v{vt[5]}, s{sT1}, v{vt[5]}
    s_lshl_b32 s{sT0}, s{sRB}, 16
    s_lshl_b32 s{sT1}, s{sWR}, 15
    s_add_u32 s{sT0}, s{sT0}, s{sT1}
    s_lshl_b32 s{sT1}, s{sCB}, 10
    s_add_u32 s{sT0}, s{sT0}, s{sT1}
    s_lshl_b32 s{sT1}, s{sWC}, 8
    s_add_u32 s{sT0}, s{sT0}, s{sT1}
    v_lshrrev_b32 v{vt[6]}, 3, v{vt[0]}
    v_lshlrev_b32 v{vt[6]}, 13, v{vt[6]}
    v_lshl_add_u32 v{vt[6]}, v{vt[1]}, 9, v{vt[6]}
    v_and_b32 v{vt[7]}, 7, v0
    v_lshl_add_u32 v{vt[6]}, v{vt[7]}, 4, v{vt[6]}
    """)
    a("s_waitcnt lgkmcnt(0)")
    srd(a, SQ, 16, 17, WS_Q, 0x200000)
    def reads(i):
        c, ip = i >> 3, i & 7
        sl = i % NS
        a(f"ds_read_b128 {v(Xf[sl],4)}, v{vXa[ip]} offset:{c*16384}")
        a(f"ds_read_b64_tr_b16 {v(Wf[sl],2)}, v{vWa[i&1]} offset:{(i&~1)*1024}")
        a(f"ds_read_b64_tr_b16 {v(Wf[sl]+2,2)}, v{vWa[i&1]} offset:{(i&~1)*1024+256}")
    a("s_waitcnt lgkmcnt(0)")
    srd(a, SKV, 16, 17, WS_FLG, 8192)
    a(f"""
    v_lshlrev_b32 v{vt[1]}, 2, v0
    v_mov_b32 v{vt[7]}, 0
    s_lshl_b32 s{sT1}, s2, 8
    s_cmp_eq_u32 s{sW}, 0
    s_cselect_b32 s{sT1}, s{sT1}, 0x10000
    buffer_store_dword v{vt[7]}, v{vt[1]}, {s(SKV,4)}, s{sT1} offen
    """)
    def job_finish():
        a.c("finish the re-layout job")
        a(f"""
        s_waitcnt vmcnt(0)
        ds_read_b64_tr_b16 {v(pk,2)}, v{jt[0]}
        ds_read_b64_tr_b16 {v(pk+2,2)}, v{jt[1]}
        ds_read_b64_tr_b16 {v(pk+4,2)}, v{jt[2]}
        ds_read_b64_tr_b16 {v(pk+6,2)}, v{jt[3]}
        s_waitcnt lgkmcnt(0)
        buffer_store_dwordx4 {v(pk,4)}, v{jt[4]}, {s(SWO,4)}, s{sJ0} offen {K1F}
        buffer_store_dwordx4 {v(pk+4,4)}, v{jt[4]}, {s(SWO,4)}, s{sJ0} offen offset:1024 {K1F}
        """)
    nxt = 0
    for i in range(32):
        c = i >> 3
        if i % 8 == 0:
            a("s_barrier")
            stamp(a, 2 + c)
            lim = (c + 1) * 8
        while nxt < min(i + NS, lim):
            reads(nxt); nxt += 1
        a(f"s_waitcnt lgkmcnt({(nxt - 1 - i) * 3})")
        a(f"v_mfma_f32_32x32x16_bf16 {v(acc,16)}, {v(Wf[i % NS],4)}, {v(Xf[i % NS],4)}, {'0' if i == 0 else v(acc,16)}")
        if (i & 1) == 0:
            for j in range(4):
                a(f"v_dot2c_f32_bf16 v{vcs[j&1]}, v{Wf[i % NS]+j}, v{onesr}")
        if i == 3:
            a("s_waitcnt vmcnt(0)")
            job_issue()
        if i == JF:
            job_finish()
    a.c("column sums: [wr][64]")
    a(f"""
    s_nop 0
    v_add_f32 v{vcs[0]}, v{vcs[0]}, v{vcs[1]}
    s_lshl_b32 s{sJ1}, s{sWR}, 8
    v_mov_b32 v{vcs[1]}, v{vcs[0]}
    s_lshl_b32 s{sJb}, s{sWC}, 7
    s_add_u32 s{sJ1}, s{sJ1}, s{sJb}
    v_permlane32_swap_b32 v{vcs[0]}, v{vcs[1]}
    s_add_u32 s{sJ1}, s{sJ1}, {STBASE + 1024}
    v_lshlrev_b32 v{onesr}, 2, v{vt[0]}
    v_add_f32 v{vcs[0]}, v{vcs[0]}, v{vcs[1]}
    v_add_u32 v{onesr}, s{sJ1}, v{onesr}
    ds_write_b32 v{onesr}, v{vcs[0]}
    """)
    a("s_waitcnt lgkmcnt(0)")
    stamp(a, 6)
    a("s_barrier")
    cs2 = Xf[0]
    a(f"ds_read_b64 {v(st,2)}, v{vt[2]}")
    for q in range(4):
        a(f"ds_read_b128 {v(csr+4*q,4)}, v{vt[5]} offset:{32*q}")
        a(f"ds_read_b128 {v(cs2+4*q,4)}, v{vt[5]} offset:{256+32*q}")
    a("s_nop 0\ns_waitcnt lgkmcnt(8)")
    for r in range(8):
        a(f"v_pk_mul_f32 {v(acc+2*r,2)}, {v(acc+2*r,2)}, {v(st,2)} op_sel_hi:[1,0]")
    a("s_waitcnt lgkmcnt(0)")
    for r in range(8):
        a(f"v_pk_add_f32 {v(csr+2*r,2)}, {v(csr+2*r,2)}, {v(cs2+2*r,2)}")
    for r in range(8):
        a(f"v_pk_fma_f32 {v(acc+2*r,2)}, {v(csr+2*r,2)}, {v(st,2)}, {v(acc+2*r,2)} op_sel:[0,1,0] op_sel_hi:[1,1,1] neg_lo:[1,0,0] neg_hi:[1,0,0]")
    for j in range(8):
        a(f"v_cvt_pk_bf16_f32 v{pk+j}, v{acc+2*j}, v{acc+2*j+1}")
    a(f"""
    buffer_store_dwordx4 {v(pk,4)}, v{vt[6]}, {s(SQ,4)}, s{sT0} offen {K1Q}
    buffer_store_dwordx4 {v(pk+4,4)}, v{vt[6]}, {s(SQ,4)}, s{sT0} offen offset:128 {K1Q}
    s_add_u32 s{sW}, s{sW}, 4
    K1_DONE:
    """)
    stamp_dump(a, 0, sW)
    a("K1_END:")
    a("s_endpgm")
    return name, R.cur, K1_LDS
```

```python
from asmlib import *
from common import *
import os

W1L = 0
QL = 98304
EXB = QL
OACC = QL + 8192
LACC = OACC + 16384
OFB = LACC + 1024
MISC = OFB + 1024
XL = MISC + 2048
B1L = EXB + 49152
K2_LDS = B1L + 256
RSTR = 17408
THR2 = (40.0 / 1.02) ** 2
PRIO = os.environ.get("PRIO", "2")
PD = int(os.environ.get("PD", "2"))
EXP = os.environ.get("EXP", "").split(",")
LDF = os.environ.get("LDF", "sc1").replace("_", " ").replace("none", "")
RELOAD = os.environ.get("RELOAD", "0") == "1"
OUTF = os.environ.get("OUTF", "").replace("_", " ")
W2L = os.environ.get("W2L", "mid")
NPOLL = int(os.environ.get("NPOLL", "1"))
QLATE = os.environ.get("QLATE", "0") == "1"
W2T = int(os.environ.get("W2T", "8"))
FASTN = int(os.environ.get("FASTN", "8"))
DUAL = int(os.environ.get("DUAL", "0"))
DEFER = os.environ.get("DEFER", "1") == "1"
SLOW_V0 = min(16, 2*PD + 10)

def gen_k2(a):
    name = "attn_kernel"
    kernel_header(a, name)
    R = Regs(1, 256)
    vt = [R.alloc(f"t{i}") for i in range(6)]
    vidx = R.alloc("idx")
    vQa = R.alloc("qa")
    vOa = R.alloc("oa"); vLa = R.alloc("la")
    vNr = R.alloc("nr"); vNl = R.alloc("nl"); vNw = R.alloc("nw")
    vOFa = R.alloc("ofa")
    vKo = R.alloc("ko"); vVo = R.alloc("vo"); vQl = R.alloc("ql"); vW1o = R.alloc("w1o")
    vP1r = R.alloc("p1r"); vP2r = R.alloc("p2r"); vPw = R.alloc("pw"); vPv = R.alloc("pv"); vCnt = R.alloc("cnt")
    zero = R.alloc("zero", 4)
    Q = R.alloc("q", 4)
    nrm = R.alloc("nrm", 8, 4)
    Kf = R.alloc("k", 32)
    Vf = R.alloc("v", 64)
    S = [R.alloc(f"s{i}", 16) for i in range(2)]
    O = [R.alloc(f"o{i}", 16) for i in range(2)]
    woA = R.alloc("woa", 16)
    T = R.alloc("T", 16)
    OFr = R.alloc("ofr", 8)
    hacc = R.alloc("hacc", 16)
    Qw = OFr
    vM = [vt[1], vt[2]]
    sW, sRB, sT0, sT1, sT2, sWm, sSo, sHalf = 20, 21, 22, 23, 44, 45, 46, 47
    sMaskLo, sV1, sV2 = 48, 50, 51
    sG, sMm, sT0f, sW1m, sV2x, sRot = 4, 5, 6, 7, 60, 61
    SQ, SKV, SWO, SX, SH, SHN, SP = 24, 28, 32, 36, 40, 52, 56
    a(f"""
    s_cmp_ge_u32 s2, 256
    s_cbranch_scc1 K2_END
    s_setprio 3
    s_load_dwordx2 s[16:17], s[0:1], 96
    s_load_dwordx2 s[8:9], s[0:1], 0
    s_load_dwordx4 s[12:15], s[0:1], 48
    s_load_dwordx2 s[18:19], s[0:1], 72
    s_load_dwordx2 s[10:11], s[0:1], 80
    v_lshrrev_b32 v{vt[0]}, 6, v0
    v_and_b32 v0, 63, v0
    v_readfirstlane_b32 s{sW}, v{vt[0]}
    v_lshlrev_b32 v{vQa}, 4, v0
    s_and_b32 s{sT0}, s2, 7
    s_lshr_b32 s{sT1}, s2, 3
    s_lshl_b32 s{sRB}, s{sT0}, 5
    s_add_u32 s{sRB}, s{sRB}, s{sT1}
    s_lshl_b32 s{sWm}, s{sW}, 13
    v_add_u32 v{vKo}, s{sWm}, v{vQa}
    v_lshrrev_b32 v{vt[3]}, 5, v0
    v_and_b32 v{vt[4]}, 31, v0
    v_lshlrev_b32 v{vt[2]}, 4, v{vt[4]}
    v_lshl_add_u32 v{vt[2]}, v{vt[3]}, 8, v{vt[2]}
    s_mul_i32 s{sT0}, s{sW}, {16*VSTR}
    s_add_u32 s{sT0}, s{sT0}, 0x10000
    v_and_b32 v{vt[1]}, 27, v0
    v_cmp_eq_u32 vcc, 16, v{vt[1]}
    v_mov_b32 v{vt[1]}, 0x40000000
    v_mov_b32 v{vt[5]}, 512
    v_cndmask_b32 v{vt[1]}, v{vt[1]}, v{vt[5]}, vcc
    v_cmp_gt_u32 vcc, 16, v{vt[4]}
    v_lshlrev_b32 v{vt[5]}, 3, v0
    s_nop 0
    v_cndmask_b32 v{vt[1]}, v{vt[1]}, v{vt[2]}, vcc
    v_add_u32 v{vVo}, s{sT0}, v{vt[1]}
    s_lshl_b32 s{sT1}, s{sRB}, 13
    s_lshl_b32 s{sT2}, s{sW}, 10
    s_add_u32 s{sT0}, s{sT1}, s{sT2}
    s_mov_b32 s{sSo}, 0x21000
    s_movk_i32 s{sT2}, 0x1000
    s_movk_i32 s{sV1}, {7*VSTR}
    s_movk_i32 s{sV2}, {14*VSTR}
    s_lshr_b32 s{sHalf}, s{sW}, 2
    """)
    stamp_init(a)
    a("s_waitcnt lgkmcnt(0)")
    srd(a, SQ, 16, 17, WS_Q, 0x200000)
    srd(a, SKV, 16, 17, WS_K, KV_BYTES)
    order = []
    def ldK(j):
        so = "0" if j < 4 else f"s{sT2}"
        order.append(f"K{j}")
        return f"buffer_load_dwordx4 {v(Kf+4*j,4)}, v{vKo}, {s(SKV,4)}, {so} offen offset:{(j&3)*1024}"
    def ldV(i):
        so = ("0", f"s{sV1}", f"s{sV2}")[i // 7]
        order.append(f"V{i}")
        return f"buffer_load_dwordx4 {v(Vf+4*i,4)}, v{vVo}, {s(SKV,4)}, {so} offen offset:{(i%7)*VSTR}"
    def ldW(t, ks, ct, dst):
        order.append(f"W{t}_{ks}_{ct}")
        pre = f"s_mov_b32 s{sSo}, {t*65536 + ks*4096}\n"
        return pre + f"buffer_load_dwordx4 {v(dst+4*ct,4)}, v{vKo}, {s(SWO,4)}, s{sSo} offen offset:{ct*1024}"
    def wait_for(item):
        return f"s_waitcnt vmcnt({len(order) - 1 - order.index(item)})"
    a(f"buffer_load_dwordx4 {v(Q,4)}, v{vQa}, {s(SQ,4)}, s{sT1} offen"); order.append("Q")
    a(ldK(0)); a(ldK(1)); a(ldV(0)); a(ldV(1)); a(ldK(2))
    def ldQW():
        a(f"buffer_load_dwordx4 {v(Qw,4)}, v{vQa}, {s(SQ,4)}, s{sT0} offen"); order.append("QW")
        a(f"buffer_load_dwordx2 {v(nrm,2)}, v{vt[5]}, {s(SKV,4)}, s{sSo} offen"); order.append("KM")
    if not QLATE:
        ldQW()
    for i in range(1, PD):
        a(ldV(2*i)); a(ldV(2*i + 1))
        if i + 2 < 8:
            a(ldK(i + 2))
    if QLATE:
        ldQW()
    a("s_setprio 0")
    pro_order = list(order)
    srd(a, SWO, 16, 17, WS_WO, 524288)
    for i in range(4):
        a(f"v_mov_b32 v{zero+i}, 0")
    a(f"v_mov_b32 v{vidx}, 0xdddddddd")
    a("s_nop 0")
    for o in O:
        a(f"v_mfma_f32_32x32x16_bf16 {v(o,16)}, {v(zero,4)}, {v(zero,4)}, 0")
    setup0 = len(a.lines)
    a(f"""
    s_lshl_b32 s{sT0}, s{sW}, 2
    s_add_u32 s{sT1}, s{sT0}, {MISC + 32}
    v_mov_b32 v{vPw}, s{sT1}
    ds_write2_b32 v{vPw}, v{zero}, v{zero} offset1:8
    s_add_u32 s{sT0}, s{sT0}, {LACC}
    v_lshlrev_b32 v{vLa}, 5, v{vt[4]}
    v_add_u32 v{vLa}, s{sT0}, v{vLa}
    s_lshl_b32 s{sT0}, s{sW}, 11
    s_add_u32 s{sT0}, s{sT0}, {OACC}
    v_add_u32 v{vOa}, s{sT0}, v{vQa}
    s_and_b32 s{sT1}, s{sW}, 3
    v_and_b32 v{vt[2]}, 7, v0
    v_lshlrev_b32 v{vP1r}, 2, v{vt[2]}
    v_add_u32 v{vP1r}, {MISC + 32}, v{vP1r}
    v_and_b32 v{vt[1]}, 3, v0
    v_lshlrev_b32 v{vP2r}, 2, v{vt[1]}
    v_add_u32 v{vP2r}, {MISC + 64}, v{vP2r}
    v_bfe_u32 v{vt[1]}, v0, 4, 1
    v_bfe_u32 v{vt[4]}, v0, 3, 1
    v_lshlrev_b32 v{vNr}, 4, v{vt[2]}
    v_lshl_add_u32 v{vNw}, v{vt[3]}, 7, v{vNr}
    v_lshl_add_u32 v{vNr}, v{vt[3]}, 10, v{vNr}
    v_lshl_add_u32 v{vNr}, v{vt[1]}, 9, v{vNr}
    v_lshl_add_u32 v{vNr}, v{vt[4]}, 3, v{vNr}
    s_lshl_b32 s{sT0}, s{sT1}, 7
    s_add_u32 s{sT0}, s{sT0}, {OACC}
    v_add_u32 v{vNr}, s{sT0}, v{vNr}
    s_lshl_b32 s{sT0}, s{sT1}, 8
    s_add_u32 s{sSo}, s{sT0}, {LACC}
    v_lshlrev_b32 v{vNl}, 5, v{vt[2]}
    v_add_u32 v{vNl}, s{sSo}, v{vNl}
    v_bfe_u32 v{vt[3]}, v0, 3, 2
    v_lshl_add_u32 v{vNw}, v{vt[3]}, 2, v{vNw}
    s_add_u32 s{sSo}, s{sT0}, {OFB}
    v_add_u32 v{vNw}, s{sSo}, v{vNw}
    v_lshrrev_b32 v{vt[3]}, 4, v0
    v_lshlrev_b32 v{vt[2]}, 4, v{vt[2]}
    v_lshl_add_u32 v{vOFa}, v{vt[3]}, 7, v{vt[2]}
    v_add_u32 v{vOFa}, {OFB}, v{vOFa}
    """)
    srd(a, SX, 8, 9, 0, 0x200000)
    srd(a, SHN, 16, 17, WS_HN, 0x200000)
    srd(a, SP, 12, 13, 0, 1409024)
    srd(a, SH, 16, 17, WS_W2, W2F_BYTES)
    a(f"""
    s_lshr_b32 s{sT0}, s2, 3
    s_mul_i32 s{sT1}, s{sT0}, 44032
    s_add_u32 s{sT1}, s{sT1}, s{sWm}
    v_lshlrev_b32 v{vt[5]}, 7, v0
    s_lshl_b32 s{sMaskLo}, s{sT0}, 14
    s_and_b32 s{sT0}, s{sWm}, 0x2000
    s_add_u32 s{sMaskLo}, s{sMaskLo}, s{sT0}
    s_mov_b32 s{sMaskLo+1}, s{sT1}
    s_lshr_b32 s{sT0}, s2, 3
    s_mul_i32 s{sV2x}, s{sT0}, 45056
    s_add_u32 s{sV2x}, s{sV2x}, s{sWm}
    s_lshr_b32 s{sG}, s{sRB}, 4
    s_and_b32 s{sMm}, s{sRB}, 15
    s_mul_i32 s{sT0f}, s{sMm}, 3
    s_min_u32 s{sT0f}, s{sT0f}, 40
    v_add_u32 v{vQl}, {QL}, v{vQa}
    v_lshrrev_b32 v{vt[3]}, 2, v0
    v_mul_u32_u24 v{vt[3]}, 2752, v{vt[3]}
    v_and_b32 v{vt[4]}, 3, v0
    v_lshl_add_u32 v{vt[3]}, v{vt[4]}, 4, v{vt[3]}
    s_lshl_b32 s{sT0}, s{sT0f}, 6
    s_mul_i32 s{sT1}, s{sHalf}, {16*44032}
    s_add_u32 s{sT0}, s{sT0}, s{sT1}
    v_add_u32 v{vW1o}, s{sT0}, v{vt[3]}
    s_lshl_b32 s{sRot}, s{sW}, 2
    s_add_u32 s{sRot}, s{sRot}, s{sMm}
    s_mul_i32 s{sW1m}, s{sW}, {4*3072}
    """)
    SETUP = []
    if DEFER:
        SETUP = [l.strip() for l in a.lines[setup0:]]
        del a.lines[setup0:]
    stamp(a, 1)
    def bound_check():
        n = nrm
        P = []
        P.append(lambda: f"s_lshl_b32 s{sT0}, s{sW}, 10\nv_add_u32 v{vt[0]}, s{sT0}, v{vQl}\nv_mov_b32 v{n+2}, 0\n{wait_for('KM')}\nds_write_b128 v{vt[0]}, {v(Qw,4)}")
        P.append("\n".join(f"v_dot2c_f32_bf16 v{n+2}, v{Qw+i}, v{Qw+i}" for i in range(4)) + f"\nv_max_f32 v{n}, v{n}, v{n+1}\ns_nop 0")
        P.append(f"v_max_f32_dpp v{n}, v{n}, v{n} row_ror:8 row_mask:0xf bank_mask:0xf\nv_mov_b32 v{n+3}, v{n+2}")
        P.append(f"v_max_f32_dpp v{n}, v{n}, v{n} row_ror:4 row_mask:0xf bank_mask:0xf\nv_permlane32_swap_b32 v{n+2}, v{n+3}")
        P.append(f"v_max_f32_dpp v{n}, v{n}, v{n} row_ror:2 row_mask:0xf bank_mask:0xf\nv_add_f32 v{n+2}, v{n+2}, v{n+3}")
        P.append(f"v_max_f32_dpp v{n}, v{n}, v{n} row_ror:1 row_mask:0xf bank_mask:0xf\nv_mov_b32 v{n+1}, v{n}\ns_nop 0")
        P.append(f"v_permlane32_swap_b32 v{n}, v{n+1}\nv_max_f32 v{n}, v{n}, v{n+1}\nv_mov_b32 v{n+1}, v{n}\ns_nop 0")
        P.append(f"v_permlane16_swap_b32 v{n}, v{n+1}\nv_max_f32 v{n}, v{n}, v{n+1}\nv_mul_f32 v{n}, v{n}, v{n+2}\nv_mov_b32 v{n+1}, {hex(f32bits(THR2))}\n"
                 f"v_cmp_nle_f32 vcc, v{n}, v{n+1}\ns_lshl_b32 s{sT0}, s{sW}, 2\ns_add_u32 s{sT0}, s{sT0}, {MISC}")
        P.append(f"s_cmp_lg_u64 vcc, 0\ns_cselect_b32 s{sT1}, 1, 0\nv_mov_b32 v{vt[0]}, s{sT0}\nv_mov_b32 v{vt[1]}, s{sT1}\nds_write_b32 v{vt[0]}, v{vt[1]}\nv_mov_b32 v{vt[0]}, {MISC}")
        return P
    flag_reads = f"ds_read_b128 {v(nrm,4)}, v{vt[0]}\nds_read_b128 {v(nrm+4,4)}, v{vt[0]} offset:16"
    flag_test = (f"s_waitcnt lgkmcnt(0)\nv_or3_b32 v{nrm}, v{nrm}, v{nrm+1}, v{nrm+2}\nv_or3_b32 v{nrm+3}, v{nrm+3}, v{nrm+4}, v{nrm+5}\n"
                 f"v_or3_b32 v{nrm}, v{nrm}, v{nrm+6}, v{nrm+7}\nv_or_b32 v{nrm}, v{nrm}, v{nrm+3}\ns_nop 0\n"
                 f"v_readfirstlane_b32 s{sT0}, v{nrm}\ns_cmp_lg_u32 s{sT0}, 0\ns_cbranch_scc1 K2_SLOW")

    def smf(tau):
        t, j = divmod(tau, 8)
        return f"v_mfma_f32_32x32x16_bf16 {v(S[tau&1],16)}, {v(Kf+4*j,4)}, {v(Q,4)}, 0"
    def pv(tau, h):
        t, j = divmod(tau, 8)
        return f"v_smfmac_f32_32x32x32_bf16 {v(O[t&1],16)}, {v(Vf+8*j+4*h,4)}, {v(S[tau&1]+8*h,8)}, v{vidx}"
    def drain(t):
        o = O[t & 1]
        return [f"ds_write_b128 v{vOa}, {v(o,4)}", f"ds_write_b128 v{vOa}, {v(o+4,4)} offset:1024", f"ds_write_b32 v{vLa}, v{o+8}"]
    retries = []
    def check(areg, off, val, lab):
        retries.append(f"K2_R{lab}:\nds_read_b32 v{vPv}, v{areg} offset:{off}\ns_waitcnt lgkmcnt(0)\nv_cmp_gt_u32 vcc, {val}, v{vPv}\n"
                       f"s_cbranch_vccnz K2_R{lab}\ns_branch K2_C{lab}")
        return f"s_waitcnt lgkmcnt(0)\nv_cmp_gt_u32 vcc, {val}, v{vPv}\ns_cbranch_vccnz K2_R{lab}\nK2_C{lab}:\n"
    def norm_reads():
        L = f"ds_read_b128 {v(nrm,4)}, v{vNl}\nds_read_b128 {v(nrm+4,4)}, v{vNl} offset:16\n"
        for w in range(8):
            L += f"ds_read_b64 {v(T+2*w,2)}, v{vNr} offset:{w*2048}\n"
        return L
    def norm_comp():
        L = f"s_waitcnt lgkmcnt(0)\n"
        L += f"v_pk_add_f32 {v(nrm,2)}, {v(nrm,2)}, {v(nrm+2,2)}\n"
        L += f"v_pk_add_f32 {v(nrm+4,2)}, {v(nrm+4,2)}, {v(nrm+6,2)}\n"
        for w in range(4):
            L += f"v_pk_add_f32 {v(T+4*w,2)}, {v(T+4*w,2)}, {v(T+4*w+2,2)}\n"
        L += f"v_pk_add_f32 {v(nrm,2)}, {v(nrm,2)}, {v(nrm+4,2)}\n"
        L += f"v_pk_add_f32 {v(T,2)}, {v(T,2)}, {v(T+4,2)}\n"
        L += f"v_add_f32 v{nrm}, v{nrm}, v{nrm+1}\n"
        L += f"v_pk_add_f32 {v(T+8,2)}, {v(T+8,2)}, {v(T+12,2)}\n"
        L += f"v_rcp_f32 v{nrm}, v{nrm}\n"
        L += f"v_pk_add_f32 {v(T,2)}, {v(T,2)}, {v(T+8,2)}\n"
        L += f"v_pk_mul_f32 {v(T,2)}, {v(T,2)}, {v(nrm,2)} op_sel_hi:[1,0]\n"
        L += f"v_cvt_pk_bf16_f32 v{T}, v{T}, v{T+1}\n"
        L += f"ds_write_b32 v{vNw}, v{T}\n"
        return L
    def only_half(t, lab, body):
        return f"s_cmp_lg_u32 s{sHalf}, {t&1}\ns_cbranch_scc1 K2_N{lab}\n{body}K2_N{lab}:\n"
    def of_reads():
        return "\n".join(f"ds_read_b128 {v(OFr+4*ks,4)}, v{vOFa} offset:{ks*512}" for ks in range(2))
    def wo_mfma(ks, ct, src, first=False):
        return f"v_mfma_f32_16x16x32_bf16 {v(hacc+4*ct,4)}, {v(src+4*ct,4)}, {v(OFr+4*ks,4)}, {'0' if first else v(hacc+4*ct,4)}"
    W7 = [Kf, Kf + 16]
    W2R = Vf + 8
    assert S[0] == Vf + 64 and S[1] == S[0] + 16 and Q == zero + 4 and nrm == Q + 4
    X = Vf

    sCB2, sW2o, sB3 = sV2, sV2x, 48
    def ldW2(i):
        if "NOW2A" in EXP and i < 8: return "s_nop 7\ns_nop 1\n"
        if "NOW2B" in EXP and i >= 8: return ""
        L = (f"s_add_u32 s{sSo}, s{sCB2}, {i}\ns_sub_u32 s{sT1}, s{sSo}, 11\ns_cselect_b32 s{sSo}, s{sSo}, s{sT1}\n"
             f"s_lshl_b32 s{sSo}, s{sSo}, 11\ns_add_u32 s{sSo}, s{sSo}, s{sW2o}\n")
        for ct in range(2):
            L += f"buffer_load_dwordx4 {v(W2R+8*i+4*ct,4)}, v{vQa}, {s(SH,4)}, s{sSo} offen offset:{ct*1024}\n"
        return L

    def mainloop(slow):
        tag = "S" if slow else "F"
        order[:] = [] if slow else list(pro_order)
        if slow:
            a(f"ds_read_b32 v{vM[0]}, v{vt[0]}")
            a("s_waitcnt lgkmcnt(0)")
        else:
            a(wait_for("K0"))
            stamp(a, 2)
        a(smf(0))
        a("s_nop 7")
        a("s_nop 3")
        for tau in range(64):
            t, j = divmod(tau, 8)
            slots = [[] for _ in range(17)]
            p1 = 11
            if PRIO == "1" and (j & 1) == 0:
                slots[0].append(f"s_setprio {3 - j // 2}")
            if PRIO == "2":
                slots[0].append(f"s_setprio {3 - (j & 3)}")
            if PRIO == "3":
                slots[0].append(f"s_setprio {3 - 2*(j & 1)}")
                slots[8].append(f"s_setprio {2 - 2*(j & 1)}")
            if PRIO == "4":
                slots[0].append(f"s_setprio {3 - ((j + 2) & 3)}")
            if PRIO == "5":
                slots[0].append(f"s_setprio {3 - ((j + 1) & 3)}")
            if PRIO == "6":
                slots[0].append(f"s_setprio {3 - ((j + 3) & 3)}")
            if PRIO == "7":
                for q in range(4):
                    slots[4*q].append(f"s_setprio {3 - q}")
            if tau > 0:
                slots[3].append(pv(tau - 1, 1))
            if t == 0 and not slow:
                if j + PD < 8:
                    slots[0].append(lambda j=j: ldV(2*(j + PD)))
                    slots[4].append(lambda j=j: ldV(2*(j + PD) + 1))
                if j + PD + 2 < 8:
                    slots[8].append(lambda j=j: ldK(j + PD + 2))
                if j < 2 and SETUP:
                    per = (len(SETUP) + 29) // 30
                    for i in range(15):
                        k0 = (j * 15 + i) * per
                        if SETUP[k0:k0 + per]:
                            slots[i + 1].append("\n".join(SETUP[k0:k0 + per]))
                if j == 2:
                    for i, x in enumerate(bound_check()):
                        slots[3 + i].append(x)
                if j == 4:
                    slots[0] += ["s_waitcnt lgkmcnt(0)", "s_barrier", flag_reads]
                    slots[5].append(flag_test)
                if j == 6:
                    slots[13].append(f"s_cmp_lt_u32 s{sW}, 6\ns_cbranch_scc1 K2_PW\nbuffer_load_dword v{vt[3]}, v{vt[5]}, {s(SWO,4)}, s{sMaskLo} offen\nK2_PW:")
            nx = tau + 1
            if nx < 64:
                if t == 0 and nx < 8 and not slow:
                    slots[6].append(lambda nx=nx: wait_for(f"K{nx}"))
                if nx % 8 == 0:
                    slots[6].append("s_waitcnt lgkmcnt(0)")
                slots[6].append(smf(nx))
                if nx % 8 == 7 and t < 7:
                    slots[10].append(f"ds_read_b128 {v(Q,4)}, v{vQl} offset:{(t+1)*1024}")
                    if slow:
                        slots[10].append(f"ds_read_b32 v{vM[(t+1)&1]}, v{vt[0]} offset:{(t+1)*128}")
            if 10 <= tau < 22 and tau % 2 == 0:
                slots[13].append(f"s_cmp_lg_u32 s{sW}, {(tau-10)//2}\ns_cbranch_scc1 K2_PA{tag}{tau}\nbuffer_load_dword v{vt[3]}, v{vt[5]}, {s(SP,4)}, s{sMaskLo+1} offen\nK2_PA{tag}{tau}:")
            if 22 <= tau < 34 and tau % 2 == 0:
                slots[13].append(f"s_cmp_lg_u32 s{sW}, {(tau-22)//2}\ns_cbranch_scc1 K2_PB{tag}{tau}\nbuffer_load_dword v{vt[4]}, v{vt[5]}, {s(SH,4)}, s{sV2x} offen\nK2_PB{tag}{tau}:")
            if 36 <= tau < 60 and tau % 2 == 0:
                n = (tau - 36) // 2
                kb, ft = divmod(n, 3)
                slots[4].append(lambda kb=kb, ft=ft: (order.append("W1"), f"s_add_u32 s{sT0}, s{sRot}, {kb}\ns_and_b32 s{sT0}, s{sT0}, 15\ns_mul_i32 s{sT0}, s{sT0}, 44032\ns_add_u32 m0, s{sW1m}, {kb*3072 + ft*1024 - ft*64}\ns_nop 0\n"
                    f"buffer_load_dwordx4 v{vW1o}, {s(SP,4)}, s{sT0} offen offset:{ft*64} lds")[1])
            if t >= 1:
                u = t - 1
                if j == 1:
                    slots[0].append(f"v_mov_b32 v{vCnt}, {t}")
                    for i, x in enumerate(drain(u)):
                        slots[1 + 2*i].append(x)
                    slots[7].append(f"ds_write_b32 v{vPw}, v{vCnt}")
                if j == 2:
                    slots[13].append("s_waitcnt lgkmcnt(0)")
                if j == 3 and t == 2 and DIAG:
                    slots[0].append(stamp_str(12))
                if j == 3:
                    slots[0].append(f"ds_read_b32 v{vPv}, v{vP1r}")
                    slots[7].append(only_half(u, f"A{tag}{t}", check(vP1r, 0, t, f"A{tag}{t}") + norm_reads()))
                    slots[9] += [f"v_mfma_f32_32x32x16_bf16 {v(O[u&1],16)}, {v(zero,4)}, {v(zero,4)}, 0"]
                    p1 = 12
                if j == 4:
                    slots[3].append(only_half(u, f"B{tag}{t}", norm_comp() + f"ds_write_b32 v{vPw}, v{vCnt} offset:32\n"))
                if 1 <= j <= 4:
                    slots[13].append(lambda u=u, ct=j-1: ldW(u, 0, ct, woA))
                if 4 <= j <= 7:
                    slots[8 if j != 6 else 1].append(lambda u=u, ct=j-4: ldW(u, 1, ct, T))
                if j == 6:
                    slots[1].append(f"ds_read_b32 v{vPv}, v{vP2r} offset:{16*(u&1)}")
                    slots[8].append(check(vP2r, 16*(u&1), t, f"D{tag}{t}") + of_reads())
                    slots[15] += ["s_waitcnt lgkmcnt(0)", lambda u=u: wait_for(f"W{u}_0_1"), wo_mfma(0, 0, woA, u == 0)]
                if j == 7:
                    slots[9].append(wo_mfma(0, 1, woA, u == 0)); slots[15] += [lambda u=u: wait_for(f"W{u}_0_3"), wo_mfma(0, 2, woA, u == 0)]
            if t >= 2:
                u = t - 2
                if j == 0:
                    slots[9].append(wo_mfma(0, 3, woA, u == 0))
                    slots[15] += [lambda u=u: wait_for(f"W{u}_1_1"), wo_mfma(1, 0, T)]
                if j == 1:
                    slots[9].append(wo_mfma(1, 1, T)); slots[15] += [lambda u=u: wait_for(f"W{u}_1_2"), wo_mfma(1, 2, T)]
                if j == 2:
                    slots[9] += [lambda u=u: wait_for(f"W{u}_1_3"), wo_mfma(1, 3, T)]
            if tau == 11:
                slots[4].append(f"s_cmp_lg_u32 s{sW}, 7\ns_cbranch_scc1 K2_B1{tag}\ns_add_u32 s{SQ}, s14, 0\ns_addc_u32 s{SQ+1}, s15, 0\ns_movk_i32 s{SQ+2}, 2752\n"
                    f"s_lshl_b32 s{sT0}, s{sT0f}, 6\nv_lshlrev_b32 v{vt[3]}, 2, v0\ns_mov_b32 m0, {B1L}\ns_nop 0\nbuffer_load_dword v{vt[3]}, {s(SQ,4)}, s{sT0} offen lds\nK2_B1{tag}:")
            if tau == 9:
                slots[4].append(lambda: (order.append("X"), f"s_lshl_b32 s{sT0}, s{sRB}, 13\ns_lshl_b32 s{sT1}, s{sW}, 10\ns_add_u32 s{sT0}, s{sT0}, s{sT1}\n"
                    f"s_mul_i32 s{sT1}, s{sW}, 1040\ns_add_u32 m0, s{sT1}, {XL}\ns_nop 0\nbuffer_load_dwordx4 v{vQa}, {s(SX,4)}, s{sT0} offen lds")[1])
            if tau == 58:
                slots[1].append(f"s_and_b32 s{sCB2}, s{sMm}, 7\ns_lshl_b32 s{sW2o}, s{sCB2}, 3\ns_add_u32 s{sW2o}, s{sW2o}, s{sW}\ns_mul_i32 s{sW2o}, s{sW2o}, {11*2048}")
            if 59 <= tau <= 62:
                slots[4].append(lambda ct=tau-59: ldW(7, 0, ct, W7[0]))
            if 60 <= tau <= 63:
                slots[16].append(lambda ct=tau-60: ldW(7, 1, ct, W7[1]))
            if t == 0 and not slow:
                slots[p1].append(lambda j=j: wait_for(f"V{2*j+1}"))
            slots[p1].append(pv(tau, 0))
            if not slow and sum(len(x) for x in slots[7:]) < 2:
                slots[14].append("s_nop 0")
            for i in range(17):
                for x in slots[i]:
                    x = x() if callable(x) else x
                    if "NOWL" in EXP and f"{s(SWO,4)}" in x: continue
                    if "NOPF" in EXP and ("K2_PA" in x or "K2_PB" in x): continue
                    if "NOW1" in EXP and " lds" in x: continue
                    if "NOW2" in EXP and f"{s(SH,4)}" in x: continue
                    if "NODRAIN" in EXP and "ds_write" in x: continue
                    if "NOZERO" in EXP and f"{v(zero,4)}" in x: continue
                    if "NOWO" in EXP and "16x16x32" in x: continue
                    if "NONORM" in EXP and "K2_N" in x: continue
                    if "NOCHK" in EXP and "K2_R" in x and "K2_N" not in x: x = of_reads()
                    a(x)
                if i < 16:
                    r = S[tau & 1] + i
                    if slow:
                        a(f"v_sub_f32 v{r}, v{r}, v{vM[t&1]}")
                    a(f"v_exp_f32 v{r}, v{r}")
        a("s_nop 1")
        a(pv(63, 1))
    mainloop(False)
    a("K2_TAIL:")
    stamp(a, 3)
    a("s_setprio 0")
    nvm = len(order) - 1 - order.index('W6_1_3')
    a(ldW2(0) + ldW2(1))
    a(wo_mfma(0, 3, woA))
    for x in drain(7):
        a(x)
    a(f"s_waitcnt vmcnt({nvm + 4})")
    for ct in range(4):
        a(wo_mfma(1, ct, T))
    a(f"""
    v_and_b32 v{vt[0]}, 7, v0
    v_lshrrev_b32 v{vt[1]}, 4, v0
    v_bfe_u32 v{vt[3]}, v0, 3, 1
    v_lshlrev_b32 v{vVo}, 10, v{vt[0]}
    v_lshl_add_u32 v{vVo}, v{vt[3]}, 6, v{vVo}
    s_lshl_b32 s{sV1}, s{sRB}, 13
    s_lshl_b32 s{sT1}, s{sW}, 7
    s_add_u32 s{sV1}, s{sV1}, s{sT1}
    s_add_u32 s{sT1}, s{sT1}, {XL}
    v_lshl_add_u32 v{vt[2]}, v{vt[0]}, 4, v{vVo}
    v_lshl_add_u32 v{vt[2]}, v{vt[1]}, 3, v{vt[2]}
    v_add_u32 v{vt[2]}, s{sT1}, v{vt[2]}
    v_bfe_u32 v{vt[1]}, v0, 4, 1
    v_lshl_add_u32 v{vVo}, v{vt[1]}, 5, v{vVo}
    v_lshrrev_b32 v{vt[4]}, 5, v0
    v_lshl_add_u32 v{vVo}, v{vt[4]}, 4, v{vVo}
    s_waitcnt lgkmcnt(0)
    s_barrier
    """)
    for c in range(2):
        a(f"ds_read_b64 {v(X+2*c,2)}, v{vt[2]} offset:{32*c}")
    a(only_half(7, "T", norm_reads() + norm_comp()))
    a(ldW2(2) + ldW2(3))
    H = O[0]; XU = O[0] + 8; PK = O[1]; ST = woA; U = T
    srd(a, SQ, 16, 17, WS_H, 0x200000)
    a(f"""
    s_mov_b32 s{sB3}, 0xff00ff00
    s_mov_b32 s{sB3+1}, 0xff00ff00
    s_waitcnt lgkmcnt(0)
    """)
    for i in range(4):
        a(f"v_lshlrev_b32 v{XU+2*i}, 16, v{X+i}")
        a(f"v_and_b32 v{XU+2*i+1}, 0xffff0000, v{X+i}")
    a("s_barrier")
    a(of_reads())
    a(f"s_waitcnt vmcnt(8) lgkmcnt(1)")
    for ct in range(4):
        a(wo_mfma(0, ct, W7[0]))
    a("s_waitcnt lgkmcnt(0)")
    for ct in (0, 2, 1, 3):
        a(wo_mfma(1, ct, W7[1]))
    stamp(a, 4)
    a(ldW2(4) + ldW2(5) if W2T >= 6 else "s_nop 7")
    a.c("h = x + attn ; lanes with bit 3 set take column tiles 2,3")
    for i in range(8):
        a(f"v_cndmask_b32 v{H+i}, v{hacc+i}, v{hacc+8+i}, {s(sB3,2)}")
    for i in range(4):
        a(f"v_pk_add_f32 {v(H+2*i,2)}, {v(H+2*i,2)}, {v(XU+2*i,2)}")
    a(f"""
    v_pk_mul_f32 {v(U+4,2)}, {v(H,2)}, {v(H,2)}
    v_pk_add_f32 {v(U,2)}, {v(H,2)}, {v(H+2,2)}
    v_pk_mul_f32 {v(U+6,2)}, {v(H+2,2)}, {v(H+2,2)}
    v_pk_add_f32 {v(U+2,2)}, {v(H+4,2)}, {v(H+6,2)}
    v_pk_fma_f32 {v(U+4,2)}, {v(H+4,2)}, {v(H+4,2)}, {v(U+4,2)}
    v_pk_fma_f32 {v(U+6,2)}, {v(H+6,2)}, {v(H+6,2)}, {v(U+6,2)}
    v_pk_add_f32 {v(U,2)}, {v(U,2)}, {v(U+2,2)}
    v_pk_add_f32 {v(U+4,2)}, {v(U+4,2)}, {v(U+6,2)}
    v_add_f32 v{U}, v{U}, v{U+1}
    v_add_f32 v{U+1}, v{U+4}, v{U+5}
    v_mov_b32 v{U+2}, v{U}
    v_mov_b32 v{U+3}, v{U+1}
    v_cvt_pk_bf16_f32 v{PK}, v{H}, v{H+1}
    v_permlane32_swap_b32 v{U}, v{U+2}
    v_permlane32_swap_b32 v{U+1}, v{U+3}
    v_pk_add_f32 {v(U,2)}, {v(U,2)}, {v(U+2,2)}
    v_mov_b32 v{U+2}, v{U}
    v_mov_b32 v{U+3}, v{U+1}
    v_cvt_pk_bf16_f32 v{PK+1}, v{H+2}, v{H+3}
    v_permlane16_swap_b32 v{U}, v{U+2}
    v_permlane16_swap_b32 v{U+1}, v{U+3}
    v_pk_add_f32 {v(U,2)}, {v(U,2)}, {v(U+2,2)}
    v_cvt_pk_bf16_f32 v{PK+2}, v{H+4}, v{H+5}
    v_cvt_pk_bf16_f32 v{PK+3}, v{H+6}, v{H+7}
    v_add_f32_dpp v{U}, v{U}, v{U} row_ror:8 row_mask:0xf bank_mask:0xf
    v_add_f32_dpp v{U+1}, v{U+1}, v{U+1} row_ror:8 row_mask:0xf bank_mask:0xf
    """)
    a(f"""
    s_lshl_b32 s{sT1}, s{sW}, 3
    s_add_u32 s{sT1}, s{sT1}, {MISC + 128}
    v_lshlrev_b32 v{vt[5]}, 6, v{vt[0]}
    v_add_u32 v{vt[4]}, s{sT1}, v{vt[5]}
    v_add_u32 v{vt[5]}, {MISC + 128}, v{vt[5]}
    ds_write_b64 v{vt[4]}, {v(U,2)}
    """)
    if W2T >= 8:
        a(ldW2(6) + ldW2(7))
    a("s_waitcnt lgkmcnt(0)")
    a("s_barrier")
    for i in range(4):
        a(f"ds_read_b128 {v(ST+4*i,4)}, v{vt[5]} offset:{16*i}")
    a(f"""
    v_permlane16_swap_b32 v{PK}, v{PK+2}
    v_permlane16_swap_b32 v{PK+1}, v{PK+3}
    buffer_store_dwordx4 {v(PK,4)}, v{vVo}, {s(SQ,4)}, s{sV1} offen sc1
    """)
    a(f"""
    s_lshr_b32 s{sT0}, s{sRB}, 2
    s_lshl_b32 s{sT0}, s{sT0}, 15
    s_lshl_b32 s{sT1}, s{sW}, 12
    s_add_u32 s{sT0}, s{sT0}, s{sT1}
    s_and_b32 s{sT1}, s{sRB}, 3
    s_lshl_b32 s{sT1}, s{sT1}, 7
    s_add_u32 s{sT0}, s{sT0}, s{sT1}
    v_lshlrev_b32 v{vt[4]}, 4, v{vt[0]}
    v_lshl_add_u32 v{vt[4]}, v{vt[3]}, 11, v{vt[4]}
    v_lshrrev_b32 v{vt[0]}, 5, v0
    v_lshl_add_u32 v{vt[4]}, v{vt[0]}, 9, v{vt[4]}
    v_lshl_add_u32 v{vt[4]}, v{vt[1]}, 10, v{vt[4]}
    s_waitcnt lgkmcnt(0)
    v_pk_add_f32 {v(U+2,2)}, {v(ST,2)}, {v(ST+2,2)}
    v_pk_add_f32 {v(U+4,2)}, {v(ST+4,2)}, {v(ST+6,2)}
    v_pk_add_f32 {v(U+6,2)}, {v(ST+8,2)}, {v(ST+10,2)}
    v_pk_add_f32 {v(U+8,2)}, {v(ST+12,2)}, {v(ST+14,2)}
    v_pk_add_f32 {v(U+2,2)}, {v(U+2,2)}, {v(U+4,2)}
    v_pk_add_f32 {v(U+6,2)}, {v(U+6,2)}, {v(U+8,2)}
    v_pk_add_f32 {v(U+2,2)}, {v(U+2,2)}, {v(U+6,2)}
    v_mul_f32 v{U+2}, {hex(f32bits(1.0/512))}, v{U+2}
    v_mul_f32 v{U+3}, {hex(f32bits(1.0/512))}, v{U+3}
    v_fma_f32 v{U+3}, -v{U+2}, v{U+2}, v{U+3}
    v_max_f32 v{U+3}, 0, v{U+3}
    v_add_f32 v{U+6}, {hex(f32bits(1e-5))}, v{U+3}
    v_rsq_f32 v{U+6}, v{U+6}
    """)
    for i in range(4):
        a(f"v_pk_add_f32 {v(H+2*i,2)}, {v(H+2*i,2)}, {v(U+2,2)} op_sel_hi:[1,0] neg_lo:[0,1] neg_hi:[0,1]")
    for i in range(4):
        a(f"v_pk_mul_f32 {v(H+2*i,2)}, {v(H+2*i,2)}, {v(U+6,2)} op_sel_hi:[1,0]")
    for i in range(4):
        a(f"v_cvt_pk_bf16_f32 v{PK+4+i}, v{H+2*i}, v{H+2*i+1}")
    a(f"""
    s_nop 1
    v_permlane16_swap_b32 v{PK+4}, v{PK+6}
    v_permlane16_swap_b32 v{PK+5}, v{PK+7}
    buffer_store_dwordx4 {v(PK+4,4)}, v{vt[4]}, {s(SHN,4)}, s{sT0} offen sc1
    """)
    if DUAL & 1:
        a.c("same bytes once more with a plain store: keeps the lines in the local L2 (speed only)")
        a(f"buffer_store_dwordx4 {v(PK+4,4)}, v{vt[4]}, {s(SHN,4)}, s{sT0} offen")
    SF, SG = SKV, SWO
    srd(a, SF, 16, 17, WS_FLG, 8192)
    srd(a, SG, 16, 17, WS_G, G_BYTES)
    def signal(off, young):
        a(f"""
        s_waitcnt vmcnt({young})
        s_barrier
        {stamp_str(1 if off == 0 else 2)}
        s_cmp_lg_u32 s{sW}, 0
        s_cbranch_scc1 K2_NOSIG{off}
        s_lshl_b32 s{sT0}, s{sG}, 8
        s_lshl_b32 s{sT1}, s{sMm}, 2
        s_add_u32 s{sT1}, s{sT1}, s{sT0}
        v_mov_b32 v{vt[0]}, 0
        v_mov_b32 v{vt[1]}, 1
        s_mov_b64 exec, 1
        s_add_u32 s{sT0}, s{sT1}, 4096
        buffer_store_dword v{vt[1]}, v{vt[0]}, {s(SF,4)}, s{sT0} offen offset:{off}
        buffer_store_dword v{vt[1]}, v{vt[0]}, {s(SF,4)}, s{sT1} offen offset:{off} sc1
        s_mov_b64 exec, -1
        K2_NOSIG{off}:
        """)
    def poll_start(off):
        pass
    def poll(off, mask):
        a(f"""
        s_cmp_lg_u32 s{sW}, 0
        s_cbranch_scc1 K2_NOPOLL{off}
        s_lshl_b32 s{sT0}, s{sG}, 8
        s_add_u32 s{sSo}, s{sT0}, 4096
        v_and_b32 v{vt[0]}, 15, v0
        v_lshlrev_b32 v{vt[0]}, 2, v{vt[0]}
        s_mov_b32 s{sT2}, 0x400000
        s_mov_b32 s{sB3}, 0
        K2_POLL{off}:
        s_sub_u32 s{sT2}, s{sT2}, 1
        s_cbranch_scc1 K2_NOPOLL{off}
        s_and_b32 s{sT1}, s{sT2}, {FASTN - 1}
        s_cselect_b32 s{sT1}, s{sSo}, s{sT0}
        buffer_load_dword v{vt[1]}, v{vt[0]}, {s(SF,4)}, s{sT1} offen offset:{off} sc1
        s_waitcnt vmcnt(0)
        v_cmp_ne_u32 vcc, 0, v{vt[1]}
        s_or_b32 s{sB3}, s{sB3}, vcc_lo
        s_and_b32 s{sT1}, s{sB3}, {hex(mask)}
        s_cmp_lg_u32 s{sT1}, {hex(mask)}
        s_cbranch_scc1 K2_POLL{off}
        K2_NOPOLL{off}:
        s_barrier
        """)
    stamp(a, 5)
    if RELOAD:
        a.c("touch the lines just written so that they sit in the local L2 (speed only)")
        a(f"""
        buffer_load_dword v{T+12}, v{vt[4]}, {s(SHN,4)}, s{sT0} offen sc1
        buffer_load_dword v{T+13}, v{vVo}, {s(SQ,4)}, s{sV1} offen sc1
        """)
    signal(0, 2 if RELOAD else 0)
    a(f"""
    s_cmp_eq_u32 s{sMm}, 15
    s_cbranch_scc1 K2_SKIP1
    """)
    poll_start(0)
    a(f"""
    v_lshrrev_b32 v{vt[2]}, 5, v0
    v_lshlrev_b32 v{vt[2]}, 3, v{vt[2]}
    v_add_u32 v{vt[2]}, {B1L}, v{vt[2]}
    s_cmp_eq_u32 s{sHalf}, 0
    s_cselect_b32 s{sT2}, -1, 0
    s_and_b32 s{sSo}, s{sT2}, 0xffff0000
    """)
    BI = Kf
    acc1 = [O[0], O[1], hacc]
    for ft in range(3):
        for q in range(4):
            a(f"ds_read_b64 {v(BI+8*ft+2*q,2)}, v{vt[2]} offset:{ft*64+q*16}")
    a("s_waitcnt lgkmcnt(0)")
    for ft in range(3):
        for i in range(8):
            a(f"v_and_b32 v{acc1[ft]+2*i+1}, s{sSo}, v{BI+8*ft+i}")
            a(f"v_and_b32 v{BI+8*ft+i}, s{sT2}, v{BI+8*ft+i}")
            a(f"v_lshlrev_b32 v{acc1[ft]+2*i}, 16, v{BI+8*ft+i}")
    Bf = [Kf + 4*i for i in range(8)] + [woA + 4*i for i in range(4)] + [T + 4*i for i in range(4)]
    Af = [Vf, Vf + 4, OFr, OFr + 4, nrm, nrm + 4, Q, zero]
    vWa = vOa; vEx = vLa; vEr = vNr
    sRT, sKH = sV1, sHalf
    a(f"""
    s_and_b32 s{sRT}, s{sW}, 3
    s_lshl_b32 s{sT0}, s{sG}, 2
    s_add_u32 s{sRT}, s{sRT}, s{sT0}
    v_lshrrev_b32 v{vt[2]}, 5, v0
    v_lshlrev_b32 v{vt[2]}, 9, v{vt[2]}
    v_bfe_u32 v{vt[3]}, v0, 2, 2
    v_lshl_add_u32 v{vt[2]}, v{vt[3]}, 6, v{vt[2]}
    v_bfe_u32 v{vt[3]}, v0, 4, 1
    v_lshl_add_u32 v{vt[2]}, v{vt[3]}, 5, v{vt[2]}
    v_and_b32 v{vt[3]}, 3, v0
    v_lshl_add_u32 v{vt[2]}, v{vt[3]}, 3, v{vt[2]}
    s_mul_i32 s{sT0}, s{sKH}, 49152
    v_add_u32 v{vWa}, s{sT0}, v{vt[2]}
    s_mul_i32 s{sT0}, s{sW}, 6144
    s_add_u32 s{sT0}, s{sT0}, {EXB}
    v_add_u32 v{vEx}, s{sT0}, v{vQa}
    s_xor_b32 s{sT0}, s{sW}, 4
    s_mul_i32 s{sT0}, s{sT0}, 6144
    s_add_u32 s{sT0}, s{sT0}, {EXB}
    v_add_u32 v{vEr}, s{sT0}, v{vQa}
    s_lshl_b32 s{sWm}, s{sRT}, 15
    s_lshl_b32 s{sT0}, s{sKH}, 14
    s_add_u32 s{sWm}, s{sWm}, s{sT0}
    """)
    def areads(f):
        ks, ft = divmod(f, 3)
        off = ks * 3072 + ft * 1024
        a(f"ds_read_b64_tr_b16 {v(Af[f%8],2)}, v{vWa} offset:{off}")
        a(f"ds_read_b64_tr_b16 {v(Af[f%8]+2,2)}, v{vWa} offset:{off+256}")
    for f in range(5):
        areads(f)
    if W2L == "thin":
        a(f"""
        s_cmp_eq_u32 s{sW}, 0
        s_cbranch_scc1 K2_NW2
        """)
        for i in range(8, 11):
            a(ldW2(i))
            if i < 10:
                a("s_waitcnt vmcnt(0)")
        a("K2_NW2:")
    poll(0, 0xffff)
    stamp(a, 6)
    for i in range(16):
        a(f"""
        s_add_u32 s{sSo}, s{sMm}, {i}
        s_and_b32 s{sSo}, s{sSo}, 15
        s_lshl_b32 s{sSo}, s{sSo}, 10
        s_add_u32 s{sSo}, s{sSo}, s{sWm}
        buffer_load_dwordx4 {v(Bf[i],4)}, v{vQa}, {s(SHN,4)}, s{sSo} offen {LDF}
        """)
    for f in range(48):
        ks, ft = divmod(f, 3)
        later = min(4, 47 - f)
        w = f"lgkmcnt({2*later})"
        if ft == 0:
            w = f"vmcnt({15 - ks + (2*min(11 - W2T, max(0, ks - (W2T + 2))) if W2L == 'mid' else 0)}) " + w
        a(f"s_waitcnt {w}")
        a(f"v_mfma_f32_32x32x16_bf16 {v(acc1[ft],16)}, {v(Af[f%8],4)}, {v(Bf[ks],4)}, {v(acc1[ft],16)}")
        if f + 5 < 48:
            areads(f + 5)
        if W2L == "mid" and ft == 2 and W2T + 2 <= ks < 13:
            a(ldW2(ks - 2))
    stamp(a, 7)
    if W2L == "thin":
        a(f"""
        s_cmp_lg_u32 s{sW}, 0
        s_cbranch_scc1 K2_NW3
        """)
    if W2L != "mid":
        a(ldW2(8) + ldW2(9) + ldW2(10))
    a("K2_NW3:")
    a(f"""
    s_mul_i32 s{sT0}, s{sRT}, 86
    s_lshl_b32 s{sT1}, s{sT0f}, 1
    s_add_u32 s{sT0}, s{sT0}, s{sT1}
    s_mul_i32 s{sT1}, s{sKH}, 3
    s_add_u32 s{sT0}, s{sT0}, s{sT1}
    s_lshl_b32 s{sT0}, s{sT0}, 10
    s_cmp_eq_u32 s{sMm}, 14
    s_cselect_b32 s{sT1}, 0x1000000, s{sT0}
    s_nop 5
    s_cmp_eq_u32 s{sKH}, 1
    s_cbranch_scc1 K2_EX1
    """)
    lo = [acc1[0], acc1[0] + 8, acc1[1]]
    hi = [acc1[1] + 8, acc1[2], acc1[2] + 8]
    RX = Kf
    def exchange(keep, send, so):
        for q in range(3):
            a(f"ds_write_b128 v{vEx}, {v(send[q],4)} offset:{q*2048}")
            a(f"ds_write_b128 v{vEx}, {v(send[q]+4,4)} offset:{q*2048+1024}")
        a("s_waitcnt lgkmcnt(0)")
        a("s_barrier")
        for q in range(6):
            a(f"ds_read_b128 {v(RX+4*q,4)}, v{vEr} offset:{q*1024}")
        for q in range(3):
            a(f"s_waitcnt lgkmcnt({4-2*q})")
            for i in range(4):
                a(f"v_pk_add_f32 {v(keep[q]+2*i,2)}, {v(keep[q]+2*i,2)}, {v(RX+8*q+2*i,2)}")
            for i in range(8):
                a(f"v_max_f32 v{keep[q]+i}, 0, v{keep[q]+i}")
            for i in range(4):
                a(f"v_pk_mul_f32 {v(keep[q]+2*i,2)}, {v(keep[q]+2*i,2)}, {v(keep[q]+2*i,2)}")
            for i in range(4):
                a(f"v_cvt_pk_bf16_f32 v{woA+4*q+i}, v{keep[q]+2*i}, v{keep[q]+2*i+1}")
            a(f"buffer_store_dwordx4 {v(woA+4*q,4)}, v{vQa}, {s(SG,4)}, s{so[q]} offen offset:{q*1024} sc1")
            if DUAL & 2:
                a(f"buffer_store_dwordx4 {v(woA+4*q,4)}, v{vQa}, {s(SG,4)}, s{so[q]} offen offset:{q*1024}")
    exchange(lo, hi, [sT1, sT1, sT1])
    a("s_branch K2_EXJ")
    a("K2_EX1:")
    exchange(hi, lo, [sT1, sT0, sT0])
    a("K2_EXJ:")
    stamp(a, 8)
    if RELOAD:
        for q in range(3):
            a(f"buffer_load_dword v{hacc+q}, v{vQa}, {s(SG,4)}, s{sT0} offen offset:{q*1024} sc1")
    signal(128, 3 if RELOAD else 0)
    a("s_branch K2_FFN2")
    a("K2_SKIP1:")
    a("".join(ldW2(i) for i in range(W2T, 11)))
    a("K2_FFN2:")
    poll_start(128)
    Gf = [Kf + 4*i for i in range(8)] + [Vf, Vf + 4] + [woA + 4*i for i in range(4)] + [T + 4*i for i in range(4)] + [OFr, OFr + 4]
    Gf += Gf[:2]
    acc2 = [O[0], O[1], hacc, zero]
    vG1 = vOa; vOo = vLa; vRw = vNr; vRr = vNl; vB2 = vNw
    sGo, sOo, sGend = sWm, sV1, sRot
    srd(a, SX, 18, 19, 0, 1024)
    srd(a, SHN, 10, 11, 0, 0x200000)
    a(f"""
    s_lshl_b32 s{sT0}, s{sG}, 1
    s_lshr_b32 s{sT1}, s{sMm}, 3
    s_add_u32 s{sT0}, s{sT0}, s{sT1}
    s_lshl_b32 s{sOo}, s{sT0}, 16
    s_mul_i32 s{sGo}, s{sT0}, {2*86*1024}
    s_add_u32 s{sGend}, s{sGo}, {86*1024}
    s_lshl_b32 s{sT1}, s{sW}, 10
    s_add_u32 s{sGo}, s{sGo}, s{sT1}
    v_add_u32 v{vG1}, {86*1024}, v{vQa}
    v_and_b32 v{vt[2]}, 31, v0
    v_mul_u32_u24 v{vt[2]}, 272, v{vt[2]}
    v_lshrrev_b32 v{vt[3]}, 5, v0
    v_lshl_add_u32 v{vt[2]}, v{vt[3]}, 4, v{vt[2]}
    s_mul_i32 s{sT0}, s{sW}, {RSTR}
    v_add_u32 v{vRw}, s{sT0}, v{vt[2]}
    v_lshrrev_b32 v{vt[2]}, 3, v0
    s_lshl_b32 s{sT0}, s{sW}, 3
    v_add_u32 v{vt[2]}, s{sT0}, v{vt[2]}
    v_and_b32 v{vt[3]}, 7, v0
    v_mul_u32_u24 v{vRr}, 272, v{vt[2]}
    v_lshl_add_u32 v{vRr}, v{vt[3]}, 5, v{vRr}
    s_lshl_b32 s{sT0}, s{sCB2}, 7
    v_lshlrev_b32 v{vB2}, 4, v{vt[3]}
    v_add_u32 v{vB2}, s{sT0}, v{vB2}
    v_lshl_add_u32 v{vOo}, v{vt[2]}, 10, v{vB2}
    """)
    poll(128, 0x7fff)
    stamp(a, 9)
    def ldG(i):
        a(f"""
        s_add_u32 s{sSo}, s{sCB2}, {i}
        s_sub_u32 s{sT1}, s{sSo}, 11
        s_cselect_b32 s{sSo}, s{sSo}, s{sT1}
        s_lshl_b32 s{sSo}, s{sSo}, 13
        s_add_u32 s{sSo}, s{sSo}, s{sGo}
        s_cmp_ge_u32 s{sSo}, s{sGend}
        s_cselect_b32 s{sSo}, 0x1000000, s{sSo}
        """)
        a(f"buffer_load_dwordx4 {v(Gf[2*i],4)}, v{vQa}, {s(SG,4)}, s{sSo} offen {LDF}")
        a(f"buffer_load_dwordx4 {v(Gf[2*i+1],4)}, v{vG1}, {s(SG,4)}, s{sSo} offen {LDF}")
    for i in range(10):
        ldG(i)
    for i in range(11):
        a(f"s_waitcnt vmcnt({18 if i == 0 else 2*(10-i)})")
        for ct in range(2):
            for rt in range(2):
                d = acc2[2*ct + rt]
                a(f"v_mfma_f32_32x32x16_bf16 {v(d,16)}, {v(W2R+8*i+4*ct,4)}, {v(Gf[2*i+rt],4)}, {'0' if i == 0 else v(d,16)}")
        if i == 0:
            ldG(10)
    stamp(a, 10)
    HR = woA; B2 = woA + 4
    a(f"""
    buffer_load_dwordx4 {v(HR,4)}, v{vOo}, {s(SQ,4)}, s{sOo} offen sc1
    buffer_load_dwordx4 {v(B2,4)}, v{vB2}, {s(SX,4)}, 0 offen
    v_add_u32 v{vt[2]}, {3*RSTR}, v{vRr}
    v_add_u32 v{vt[3]}, {6*RSTR}, v{vRr}
    s_nop 7
    """)
    for ct in range(2):
        for rt in range(2):
            for q in range(4):
                d = acc2[2*ct + rt] + 4*q
                a(f"ds_write_b128 v{vRw}, {v(d,4)} offset:{rt*32*272 + (32*ct + 8*q)*4}")
    a("s_waitcnt vmcnt(0)")
    for i in range(4):
        a(f"v_lshlrev_b32 v{T+2*i}, 16, v{HR+i}")
        a(f"v_and_b32 v{T+2*i+1}, 0xffff0000, v{HR+i}")
        a(f"v_lshlrev_b32 v{T+8+2*i}, 16, v{B2+i}")
        a(f"v_and_b32 v{T+8+2*i+1}, 0xffff0000, v{B2+i}")
    for i in range(4):
        a(f"v_pk_add_f32 {v(T+2*i,2)}, {v(T+2*i,2)}, {v(T+8+2*i,2)}")
    a("s_waitcnt lgkmcnt(0)")
    a("s_barrier")
    stamp(a, 11)
    RR = W2R
    for w in range(8):
        base = (vRr, vt[2], vt[3])[w // 3]
        for q in range(2):
            a(f"ds_read_b128 {v(RR+8*w+4*q,4)}, v{base} offset:{(w % 3)*RSTR + 16*q}")
    for w in range(0, 8, 2):
        a(f"s_waitcnt lgkmcnt({12 - 2*w})")
        for i in range(4):
            a(f"v_pk_add_f32 {v(RR+8*w+2*i,2)}, {v(RR+8*w+2*i,2)}, {v(RR+8*w+8+2*i,2)}")
        for i in range(4):
            a(f"v_pk_add_f32 {v(T+2*i,2)}, {v(T+2*i,2)}, {v(RR+8*w+2*i,2)}")
    for i in range(4):
        a(f"v_cvt_pk_bf16_f32 v{T+8+i}, v{T+2*i}, v{T+2*i+1}")
    a(f"buffer_store_dwordx4 {v(T+8,4)}, v{vOo}, {s(SHN,4)}, s{sOo} offen {OUTF}")
    stamp_dump(a, 1, sW)
    a("K2_END:")
    a("s_endpgm")
    a.c("slow path: true row maxima first")
    a("K2_SLOW:")
    MB = MISC + 1024
    a("s_setprio 0")
    for i in range(SLOW_V0, 16):
        a(ldV(i))
    a("s_nop 7\ns_nop 7")
    for o in O:
        a(f"v_mfma_f32_32x32x16_bf16 {v(o,16)}, {v(zero,4)}, {v(zero,4)}, 0")
    a(f"""
    v_and_b32 v{vt[0]}, 31, v0
    v_lshlrev_b32 v{vt[0]}, 2, v{vt[0]}
    v_add_u32 v{vt[0]}, {MB}, v{vt[0]}
    s_lshl_b32 s{sT0}, s{sW}, 7
    v_add_u32 v{vt[1]}, s{sT0}, v{vt[0]}
    v_mov_b32 v{vt[2]}, 0xff800000
    ds_write_b32 v{vt[1]}, v{vt[2]}
    s_waitcnt vmcnt(0) lgkmcnt(0)
    s_barrier
    v_mov_b32 v{vt[1]}, v{vt[0]}
    v_mov_b32 v{vt[3]}, v{vQl}
    s_mov_b32 s{sT0}, 0
    K2_P1:
    ds_read_b128 {v(Q,4)}, v{vt[3]}
    v_mov_b32 v{nrm}, 0xff800000
    s_waitcnt lgkmcnt(0)
    """)
    for j in range(8):
        a(f"v_mfma_f32_32x32x16_bf16 {v(S[0],16)}, {v(Kf+4*j,4)}, {v(Q,4)}, 0")
        a("s_nop 7\ns_nop 3")
        for i in range(8):
            a(f"v_max3_f32 v{nrm}, v{nrm}, v{S[0]+2*i}, v{S[0]+2*i+1}")
        a("s_nop 1")
    a(f"""
    ds_max_f32 v{vt[1]}, v{nrm}
    v_add_u32 v{vt[1]}, 128, v{vt[1]}
    v_add_u32 v{vt[3]}, 1024, v{vt[3]}
    s_add_u32 s{sT0}, s{sT0}, 1
    s_cmp_lt_u32 s{sT0}, 8
    s_cbranch_scc1 K2_P1
    ds_read_b128 {v(Q,4)}, v{vQl}
    s_waitcnt lgkmcnt(0)
    s_barrier
    """)
    mainloop(True)
    a("s_branch K2_TAIL")
    for r in retries:
        lab = r.split(":")[0]
        if any(("s_cbranch_vccnz " + lab) == l.strip() for l in a.lines):
            a(r)
    return name, R.cur, K2_LDS
```

```python
import sys
from asmlib import *
from k1 import gen_k1
from k2 import gen_k2
from k3 import gen_k3
from k4 import gen_k4
NAME = "sequential_preLN__grouped_kv_mqa__dense_activation_squared_relu__prompt"
ref = open(f"cdna_kernels/{NAME}.s.ref").read().split("\n")
hdr = [l for l in ref if l.startswith(";") and "@launch" not in l and "Override launch" not in l and "grid=ceil" not in l]
DOC = """;
"""
def build(extra_launch=None):
    a = Asm()
    ks = []
    for g, grid, block in ((gen_k1, 256, 512), (gen_k2, 256, 512)):
        name, nv, lds = g(a)
        ks.append((name, nv, lds, grid, block))
    out = "\n".join(hdr) + "\n" + DOC
    launches = [(n, g, b, l) for (n, nv, l, g, b) in ks]
    for n, g, b, l in launches:
        out += f"; @launch kernel={n} grid=({g},1,1) block=({b},1,1) lds={l}\n"
    out += '.amdgcn_target "amdgcn-amd-amdhsa--gfx950"\n.text\n'
    out += a.text()
    out += '.section .rodata,"a"\n'
    for n, nv, l, g, b in ks:
        out += kernel_desc(n, nv)
        print(n, "vgprs", nv, "lds", l, file=sys.stderr)
    return out
if __name__ == "__main__":
    path = sys.argv[1] if len(sys.argv) > 1 else f"cdna_kernels/{NAME}.s"
    open(path, "w").write(build())
```

```python
from asmlib import *
from common import *
import os

W1L = 0
QL = 98304
EXB = QL
OACC = QL + 8192
LACC = OACC + 16384
OFB = LACC + 1024
MISC = OFB + 1024
XL = MISC + 2048
B1L = EXB + 49152
K2_LDS = B1L + 256
RSTR = 17408
THR2 = (40.0 / 1.02) ** 2
PRIO = os.environ.get("PRIO", "2")
PD = int(os.environ.get("PD", "2"))
EXP = os.environ.get("EXP", "").split(",")
LDF = os.environ.get("LDF", "sc1").replace("_", " ").replace("none", "")
RELOAD = os.environ.get("RELOAD", "0") == "1"
OUTF = os.environ.get("OUTF", "").replace("_", " ")
W2L = os.environ.get("W2L", "mid")
NPOLL = int(os.environ.get("NPOLL", "1"))
QLATE = os.environ.get("QLATE", "0") == "1"
W2T = int(os.environ.get("W2T", "8"))
FASTN = int(os.environ.get("FASTN", "8"))
DUAL = int(os.environ.get("DUAL", "0"))
BJ = int(os.environ.get("BJ", "6"))
SLOW_V0 = min(16, 2*PD + 2*(BJ + 1))

def gen_k2(a):
    name = "attn_kernel"
    kernel_header(a, name)
    R = Regs(1, 256)
    vt = [R.alloc(f"t{i}") for i in range(6)]
    vidx = R.alloc("idx")
    vQa = R.alloc("qa")
    vOa = R.alloc("oa"); vLa = R.alloc("la")
    vNr = R.alloc("nr"); vNl = R.alloc("nl"); vNw = R.alloc("nw")
    vOFa = R.alloc("ofa")
    vKo = R.alloc("ko"); vVo = R.alloc("vo"); vQl = R.alloc("ql"); vW1o = R.alloc("w1o")
    vP1r = R.alloc("p1r"); vP2r = R.alloc("p2r"); vPw = R.alloc("pw"); vPv = R.alloc("pv"); vCnt = R.alloc("cnt")
    zero = R.alloc("zero", 4)
    Q = R.alloc("q", 4)
    nrm = R.alloc("nrm", 8, 4)
    Kf = R.alloc("k", 32)
    Vf = R.alloc("v", 64)
    S = [R.alloc(f"s{i}", 16) for i in range(2)]
    O = [R.alloc(f"o{i}", 16) for i in range(2)]
    woA = R.alloc("woa", 16)
    T = R.alloc("T", 16)
    OFr = R.alloc("ofr", 8)
    hacc = R.alloc("hacc", 16)
    Qw = OFr
    vM = [vt[1], vt[2]]
    sW, sRB, sT0, sT1, sT2, sWm, sSo, sHalf = 20, 21, 22, 23, 44, 45, 46, 47
    sMaskLo, sV1, sV2 = 48, 50, 51
    sG, sMm, sT0f, sW1m, sV2x, sRot = 4, 5, 6, 7, 60, 61
    SQ, SKV, SWO, SX, SH, SHN, SP = 24, 28, 32, 36, 40, 52, 56
    a(f"""
    s_cmp_ge_u32 s2, 256
    s_cbranch_scc1 K2_END
    s_setprio 3
    s_load_dwordx2 s[16:17], s[0:1], 96
    s_load_dwordx2 s[8:9], s[0:1], 0
    s_load_dwordx4 s[12:15], s[0:1], 48
    s_load_dwordx2 s[18:19], s[0:1], 72
    s_load_dwordx2 s[10:11], s[0:1], 80
    v_lshrrev_b32 v{vt[0]}, 6, v0
    v_and_b32 v0, 63, v0
    v_readfirstlane_b32 s{sW}, v{vt[0]}
    v_lshlrev_b32 v{vQa}, 4, v0
    s_and_b32 s{sT0}, s2, 7
    s_lshr_b32 s{sT1}, s2, 3
    s_lshl_b32 s{sRB}, s{sT0}, 5
    s_add_u32 s{sRB}, s{sRB}, s{sT1}
    s_lshl_b32 s{sWm}, s{sW}, 13
    v_add_u32 v{vKo}, s{sWm}, v{vQa}
    v_lshrrev_b32 v{vt[3]}, 5, v0
    v_and_b32 v{vt[4]}, 31, v0
    v_lshlrev_b32 v{vt[2]}, 4, v{vt[4]}
    v_lshl_add_u32 v{vt[2]}, v{vt[3]}, 8, v{vt[2]}
    s_mul_i32 s{sT0}, s{sW}, {16*VSTR}
    s_add_u32 s{sT0}, s{sT0}, 0x10000
    v_and_b32 v{vt[1]}, 27, v0
    v_cmp_eq_u32 vcc, 16, v{vt[1]}
    v_mov_b32 v{vt[1]}, 0x40000000
    v_mov_b32 v{vt[5]}, 512
    v_cndmask_b32 v{vt[1]}, v{vt[1]}, v{vt[5]}, vcc
    v_cmp_gt_u32 vcc, 16, v{vt[4]}
    v_lshlrev_b32 v{vt[5]}, 3, v0
    s_nop 0
    v_cndmask_b32 v{vt[1]}, v{vt[1]}, v{vt[2]}, vcc
    v_add_u32 v{vVo}, s{sT0}, v{vt[1]}
    s_lshl_b32 s{sT1}, s{sRB}, 13
    s_lshl_b32 s{sT2}, s{sW}, 10
    s_add_u32 s{sT0}, s{sT1}, s{sT2}
    s_mov_b32 s{sSo}, 0x21000
    s_movk_i32 s{sT2}, 0x1000
    s_movk_i32 s{sV1}, {7*VSTR}
    s_movk_i32 s{sV2}, {14*VSTR}
    s_lshr_b32 s{sHalf}, s{sW}, 2
    """)
    stamp_init(a)
    a("s_waitcnt lgkmcnt(0)")
    srd(a, SQ, 16, 17, WS_Q, 0x200000)
    srd(a, SKV, 16, 17, WS_K, KV_BYTES)
    order = []
    def ldK(j):
        so = "0" if j < 4 else f"s{sT2}"
        order.append(f"K{j}")
        return f"buffer_load_dwordx4 {v(Kf+4*j,4)}, v{vKo}, {s(SKV,4)}, {so} offen offset:{(j&3)*1024}"
    def ldV(i):
        so = ("0", f"s{sV1}", f"s{sV2}")[i // 7]
        order.append(f"V{i}")
        return f"buffer_load_dwordx4 {v(Vf+4*i,4)}, v{vVo}, {s(SKV,4)}, {so} offen offset:{(i%7)*VSTR}"
    def ldW(t, ks, ct, dst):
        order.append(f"W{t}_{ks}_{ct}")
        pre = f"s_mov_b32 s{sSo}, {t*65536 + ks*4096}\n"
        return pre + f"buffer_load_dwordx4 {v(dst+4*ct,4)}, v{vKo}, {s(SWO,4)}, s{sSo} offen offset:{ct*1024}"
    def wait_for(item):
        return f"s_waitcnt vmcnt({len(order) - 1 - order.index(item)})"
    a(f"buffer_load_dwordx4 {v(Q,4)}, v{vQa}, {s(SQ,4)}, s{sT1} offen"); order.append("Q")
    a(ldK(0)); a(ldK(1)); a(ldV(0)); a(ldV(1)); a(ldK(2))
    def ldQW():
        a(f"buffer_load_dwordx4 {v(Qw,4)}, v{vQa}, {s(SQ,4)}, s{sT0} offen"); order.append("QW")
        a(f"buffer_load_dwordx2 {v(nrm,2)}, v{vt[5]}, {s(SKV,4)}, s{sSo} offen"); order.append("KM")
    if not QLATE:
        ldQW()
    for i in range(1, PD):
        a(ldV(2*i)); a(ldV(2*i + 1))
        if i + 2 < 8:
            a(ldK(i + 2))
    if QLATE:
        ldQW()
    a("s_setprio 0")
    pro_order = list(order)
    srd(a, SWO, 16, 17, WS_WO, 524288)
    for i in range(4):
        a(f"v_mov_b32 v{zero+i}, 0")
    a(f"v_mov_b32 v{vidx}, 0xdddddddd")
    a("s_nop 0")
    for o in O:
        a(f"v_mfma_f32_32x32x16_bf16 {v(o,16)}, {v(zero,4)}, {v(zero,4)}, 0")
    a.c("LDS addresses")
    a(f"""
    s_lshl_b32 s{sT0}, s{sW}, 2
    s_add_u32 s{sT1}, s{sT0}, {MISC + 32}
    v_mov_b32 v{vPw}, s{sT1}
    ds_write2_b32 v{vPw}, v{zero}, v{zero} offset1:8
    s_add_u32 s{sT0}, s{sT0}, {LACC}
    v_lshlrev_b32 v{vLa}, 5, v{vt[4]}
    v_add_u32 v{vLa}, s{sT0}, v{vLa}
    s_lshl_b32 s{sT0}, s{sW}, 11
    s_add_u32 s{sT0}, s{sT0}, {OACC}
    v_add_u32 v{vOa}, s{sT0}, v{vQa}
    s_and_b32 s{sT1}, s{sW}, 3
    v_and_b32 v{vt[2]}, 7, v0
    v_lshlrev_b32 v{vP1r}, 2, v{vt[2]}
    v_add_u32 v{vP1r}, {MISC + 32}, v{vP1r}
    v_and_b32 v{vt[1]}, 3, v0
    v_lshlrev_b32 v{vP2r}, 2, v{vt[1]}
    v_add_u32 v{vP2r}, {MISC + 64}, v{vP2r}
    v_bfe_u32 v{vt[1]}, v0, 4, 1
    v_bfe_u32 v{vt[4]}, v0, 3, 1
    v_lshlrev_b32 v{vNr}, 4, v{vt[2]}
    v_lshl_add_u32 v{vNw}, v{vt[3]}, 7, v{vNr}
    v_lshl_add_u32 v{vNr}, v{vt[3]}, 10, v{vNr}
    v_lshl_add_u32 v{vNr}, v{vt[1]}, 9, v{vNr}
    v_lshl_add_u32 v{vNr}, v{vt[4]}, 3, v{vNr}
    s_lshl_b32 s{sT0}, s{sT1}, 7
    s_add_u32 s{sT0}, s{sT0}, {OACC}
    v_add_u32 v{vNr}, s{sT0}, v{vNr}
    s_lshl_b32 s{sT0}, s{sT1}, 8
    s_add_u32 s{sSo}, s{sT0}, {LACC}
    v_lshlrev_b32 v{vNl}, 5, v{vt[2]}
    v_add_u32 v{vNl}, s{sSo}, v{vNl}
    v_bfe_u32 v{vt[3]}, v0, 3, 2
    v_lshl_add_u32 v{vNw}, v{vt[3]}, 2, v{vNw}
    s_add_u32 s{sSo}, s{sT0}, {OFB}
    v_add_u32 v{vNw}, s{sSo}, v{vNw}
    v_lshrrev_b32 v{vt[3]}, 4, v0
    v_lshlrev_b32 v{vt[2]}, 4, v{vt[2]}
    v_lshl_add_u32 v{vOFa}, v{vt[3]}, 7, v{vt[2]}
    v_add_u32 v{vOFa}, {OFB}, v{vOFa}
    """)
    srd(a, SX, 8, 9, 0, 0x200000)
    srd(a, SHN, 16, 17, WS_HN, 0x200000)
    srd(a, SP, 12, 13, 0, 1409024)
    srd(a, SH, 16, 17, WS_W2, W2F_BYTES)
    a(f"""
    s_lshr_b32 s{sT0}, s2, 3
    s_mul_i32 s{sT1}, s{sT0}, 44032
    s_add_u32 s{sT1}, s{sT1}, s{sWm}
    v_lshlrev_b32 v{vt[5]}, 7, v0
    s_lshl_b32 s{sMaskLo}, s{sT0}, 14
    s_and_b32 s{sT0}, s{sWm}, 0x2000
    s_add_u32 s{sMaskLo}, s{sMaskLo}, s{sT0}
    s_mov_b32 s{sMaskLo+1}, s{sT1}
    s_lshr_b32 s{sT0}, s2, 3
    s_mul_i32 s{sV2x}, s{sT0}, 45056
    s_add_u32 s{sV2x}, s{sV2x}, s{sWm}
    s_lshr_b32 s{sG}, s{sRB}, 4
    s_and_b32 s{sMm}, s{sRB}, 15
    s_mul_i32 s{sT0f}, s{sMm}, 3
    s_min_u32 s{sT0f}, s{sT0f}, 40
    v_add_u32 v{vQl}, {QL}, v{vQa}
    v_lshrrev_b32 v{vt[3]}, 2, v0
    v_mul_u32_u24 v{vt[3]}, 2752, v{vt[3]}
    v_and_b32 v{vt[4]}, 3, v0
    v_lshl_add_u32 v{vt[3]}, v{vt[4]}, 4, v{vt[3]}
    s_lshl_b32 s{sT0}, s{sT0f}, 6
    s_mul_i32 s{sT1}, s{sHalf}, {16*44032}
    s_add_u32 s{sT0}, s{sT0}, s{sT1}
    v_add_u32 v{vW1o}, s{sT0}, v{vt[3]}
    s_lshl_b32 s{sRot}, s{sW}, 2
    s_add_u32 s{sRot}, s{sRot}, s{sMm}
    s_mul_i32 s{sW1m}, s{sW}, {4*3072}
    """)
    stamp(a, 1)
    def bound_check():
        n = nrm
        P = []
        P.append(lambda: f"s_lshl_b32 s{sT0}, s{sW}, 10\nv_add_u32 v{vt[0]}, s{sT0}, v{vQl}\nv_mov_b32 v{n+2}, 0\n{wait_for('KM')}\nds_write_b128 v{vt[0]}, {v(Qw,4)}")
        P.append("\n".join(f"v_dot2c_f32_bf16 v{n+2}, v{Qw+i}, v{Qw+i}" for i in range(4)) + f"\nv_max_f32 v{n}, v{n}, v{n+1}\ns_nop 0")
        P.append(f"v_max_f32_dpp v{n}, v{n}, v{n} row_ror:8 row_mask:0xf bank_mask:0xf\nv_mov_b32 v{n+3}, v{n+2}")
        P.append(f"v_max_f32_dpp v{n}, v{n}, v{n} row_ror:4 row_mask:0xf bank_mask:0xf\nv_permlane32_swap_b32 v{n+2}, v{n+3}")
        P.append(f"v_max_f32_dpp v{n}, v{n}, v{n} row_ror:2 row_mask:0xf bank_mask:0xf\nv_add_f32 v{n+2}, v{n+2}, v{n+3}")
        P.append(f"v_max_f32_dpp v{n}, v{n}, v{n} row_ror:1 row_mask:0xf bank_mask:0xf\nv_mov_b32 v{n+1}, v{n}\ns_nop 0")
        P.append(f"v_permlane32_swap_b32 v{n}, v{n+1}\nv_max_f32 v{n}, v{n}, v{n+1}\nv_mov_b32 v{n+1}, v{n}\ns_nop 0")
        P.append(f"v_permlane16_swap_b32 v{n}, v{n+1}\nv_max_f32 v{n}, v{n}, v{n+1}\nv_mul_f32 v{n}, v{n}, v{n+2}\nv_mov_b32 v{n+1}, {hex(f32bits(THR2))}\n"
                 f"v_cmp_nle_f32 vcc, v{n}, v{n+1}\ns_lshl_b32 s{sT0}, s{sW}, 2\ns_add_u32 s{sT0}, s{sT0}, {MISC}")
        P.append(f"s_cmp_lg_u64 vcc, 0\ns_cselect_b32 s{sT1}, 1, 0\nv_mov_b32 v{vt[0]}, s{sT0}\nv_mov_b32 v{vt[1]}, s{sT1}\nds_write_b32 v{vt[0]}, v{vt[1]}\nv_mov_b32 v{vt[0]}, {MISC}")
        return P
    flag_reads = f"ds_read_b128 {v(nrm,4)}, v{vt[0]}\nds_read_b128 {v(nrm+4,4)}, v{vt[0]} offset:16"
    flag_test = (f"s_waitcnt lgkmcnt(0)\nv_or3_b32 v{nrm}, v{nrm}, v{nrm+1}, v{nrm+2}\nv_or3_b32 v{nrm+3}, v{nrm+3}, v{nrm+4}, v{nrm+5}\n"
                 f"v_or3_b32 v{nrm}, v{nrm}, v{nrm+6}, v{nrm+7}\nv_or_b32 v{nrm}, v{nrm}, v{nrm+3}\ns_nop 0\n"
                 f"v_readfirstlane_b32 s{sT0}, v{nrm}\ns_cmp_lg_u32 s{sT0}, 0\ns_cbranch_scc1 K2_SLOW")

    def smf(tau):
        t, j = divmod(tau, 8)
        return f"v_mfma_f32_32x32x16_bf16 {v(S[tau&1],16)}, {v(Kf+4*j,4)}, {v(Q,4)}, 0"
    def pv(tau, h):
        t, j = divmod(tau, 8)
        return f"v_smfmac_f32_32x32x32_bf16 {v(O[t&1],16)}, {v(Vf+8*j+4*h,4)}, {v(S[tau&1]+8*h,8)}, v{vidx}"
    def drain(t):
        o = O[t & 1]
        return [f"ds_write_b128 v{vOa}, {v(o,4)}", f"ds_write_b128 v{vOa}, {v(o+4,4)} offset:1024", f"ds_write_b32 v{vLa}, v{o+8}"]
    retries = []
    def check(areg, off, val, lab):
        retries.append(f"K2_R{lab}:\nds_read_b32 v{vPv}, v{areg} offset:{off}\ns_waitcnt lgkmcnt(0)\nv_cmp_gt_u32 vcc, {val}, v{vPv}\n"
                       f"s_cbranch_vccnz K2_R{lab}\ns_branch K2_C{lab}")
        return f"s_waitcnt lgkmcnt(0)\nv_cmp_gt_u32 vcc, {val}, v{vPv}\ns_cbranch_vccnz K2_R{lab}\nK2_C{lab}:\n"
    def norm_reads():
        L = f"ds_read_b128 {v(nrm,4)}, v{vNl}\nds_read_b128 {v(nrm+4,4)}, v{vNl} offset:16\n"
        for w in range(8):
            L += f"ds_read_b64 {v(T+2*w,2)}, v{vNr} offset:{w*2048}\n"
        return L
    def norm_comp():
        L = f"s_waitcnt lgkmcnt(0)\n"
        L += f"v_pk_add_f32 {v(nrm,2)}, {v(nrm,2)}, {v(nrm+2,2)}\n"
        L += f"v_pk_add_f32 {v(nrm+4,2)}, {v(nrm+4,2)}, {v(nrm+6,2)}\n"
        for w in range(4):
            L += f"v_pk_add_f32 {v(T+4*w,2)}, {v(T+4*w,2)}, {v(T+4*w+2,2)}\n"
        L += f"v_pk_add_f32 {v(nrm,2)}, {v(nrm,2)}, {v(nrm+4,2)}\n"
        L += f"v_pk_add_f32 {v(T,2)}, {v(T,2)}, {v(T+4,2)}\n"
        L += f"v_add_f32 v{nrm}, v{nrm}, v{nrm+1}\n"
        L += f"v_pk_add_f32 {v(T+8,2)}, {v(T+8,2)}, {v(T+12,2)}\n"
        L += f"v_rcp_f32 v{nrm}, v{nrm}\n"
        L += f"v_pk_add_f32 {v(T,2)}, {v(T,2)}, {v(T+8,2)}\n"
        L += f"v_pk_mul_f32 {v(T,2)}, {v(T,2)}, {v(nrm,2)} op_sel_hi:[1,0]\n"
        L += f"v_cvt_pk_bf16_f32 v{T}, v{T}, v{T+1}\n"
        L += f"ds_write_b32 v{vNw}, v{T}\n"
        return L
    def only_half(t, lab, body):
        return f"s_cmp_lg_u32 s{sHalf}, {t&1}\ns_cbranch_scc1 K2_N{lab}\n{body}K2_N{lab}:\n"
    def of_reads():
        return "\n".join(f"ds_read_b128 {v(OFr+4*ks,4)}, v{vOFa} offset:{ks*512}" for ks in range(2))
    def wo_mfma(ks, ct, src, first=False):
        return f"v_mfma_f32_16x16x32_bf16 {v(hacc+4*ct,4)}, {v(src+4*ct,4)}, {v(OFr+4*ks,4)}, {'0' if first else v(hacc+4*ct,4)}"
    W7 = [Kf, Kf + 16]
    W2R = Vf + 8
    assert S[0] == Vf + 64 and S[1] == S[0] + 16 and Q == zero + 4 and nrm == Q + 4
    X = Vf

    sCB2, sW2o, sB3 = sV2, sV2x, 48
    def ldW2(i):
        if "NOW2A" in EXP and i < 8: return "s_nop 7\ns_nop 1\n"
        if "NOW2B" in EXP and i >= 8: return ""
        L = (f"s_add_u32 s{sSo}, s{sCB2}, {i}\ns_sub_u32 s{sT1}, s{sSo}, 11\ns_cselect_b32 s{sSo}, s{sSo}, s{sT1}\n"
             f"s_lshl_b32 s{sSo}, s{sSo}, 11\ns_add_u32 s{sSo}, s{sSo}, s{sW2o}\n")
        for ct in range(2):
            L += f"buffer_load_dwordx4 {v(W2R+8*i+4*ct,4)}, v{vQa}, {s(SH,4)}, s{sSo} offen offset:{ct*1024}\n"
        return L

    def mainloop(slow):
        tag = "S" if slow else "F"
        order[:] = [] if slow else list(pro_order)
        if slow:
            a(f"ds_read_b32 v{vM[0]}, v{vt[0]}")
            a("s_waitcnt lgkmcnt(0)")
        else:
            a(wait_for("K0"))
            stamp(a, 2)
        a(smf(0))
        a("s_nop 7")
        a("s_nop 3")
        for tau in range(64):
            t, j = divmod(tau, 8)
            slots = [[] for _ in range(17)]
            p1 = 11
            if PRIO == "1" and (j & 1) == 0:
                slots[0].append(f"s_setprio {3 - j // 2}")
            if PRIO == "2":
                slots[0].append(f"s_setprio {3 - (j & 3)}")
            if PRIO == "3":
                slots[0].append(f"s_setprio {3 - 2*(j & 1)}")
                slots[8].append(f"s_setprio {2 - 2*(j & 1)}")
            if PRIO == "4":
                slots[0].append(f"s_setprio {3 - ((j + 2) & 3)}")
            if PRIO == "5":
                slots[0].append(f"s_setprio {3 - ((j + 1) & 3)}")
            if PRIO == "6":
                slots[0].append(f"s_setprio {3 - ((j + 3) & 3)}")
            if PRIO == "7":
                for q in range(4):
                    slots[4*q].append(f"s_setprio {3 - q}")
            if tau > 0:
                slots[3].append(pv(tau - 1, 1))
            if t == 0 and not slow:
                if j + PD < 8:
                    slots[0].append(lambda j=j: ldV(2*(j + PD)))
                    slots[4].append(lambda j=j: ldV(2*(j + PD) + 1))
                if j + PD + 2 < 8:
                    slots[8].append(lambda j=j: ldK(j + PD + 2))
                if j == 2:
                    for i, x in enumerate(bound_check()):
                        slots[3 + i].append(x)
                if j == BJ:
                    slots[0] += ["s_waitcnt lgkmcnt(0)", "s_barrier", flag_reads]
                    slots[5].append(flag_test)
                if j == 6:
                    slots[13].append(f"s_cmp_lt_u32 s{sW}, 6\ns_cbranch_scc1 K2_PW\nbuffer_load_dword v{vt[3]}, v{vt[5]}, {s(SWO,4)}, s{sMaskLo} offen\nK2_PW:")
            nx = tau + 1
            if nx < 64:
                if t == 0 and nx < 8 and not slow:
                    slots[6].append(lambda nx=nx: wait_for(f"K{nx}"))
                if nx % 8 == 0:
                    slots[6].append("s_waitcnt lgkmcnt(0)")
                slots[6].append(smf(nx))
                if nx % 8 == 7 and t < 7:
                    slots[10].append(f"ds_read_b128 {v(Q,4)}, v{vQl} offset:{(t+1)*1024}")
                    if slow:
                        slots[10].append(f"ds_read_b32 v{vM[(t+1)&1]}, v{vt[0]} offset:{(t+1)*128}")
            if 10 <= tau < 22 and tau % 2 == 0:
                slots[13].append(f"s_cmp_lg_u32 s{sW}, {(tau-10)//2}\ns_cbranch_scc1 K2_PA{tag}{tau}\nbuffer_load_dword v{vt[3]}, v{vt[5]}, {s(SP,4)}, s{sMaskLo+1} offen\nK2_PA{tag}{tau}:")
            if 22 <= tau < 34 and tau % 2 == 0:
                slots[13].append(f"s_cmp_lg_u32 s{sW}, {(tau-22)//2}\ns_cbranch_scc1 K2_PB{tag}{tau}\nbuffer_load_dword v{vt[4]}, v{vt[5]}, {s(SH,4)}, s{sV2x} offen\nK2_PB{tag}{tau}:")
            if 36 <= tau < 60 and tau % 2 == 0:
                n = (tau - 36) // 2
                kb, ft = divmod(n, 3)
                slots[4].append(lambda kb=kb, ft=ft: (order.append("W1"), f"s_add_u32 s{sT0}, s{sRot}, {kb}\ns_and_b32 s{sT0}, s{sT0}, 15\ns_mul_i32 s{sT0}, s{sT0}, 44032\ns_add_u32 m0, s{sW1m}, {kb*3072 + ft*1024 - ft*64}\ns_nop 0\n"
                    f"buffer_load_dwordx4 v{vW1o}, {s(SP,4)}, s{sT0} offen offset:{ft*64} lds")[1])
            if t >= 1:
                u = t - 1
                if j == 1:
                    slots[0].append(f"v_mov_b32 v{vCnt}, {t}")
                    for i, x in enumerate(drain(u)):
                        slots[1 + 2*i].append(x)
                    slots[7].append(f"ds_write_b32 v{vPw}, v{vCnt}")
                if j == 2:
                    slots[13].append("s_waitcnt lgkmcnt(0)")
                if j == 3 and t == 2 and DIAG:
                    slots[0].append(stamp_str(12))
                if j == 3:
                    slots[0].append(f"ds_read_b32 v{vPv}, v{vP1r}")
                    slots[7].append(only_half(u, f"A{tag}{t}", check(vP1r, 0, t, f"A{tag}{t}") + norm_reads()))
                    slots[9] += [f"v_mfma_f32_32x32x16_bf16 {v(O[u&1],16)}, {v(zero,4)}, {v(zero,4)}, 0"]
                    p1 = 12
                if j == 4:
                    slots[3].append(only_half(u, f"B{tag}{t}", norm_comp() + f"ds_write_b32 v{vPw}, v{vCnt} offset:32\n"))
                if 1 <= j <= 4:
                    slots[13].append(lambda u=u, ct=j-1: ldW(u, 0, ct, woA))
                if 4 <= j <= 7:
                    slots[8 if j != 6 else 1].append(lambda u=u, ct=j-4: ldW(u, 1, ct, T))
                if j == 6:
                    slots[1].append(f"ds_read_b32 v{vPv}, v{vP2r} offset:{16*(u&1)}")
                    slots[8].append(check(vP2r, 16*(u&1), t, f"D{tag}{t}") + of_reads())
                    slots[15] += ["s_waitcnt lgkmcnt(0)", lambda u=u: wait_for(f"W{u}_0_1"), wo_mfma(0, 0, woA, u == 0)]
                if j == 7:
                    slots[9].append(wo_mfma(0, 1, woA, u == 0)); slots[15] += [lambda u=u: wait_for(f"W{u}_0_3"), wo_mfma(0, 2, woA, u == 0)]
            if t >= 2:
                u = t - 2
                if j == 0:
                    slots[9].append(wo_mfma(0, 3, woA, u == 0))
                    slots[15] += [lambda u=u: wait_for(f"W{u}_1_1"), wo_mfma(1, 0, T)]
                if j == 1:
                    slots[9].append(wo_mfma(1, 1, T)); slots[15] += [lambda u=u: wait_for(f"W{u}_1_2"), wo_mfma(1, 2, T)]
                if j == 2:
                    slots[9] += [lambda u=u: wait_for(f"W{u}_1_3"), wo_mfma(1, 3, T)]
            if tau == 11:
                slots[4].append(f"s_cmp_lg_u32 s{sW}, 7\ns_cbranch_scc1 K2_B1{tag}\ns_add_u32 s{SQ}, s14, 0\ns_addc_u32 s{SQ+1}, s15, 0\ns_movk_i32 s{SQ+2}, 2752\n"
                    f"s_lshl_b32 s{sT0}, s{sT0f}, 6\nv_lshlrev_b32 v{vt[3]}, 2, v0\ns_mov_b32 m0, {B1L}\ns_nop 0\nbuffer_load_dword v{vt[3]}, {s(SQ,4)}, s{sT0} offen lds\nK2_B1{tag}:")
            if tau == 9:
                slots[4].append(lambda: (order.append("X"), f"s_lshl_b32 s{sT0}, s{sRB}, 13\ns_lshl_b32 s{sT1}, s{sW}, 10\ns_add_u32 s{sT0}, s{sT0}, s{sT1}\n"
                    f"s_mul_i32 s{sT1}, s{sW}, 1040\ns_add_u32 m0, s{sT1}, {XL}\ns_nop 0\nbuffer_load_dwordx4 v{vQa}, {s(SX,4)}, s{sT0} offen lds")[1])
            if tau == 58:
                slots[1].append(f"s_and_b32 s{sCB2}, s{sMm}, 7\ns_lshl_b32 s{sW2o}, s{sCB2}, 3\ns_add_u32 s{sW2o}, s{sW2o}, s{sW}\ns_mul_i32 s{sW2o}, s{sW2o}, {11*2048}")
            if 59 <= tau <= 62:
                slots[4].append(lambda ct=tau-59: ldW(7, 0, ct, W7[0]))
            if 60 <= tau <= 63:
                slots[16].append(lambda ct=tau-60: ldW(7, 1, ct, W7[1]))
            if t == 0 and not slow:
                slots[p1].append(lambda j=j: wait_for(f"V{2*j+1}"))
            slots[p1].append(pv(tau, 0))
            if not slow and sum(len(x) for x in slots[7:]) < 2:
                slots[14].append("s_nop 0")
            for i in range(17):
                for x in slots[i]:
                    x = x() if callable(x) else x
                    if "NOWL" in EXP and f"{s(SWO,4)}" in x: continue
                    if "NOPF" in EXP and ("K2_PA" in x or "K2_PB" in x): continue
                    if "NOW1" in EXP and " lds" in x: continue
                    if "NOW2" in EXP and f"{s(SH,4)}" in x: continue
                    if "NODRAIN" in EXP and "ds_write" in x: continue
                    if "NOZERO" in EXP and f"{v(zero,4)}" in x: continue
                    if "NOWO" in EXP and "16x16x32" in x: continue
                    if "NONORM" in EXP and "K2_N" in x: continue
                    if "NOCHK" in EXP and "K2_R" in x and "K2_N" not in x: x = of_reads()
                    a(x)
                if i < 16:
                    r = S[tau & 1] + i
                    if slow:
                        a(f"v_sub_f32 v{r}, v{r}, v{vM[t&1]}")
                    a(f"v_exp_f32 v{r}, v{r}")
        a("s_nop 1")
        a(pv(63, 1))
    mainloop(False)
    a("K2_TAIL:")
    stamp(a, 3)
    a("s_setprio 0")
    nvm = len(order) - 1 - order.index('W6_1_3')
    a(ldW2(0) + ldW2(1))
    a(wo_mfma(0, 3, woA))
    for x in drain(7):
        a(x)
    a(f"s_waitcnt vmcnt({nvm + 4})")
    for ct in range(4):
        a(wo_mfma(1, ct, T))
    a(f"""
    v_and_b32 v{vt[0]}, 7, v0
    v_lshrrev_b32 v{vt[1]}, 4, v0
    v_bfe_u32 v{vt[3]}, v0, 3, 1
    v_lshlrev_b32 v{vVo}, 10, v{vt[0]}
    v_lshl_add_u32 v{vVo}, v{vt[3]}, 6, v{vVo}
    s_lshl_b32 s{sV1}, s{sRB}, 13
    s_lshl_b32 s{sT1}, s{sW}, 7
    s_add_u32 s{sV1}, s{sV1}, s{sT1}
    s_add_u32 s{sT1}, s{sT1}, {XL}
    v_lshl_add_u32 v{vt[2]}, v{vt[0]}, 4, v{vVo}
    v_lshl_add_u32 v{vt[2]}, v{vt[1]}, 3, v{vt[2]}
    v_add_u32 v{vt[2]}, s{sT1}, v{vt[2]}
    v_bfe_u32 v{vt[1]}, v0, 4, 1
    v_lshl_add_u32 v{vVo}, v{vt[1]}, 5, v{vVo}
    v_lshrrev_b32 v{vt[4]}, 5, v0
    v_lshl_add_u32 v{vVo}, v{vt[4]}, 4, v{vVo}
    s_waitcnt lgkmcnt(0)
    s_barrier
    """)
    for c in range(2):
        a(f"ds_read_b64 {v(X+2*c,2)}, v{vt[2]} offset:{32*c}")
    a(only_half(7, "T", norm_reads() + norm_comp()))
    a(ldW2(2) + ldW2(3))
    H = O[0]; XU = O[0] + 8; PK = O[1]; ST = woA; U = T
    srd(a, SQ, 16, 17, WS_H, 0x200000)
    a(f"""
    s_mov_b32 s{sB3}, 0xff00ff00
    s_mov_b32 s{sB3+1}, 0xff00ff00
    s_waitcnt lgkmcnt(0)
    """)
    for i in range(4):
        a(f"v_lshlrev_b32 v{XU+2*i}, 16, v{X+i}")
        a(f"v_and_b32 v{XU+2*i+1}, 0xffff0000, v{X+i}")
    a("s_barrier")
    a(of_reads())
    a(f"s_waitcnt vmcnt(8) lgkmcnt(1)")
    for ct in range(4):
        a(wo_mfma(0, ct, W7[0]))
    a("s_waitcnt lgkmcnt(0)")
    for ct in (0, 2, 1, 3):
        a(wo_mfma(1, ct, W7[1]))
    stamp(a, 4)
    a(ldW2(4) + ldW2(5) if W2T >= 6 else "s_nop 7")
    a.c("h = x + attn ; lanes with bit 3 set take column tiles 2,3")
    for i in range(8):
        a(f"v_cndmask_b32 v{H+i}, v{hacc+i}, v{hacc+8+i}, {s(sB3,2)}")
    for i in range(4):
        a(f"v_pk_add_f32 {v(H+2*i,2)}, {v(H+2*i,2)}, {v(XU+2*i,2)}")
    a(f"""
    v_pk_mul_f32 {v(U+4,2)}, {v(H,2)}, {v(H,2)}
    v_pk_add_f32 {v(U,2)}, {v(H,2)}, {v(H+2,2)}
    v_pk_mul_f32 {v(U+6,2)}, {v(H+2,2)}, {v(H+2,2)}
    v_pk_add_f32 {v(U+2,2)}, {v(H+4,2)}, {v(H+6,2)}
    v_pk_fma_f32 {v(U+4,2)}, {v(H+4,2)}, {v(H+4,2)}, {v(U+4,2)}
    v_pk_fma_f32 {v(U+6,2)}, {v(H+6,2)}, {v(H+6,2)}, {v(U+6,2)}
    v_pk_add_f32 {v(U,2)}, {v(U,2)}, {v(U+2,2)}
    v_pk_add_f32 {v(U+4,2)}, {v(U+4,2)}, {v(U+6,2)}
    v_add_f32 v{U}, v{U}, v{U+1}
    v_add_f32 v{U+1}, v{U+4}, v{U+5}
    v_mov_b32 v{U+2}, v{U}
    v_mov_b32 v{U+3}, v{U+1}
    v_cvt_pk_bf16_f32 v{PK}, v{H}, v{H+1}
    v_permlane32_swap_b32 v{U}, v{U+2}
    v_permlane32_swap_b32 v{U+1}, v{U+3}
    v_pk_add_f32 {v(U,2)}, {v(U,2)}, {v(U+2,2)}
    v_mov_b32 v{U+2}, v{U}
    v_mov_b32 v{U+3}, v{U+1}
    v_cvt_pk_bf16_f32 v{PK+1}, v{H+2}, v{H+3}
    v_permlane16_swap_b32 v{U}, v{U+2}
    v_permlane16_swap_b32 v{U+1}, v{U+3}
    v_pk_add_f32 {v(U,2)}, {v(U,2)}, {v(U+2,2)}
    v_cvt_pk_bf16_f32 v{PK+2}, v{H+4}, v{H+5}
    v_cvt_pk_bf16_f32 v{PK+3}, v{H+6}, v{H+7}
    v_add_f32_dpp v{U}, v{U}, v{U} row_ror:8 row_mask:0xf bank_mask:0xf
    v_add_f32_dpp v{U+1}, v{U+1}, v{U+1} row_ror:8 row_mask:0xf bank_mask:0xf
    """)
    a(f"""
    s_lshl_b32 s{sT1}, s{sW}, 3
    s_add_u32 s{sT1}, s{sT1}, {MISC + 128}
    v_lshlrev_b32 v{vt[5]}, 6, v{vt[0]}
    v_add_u32 v{vt[4]}, s{sT1}, v{vt[5]}
    v_add_u32 v{vt[5]}, {MISC + 128}, v{vt[5]}
    ds_write_b64 v{vt[4]}, {v(U,2)}
    """)
    if W2T >= 8:
        a(ldW2(6) + ldW2(7))
    a("s_waitcnt lgkmcnt(0)")
    a("s_barrier")
    for i in range(4):
        a(f"ds_read_b128 {v(ST+4*i,4)}, v{vt[5]} offset:{16*i}")
    a(f"""
    v_permlane16_swap_b32 v{PK}, v{PK+2}
    v_permlane16_swap_b32 v{PK+1}, v{PK+3}
    buffer_store_dwordx4 {v(PK,4)}, v{vVo}, {s(SQ,4)}, s{sV1} offen sc1
    """)
    a(f"""
    s_lshr_b32 s{sT0}, s{sRB}, 2
    s_lshl_b32 s{sT0}, s{sT0}, 15
    s_lshl_b32 s{sT1}, s{sW}, 12
    s_add_u32 s{sT0}, s{sT0}, s{sT1}
    s_and_b32 s{sT1}, s{sRB}, 3
    s_lshl_b32 s{sT1}, s{sT1}, 7
    s_add_u32 s{sT0}, s{sT0}, s{sT1}
    v_lshlrev_b32 v{vt[4]}, 4, v{vt[0]}
    v_lshl_add_u32 v{vt[4]}, v{vt[3]}, 11, v{vt[4]}
    v_lshrrev_b32 v{vt[0]}, 5, v0
    v_lshl_add_u32 v{vt[4]}, v{vt[0]}, 9, v{vt[4]}
    v_lshl_add_u32 v{vt[4]}, v{vt[1]}, 10, v{vt[4]}
    s_waitcnt lgkmcnt(0)
    v_pk_add_f32 {v(U+2,2)}, {v(ST,2)}, {v(ST+2,2)}
    v_pk_add_f32 {v(U+4,2)}, {v(ST+4,2)}, {v(ST+6,2)}
    v_pk_add_f32 {v(U+6,2)}, {v(ST+8,2)}, {v(ST+10,2)}
    v_pk_add_f32 {v(U+8,2)}, {v(ST+12,2)}, {v(ST+14,2)}
    v_pk_add_f32 {v(U+2,2)}, {v(U+2,2)}, {v(U+4,2)}
    v_pk_add_f32 {v(U+6,2)}, {v(U+6,2)}, {v(U+8,2)}
    v_pk_add_f32 {v(U+2,2)}, {v(U+2,2)}, {v(U+6,2)}
    v_mul_f32 v{U+2}, {hex(f32bits(1.0/512))}, v{U+2}
    v_mul_f32 v{U+3}, {hex(f32bits(1.0/512))}, v{U+3}
    v_fma_f32 v{U+3}, -v{U+2}, v{U+2}, v{U+3}
    v_max_f32 v{U+3}, 0, v{U+3}
    v_add_f32 v{U+6}, {hex(f32bits(1e-5))}, v{U+3}
    v_rsq_f32 v{U+6}, v{U+6}
    """)
    for i in range(4):
        a(f"v_pk_add_f32 {v(H+2*i,2)}, {v(H+2*i,2)}, {v(U+2,2)} op_sel_hi:[1,0] neg_lo:[0,1] neg_hi:[0,1]")
    for i in range(4):
        a(f"v_pk_mul_f32 {v(H+2*i,2)}, {v(H+2*i,2)}, {v(U+6,2)} op_sel_hi:[1,0]")
    for i in range(4):
        a(f"v_cvt_pk_bf16_f32 v{PK+4+i}, v{H+2*i}, v{H+2*i+1}")
    a(f"""
    s_nop 1
    v_permlane16_swap_b32 v{PK+4}, v{PK+6}
    v_permlane16_swap_b32 v{PK+5}, v{PK+7}
    buffer_store_dwordx4 {v(PK+4,4)}, v{vt[4]}, {s(SHN,4)}, s{sT0} offen sc1
    """)
    if DUAL & 1:
        a.c("same bytes once more with a plain store: keeps the lines in the local L2 (speed only)")
        a(f"buffer_store_dwordx4 {v(PK+4,4)}, v{vt[4]}, {s(SHN,4)}, s{sT0} offen")
    SF, SG = SKV, SWO
    srd(a, SF, 16, 17, WS_FLG, 8192)
    srd(a, SG, 16, 17, WS_G, G_BYTES)
    def signal(off, young):
        a(f"""
        s_waitcnt vmcnt({young})
        s_barrier
        {stamp_str(1 if off == 0 else 2)}
        s_cmp_lg_u32 s{sW}, 0
        s_cbranch_scc1 K2_NOSIG{off}
        s_lshl_b32 s{sT0}, s{sG}, 8
        s_lshl_b32 s{sT1}, s{sMm}, 2
        s_add_u32 s{sT1}, s{sT1}, s{sT0}
        v_mov_b32 v{vt[0]}, 0
        v_mov_b32 v{vt[1]}, 1
        s_mov_b64 exec, 1
        s_add_u32 s{sT0}, s{sT1}, 4096
        buffer_store_dword v{vt[1]}, v{vt[0]}, {s(SF,4)}, s{sT0} offen offset:{off}
        buffer_store_dword v{vt[1]}, v{vt[0]}, {s(SF,4)}, s{sT1} offen offset:{off} sc1
        s_mov_b64 exec, -1
        K2_NOSIG{off}:
        """)
    def poll_start(off):
        pass
    def poll(off, mask):
        a(f"""
        s_cmp_lg_u32 s{sW}, 0
        s_cbranch_scc1 K2_NOPOLL{off}
        s_lshl_b32 s{sT0}, s{sG}, 8
        s_add_u32 s{sSo}, s{sT0}, 4096
        v_and_b32 v{vt[0]}, 15, v0
        v_lshlrev_b32 v{vt[0]}, 2, v{vt[0]}
        s_mov_b32 s{sT2}, 0x400000
        s_mov_b32 s{sB3}, 0
        K2_POLL{off}:
        s_sub_u32 s{sT2}, s{sT2}, 1
        s_cbranch_scc1 K2_NOPOLL{off}
        s_and_b32 s{sT1}, s{sT2}, {FASTN - 1}
        s_cselect_b32 s{sT1}, s{sSo}, s{sT0}
        buffer_load_dword v{vt[1]}, v{vt[0]}, {s(SF,4)}, s{sT1} offen offset:{off} sc1
        s_waitcnt vmcnt(0)
        v_cmp_ne_u32 vcc, 0, v{vt[1]}
        s_or_b32 s{sB3}, s{sB3}, vcc_lo
        s_and_b32 s{sT1}, s{sB3}, {hex(mask)}
        s_cmp_lg_u32 s{sT1}, {hex(mask)}
        s_cbranch_scc1 K2_POLL{off}
        K2_NOPOLL{off}:
        s_barrier
        """)
    stamp(a, 5)
    if RELOAD:
        a.c("touch the lines just written so that they sit in the local L2 (speed only)")
        a(f"""
        buffer_load_dword v{T+12}, v{vt[4]}, {s(SHN,4)}, s{sT0} offen sc1
        buffer_load_dword v{T+13}, v{vVo}, {s(SQ,4)}, s{sV1} offen sc1
        """)
    signal(0, 2 if RELOAD else 0)
    a(f"""
    s_cmp_eq_u32 s{sMm}, 15
    s_cbranch_scc1 K2_SKIP1
    """)
    poll_start(0)
    a(f"""
    v_lshrrev_b32 v{vt[2]}, 5, v0
    v_lshlrev_b32 v{vt[2]}, 3, v{vt[2]}
    v_add_u32 v{vt[2]}, {B1L}, v{vt[2]}
    s_cmp_eq_u32 s{sHalf}, 0
    s_cselect_b32 s{sT2}, -1, 0
    s_and_b32 s{sSo}, s{sT2}, 0xffff0000
    """)
    BI = Kf
    acc1 = [O[0], O[1], hacc]
    for ft in range(3):
        for q in range(4):
            a(f"ds_read_b64 {v(BI+8*ft+2*q,2)}, v{vt[2]} offset:{ft*64+q*16}")
    a("s_waitcnt lgkmcnt(0)")
    for ft in range(3):
        for i in range(8):
            a(f"v_and_b32 v{acc1[ft]+2*i+1}, s{sSo}, v{BI+8*ft+i}")
            a(f"v_and_b32 v{BI+8*ft+i}, s{sT2}, v{BI+8*ft+i}")
            a(f"v_lshlrev_b32 v{acc1[ft]+2*i}, 16, v{BI+8*ft+i}")
    Bf = [Kf + 4*i for i in range(8)] + [woA + 4*i for i in range(4)] + [T + 4*i for i in range(4)]
    Af = [Vf, Vf + 4, OFr, OFr + 4, nrm, nrm + 4, Q, zero]
    vWa = vOa; vEx = vLa; vEr = vNr
    sRT, sKH = sV1, sHalf
    a(f"""
    s_and_b32 s{sRT}, s{sW}, 3
    s_lshl_b32 s{sT0}, s{sG}, 2
    s_add_u32 s{sRT}, s{sRT}, s{sT0}
    v_lshrrev_b32 v{vt[2]}, 5, v0
    v_lshlrev_b32 v{vt[2]}, 9, v{vt[2]}
    v_bfe_u32 v{vt[3]}, v0, 2, 2
    v_lshl_add_u32 v{vt[2]}, v{vt[3]}, 6, v{vt[2]}
    v_bfe_u32 v{vt[3]}, v0, 4, 1
    v_lshl_add_u32 v{vt[2]}, v{vt[3]}, 5, v{vt[2]}
    v_and_b32 v{vt[3]}, 3, v0
    v_lshl_add_u32 v{vt[2]}, v{vt[3]}, 3, v{vt[2]}
    s_mul_i32 s{sT0}, s{sKH}, 49152
    v_add_u32 v{vWa}, s{sT0}, v{vt[2]}
    s_mul_i32 s{sT0}, s{sW}, 6144
    s_add_u32 s{sT0}, s{sT0}, {EXB}
    v_add_u32 v{vEx}, s{sT0}, v{vQa}
    s_xor_b32 s{sT0}, s{sW}, 4
    s_mul_i32 s{sT0}, s{sT0}, 6144
    s_add_u32 s{sT0}, s{sT0}, {EXB}
    v_add_u32 v{vEr}, s{sT0}, v{vQa}
    s_lshl_b32 s{sWm}, s{sRT}, 15
    s_lshl_b32 s{sT0}, s{sKH}, 14
    s_add_u32 s{sWm}, s{sWm}, s{sT0}
    """)
    def areads(f):
        ks, ft = divmod(f, 3)
        off = ks * 3072 + ft * 1024
        a(f"ds_read_b64_tr_b16 {v(Af[f%8],2)}, v{vWa} offset:{off}")
        a(f"ds_read_b64_tr_b16 {v(Af[f%8]+2,2)}, v{vWa} offset:{off+256}")
    for f in range(5):
        areads(f)
    if W2L == "thin":
        a(f"""
        s_cmp_eq_u32 s{sW}, 0
        s_cbranch_scc1 K2_NW2
        """)
        for i in range(8, 11):
            a(ldW2(i))
            if i < 10:
                a("s_waitcnt vmcnt(0)")
        a("K2_NW2:")
    poll(0, 0xffff)
    stamp(a, 6)
    for i in range(16):
        a(f"""
        s_add_u32 s{sSo}, s{sMm}, {i}
        s_and_b32 s{sSo}, s{sSo}, 15
        s_lshl_b32 s{sSo}, s{sSo}, 10
        s_add_u32 s{sSo}, s{sSo}, s{sWm}
        buffer_load_dwordx4 {v(Bf[i],4)}, v{vQa}, {s(SHN,4)}, s{sSo} offen {LDF}
        """)
    for f in range(48):
        ks, ft = divmod(f, 3)
        later = min(4, 47 - f)
        w = f"lgkmcnt({2*later})"
        if ft == 0:
            w = f"vmcnt({15 - ks + (2*min(11 - W2T, max(0, ks - (W2T + 2))) if W2L == 'mid' else 0)}) " + w
        a(f"s_waitcnt {w}")
        a(f"v_mfma_f32_32x32x16_bf16 {v(acc1[ft],16)}, {v(Af[f%8],4)}, {v(Bf[ks],4)}, {v(acc1[ft],16)}")
        if f + 5 < 48:
            areads(f + 5)
        if W2L == "mid" and ft == 2 and W2T + 2 <= ks < 13:
            a(ldW2(ks - 2))
    stamp(a, 7)
    if W2L == "thin":
        a(f"""
        s_cmp_lg_u32 s{sW}, 0
        s_cbranch_scc1 K2_NW3
        """)
    if W2L != "mid":
        a(ldW2(8) + ldW2(9) + ldW2(10))
    a("K2_NW3:")
    a(f"""
    s_mul_i32 s{sT0}, s{sRT}, 86
    s_lshl_b32 s{sT1}, s{sT0f}, 1
    s_add_u32 s{sT0}, s{sT0}, s{sT1}
    s_mul_i32 s{sT1}, s{sKH}, 3
    s_add_u32 s{sT0}, s{sT0}, s{sT1}
    s_lshl_b32 s{sT0}, s{sT0}, 10
    s_cmp_eq_u32 s{sMm}, 14
    s_cselect_b32 s{sT1}, 0x1000000, s{sT0}
    s_nop 5
    s_cmp_eq_u32 s{sKH}, 1
    s_cbranch_scc1 K2_EX1
    """)
    lo = [acc1[0], acc1[0] + 8, acc1[1]]
    hi = [acc1[1] + 8, acc1[2], acc1[2] + 8]
    RX = Kf
    def exchange(keep, send, so):
        for q in range(3):
            a(f"ds_write_b128 v{vEx}, {v(send[q],4)} offset:{q*2048}")
            a(f"ds_write_b128 v{vEx}, {v(send[q]+4,4)} offset:{q*2048+1024}")
        a("s_waitcnt lgkmcnt(0)")
        a("s_barrier")
        for q in range(6):
            a(f"ds_read_b128 {v(RX+4*q,4)}, v{vEr} offset:{q*1024}")
        for q in range(3):
            a(f"s_waitcnt lgkmcnt({4-2*q})")
            for i in range(4):
                a(f"v_pk_add_f32 {v(keep[q]+2*i,2)}, {v(keep[q]+2*i,2)}, {v(RX+8*q+2*i,2)}")
            for i in range(8):
                a(f"v_max_f32 v{keep[q]+i}, 0, v{keep[q]+i}")
            for i in range(4):
                a(f"v_pk_mul_f32 {v(keep[q]+2*i,2)}, {v(keep[q]+2*i,2)}, {v(keep[q]+2*i,2)}")
            for i in range(4):
                a(f"v_cvt_pk_bf16_f32 v{woA+4*q+i}, v{keep[q]+2*i}, v{keep[q]+2*i+1}")
            a(f"buffer_store_dwordx4 {v(woA+4*q,4)}, v{vQa}, {s(SG,4)}, s{so[q]} offen offset:{q*1024} sc1")
            if DUAL & 2:
                a(f"buffer_store_dwordx4 {v(woA+4*q,4)}, v{vQa}, {s(SG,4)}, s{so[q]} offen offset:{q*1024}")
    exchange(lo, hi, [sT1, sT1, sT1])
    a("s_branch K2_EXJ")
    a("K2_EX1:")
    exchange(hi, lo, [sT1, sT0, sT0])
    a("K2_EXJ:")
    stamp(a, 8)
    if RELOAD:
        for q in range(3):
            a(f"buffer_load_dword v{hacc+q}, v{vQa}, {s(SG,4)}, s{sT0} offen offset:{q*1024} sc1")
    signal(128, 3 if RELOAD else 0)
    a("s_branch K2_FFN2")
    a("K2_SKIP1:")
    a("".join(ldW2(i) for i in range(W2T, 11)))
    a("K2_FFN2:")
    poll_start(128)
    Gf = [Kf + 4*i for i in range(8)] + [Vf, Vf + 4] + [woA + 4*i for i in range(4)] + [T + 4*i for i in range(4)] + [OFr, OFr + 4]
    Gf += Gf[:2]
    acc2 = [O[0], O[1], hacc, zero]
    vG1 = vOa; vOo = vLa; vRw = vNr; vRr = vNl; vB2 = vNw
    sGo, sOo, sGend = sWm, sV1, sRot
    srd(a, SX, 18, 19, 0, 1024)
    srd(a, SHN, 10, 11, 0, 0x200000)
    a(f"""
    s_lshl_b32 s{sT0}, s{sG}, 1
    s_lshr_b32 s{sT1}, s{sMm}, 3
    s_add_u32 s{sT0}, s{sT0}, s{sT1}
    s_lshl_b32 s{sOo}, s{sT0}, 16
    s_mul_i32 s{sGo}, s{sT0}, {2*86*1024}
    s_add_u32 s{sGend}, s{sGo}, {86*1024}
    s_lshl_b32 s{sT1}, s{sW}, 10
    s_add_u32 s{sGo}, s{sGo}, s{sT1}
    v_add_u32 v{vG1}, {86*1024}, v{vQa}
    v_and_b32 v{vt[2]}, 31, v0
    v_mul_u32_u24 v{vt[2]}, 272, v{vt[2]}
    v_lshrrev_b32 v{vt[3]}, 5, v0
    v_lshl_add_u32 v{vt[2]}, v{vt[3]}, 4, v{vt[2]}
    s_mul_i32 s{sT0}, s{sW}, {RSTR}
    v_add_u32 v{vRw}, s{sT0}, v{vt[2]}
    v_lshrrev_b32 v{vt[2]}, 3, v0
    s_lshl_b32 s{sT0}, s{sW}, 3
    v_add_u32 v{vt[2]}, s{sT0}, v{vt[2]}
    v_and_b32 v{vt[3]}, 7, v0
    v_mul_u32_u24 v{vRr}, 272, v{vt[2]}
    v_lshl_add_u32 v{vRr}, v{vt[3]}, 5, v{vRr}
    s_lshl_b32 s{sT0}, s{sCB2}, 7
    v_lshlrev_b32 v{vB2}, 4, v{vt[3]}
    v_add_u32 v{vB2}, s{sT0}, v{vB2}
    v_lshl_add_u32 v{vOo}, v{vt[2]}, 10, v{vB2}
    """)
    poll(128, 0x7fff)
    stamp(a, 9)
    def ldG(i):
        a(f"""
        s_add_u32 s{sSo}, s{sCB2}, {i}
        s_sub_u32 s{sT1}, s{sSo}, 11
        s_cselect_b32 s{sSo}, s{sSo}, s{sT1}
        s_lshl_b32 s{sSo}, s{sSo}, 13
        s_add_u32 s{sSo}, s{sSo}, s{sGo}
        s_cmp_ge_u32 s{sSo}, s{sGend}
        s_cselect_b32 s{sSo}, 0x1000000, s{sSo}
        """)
        a(f"buffer_load_dwordx4 {v(Gf[2*i],4)}, v{vQa}, {s(SG,4)}, s{sSo} offen {LDF}")
        a(f"buffer_load_dwordx4 {v(Gf[2*i+1],4)}, v{vG1}, {s(SG,4)}, s{sSo} offen {LDF}")
    for i in range(10):
        ldG(i)
    for i in range(11):
        a(f"s_waitcnt vmcnt({18 if i == 0 else 2*(10-i)})")
        for ct in range(2):
            for rt in range(2):
                d = acc2[2*ct + rt]
                a(f"v_mfma_f32_32x32x16_bf16 {v(d,16)}, {v(W2R+8*i+4*ct,4)}, {v(Gf[2*i+rt],4)}, {'0' if i == 0 else v(d,16)}")
        if i == 0:
            ldG(10)
    stamp(a, 10)
    HR = woA; B2 = woA + 4
    a(f"""
    buffer_load_dwordx4 {v(HR,4)}, v{vOo}, {s(SQ,4)}, s{sOo} offen sc1
    buffer_load_dwordx4 {v(B2,4)}, v{vB2}, {s(SX,4)}, 0 offen
    v_add_u32 v{vt[2]}, {3*RSTR}, v{vRr}
    v_add_u32 v{vt[3]}, {6*RSTR}, v{vRr}
    s_nop 7
    """)
    for ct in range(2):
        for rt in range(2):
            for q in range(4):
                d = acc2[2*ct + rt] + 4*q
                a(f"ds_write_b128 v{vRw}, {v(d,4)} offset:{rt*32*272 + (32*ct + 8*q)*4}")
    a("s_waitcnt vmcnt(0)")
    for i in range(4):
        a(f"v_lshlrev_b32 v{T+2*i}, 16, v{HR+i}")
        a(f"v_and_b32 v{T+2*i+1}, 0xffff0000, v{HR+i}")
        a(f"v_lshlrev_b32 v{T+8+2*i}, 16, v{B2+i}")
        a(f"v_and_b32 v{T+8+2*i+1}, 0xffff0000, v{B2+i}")
    for i in range(4):
        a(f"v_pk_add_f32 {v(T+2*i,2)}, {v(T+2*i,2)}, {v(T+8+2*i,2)}")
    a("s_waitcnt lgkmcnt(0)")
    a("s_barrier")
    stamp(a, 11)
    RR = W2R
    for w in range(8):
        base = (vRr, vt[2], vt[3])[w // 3]
        for q in range(2):
            a(f"ds_read_b128 {v(RR+8*w+4*q,4)}, v{base} offset:{(w % 3)*RSTR + 16*q}")
    for w in range(0, 8, 2):
        a(f"s_waitcnt lgkmcnt({12 - 2*w})")
        for i in range(4):
            a(f"v_pk_add_f32 {v(RR+8*w+2*i,2)}, {v(RR+8*w+2*i,2)}, {v(RR+8*w+8+2*i,2)}")
        for i in range(4):
            a(f"v_pk_add_f32 {v(T+2*i,2)}, {v(T+2*i,2)}, {v(RR+8*w+2*i,2)}")
    for i in range(4):
        a(f"v_cvt_pk_bf16_f32 v{T+8+i}, v{T+2*i}, v{T+2*i+1}")
    a(f"buffer_store_dwordx4 {v(T+8,4)}, v{vOo}, {s(SHN,4)}, s{sOo} offen {OUTF}")
    stamp_dump(a, 1, sW)
    a("K2_END:")
    a("s_endpgm")
    a.c("slow path: true row maxima first")
    a("K2_SLOW:")
    MB = MISC + 1024
    a("s_setprio 0")
    for i in range(SLOW_V0, 16):
        a(ldV(i))
    a("s_nop 7\ns_nop 7")
    for o in O:
        a(f"v_mfma_f32_32x32x16_bf16 {v(o,16)}, {v(zero,4)}, {v(zero,4)}, 0")
    a(f"""
    v_and_b32 v{vt[0]}, 31, v0
    v_lshlrev_b32 v{vt[0]}, 2, v{vt[0]}
    v_add_u32 v{vt[0]}, {MB}, v{vt[0]}
    s_lshl_b32 s{sT0}, s{sW}, 7
    v_add_u32 v{vt[1]}, s{sT0}, v{vt[0]}
    v_mov_b32 v{vt[2]}, 0xff800000
    ds_write_b32 v{vt[1]}, v{vt[2]}
    s_waitcnt vmcnt(0) lgkmcnt(0)
    s_barrier
    v_mov_b32 v{vt[1]}, v{vt[0]}
    v_mov_b32 v{vt[3]}, v{vQl}
    s_mov_b32 s{sT0}, 0
    K2_P1:
    ds_read_b128 {v(Q,4)}, v{vt[3]}
    v_mov_b32 v{nrm}, 0xff800000
    s_waitcnt lgkmcnt(0)
    """)
    for j in range(8):
        a(f"v_mfma_f32_32x32x16_bf16 {v(S[0],16)}, {v(Kf+4*j,4)}, {v(Q,4)}, 0")
        a("s_nop 7\ns_nop 3")
        for i in range(8):
            a(f"v_max3_f32 v{nrm}, v{nrm}, v{S[0]+2*i}, v{S[0]+2*i+1}")
        a("s_nop 1")
    a(f"""
    ds_max_f32 v{vt[1]}, v{nrm}
    v_add_u32 v{vt[1]}, 128, v{vt[1]}
    v_add_u32 v{vt[3]}, 1024, v{vt[3]}
    s_add_u32 s{sT0}, s{sT0}, 1
    s_cmp_lt_u32 s{sT0}, 8
    s_cbranch_scc1 K2_P1
    ds_read_b128 {v(Q,4)}, v{vQl}
    s_waitcnt lgkmcnt(0)
    s_barrier
    """)
    mainloop(True)
    a("s_branch K2_TAIL")
    for r in retries:
        lab = r.split(":")[0]
        if any(("s_cbranch_vccnz " + lab) == l.strip() for l in a.lines):
            a(r)
    return name, R.cur, K2_LDS
```
